```python
import torch

def _softmax(x, axis=-1):
    return torch.softmax(x, dim=axis)

def _gelu(x):
    return torch.nn.functional.gelu(x, approximate='tanh')

def _silu(x):
    return torch.nn.functional.silu(x)

def _sigmoid(x):
    return torch.sigmoid(x)

def _layernorm(x, axis=-1, eps=1e-05):
    m = x.mean(dim=axis, keepdim=True)
    v = x.var(dim=axis, keepdim=True, unbiased=False)
    return (x - m) / torch.sqrt(v + eps)

def _scatter_add(tgt, idx, src, axis=0):
    return tgt.clone().index_add_(axis, idx, src)

def _segment_sum(src, seg, n):
    out = torch.zeros((n,) + src.shape[1:], dtype=src.dtype)
    return out.index_add_(0, seg, src)

def _pad(x, pw):
    flat = tuple((v for pair in reversed(pw) for v in pair))
    return torch.nn.functional.pad(x, flat)
kernel_name = 'adaLN_cond__sliding_block_cached__glu_gated_reglu__decode'

def setup_inputs():

    _w = lambda a: (lambda t: t.to(torch.bfloat16) if t.is_floating_point() else t)(torch.as_tensor(a))

    def _A_setup():
        B, Sq, D = (4, 1, 512)
        Hq, Hkv, Sk, Dh = (32, 8, 4096, 128)
        assert Hq % Hkv == 0, (Hq, Hkv)
        return {'x': _w((lambda *s: torch.randn(*s, dtype=torch.bfloat16) * 0.1)(B, Sq, D)), 'k_cache': _w((lambda *s: torch.randn(*s, dtype=torch.bfloat16) * 0.8)(B, Hkv, Sk, Dh)), 'v_cache': _w((lambda *s: torch.randn(*s, dtype=torch.bfloat16) * 3.2)(B, Hkv, Sk, Dh)), 'wq': _w((lambda *s: torch.randn(*s, dtype=torch.bfloat16) * 0.8)(D, Hq * Dh) * D ** (-0.5)), 'wo': _w((lambda *s: torch.randn(*s, dtype=torch.bfloat16) * 3.2)(Hq * Dh, D) * (Hq * Dh) ** (-0.5))}
    _A_in = _A_setup()

    def _B_setup():
        B, S, D, F = (4, 1, 512, 1792)
        return {'x': _w((lambda *s: torch.randn(*s, dtype=torch.bfloat16) * 0.1)(B, S, D)), 'W_gate': _w((lambda *s: torch.randn(*s, dtype=torch.bfloat16) * 3.2)(D, F) * (2.0 / D) ** 0.5), 'W_up': _w((lambda *s: torch.randn(*s, dtype=torch.bfloat16) * 3.2)(D, F) * (2.0 / D) ** 0.5), 'W_down': _w((lambda *s: torch.randn(*s, dtype=torch.bfloat16) * 3.2)(F, D) * (1.0 / F) ** 0.5)}
    _B_in = _B_setup()
    return {'A_x': _A_in['x'], 'A_k_cache': _A_in['k_cache'], 'A_v_cache': _A_in['v_cache'], 'A_wq': _A_in['wq'], 'A_wo': _A_in['wo'], 'B_x': _B_in['x'], 'B_W_gate': _B_in['W_gate'], 'B_W_up': _B_in['W_up'], 'B_W_down': _B_in['W_down'], 'c': _w((lambda *s: torch.randn(*s, dtype=torch.bfloat16) * 0.8)(4, 512) * 8.0), 'w_mod': _w((lambda *s: torch.randn(*s, dtype=torch.bfloat16) * 0.8)(512, 6 * 512) * 512 ** (-0.5) * 8.0)}

def reference(A_x, A_k_cache, A_v_cache, A_wq, A_wo, B_x, B_W_gate, B_W_up, B_W_down, c, w_mod):

    def _A_ref(x, k_cache, v_cache, wq, wo):
        B, Sq, D = x.shape
        Hq, Dh = (32, 128)
        Hkv, Sk = (k_cache.shape[1], k_cache.shape[2])
        W = min(4096, max(256, Sk // 4))
        rep = Hq // Hkv
        q = (lambda x, *d: x.permute(*d))((x @ wq).reshape(B, Sq, Hq, Dh), 0, 2, 1, 3)
        k = (lambda x, n, axis: torch.repeat_interleave(x, n, dim=axis))(k_cache[:, :, Sk - W:, :], rep, axis=1)
        v = (lambda x, n, axis: torch.repeat_interleave(x, n, dim=axis))(v_cache[:, :, Sk - W:, :], rep, axis=1)
        scores = torch.einsum('bhqd,bhkd->bhqk', q, k) * Dh ** (-0.5)
        p = _softmax(scores, axis=-1)
        o = torch.einsum('bhqk,bhkd->bhqd', p, v)
        return (lambda x, *d: x.permute(*d))(o, 0, 2, 1, 3).reshape(B, Sq, Hq * Dh) @ wo

    def _B_ref(x, W_gate, W_up, W_down):
        gate = torch.einsum('bsd,df->bsf', x, W_gate)
        up = torch.einsum('bsd,df->bsf', x, W_up)
        gate = gate * (lambda x, dt: x.to(dt))(gate > 0, gate.dtype)
        h = gate * up
        return torch.einsum('bsf,fd->bsd', h, W_down)
    x = A_x
    mod = (_silu(c) @ w_mod).reshape(c.shape[0], 6, 1, -1)
    sa, ca, ga, sb, cb, gb = (mod[:, 0].clone(), mod[:, 1].clone(), mod[:, 2].clone(), mod[:, 3].clone(), mod[:, 4].clone(), mod[:, 5].clone())
    h = _layernorm(x, axis=-1) * (1 + ca) + sa
    x = x + ga * _A_ref(h, A_k_cache, A_v_cache, A_wq, A_wo)
    h = _layernorm(x, axis=-1) * (1 + cb) + sb
    x = x + gb * _B_ref(h, B_W_gate, B_W_up, B_W_down)
    return x
```

```python
import re

REG_RE = re.compile(r'^(-?\|?|abs\()?([vsa])(\d+)\)?\|?$')
RANGE_RE = re.compile(r'^(-?)([vsa])\[(\d+):(\d+)\]$')

TRANS = ('v_exp_f32', 'v_log_f32', 'v_rcp_f32', 'v_rsq_f32', 'v_sqrt_f32', 'v_sin_f32', 'v_cos_f32',
         'v_rcp_iflag_f32')
NO_DEST_S = ('s_cmp', 's_cbranch', 's_waitcnt', 's_barrier', 's_nop', 's_bitcmp', 's_branch', 's_setprio',
             's_endpgm', 's_sleep', 's_setreg')


def regs_of(tok):
    tok = tok.strip()
    if tok in ('vcc',):
        return {('s', 'vcc')}
    if tok in ('vcc_lo', 'vcc_hi'):
        return {('s', 'vcc')}
    if tok in ('exec', 'exec_lo', 'exec_hi'):
        return {('s', 'exec')}
    if tok == 'm0':
        return {('s', 'm0')}
    m = RANGE_RE.match(tok)
    if m:
        return {(m.group(2), i) for i in range(int(m.group(3)), int(m.group(4)) + 1)}
    m = REG_RE.match(tok)
    if m:
        return {(m.group(2), int(m.group(3)))}
    return set()


def split_ops(s):
    out, depth, cur = [], 0, ''
    for ch in s:
        if ch in '[(':
            depth += 1
        if ch in '])':
            depth -= 1
        if ch == ',' and depth == 0:
            out.append(cur.strip())
            cur = ''
        else:
            cur += ch
    if cur.strip():
        out.append(cur.strip())
    return out


class Ins:
    def __init__(self, text):
        self.text = text
        t = text.strip()
        parts = t.split(None, 1)
        self.op = parts[0]
        rest = parts[1] if len(parts) > 1 else ''
        ops = split_ops(rest)
        mods = ''
        clean = []
        for o in ops:
            p = o.split(None, 1)
            clean.append(p[0])
            if len(p) > 1:
                mods += ' ' + p[1]
        self.ops, self.mods = clean, mods
        op = self.op
        self.defs, self.uses = set(), set()
        self.is_mfma = op.startswith('v_mfma')
        self.is_valu = op.startswith('v_') and not self.is_mfma
        self.is_salu = op.startswith('s_')
        self.is_vmem = op.startswith('buffer_') or op.startswith('global_')
        self.is_ds = op.startswith('ds_')
        self.is_trans = any(op.startswith(x) for x in TRANS)
        self.is_dpp = ('row_' in mods) or ('quad_perm' in mods) or op.endswith('_dpp')
        self.is_perml = op.startswith('v_permlane')
        self.is_rdlane = op.startswith('v_readlane') or op.startswith('v_readfirstlane')
        self.is_ldsdma = self.is_vmem and re.search(r'\blds\b', mods) is not None
        self.wide_store = False
        self.nop = 0
        R = [regs_of(o) for o in clean]
        if op == 's_nop':
            self.nop = int(clean[0], 0) + 1
        elif self.is_mfma:
            self.defs = R[0]
            self.srcA, self.srcB, self.srcC = R[1], R[2], R[3]
            self.uses = R[1] | R[2] | R[3]
        elif self.is_valu:
            if self.is_perml:
                self.defs = R[0] | R[1]
                self.uses = R[0] | R[1]
            elif op.startswith('v_cmp'):
                self.defs = R[0]
                self.uses = set().union(*R[1:])
            elif re.match(r'v_(add|sub|subrev)_co_u32', op):
                self.defs = R[0] | R[1]
                self.uses = set().union(*R[2:])
            elif re.match(r'v_(addc|subb|subbrev)_co_u32', op):
                self.defs = R[0] | R[1]
                self.uses = set().union(*R[2:])
            else:
                self.defs = R[0]
                self.uses = set().union(*R[1:]) if len(R) > 1 else set()
                if op.startswith('v_fmac') or op.startswith('v_mac') or self.is_dpp or op.startswith('v_writelane'):
                    self.uses |= R[0]
                if op.startswith('v_cndmask') and len(R) == 3:
                    self.uses |= {('s', 'vcc')}
            self.uses |= {('s', 'exec')}
        elif self.is_vmem:
            if 'load' in op and not self.is_ldsdma:
                self.defs = R[0]
                self.uses = set().union(*R[1:])
            elif self.is_ldsdma:
                self.uses = set().union(*R) | {('s', 'm0')}
            elif 'store' in op:
                self.uses = set().union(*R)
                if op.startswith('buffer_store'):
                    self.data = R[0]
                else:
                    self.data = R[1]
                self.wide_store = op.endswith('x4') or op.endswith('x3')
            else:
                self.uses = set().union(*R)
        elif self.is_ds:
            if op.startswith('ds_read') or op.startswith('ds_bpermute') or op.startswith('ds_swizzle'):
                self.defs = R[0]
                self.uses = set().union(*R[1:])
            else:
                self.uses = set().union(*R)
        elif self.is_salu:
            if any(op.startswith(x) for x in NO_DEST_S):
                self.uses = set().union(*R) if R else set()
            else:
                self.defs = R[0] if R else set()
                self.uses = set().union(*R[1:]) if len(R) > 1 else set()
                if 'saveexec' in op:
                    self.defs |= {('s', 'exec')}
        self.branch_target = None
        if op.startswith('s_cbranch') or op == 's_branch':
            self.branch_target = clean[0]
        self.terminates = op in ('s_branch', 's_endpgm')

    def vdefs(self):
        return {r for r in self.defs if r[0] in 'va'}

    def sdefs(self):
        return {r for r in self.defs if r[0] == 's'}


def need(p, i):
    n = 0
    if p.is_valu:
        vd = p.vdefs()
        sd = p.sdefs()
        if vd:
            if i.is_mfma and (vd & i.uses):
                n = max(n, 2)
            if i.is_valu and (i.is_dpp or i.is_perml) and (vd & i.uses):
                n = max(n, 2)
            if i.is_rdlane and (vd & i.uses):
                n = max(n, 1)
            if p.is_trans and i.is_valu and not i.is_trans and (vd & i.uses):
                n = max(n, 1)
        if sd:
            u = {r for r in i.uses if r != ('s', 'exec')}
            if i.is_valu and (sd & u):
                n = max(n, 4 if i.is_rdlane else 2)
            if i.is_vmem and (sd & i.uses):
                n = max(n, 5)
            if i.is_salu and (sd & i.uses):
                n = max(n, 1)
    if p.is_mfma:
        d = p.defs
        if i.is_mfma:
            if d & (i.srcA | i.srcB):
                n = max(n, 8)
            if d & i.srcC and i.srcC != d:
                n = max(n, 6)
        elif i.is_valu or i.is_vmem or i.is_ds:
            if d & (i.uses | i.defs):
                n = max(n, 8)
        if i.is_valu and (p.srcC & i.defs):
            n = max(n, 3)
    if p.is_salu and ('s', 'm0') in p.defs and i.is_ldsdma:
        n = max(n, 1)
    if p.wide_store:
        if i.is_valu and (p.data & i.defs):
            n = max(n, 2)
        elif (p.data & i.defs):
            n = max(n, 1)
    return n


class Asm:
    def __init__(self):
        self.items = []

    def __call__(self, text):
        for line in text.split('\n'):
            s = line.strip()
            if not s:
                continue
            if s.startswith(';'):
                self.items.append(('r', '    ' + s))
                continue
            c = s.split(';')[0].strip()
            if c.endswith(':'):
                self.items.append(('l', c[:-1]))
            else:
                self.items.append(('i', Ins(c)))

    def label(self, n):
        self.items.append(('l', n))

    def raw(self, t):
        self.items.append(('r', t))

    def pad_pass(self, incoming):
        WIN = 24
        out = []
        hist = []
        new_incoming = {}
        changed = False
        for kind, x in self.items:
            if kind == 'r':
                out.append((kind, x))
                continue
            if kind == 'l':
                for src in (incoming.get(x, []), new_incoming.get(x, [])):
                    hist = hist + [[p, d] for p, d in src]
                out.append((kind, x))
                continue
            req = 0
            for p, d in hist:
                req = max(req, need(p, x) - d)
            if req > 0:
                changed = True
                r = req
                while r > 0:
                    k = min(r, 16)
                    out.append(('i', Ins('s_nop %d' % (k - 1))))
                    r -= k
                hist = [[p, d + req] for p, d in hist]
            out.append((kind, x))
            step = x.nop if x.nop else 1
            hist = [[p, d + step] for p, d in hist if d + step < WIN]
            if not x.nop:
                hist.append([x, 0])
            if x.branch_target:
                new_incoming.setdefault(x.branch_target, []).extend([[p, d] for p, d in hist])
            if x.terminates:
                hist = []
        self.items = out
        return new_incoming, changed

    def finalize(self):
        incoming = {}
        for it in range(6):
            incoming, changed = self.pad_pass(incoming)
            if not changed and it > 0:
                break
        else:
            raise RuntimeError('padding did not converge')
        lines = []
        for kind, x in self.items:
            if kind == 'i':
                lines.append('    ' + x.text)
            elif kind == 'l':
                lines.append(x + ':')
            else:
                lines.append(x)
        return '\n'.join(lines) + '\n'

    def count(self):
        return sum(1 for k, _ in self.items if k == 'i')
```

```python
import sys, os
sys.path.insert(0, os.path.dirname(os.path.abspath(__file__)))
from asmlib import Asm

NAME = "adaLN_cond__sliding_block_cached__glu_gated_reglu__decode_kernel"

OPT = dict(
    NT=1,
    PROF=0,
    LIMIT=20000,
    ST="sc0 sc1",
    LD="sc1",
    PF=0,
    LOCAL=1,
    KLOC=200,
    MTRIG=1,
    KWAIT=0,
    VWAIT=0,
    ONLY="",
)

WS_EPOCH = 0
WS_A1 = 0x1000
WS_A2 = 0x41000
WS_B = 0x43000
WS_S = 0x53000
WS_C = 0xD3000
WS_C2 = 0xE3000
WS_ML = 0xF3000
WS_D = 0x103000
WS_E = 0x123000
WS_PROF = 0x1A0000
WS_LOC = 0x200000
WS_SIZE = 0x400000
TAGC = 0x9E3779B9

LDS_BYTES = 140288

sX, sK, sV, sWQ, sWO, sWG, sWU, sWD, sC, sWM, sOUT, sWS = 4, 6, 8, 10, 12, 16, 18, 20, 22, 24, 26, 30
sG, sJ, sWAVE, sTAG, sE, sCNT = 's32', 's33', 's34', 's35', 's36', 's37'
WSR = 's[40:43]'
R1 = 's[44:47]'
R2 = 's[48:51]'
R3 = 's[52:55]'


class Gen:
    def __init__(self, opt):
        self.o = dict(OPT)
        self.o.update(opt)
        self.a = Asm()
        self.uid = 0
        self.nstamp = 0

    def lab(self, p):
        self.uid += 1
        return f"L{p}_{self.uid}"

    def nt(self):
        return "nt " if self.o['NT'] else ""

    def srd(self, base, ptr, size):
        a = self.a
        a(f"""s_mov_b32 s{base}, s{ptr}
              s_mov_b32 s{base+1}, s{ptr+1}
              s_mov_b32 s{base+2}, {size}
              s_mov_b32 s{base+3}, 0x20000""")

    def stamp(self, k):
        if self.o['PROF'] == 2 and k != 12:
            return
        if self.o['PROF']:
            l = self.lab('stp')
            self.a(f"""s_cmp_eq_u32 s99, 1
                       s_cbranch_scc0 {l}
                       s_memrealtime s[96:97]
                       s_waitcnt lgkmcnt(0)
                       s_mov_b32 s{70+k}, s96""")
            self.a.label(l)

    def stamps_out(self, n):
        if not self.o['PROF']:
            return
        a = self.a
        a(f"""s_lshl_b32 s98, s2, 3
              s_add_u32 s98, s98, {sWAVE}
              s_lshl_b32 s98, s98, 6
              s_add_u32 s98, s98, {WS_PROF}
              s_mov_b64 exec, 1
              v_mov_b32 v250, 0""")
        for k in range(n):
            a(f"""v_mov_b32 v251, s{70+k}
                  buffer_store_dword v251, v250, {WSR}, s98 offen offset:{4*k}""")
        a("s_mov_b64 exec, -1")

    def only_exit(self, role, pre=False):
        o = self.o['ONLY']
        if not o:
            return
        if pre:
            if role not in o:
                self.stamps_out(16)
                self.a("s_endpgm")
            return
        if role in o:
            self.stamp(1)
            self.a("s_waitcnt vmcnt(0)")
            self.stamp(2)
            self.stamps_out(16)
            self.a("s_endpgm")

    def tag_ready(self):
        self.a(f"""s_waitcnt lgkmcnt(0)
                   s_add_u32 {sTAG}, {sE}, {TAGC}""")

    def check_tags(self, tagregs, ok):
        a = self.a
        a(f"v_cmp_ne_u32 vcc, {sTAG}, {tagregs[0]}")
        if len(tagregs) == 1:
            a(f"s_cbranch_vccz {ok}")
            return
        for r in tagregs[1:]:
            a(f"""v_cmp_ne_u32 s[64:65], {sTAG}, {r}
                  s_or_b64 vcc, vcc, s[64:65]""")
        a(f"s_cbranch_scc0 {ok}")

    def stolen_tag(self, q, t0, t1):
        self.a(f"""v_perm_b32 {t0}, v{q+1}, v{q}, s92
                   v_perm_b32 {t1}, v{q+3}, v{q+2}, s93
                   v_or_b32 {t0}, {t0}, {t1}""")

    def sel_consts(self):
        self.a("""s_mov_b32 s92, 0x0c0c0400
                  s_mov_b32 s93, 0x04000c0c
                  s_movk_i32 s91, 0xff""")

    def tagbytes(self, base):
        a = self.a
        a(f"v_mov_b32 v{base}, {sTAG}")
        for r in range(1, 4):
            a(f"v_lshrrev_b32 v{base+r}, {8*r}, v{base}")

    def steal(self, q, tb):
        for r in range(4):
            self.a(f"v_bfi_b32 v{q+r}, s91, v{tb+r}, v{q+r}")

    def poll(self, name, loads, check, first_extra=None, local=None):
        a = self.a
        ok = self.lab(name + 'ok')
        lp = self.lab(name)
        local = local if self.o['LOCAL'] else None
        if local:
            for r in local:
                a(f"s_or_b32 {r}, {r}, {WS_LOC}")
        if first_extra is not None:
            for l in loads:
                a(l)
            a("s_waitcnt vmcnt(0)")
            first_extra()
            check(ok)
        a(f"s_mov_b32 {sCNT}, {self.o['LIMIT']}")
        a.label(lp)
        for l in loads:
            a(l)
        a("s_waitcnt vmcnt(0)")
        check(ok)
        if local:
            a(f"""s_cmp_lt_u32 {sCNT}, {self.o['LIMIT'] - self.o['KLOC']}
                  s_cselect_b32 s39, {WS_LOC}, 0""")
            for r in local:
                a(f"s_xor_b32 {r}, {r}, s39")
        a(f"""s_sub_u32 {sCNT}, {sCNT}, 1
              s_cbranch_scc0 {lp}""")
        a.label(ok)

    def gload(self, q, voff, soff, imm=0):
        i = f" offset:{imm}" if imm else ""
        return f"buffer_load_dwordx4 v[{q}:{q+3}], {voff}, {WSR}, {soff} offen{i} {self.o['LD']}"

    def gstore(self, q, voff, soff, imm=0, local=False):
        i = f" offset:{imm}" if imm else ""
        if local and self.o['LOCAL']:
            self.a(f"""s_or_b32 s39, {soff}, {WS_LOC}
                       buffer_store_dwordx4 v[{q}:{q+3}], {voff}, {WSR}, s39 offen{i}""")
            if self.o.get('NOGLOBAL'):
                return
        self.a(f"buffer_store_dwordx4 v[{q}:{q+3}], {voff}, {WSR}, {soff} offen{i} {self.o['ST']}")

    def dma_loop(self, voff, srd, soff, sstep, n, m0step=1024, win=0):
        a = self.a
        l = self.lab('dma')
        a(f"s_mov_b32 s38, {n}")
        a.label(l)
        if win:
            a(f"s_waitcnt vmcnt({win-1})")
        a(f"""buffer_load_dwordx4 {voff}, {srd}, {soff} offen {self.nt()}lds
              s_add_u32 {soff}, {soff}, {sstep}
              s_add_u32 m0, m0, {m0step}
              s_sub_u32 s38, s38, 1
              s_cmp_lg_u32 s38, 0
              s_cbranch_scc1 {l}""")

    def rnd(self, d, s):
        self.a(f"""v_cvt_pk_bf16_f32 {d}, {s}, {s}
                   v_and_b32 {d}, 0xffff0000, {d}""")

    def unpack(self, lo, hi, src):
        self.a(f"""v_lshlrev_b32 {lo}, 16, {src}
                   v_and_b32 {hi}, 0xffff0000, {src}""")

    def wave_sum(self, v, t):
        a = self.a
        for pat in ("quad_perm:[1,0,3,2]", "quad_perm:[2,3,0,1]", "row_half_mirror", "row_mirror"):
            a(f"v_add_f32_dpp {v}, {v}, {v} {pat} row_mask:0xf bank_mask:0xf")
        a(f"""v_mov_b32 {t}, {v}
              v_permlane16_swap_b32 {v}, {t}
              v_add_f32 {v}, {v}, {t}
              v_mov_b32 {t}, {v}
              v_permlane32_swap_b32 {v}, {t}
              v_add_f32 {v}, {v}, {t}""")

    def ln_stats(self, x, vm, vsd, vrc, t):
        a = self.a
        t0, t1, t2, t3 = [f"v{t+i}" for i in range(4)]
        a(f"""v_add_f32 {t0}, v{x}, v{x+1}
              v_add_f32 {t1}, v{x+2}, v{x+3}
              v_add_f32 {t2}, v{x+4}, v{x+5}
              v_add_f32 {t3}, v{x+6}, v{x+7}
              v_add_f32 {t0}, {t0}, {t1}
              v_add_f32 {t2}, {t2}, {t3}
              v_add_f32 {t0}, {t0}, {t2}""")
        self.wave_sum(t0, t1)
        a(f"v_mul_f32 {t0}, 0x3b000000, {t0}")
        a(f"v_sub_f32 {t1}, v{x}, {t0}")
        a(f"v_mul_f32 {t2}, {t1}, {t1}")
        for k in range(1, 8):
            tt = t1 if k % 2 == 0 else t3
            a(f"""v_sub_f32 {tt}, v{x+k}, {t0}
                  v_fmac_f32 {t2}, {tt}, {tt}""")
        self.wave_sum(t2, t1)
        a(f"v_mul_f32 {t2}, 0x3b000000, {t2}")
        self.rnd(t2, t2)
        a(f"v_add_f32 {t2}, 0x3727c5ac, {t2}")
        self.rnd(t2, t2)
        a(f"v_sqrt_f32 {t2}, {t2}")
        self.rnd(vsd, t2)
        self.rnd(vm, t0)
        a(f"v_rcp_f32 {vrc}, {vsd}")

    def ln_elem(self, d, x, vm, vsd, vrc, t0, t1):
        a = self.a
        a(f"v_sub_f32 {t0}, {x}, {vm}")
        self.rnd(t0, t0)
        a(f"""v_mul_f32 {d}, {t0}, {vrc}
              v_fma_f32 {t1}, -{d}, {vsd}, {t0}
              v_fma_f32 {d}, {t1}, {vrc}, {d}""")
        self.rnd(d, d)

    def silu4(self, x, t):
        a = self.a
        a("""s_mov_b32 s94, 0xbfb8aa3b
             s_mov_b32 s95, 0xb2a57060""")
        for k in range(4):
            xv = f"v{x+k}"
            e, r = f"v{t+k}", f"v{t+4+k}"
            a(f"""v_mul_f32 {e}, 0xbfb8aa3b, {xv}
                  v_fma_f32 {r}, {xv}, s94, -{e}
                  v_fma_f32 {r}, {xv}, s95, {r}
                  v_exp_f32 {e}, {e}
                  v_mul_f32 {r}, 0x3f317218, {r}
                  v_add_f32 {r}, 1.0, {r}
                  v_mul_f32 {e}, {e}, {r}
                  v_add_f32 {e}, 1.0, {e}
                  v_rcp_f32 {r}, {e}
                  v_cmp_eq_f32 vcc, 0x7f800000, {e}
                  v_mul_f32 v{t+8}, {xv}, {r}
                  v_fma_f32 v{t+9}, -v{t+8}, {e}, {xv}
                  v_fma_f32 v{t+9}, v{t+9}, {r}, v{t+8}
                  v_cndmask_b32 {xv}, v{t+9}, v{t+8}, vcc""")

    def perm_pos_bytes(self, d, kq, t):
        self.a(f"""v_lshrrev_b32 {d}, 3, {kq}
                   v_lshlrev_b32 {d}, 6, {d}
                   v_and_b32 {t}, 3, {kq}
                   v_lshl_add_u32 {d}, {t}, 4, {d}
                   v_bfe_u32 {t}, {kq}, 2, 1
                   v_lshl_add_u32 {d}, {t}, 3, {d}""")

    def select_tiles(self, D):
        a = self.a
        for t in range(1, 4):
            m = 0x000F000F << (4 * t)
            a(f"""s_mov_b32 exec_lo, {m:#x}
                  s_mov_b32 exec_hi, {m:#x}""")
            for r in range(4):
                a(f"v_mov_b32 v{D[0]+r}, v{D[t]+r}")
        a("s_mov_b64 exec, -1")

    def red_rows(self, x):
        a = self.a
        for r in range(4):
            a(f"v_add_f32_dpp v{x+r}, v{x+r}, v{x+r} row_ror:8 row_mask:0xf bank_mask:0xf")
        a(f"""v_permlane16_swap_b32 v{x}, v{x+1}
              v_permlane16_swap_b32 v{x+2}, v{x+3}
              v_add_f32 v{x}, v{x}, v{x+1}
              v_add_f32 v{x+2}, v{x+2}, v{x+3}
              v_permlane32_swap_b32 v{x}, v{x+2}
              v_add_f32 v{x}, v{x}, v{x+2}""")

    def rows_to_quad(self, c, d, h, t):
        a = self.a
        a(f"""v_mov_b32 {c}, {h}
              v_mov_b32 {t}, {h}
              v_permlane16_swap_b32 {c}, {t}
              v_cvt_pk_bf16_f32 {c}, {c}, {t}
              v_mov_b32 {d}, {c}
              v_permlane32_swap_b32 {c}, {d}""")

    def tr_addr_p128(self, d, tile_t, base_s, t0, t1):
        a = self.a
        a(f"""v_lshrrev_b32 {t0}, 4, v0
              v_lshlrev_b32 {d}, 9, {t0}
              v_and_b32 {t0}, 1, {t0}
              v_lshlrev_b32 {t0}, 6, {t0}
              v_bfe_u32 {t1}, v0, 2, 2
              v_lshl_add_u32 {d}, {t1}, 7, {d}
              v_lshrrev_b32 {t1}, 1, {t1}
              v_lshl_or_b32 {t0}, {t1}, 5, {t0}
              v_xor_b32 {t0}, {tile_t}, {t0}
              v_add_u32 {d}, {d}, {t0}
              v_and_b32 {t1}, 3, v0
              v_lshl_add_u32 {d}, {t1}, 3, {d}
              v_add_u32 {d}, {base_s}, {d}""")

    def dma_off_p128(self, d, pitch, t0, t1):
        a = self.a
        a(f"""v_lshrrev_b32 {t0}, 4, v0
              v_lshlrev_b32 {t0}, 1, {t0}
              v_and_b32 {t1}, 7, v0
              v_xor_b32 {t0}, {t0}, {t1}
              v_lshlrev_b32 {t0}, 4, {t0}
              v_lshrrev_b32 {t1}, 3, v0
              v_mul_u32_u24 {t1}, {pitch}, {t1}
              v_add_u32 {d}, {t0}, {t1}""")

    def act_addr(self, d, base, pitch, t0):
        a = self.a
        a(f"""v_and_b32 {t0}, 3, v0
              v_mul_u32_u24 {d}, {pitch}, {t0}
              v_lshrrev_b32 {t0}, 4, v0
              v_lshl_add_u32 {d}, {t0}, 4, {d}
              v_add_u32 {d}, {base}, {d}""")

    def frags(self, F, vaddr, nsteps, step_off, half_off, off0=0):
        a = self.a
        for s in range(nsteps):
            for h in range(2):
                o = off0 + s * step_off + h * half_off
                a(f"ds_read_b64_tr_b16 v[{F+4*s+2*h}:{F+4*s+2*h+1}], {vaddr} offset:{o}")

    def gemv16(self, D, F, vact, A):
        a = self.a
        for s in range(8):
            a(f"ds_read_b128 v[{A+4*s}:{A+4*s+3}], {vact} offset:{64*s}")
        for s in range(16):
            if s < 8:
                a(f"ds_read_b128 v[{A+4*(s+8)}:{A+4*(s+8)+3}], {vact} offset:{64*(s+8)}")
                a("s_waitcnt lgkmcnt(8)")
            else:
                a(f"s_waitcnt lgkmcnt({15-s})")
            c = "0" if s == 0 else f"v[{D}:{D+3}]"
            a(f"v_mfma_f32_16x16x32_bf16 v[{D}:{D+3}], v[{F+4*s}:{F+4*s+3}], v[{A+4*s}:{A+4*s+3}], {c}")

    def prologue(self):
        a = self.a
        a(f"""s_cmp_ge_u32 s2, 256
              s_cbranch_scc1 L_END
              s_load_dwordx16 s[4:19], s[0:1], 0
              s_load_dwordx8 s[20:27], s[0:1], 64
              s_load_dwordx4 s[28:31], s[0:1], 96""")
        if self.o['PROF']:
            a("s_memrealtime s[96:97]")
        a(f"""v_lshrrev_b32 v1, 6, v0
              v_and_b32 v0, 63, v0
              v_readfirstlane_b32 {sWAVE}, v1
              s_and_b32 {sG}, s2, 7
              s_lshr_b32 {sJ}, s2, 3
              s_waitcnt lgkmcnt(0)""")
        if self.o['PROF']:
            a("s_mov_b32 s70, s96")
            for k in range(1, 16):
                a(f"s_mov_b32 s{70+k}, 0")
            self.stamp(14)
        if self.o['PF']:
            l = self.lab('pf')
            a(f"""s_cmp_eq_u32 {sWAVE}, 7
                  s_cbranch_scc0 {l}
                  s_getpc_b64 s[56:57]""")
            a.label('L_PC')
            a(f"""s_lshl_b32 s58, {sJ}, 10
                  v_lshl_add_u32 v1, v0, 4, s58
                  v_min_u32 v1, (L_END-L_PC-16)&0xfffffff0, v1
                  v_mov_b32 v3, s57
                  v_add_co_u32 v2, vcc, s56, v1
                  v_addc_co_u32 v3, vcc, 0, v3, vcc
                  global_load_dwordx4 v[200:203], v[2:3], off""")
            a.label(l)
        self.srd(40, sWS, WS_SIZE)
        a(f"""s_load_dword {sE}, s[{sWS}:{sWS+1}], {WS_EPOCH}
              s_cmp_lt_u32 {sJ}, 8
              s_cbranch_scc1 L_ROLE_M
              s_cmp_lt_u32 {sJ}, 16
              s_cbranch_scc1 L_ROLE_W
              s_cmp_lt_u32 {sJ}, 24
              s_cbranch_scc1 L_ROLE_K
              s_branch L_ROLE_V""")

    def role_v(self):
        a = self.a
        RED, ST = 131072, 139776
        F = 64
        a.label("L_ROLE_V")
        a(f"""s_sub_u32 s56, {sJ}, 24
              s_lshr_b32 s57, s56, 1
              s_and_b32 s58, s56, 1
              s_lshl_b32 s60, s57, 3
              s_add_u32 s60, s60, {sG}
              s_lshl_b32 s59, s60, 20
              s_add_u32 s59, s59, {3072*256}
              s_lshl_b32 s61, s58, 7
              s_add_u32 s59, s59, s61
              s_lshl_b32 s61, {sWAVE}, 15
              s_add_u32 s59, s59, s61
              s_lshl_b32 s62, {sWAVE}, 14
              s_mov_b32 m0, s62""")
        self.srd(44, sV, 0x2000000)
        self.dma_off_p128('v32', 256, 'v1', 'v2')
        if self.o['VWAIT']:
            a("s_waitcnt lgkmcnt(0)")
        self.stamp(15)
        self.only_exit('V', pre=True)
        self.dma_loop('v32', R1, 's59', 2048, 16)
        self.only_exit('V')
        a(f"""v_bfe_u32 v1, v0, 2, 2
              v_lshlrev_b32 v33, 9, v1
              v_lshrrev_b32 v2, 4, v0
              v_lshl_add_u32 v33, v2, 6, v33
              v_and_b32 v3, 3, v0
              v_lshl_add_u32 v33, v3, 4, v33
              s_lshl_b32 s59, s60, 14
              s_add_u32 s59, s59, {WS_S}
              s_lshl_b32 s61, {sWAVE}, 11
              s_add_u32 s59, s59, s61""")
        a(f"""v_mul_u32_u24 v38, 272, v3
              v_lshl_add_u32 v38, v1, 6, v38
              v_lshl_add_u32 v38, v2, 4, v38
              s_mul_i32 s61, {sWAVE}, 1088
              s_add_u32 s61, s61, {RED}
              v_add_u32 v38, s61, v38
              v_lshlrev_b32 v39, 6, v3
              v_add_u32 v40, {ST}, v39
              s_lshl_b32 s61, {sWAVE}, 3
              v_add_u32 v39, s61, v40""")
        for t in range(4):
            self.tr_addr_p128(f'v{34+t}', 32 * t, 's62', 'v1', 'v2')
        self.tag_ready()
        self.stamp(1)

        def first():
            self.stamp(2)
            for s in range(4):
                for t in range(4):
                    for h in range(2):
                        q = F + 16 * s + 4 * t + 2 * h
                        a(f"ds_read_b64_tr_b16 v[{q}:{q+1}], v{34+t} offset:{4096*s+2048*h}")
                if s < 3:
                    a("s_waitcnt lgkmcnt(6)")
        self.poll('S', [self.gload(4, 'v33', 's59'), self.gload(8, 'v33', 's59', 256)],
                  lambda ok: self.check_tags(['v6', 'v10'], ok), first_extra=first, local=['s59'])
        self.stamp(3)
        self.unpack('v12', 'v13', 'v4')
        self.unpack('v14', 'v15', 'v5')
        self.unpack('v16', 'v17', 'v8')
        self.unpack('v18', 'v19', 'v9')
        a("""v_max3_f32 v20, v12, v13, v14
             v_max3_f32 v21, v15, v16, v17
             v_max3_f32 v20, v20, v18, v19
             v_max_f32 v20, v20, v21
             v_max_f32_dpp v20, v20, v20 row_ror:4 row_mask:0xf bank_mask:0xf
             v_max_f32_dpp v20, v20, v20 row_ror:8 row_mask:0xf bank_mask:0xf
             v_mov_b32 v21, v20
             v_permlane16_swap_b32 v20, v21
             v_max_f32 v20, v20, v21
             v_mov_b32 v21, v20
             v_permlane32_swap_b32 v20, v21
             v_max_f32 v20, v20, v21""")
        for k in range(8):
            a(f"v_sub_f32 v{12+k}, v{12+k}, v20")
        for k in range(8):
            a(f"v_mul_f32 v{12+k}, 0x3fb8aa3b, v{12+k}")
        for k in range(8):
            a(f"v_exp_f32 v{12+k}, v{12+k}")
        a("""v_add_f32 v22, v12, v13
             v_add_f32 v23, v14, v15
             v_add_f32 v24, v16, v17
             v_add_f32 v25, v18, v19
             v_add_f32 v22, v22, v23
             v_add_f32 v24, v24, v25
             v_add_f32 v21, v22, v24
             v_add_f32_dpp v21, v21, v21 row_ror:4 row_mask:0xf bank_mask:0xf
             v_add_f32_dpp v21, v21, v21 row_ror:8 row_mask:0xf bank_mask:0xf
             v_mov_b32 v22, v21
             v_permlane16_swap_b32 v21, v22
             v_add_f32 v21, v21, v22
             v_mov_b32 v22, v21
             v_permlane32_swap_b32 v21, v22
             v_add_f32 v21, v21, v22
             s_mov_b64 exec, 0xf
             ds_write_b64 v39, v[20:21]
             s_mov_b64 exec, -1
             s_waitcnt lgkmcnt(0)
             s_barrier
             ds_read_b128 v[44:47], v40
             ds_read_b128 v[48:51], v40 offset:16
             ds_read_b128 v[52:55], v40 offset:32
             ds_read_b128 v[56:59], v40 offset:48
             s_waitcnt lgkmcnt(0)
             v_max3_f32 v22, v44, v46, v48
             v_max3_f32 v23, v50, v52, v54
             v_max3_f32 v22, v22, v56, v58
             v_max_f32 v22, v22, v23""")
        for k in range(8):
            a(f"v_sub_f32 v{44+2*k}, v{44+2*k}, v22")
        a("v_sub_f32 v20, v20, v22")
        for k in range(8):
            a(f"v_mul_f32 v{44+2*k}, 0x3fb8aa3b, v{44+2*k}")
        a("v_mul_f32 v20, 0x3fb8aa3b, v20")
        for k in range(8):
            a(f"v_exp_f32 v{44+2*k}, v{44+2*k}")
        a("""v_exp_f32 v20, v20
             v_mul_f32 v23, v44, v45""")
        for k in range(1, 8):
            a(f"v_fmac_f32 v23, v{44+2*k}, v{45+2*k}")
        a("""v_rcp_f32 v23, v23
             v_mul_f32 v20, v20, v23""")
        for k in range(8):
            a(f"v_mul_f32 v{12+k}, v{12+k}, v20")
        for k in range(4):
            a(f"v_cvt_pk_bf16_f32 v{44+k}, v{12+2*k}, v{13+2*k}")
        for rho, n in ((1, 12), (2, 8), (3, 4)):
            for k in range(4):
                a(f"v_mov_b32_dpp v{44+4*rho+k}, v{44+k} row_ror:{n} row_mask:0xf bank_mask:0xf")
        D = [4, 8, 12, 16]
        for s in range(4):
            for t in range(4):
                rho = (s - t) & 3
                q = F + 16 * s + 4 * t
                c = "0" if s == 0 else f"v[{D[t]}:{D[t]+3}]"
                a(f"v_mfma_f32_16x16x32_bf16 v[{D[t]}:{D[t]+3}], v[{q}:{q+3}], v[{44+4*rho}:{47+4*rho}], {c}")
        self.select_tiles(D)
        a("""ds_write_b128 v38, v[4:7]
             s_waitcnt lgkmcnt(0)
             s_barrier""")
        self.stamp(4)
        done = self.lab('vdone')
        a(f"""s_cmp_eq_u32 {sWAVE}, 0
              s_cbranch_scc0 {done}
              v_lshrrev_b32 v1, 4, v0
              v_mul_u32_u24 v1, 272, v1
              v_and_b32 v2, 15, v0
              v_lshl_add_u32 v1, v2, 4, v1
              v_add_u32 v1, {RED}, v1""")
        for w in range(8):
            a(f"ds_read_b128 v[{64+4*w}:{67+4*w}], v1 offset:{1088*w}")
        a(f"""s_lshl_b32 s59, {sG}, 2
              s_add_u32 s59, s59, s57
              s_lshl_b32 s59, s59, 1
              s_add_u32 s59, s59, s58
              s_lshl_b32 s59, s59, 10
              s_add_u32 s59, s59, {WS_C}
              v_lshlrev_b32 v2, 4, v0""")
        for w in range(1, 8):
            a(f"s_waitcnt lgkmcnt({7-w})")
            for r in range(4):
                a(f"v_add_f32 v{64+r}, v{64+r}, v{64+4*w+r}")
        a(f"""v_cvt_pk_bf16_f32 v4, v64, v65
              v_cvt_pk_bf16_f32 v5, v66, v67
              v_mov_b32 v6, {sTAG}
              v_mov_b32 v7, 0""")
        self.gstore(4, 'v2', 's59', local=True)
        self.stamp(5)
        a.label(done)
        self.stamps_out(16)
        a("s_endpgm")

    def role_k(self):
        a = self.a
        QL, SC2 = 131072, 132224
        F = 64
        a.label("L_ROLE_K")
        a(f"""s_sub_u32 s56, {sJ}, 16
              s_lshr_b32 s57, s56, 1
              s_and_b32 s58, s56, 1
              s_lshl_b32 s66, {sG}, 3
              s_add_u32 s66, s66, s56
              s_and_b32 s67, s66, 1""")
        self.srd(48, sC, 4096)
        skipc = self.lab('kc')
        a(f"""s_cmp_lt_u32 {sWAVE}, 4
              s_cbranch_scc0 {skipc}
              s_lshl_b32 s61, {sWAVE}, 10
              s_lshl_b32 s68, s67, 9
              s_add_u32 s61, s61, s68
              v_lshlrev_b32 v1, 3, v0
              buffer_load_dwordx2 v[24:25], v1, {R2}, s61 offen""")
        a.label(skipc)
        a(f"""s_lshl_b32 s60, s57, 3
              s_add_u32 s60, s60, {sG}
              s_lshl_b32 s59, s60, 20
              s_add_u32 s59, s59, {3072*256}
              s_lshl_b32 s61, s58, 17
              s_add_u32 s59, s59, s61
              s_lshl_b32 s61, {sWAVE}, 14
              s_add_u32 s59, s59, s61
              s_mov_b32 m0, s61
              s_mov_b32 s62, s61""")
        self.srd(44, sK, 0x2000000)
        a("""v_lshrrev_b32 v1, 4, v0
             v_and_b32 v2, 15, v0""")
        for v in range(4):
            a(f"""v_add_u32 v3, {4*v}, v1
                  v_xor_b32 v3, v3, v2
                  v_lshlrev_b32 v3, 4, v3
                  v_lshl_add_u32 v{32+v}, v1, 8, v3""")
        l = self.lab('kdma')
        if self.o['KWAIT']:
            a("s_waitcnt lgkmcnt(0)")
        self.stamp(15)
        self.only_exit('K', pre=True)
        a("s_mov_b32 s38, 4")
        a.label(l)
        for v in range(4):
            i = f" offset:{1024*v}" if v else ""
            a(f"buffer_load_dwordx4 v{32+v}, {R1}, s59 offen{i} {self.nt()}lds")
        a(f"""s_add_u32 s59, s59, 4096
              s_add_u32 m0, m0, 4096
              s_sub_u32 s38, s38, 1
              s_cmp_lg_u32 s38, 0
              s_cbranch_scc1 {l}""")
        self.only_exit('K')
        for t in range(4):
            a(f"""v_and_b32 v3, 12, v2
                  v_xor_b32 v3, {4*t}, v3
                  v_and_b32 v4, 3, v2
                  v_xor_b32 v4, v4, v1
                  v_add_u32 v3, v3, v4
                  v_lshlrev_b32 v3, 4, v3
                  v_lshl_add_u32 v3, v2, 8, v3
                  v_add_u32 v{36+t}, s62, v3""")
        skips = self.lab('ks')
        a(f"""s_cmp_lt_u32 {sWAVE}, 4
              s_cbranch_scc0 {skips}
              s_waitcnt vmcnt(16)""")
        self.unpack('v8', 'v9', 'v24')
        self.unpack('v10', 'v11', 'v25')
        self.silu4(8, 12)
        a("""v_cvt_pk_bf16_f32 v8, v8, v9
             v_cvt_pk_bf16_f32 v9, v10, v11""")
        self.perm_pos_bytes('v5', 'v0', 'v6')
        a(f"""s_mul_i32 s61, {sWAVE}, 544
              s_add_u32 s61, s61, {SC2}
              v_add_u32 v5, s61, v5
              ds_write_b64 v5, v[8:9]""")
        a.label(skips)
        a(f"""s_lshl_b32 s61, {sWAVE}, 6
              v_add_u32 v5, s61, v0
              v_lshrrev_b32 v6, 2, v5
              v_lshlrev_b32 v6, 8, v6
              v_and_b32 v7, 3, v5
              v_lshl_add_u32 v40, v7, 4, v6
              v_lshrrev_b32 v6, 5, v5
              v_mul_u32_u24 v6, 288, v6
              v_and_b32 v7, 31, v5
              v_lshl_add_u32 v6, v7, 3, v6
              v_add_u32 v41, {QL}, v6
              s_lshl_b32 s59, {sG}, 13
              s_lshl_b32 s61, s57, 6
              s_add_u32 s59, s59, s61
              s_add_u32 s59, s59, {WS_B}""")
        self.act_addr('v42', QL, 288, 'v5')
        a(f"""v_bfe_u32 v5, v0, 2, 2
              v_lshl_add_u32 v5, v5, 2, v1
              v_lshlrev_b32 v5, 6, v5
              v_and_b32 v6, 3, v0
              v_lshl_add_u32 v43, v6, 4, v5
              s_lshl_b32 s63, s60, 14
              s_add_u32 s63, s63, {WS_S}
              s_lshl_b32 s61, s58, 13
              s_add_u32 s63, s63, s61
              s_lshl_b32 s61, {sWAVE}, 10
              s_add_u32 s63, s63, s61""")
        self.tag_ready()
        self.stamp(1)

        def kfrags():
            for T in range(4):
                for t in range(4):
                    q = F + 16 * T + 4 * t
                    a(f"ds_read_b128 v[{q}:{q+3}], v{36+t} offset:{4096*T}")
                if T == 2:
                    a("s_waitcnt lgkmcnt(6)")
        nopoll = self.lab('knp')
        join = self.lab('kj')
        a(f"""s_cmp_lt_u32 {sWAVE}, 2
              s_cbranch_scc0 {nopoll}""")

        def first():
            self.stamp(2)
            kfrags()
        self.poll('B', [self.gload(4, 'v40', 's59')], lambda ok: self.check_tags(['v6'], ok), first_extra=first, local=['s59'])
        a(f"""ds_write_b64 v41, v[4:5]
              s_branch {join}""")
        a.label(nopoll)
        a("s_waitcnt vmcnt(0)")
        kfrags()
        a.label(join)
        a("""s_waitcnt lgkmcnt(0)
             s_barrier""")
        self.stamp(3)
        for t in range(4):
            a(f"ds_read_b128 v[{44+4*t}:{47+4*t}], v42 offset:{64*t}")
        D = [4, 8, 12, 16]
        for t in range(4):
            a(f"s_waitcnt lgkmcnt({3-t})")
            for T in range(4):
                q = F + 16 * T + 4 * t
                c = "0" if t == 0 else f"v[{D[T]}:{D[T]+3}]"
                a(f"v_mfma_f32_16x16x32_bf16 v[{D[T]}:{D[T]+3}], v[{q}:{q+3}], v[{44+4*t}:{47+4*t}], {c}")
        self.select_tiles(D)
        a("""v_cvt_pk_bf16_f32 v8, v4, v5
             v_cvt_pk_bf16_f32 v9, v6, v7""")
        self.unpack('v4', 'v5', 'v8')
        self.unpack('v6', 'v7', 'v9')
        for r in range(4):
            a(f"v_mul_f32 v{4+r}, 0x3db504f3, v{4+r}")
        a(f"""v_cvt_pk_bf16_f32 v8, v4, v5
              v_cvt_pk_bf16_f32 v9, v6, v7
              v_mov_b32 v10, {sTAG}
              v_mov_b32 v11, 0""")
        self.gstore(8, 'v43', 's63', local=True)
        self.stamp(4)
        end = self.lab('kend')
        a(f"""s_cmp_lt_u32 s66, 48
              s_cbranch_scc0 {end}
              s_lshr_b32 s68, s66, 4
              s_add_u32 s68, s68, 1
              s_lshr_b32 s69, s66, 1
              s_and_b32 s69, s69, 7""")
        self.srd(48, sWM, 512 * 6144)
        self.dma_off_p128('v32', 6144, 'v1', 'v2')
        a(f"""s_lshl_b32 s59, s67, 8
              s_lshl_b32 s61, {sWAVE}, 5
              s_add_u32 s59, s59, s61
              s_mul_i32 s59, s59, 6144
              s_lshl_b32 s61, s68, 10
              s_add_u32 s59, s59, s61
              s_lshl_b32 s61, s69, 7
              s_add_u32 s59, s59, s61
              s_add_u32 s59, s59, 2048
              s_mov_b32 m0, s62""")
        self.dma_loop('v32', R2, 's59', 8 * 6144, 4)
        a(f"s_lshl_b32 s61, {sWAVE}, 5")
        self.tr_addr_p128('v33', 's61', '0', 'v1', 'v2')
        a("v_add_u32 v34, 65536, v33")
        self.act_addr('v35', SC2, 544, 'v1')
        a(f"""v_lshrrev_b32 v1, 5, v0
              v_lshlrev_b32 v36, 10, v1
              v_and_b32 v1, 3, v0
              v_lshl_add_u32 v36, v1, 5, v36
              v_bfe_u32 v1, v0, 4, 1
              v_lshl_add_u32 v36, v1, 4, v36
              s_lshl_b32 s59, s69, 13
              s_lshl_b32 s61, {sWAVE}, 11
              s_add_u32 s59, s59, s61
              s_lshl_b32 s61, s68, 8
              s_add_u32 s59, s59, s61
              s_lshl_b32 s61, s67, 7
              s_add_u32 s59, s59, s61
              s_add_u32 s59, s59, {WS_ML}""")
        self.sel_consts()
        self.tagbytes(28)
        a("""s_waitcnt vmcnt(0)
             s_barrier""")
        a(f"""s_cmp_lt_u32 {sWAVE}, 4
              s_cbranch_scc0 {end}""")
        for s in range(8):
            va = 'v33' if s < 4 else 'v34'
            for h in range(2):
                q = F + 4 * s + 2 * h
                a(f"ds_read_b64_tr_b16 v[{q}:{q+1}], {va} offset:{16384*(s&3)+2048*h}")
            if s == 3:
                a("s_waitcnt lgkmcnt(0)")
        a("s_waitcnt lgkmcnt(0)")
        for s in range(8):
            a(f"ds_read_b128 v[{96+4*s}:{99+4*s}], v35 offset:{64*s}")
        for s in range(8):
            a(f"s_waitcnt lgkmcnt({7-s})")
            c = "0" if s == 0 else "v[4:7]"
            a(f"v_mfma_f32_16x16x32_bf16 v[4:7], v[{F+4*s}:{F+4*s+3}], v[{96+4*s}:{99+4*s}], {c}")
        self.steal(4, 28)
        a("s_mov_b32 exec_lo, 0x000f000f")
        a("s_mov_b32 exec_hi, 0x000f000f")
        self.gstore(4, 'v36', 's59')
        a("s_mov_b64 exec, -1")
        self.stamp(5)
        a.label(end)
        self.stamps_out(16)
        a("s_endpgm")

    def role_m(self):
        a = self.a
        M1W, SC, STAT = 0, 16384, 17024
        GATE, UP, DOWN, H2, GU = 32768, 65536, 98304, 131072, 135296
        F = 64
        a.label("L_ROLE_M")
        self.srd(48, sC, 4096)
        self.srd(52, sX, 4096)
        l4 = self.lab('m4')
        lx = self.lab('mx')
        a(f"""s_cmp_lt_u32 {sWAVE}, 4
              s_cbranch_scc0 {l4}
              s_lshl_b32 s61, {sWAVE}, 10
              v_lshlrev_b32 v1, 4, v0
              buffer_load_dwordx4 v[24:27], v1, {R3}, s61 offen
              v_bfe_u32 v1, v0, 1, 2
              v_lshlrev_b32 v1, 10, v1
              v_and_b32 v2, 1, v0
              v_lshl_add_u32 v1, v2, 3, v1
              v_lshrrev_b32 v2, 4, v0
              v_lshl_add_u32 v1, v2, 1, v1
              s_lshl_b32 s61, {sG}, 7
              s_lshl_b32 s56, {sJ}, 4
              s_add_u32 s61, s61, s56
              buffer_load_ushort v28, v1, {R3}, s61 offen
              s_branch {lx}""")
        a.label(l4)
        a(f"""s_cmp_eq_u32 {sWAVE}, 4
              s_cbranch_scc0 {lx}
              v_lshrrev_b32 v1, 4, v0
              v_lshlrev_b32 v1, 10, v1
              v_and_b32 v2, 15, v0
              v_lshl_add_u32 v1, v2, 3, v1
              s_lshl_b32 s61, {sJ}, 7
              buffer_load_dwordx2 v[24:25], v1, {R2}, s61 offen""")
        a.label(lx)
        self.srd(44, sWM, 512 * 6144)
        for e in range(2):
            a(f"""v_lshrrev_b32 v1, 4, v0
                  v_add_u32 v2, {4*e}, v1
                  v_lshlrev_b32 v2, 1, v2
                  v_and_b32 v3, 15, v0
                  v_xor_b32 v2, v2, v3
                  v_and_b32 v3, 7, v2
                  v_lshlrev_b32 v3, 4, v3
                  v_lshrrev_b32 v2, 3, v2
                  v_lshl_add_u32 v3, v2, 10, v3
                  v_mul_u32_u24 v1, 6144, v1
                  v_add_u32 v{32+e}, v1, v3""")
        a(f"""s_lshl_b32 s59, {sJ}, 6
              s_lshl_b32 s61, {sWAVE}, 3
              s_add_u32 s59, s59, s61
              s_mul_i32 s59, s59, 6144
              s_lshl_b32 s61, {sG}, 7
              s_add_u32 s59, s59, s61
              s_lshl_b32 s61, {sWAVE}, 11
              s_mov_b32 m0, s61""")
        self.stamp(15)
        self.only_exit('M', pre=True)
        a(f"""s_nop 0
              buffer_load_dwordx4 v32, {R1}, s59 offen {self.nt()}lds
              s_add_u32 s59, s59, {4*6144}
              s_add_u32 m0, m0, 1024
              s_nop 0
              buffer_load_dwordx4 v33, {R1}, s59 offen {self.nt()}lds""")
        self.only_exit('M')
        a(f"""v_lshrrev_b32 v1, 4, v0
              v_bfe_u32 v2, v0, 2, 2
              v_lshl_add_u32 v3, v1, 2, v2
              v_lshlrev_b32 v34, 8, v3
              v_and_b32 v3, 1, v1
              v_lshlrev_b32 v3, 3, v3
              v_lshl_add_u32 v3, v2, 1, v3
              s_lshl_b32 s61, {sWAVE}, 1
              v_xor_b32 v3, s61, v3
              v_lshl_add_u32 v34, v3, 4, v34
              v_and_b32 v3, 3, v0
              v_lshl_add_u32 v34, v3, 3, v34""")
        self.act_addr('v35', SC, 160, 'v1')
        a(f"""v_lshrrev_b32 v1, 5, v0
              v_lshlrev_b32 v36, 12, v1
              v_bfe_u32 v1, v0, 2, 1
              v_lshl_add_u32 v36, v1, 10, v36
              v_and_b32 v1, 3, v0
              v_lshl_add_u32 v36, v1, 5, v36
              v_bfe_u32 v1, v0, 4, 1
              v_lshl_add_u32 v36, v1, 4, v36
              s_lshl_b32 s60, {sG}, 15
              s_and_b32 s61, {sWAVE}, 3
              s_lshl_b32 s61, s61, 13
              s_add_u32 s60, s60, s61
              s_lshr_b32 s61, {sWAVE}, 2
              s_lshl_b32 s61, s61, 11
              s_add_u32 s60, s60, s61
              s_lshl_b32 s61, {sJ}, 7
              s_add_u32 s60, s60, s61
              s_add_u32 s60, s60, {WS_A1}""")
        ls = self.lab('ms')
        lb = self.lab('mb')
        a(f"""s_cmp_lt_u32 {sWAVE}, 4
              s_cbranch_scc0 {ls}
              s_waitcnt vmcnt(3)""")
        for k in range(4):
            self.unpack(f'v{8+2*k}', f'v{9+2*k}', f'v{24+k}')
        self.ln_stats(8, 'v20', 'v21', 'v22', 16)
        a(f"""s_lshl_b32 s61, {sWAVE}, 3
              s_add_u32 s61, s61, {STAT}
              v_mov_b32 v1, s61
              s_mov_b64 exec, 1
              ds_write_b64 v1, v[20:21]
              s_mov_b64 exec, -1
              s_branch {lb}""")
        a.label(ls)
        a(f"""s_cmp_eq_u32 {sWAVE}, 4
              s_cbranch_scc0 {lb}
              s_waitcnt vmcnt(2)""")
        self.unpack('v8', 'v9', 'v24')
        self.unpack('v10', 'v11', 'v25')
        self.silu4(8, 12)
        a("""v_cvt_pk_bf16_f32 v8, v8, v9
             v_cvt_pk_bf16_f32 v9, v10, v11
             v_and_b32 v4, 15, v0""")
        self.perm_pos_bytes('v5', 'v4', 'v6')
        a(f"""v_lshrrev_b32 v6, 4, v0
              v_mul_u32_u24 v6, 160, v6
              v_add_u32 v5, v5, v6
              v_add_u32 v5, {SC}, v5
              ds_write_b64 v5, v[8:9]""")
        a.label(lb)
        a("""s_waitcnt vmcnt(0) lgkmcnt(0)
             s_barrier""")
        self.stamp(1)
        self.frags(F, 'v34', 2, 8192, 4096)
        a("""ds_read_b128 v[72:75], v35
             ds_read_b128 v[76:79], v35 offset:64
             s_waitcnt lgkmcnt(0)
             v_mfma_f32_16x16x32_bf16 v[4:7], v[64:67], v[72:75], 0
             v_mfma_f32_16x16x32_bf16 v[4:7], v[68:71], v[76:79], v[4:7]""")
        self.tag_ready()
        a(f"""s_mov_b32 exec_lo, 0x00f000f0
              s_mov_b32 exec_hi, 0x00f000f0
              v_mov_b32 v4, v6
              v_mov_b32 v5, v7
              s_mov_b32 exec_lo, 0x00ff00ff
              s_mov_b32 exec_hi, 0x00ff00ff
              v_mov_b32 v6, {sTAG}
              v_mov_b32 v7, 0""")
        self.gstore(4, 'v36', 's60', local=True)
        a("s_mov_b64 exec, -1")
        self.stamp(2)
        lh = self.lab('mh')
        a(f"""s_cmp_eq_u32 {sWAVE}, 0
              s_cbranch_scc0 {lh}
              v_bfe_u32 v1, v0, 1, 2
              v_lshlrev_b32 v1, 3, v1
              v_add_u32 v1, {STAT}, v1
              ds_read_b64 v[20:21], v1
              v_lshlrev_b32 v28, 16, v28
              s_lshl_b32 s59, {sG}, 3
              s_add_u32 s59, s59, {sJ}
              s_lshl_b32 s59, s59, 12
              s_add_u32 s59, s59, {WS_A1}
              v_lshlrev_b32 v2, 4, v0
              s_waitcnt lgkmcnt(0)
              v_rcp_f32 v22, v21""")
        self.ln_elem('v29', 'v28', 'v20', 'v21', 'v22', 'v23', 'v30')
        self.poll('A1', [self.gload(4 + 4 * m, 'v2', 's59', 1024 * m) for m in range(4)],
                  lambda ok: self.check_tags(['v6', 'v10', 'v14', 'v18'], ok), local=['s59'])
        self.stamp(3)
        a("""v_mov_b32 v6, v8
             v_mov_b32 v7, v9
             v_mov_b32 v14, v16
             v_mov_b32 v15, v17""")
        self.red_rows(4)
        self.red_rows(12)
        self.rnd('v4', 'v4')
        self.rnd('v12', 'v12')
        a("v_add_f32 v12, 1.0, v12")
        self.rnd('v12', 'v12')
        a("v_mul_f32 v12, v29, v12")
        self.rnd('v12', 'v12')
        a("v_add_f32 v12, v12, v4")
        self.rows_to_quad('v4', 'v5', 'v12', 'v8')
        a(f"""v_mov_b32 v6, {sTAG}
              v_mov_b32 v7, 0
              s_lshl_b32 s59, {sG}, 3
              s_add_u32 s59, s59, {sJ}
              s_lshl_b32 s59, s59, 7
              s_add_u32 s59, s59, {WS_A2}
              s_mov_b64 exec, 0xff""")
        self.gstore(4, 'v2', 's59')
        a("s_mov_b64 exec, -1")
        self.stamp(4)
        if self.o['MTRIG']:
            a(f"""v_lshlrev_b32 v2, 10, v0
                  s_lshl_b32 s59, {sG}, 13
                  s_add_u32 s59, s59, {WS_B}
                  s_mov_b64 exec, 0xff""")
            self.poll('T', [self.gload(4, 'v2', 's59')], lambda ok: self.check_tags(['v6'], ok), local=['s59'])
            a("s_mov_b64 exec, -1")
        a.label(lh)
        a("s_barrier")
        a(f"""s_cmp_eq_u32 {sJ}, 7
              s_cbranch_scc1 L_ROLE_GA""")
        a(f"""s_mul_i32 s66, {sG}, 7
              s_add_u32 s66, s66, {sJ}""")
        self.srd(44, sWG, 512 * 3584)
        self.srd(48, sWU, 512 * 3584)
        self.srd(52, sWD, 1792 * 1024)
        a(f"""v_lshrrev_b32 v1, 2, v0
              v_mul_u32_u24 v1, 3584, v1
              v_bfe_u32 v2, v0, 4, 1
              v_lshlrev_b32 v2, 1, v2
              v_and_b32 v3, 3, v0
              v_xor_b32 v2, v2, v3
              v_lshl_add_u32 v32, v2, 4, v1
              s_lshl_b32 s59, {sWAVE}, 6
              s_mul_i32 s59, s59, 3584
              s_lshl_b32 s61, s66, 6
              s_add_u32 s59, s59, s61
              s_mov_b32 s60, s59
              s_lshl_b32 s61, {sWAVE}, 12
              s_add_u32 s61, s61, {GATE}
              s_mov_b32 m0, s61""")
        self.dma_loop('v32', R1, 's59', 16 * 3584, 4)
        a(f"""s_add_u32 s61, s61, {UP-GATE}
              s_mov_b32 m0, s61""")
        self.dma_loop('v32', R2, 's60', 16 * 3584, 4)
        a(f"""s_lshl_b32 s59, s66, 5
              s_lshl_b32 s61, {sWAVE}, 2
              s_add_u32 s59, s59, s61
              s_lshl_b32 s59, s59, 10
              s_lshl_b32 s61, {sWAVE}, 12
              s_add_u32 s61, s61, {DOWN}
              s_mov_b32 m0, s61
              s_and_b32 s62, {sWAVE}, 1
              s_lshl_b32 s62, s62, 3""")
        for n in range(4):
            a(f"""s_add_u32 s63, s62, {2*n}
                  v_xor_b32 v1, s63, v0
                  v_lshlrev_b32 v{40+n}, 4, v1""")
        for n in range(4):
            a(f"""buffer_load_dwordx4 v{40+n}, {R3}, s59 offen {self.nt()}lds
                  s_add_u32 s59, s59, 1024
                  s_add_u32 m0, m0, 1024
                  s_nop 0""")
        a(f"""v_lshrrev_b32 v1, 4, v0
              v_bfe_u32 v2, v0, 2, 2
              v_lshl_add_u32 v3, v1, 2, v2
              v_lshlrev_b32 v33, 6, v3
              v_and_b32 v3, 1, v1
              s_and_b32 s61, {sWAVE}, 1
              v_xor_b32 v3, s61, v3
              v_lshl_add_u32 v33, v3, 5, v33
              v_and_b32 v3, 3, v0
              v_lshl_add_u32 v33, v3, 3, v33
              s_bfe_u32 s61, {sWAVE}, 0x10001
              s_lshl_b32 s61, s61, 15
              s_add_u32 s61, s61, {GATE}
              v_add_u32 v33, s61, v33""")
        for t in range(4):
            a(f"""v_lshl_add_u32 v3, v1, 2, v2
                  v_lshlrev_b32 v4, 10, v3
                  v_and_b32 v3, 7, v3
                  v_lshlrev_b32 v3, 1, v3
                  s_lshl_b32 s61, {sWAVE}, 3
                  s_add_u32 s61, s61, {2*t}
                  v_xor_b32 v3, s61, v3
                  v_lshl_add_u32 v4, v3, 4, v4
                  v_and_b32 v3, 3, v0
                  v_lshl_add_u32 v4, v3, 3, v4
                  v_add_u32 v{34+t}, {DOWN}, v4""")
        self.act_addr('v38', H2, 1056, 'v1')
        self.act_addr('v39', GU, 96, 'v1')
        a(f"""v_lshlrev_b32 v44, 4, v0
              s_lshl_b32 s59, {sG}, 2
              s_add_u32 s59, s59, {sWAVE}
              s_lshl_b32 s59, s59, 12
              s_add_u32 s59, s59, {WS_D}""")
        self.perm_pos_bytes('v45', 'v0', 'v1')
        a(f"""s_mul_i32 s61, {sWAVE}, 1056
              s_add_u32 s61, s61, {H2}
              v_add_u32 v45, s61, v45""")
        a(f"""v_and_b32 v1, 3, v0
              v_mul_u32_u24 v46, 96, v1
              v_lshrrev_b32 v1, 4, v0
              v_lshl_add_u32 v46, v1, 4, v46
              s_and_b32 s61, {sWAVE}, 1
              s_lshl_b32 s61, s61, 3
              s_bfe_u32 s62, {sWAVE}, 0x10001
              s_mul_i32 s62, s62, 384
              s_add_u32 s61, s61, s62
              s_add_u32 s61, s61, {GU}
              v_add_u32 v46, s61, v46""")
        a(f"""v_bfe_u32 v1, v0, 2, 2
              v_lshlrev_b32 v1, 1, v1
              v_lshrrev_b32 v2, 5, v0
              v_add_u32 v1, v1, v2
              v_mul_u32_u24 v47, {56*128}, v1
              v_and_b32 v1, 3, v0
              v_lshl_add_u32 v47, v1, 5, v47
              v_bfe_u32 v1, v0, 4, 1
              v_lshl_add_u32 v47, v1, 4, v47
              s_mul_i32 s63, {sWAVE}, {8*56*128}
              s_lshl_b32 s61, s66, 7
              s_add_u32 s63, s63, s61
              s_add_u32 s63, s63, {WS_E}""")
        self.sel_consts()
        self.tagbytes(48)
        a("""s_waitcnt vmcnt(0)
             s_barrier""")
        self.stamp(5)
        for t in range(4):
            for h in range(2):
                q = 128 + 4 * t + 2 * h
                a(f"ds_read_b64_tr_b16 v[{q}:{q+1}], v{34+t} offset:{16384*h}")
        lw = self.lab('mw')
        a(f"""s_cmp_lt_u32 {sWAVE}, 4
              s_cbranch_scc0 {lw}
              s_waitcnt lgkmcnt(0)""")
        for s in range(16):
            for h in range(2):
                q = F + 4 * s + 2 * h
                a(f"ds_read_b64_tr_b16 v[{q}:{q+1}], v33 offset:{2048*s+1024*h}")
            if s == 6:
                a("s_waitcnt lgkmcnt(0)")
            if s == 13:
                a("s_waitcnt lgkmcnt(0)")
        self.poll('D', [self.gload(4, 'v44', 's59'), self.gload(8, 'v44', 's59', 2048),
                        self.gload(12, 'v44', 's59', 1024), self.gload(16, 'v44', 's59', 3072)],
                  lambda ok: self.check_tags(['v7', 'v11', 'v15', 'v19'], ok), local=['s59'])
        self.stamp(6)
        X = 20
        self.unpack(f'v{X}', f'v{X+1}', 'v4')
        self.unpack(f'v{X+2}', f'v{X+3}', 'v5')
        self.unpack(f'v{X+4}', f'v{X+5}', 'v12')
        self.unpack(f'v{X+6}', f'v{X+7}', 'v13')
        self.ln_stats(X, 'v52', 'v53', 'v54', 28)
        csrc = ['v6', 'v6', 'v8', 'v8', 'v14', 'v14', 'v16', 'v16']
        ssrc = ['v9', 'v9', 'v10', 'v10', 'v17', 'v17', 'v18', 'v18']
        for k in range(8):
            x = f'v{X+k}'
            self.ln_elem(x, x, 'v52', 'v53', 'v54', 'v28', 'v29')
            ext = (lambda d, s: f"v_lshlrev_b32 {d}, 16, {s}") if k % 2 == 0 else (lambda d, s: f"v_and_b32 {d}, 0xffff0000, {s}")
            a(ext('v28', csrc[k]))
            a(ext('v29', ssrc[k]))
            a(f"v_mul_f32 {x}, {x}, v28")
            self.rnd(x, x)
            a(f"v_add_f32 {x}, {x}, v29")
        a(f"""v_cvt_pk_bf16_f32 v4, v{X}, v{X+1}
              v_cvt_pk_bf16_f32 v5, v{X+2}, v{X+3}
              v_cvt_pk_bf16_f32 v6, v{X+4}, v{X+5}
              v_cvt_pk_bf16_f32 v7, v{X+6}, v{X+7}
              ds_write_b64 v45, v[4:5]
              ds_write_b64 v45, v[6:7] offset:512""")
        a.label(lw)
        a("""s_waitcnt lgkmcnt(0)
             s_barrier""")
        self.stamp(7)
        lg = self.lab('mg')
        a(f"""s_cmp_lt_u32 {sWAVE}, 4
              s_cbranch_scc0 {lg}""")
        self.gemv16(4, F, 'v38', 144)
        a("""v_cvt_pk_bf16_f32 v8, v4, v5
             v_cvt_pk_bf16_f32 v9, v6, v7
             s_mov_b32 exec_lo, 0x000f000f
             s_mov_b32 exec_hi, 0x000f000f
             ds_write_b64 v46, v[8:9]
             s_mov_b64 exec, -1""")
        a.label(lg)
        a("""s_waitcnt lgkmcnt(0)
             s_barrier
             ds_read_b128 v[4:7], v39
             ds_read_b128 v[8:11], v39 offset:384
             s_waitcnt lgkmcnt(0)""")
        for k in range(4):
            self.unpack('v12', 'v13', f'v{4+k}')
            self.unpack('v14', 'v15', f'v{8+k}')
            a(f"""v_max_f32 v12, 0, v12
                  v_max_f32 v13, 0, v13
                  v_mul_f32 v12, v12, v14
                  v_mul_f32 v13, v13, v15
                  v_cvt_pk_bf16_f32 v{16+k}, v12, v13""")
        D = [4, 8, 12, 20]
        for t in range(4):
            a(f"v_mfma_f32_16x16x32_bf16 v[{D[t]}:{D[t]+3}], v[{128+4*t}:{131+4*t}], v[16:19], 0")
        self.select_tiles(D)
        self.steal(4, 48)
        self.gstore(4, 'v47', 's63')
        self.stamp(8)
        self.stamps_out(16)
        a("s_endpgm")

        a.label("L_ROLE_GA")
        S = 131072
        self.srd(48, sC, 4096)
        lc = self.lab('gc')
        a(f"""s_cmp_lt_u32 {sWAVE}, 4
              s_cbranch_scc0 {lc}
              s_lshl_b32 s61, {sWAVE}, 10
              v_lshlrev_b32 v1, 3, v0
              buffer_load_dwordx2 v[24:25], v1, {R2}, s61 offen
              buffer_load_dwordx2 v[26:27], v1, {R2}, s61 offen offset:512""")
        a.label(lc)
        self.dma_off_p128('v32', 6144, 'v1', 'v2')
        a(f"""s_lshl_b32 s59, {sWAVE}, 6
              s_mul_i32 s59, s59, 6144
              s_lshl_b32 s61, {sG}, 7
              s_add_u32 s59, s59, s61
              s_add_u32 s59, s59, 2048
              s_lshl_b32 s61, {sWAVE}, 13
              s_add_u32 s61, s61, {GATE}
              s_mov_b32 m0, s61""")
        self.dma_loop('v32', R1, 's59', 8 * 6144, 8)
        lc2 = self.lab('gc2')
        a(f"""s_cmp_lt_u32 {sWAVE}, 4
              s_cbranch_scc0 {lc2}
              s_waitcnt vmcnt(8)""")
        self.perm_pos_bytes('v5', 'v0', 'v6')
        a(f"""s_mul_i32 s61, {sWAVE}, 1056
              s_add_u32 s61, s61, {S}
              v_add_u32 v5, s61, v5""")
        for hf in range(2):
            self.unpack('v8', 'v9', f'v{24+2*hf}')
            self.unpack('v10', 'v11', f'v{25+2*hf}')
            self.silu4(8, 12)
            a(f"""v_cvt_pk_bf16_f32 v8, v8, v9
                  v_cvt_pk_bf16_f32 v9, v10, v11
                  ds_write_b64 v5, v[8:9] offset:{512*hf}""")
        a.label(lc2)
        a(f"s_lshl_b32 s61, {sWAVE}, 5")
        self.tr_addr_p128('v33', 's61', GATE, 'v1', 'v2')
        self.act_addr('v35', S, 1056, 'v1')
        a(f"""v_lshrrev_b32 v1, 5, v0
              v_lshlrev_b32 v36, 10, v1
              v_bfe_u32 v1, v0, 2, 1
              v_lshl_add_u32 v36, v1, 7, v36
              v_and_b32 v1, 3, v0
              v_lshl_add_u32 v36, v1, 5, v36
              v_bfe_u32 v1, v0, 4, 1
              v_lshl_add_u32 v36, v1, 4, v36
              s_lshl_b32 s59, {sG}, 13
              s_lshl_b32 s61, {sWAVE}, 11
              s_add_u32 s59, s59, s61
              s_add_u32 s59, s59, {WS_ML}""")
        self.sel_consts()
        self.tagbytes(28)
        a("""s_waitcnt vmcnt(0) lgkmcnt(0)
             s_barrier""")
        le = self.lab('ge')
        a(f"""s_cmp_lt_u32 {sWAVE}, 4
              s_cbranch_scc0 {le}""")
        for s in range(16):
            for h in range(2):
                q = F + 4 * s + 2 * h
                a(f"ds_read_b64_tr_b16 v[{q}:{q+1}], v33 offset:{4096*s+2048*h}")
            if s in (6, 13):
                a("s_waitcnt lgkmcnt(0)")
        a("s_waitcnt lgkmcnt(0)")
        self.gemv16(4, F, 'v35', 144)
        a("""s_mov_b32 exec_lo, 0x00f000f0
             s_mov_b32 exec_hi, 0x00f000f0""")
        for r in range(4):
            a(f"v_mov_b32 v{4+r}, 0")
        a("""s_mov_b32 exec_lo, 0x00ff00ff
             s_mov_b32 exec_hi, 0x00ff00ff""")
        self.steal(4, 28)
        self.gstore(4, 'v36', 's59')
        a("s_mov_b64 exec, -1")
        a.label(le)
        self.stamp(5)
        self.stamps_out(16)
        a("s_endpgm")

    def role_w(self):
        a = self.a
        WQ, WO, H, O = 0, 65536, 131072, 135296
        F = 64
        a.label("L_ROLE_W")
        a(f"s_sub_u32 s56, {sJ}, 8")
        self.srd(44, sWQ, 512 * 8192)
        self.dma_off_p128('v32', 8192, 'v1', 'v2')
        a(f"""s_lshl_b32 s59, {sWAVE}, 19
              s_lshl_b32 s61, {sG}, 10
              s_add_u32 s59, s59, s61
              s_lshl_b32 s61, s56, 7
              s_add_u32 s59, s59, s61
              s_lshl_b32 s61, {sWAVE}, 13
              s_mov_b32 m0, s61""")
        self.stamp(15)
        self.only_exit('W', pre=True)
        self.dma_loop('v32', R1, 's59', 8 * 8192, 8)
        self.only_exit('W')
        self.srd(52, sX, 4096)
        a(f"""v_bfe_u32 v1, v0, 1, 2
              v_lshlrev_b32 v1, 10, v1
              v_and_b32 v2, 1, v0
              v_lshl_add_u32 v1, v2, 3, v1
              v_lshrrev_b32 v2, 4, v0
              v_lshl_add_u32 v1, v2, 1, v1
              s_lshl_b32 s61, s56, 7
              s_lshl_b32 s62, {sWAVE}, 4
              s_add_u32 s61, s61, s62
              buffer_load_ushort v60, v1, {R3}, s61 offen""")
        a(f"""s_lshl_b32 s61, {sWAVE}, 6
              v_add_u32 v1, s61, v0
              v_lshlrev_b32 v33, 4, v1
              v_lshrrev_b32 v2, 3, v1
              v_lshlrev_b32 v2, 1, v2
              v_and_b32 v3, 1, v1
              v_add_u32 v2, v2, v3""")
        self.perm_pos_bytes('v34', 'v2', 'v3')
        a(f"""v_bfe_u32 v3, v1, 1, 2
              v_mul_u32_u24 v3, 1056, v3
              v_add_u32 v34, v34, v3
              v_add_u32 v34, {H}, v34""")
        a(f"""v_bfe_u32 v2, v1, 4, 2
              v_lshlrev_b32 v2, 5, v2
              v_bfe_u32 v3, v1, 6, 1
              v_lshl_add_u32 v2, v3, 4, v2
              v_and_b32 v3, 15, v1
              v_add_u32 v2, v2, v3""")
        self.perm_pos_bytes('v35', 'v2', 'v3')
        a(f"""v_lshrrev_b32 v3, 7, v1
              v_mul_u32_u24 v3, 1056, v3
              v_add_u32 v35, v35, v3
              v_add_u32 v35, {O}, v35""")
        a(f"""s_and_b32 s61, {sWAVE}, 3
              s_lshl_b32 s61, s61, 5""")
        self.tr_addr_p128('v36', 's61', WQ, 'v1', 'v2')
        a(f"v_add_u32 v37, {WO-WQ}, v36")
        self.act_addr('v38', H, 1056, 'v1')
        a(f"v_add_u32 v39, {O-H}, v38")
        a(f"""v_and_b32 v1, 3, v0
              v_lshlrev_b32 v40, 6, v1
              v_lshrrev_b32 v1, 4, v0
              v_lshl_add_u32 v40, v1, 4, v40
              s_lshl_b32 s57, {sG}, 3
              s_add_u32 s57, s57, s56
              s_lshl_b32 s57, s57, 2
              s_add_u32 s57, s57, {sWAVE}
              s_lshl_b32 s57, s57, 8
              s_add_u32 s57, s57, {WS_B}
              s_mov_b32 s58, {WS_A2}""")
        self.tag_ready()
        self.stamp(1)
        lw1 = self.lab('w1')

        def first():
            self.stamp(2)
            a("s_barrier")
            a(f"""s_cmp_lt_u32 {sWAVE}, 4
                  s_cbranch_scc0 {lw1}""")
            for s in range(16):
                for h in range(2):
                    q = F + 4 * s + 2 * h
                    a(f"ds_read_b64_tr_b16 v[{q}:{q+1}], v36 offset:{4096*s+2048*h}")
                if s in (6, 13):
                    a("s_waitcnt lgkmcnt(0)")
            a.label(lw1)
        self.poll('A2', [self.gload(4, 'v33', 's58')],
                  lambda ok: self.check_tags(['v6'], ok), first_extra=first)
        a("""ds_write_b64 v34, v[4:5]
             s_waitcnt lgkmcnt(0)
             s_barrier""")
        self.stamp(3)
        self.srd(44, sWO, 4096 * 1024)
        self.dma_off_p128('v32', 1024, 'v1', 'v2')
        a(f"""s_lshl_b32 s59, {sG}, 9
              s_lshl_b32 s61, {sWAVE}, 6
              s_add_u32 s59, s59, s61
              s_lshl_b32 s59, s59, 10
              s_lshl_b32 s61, s56, 7
              s_add_u32 s59, s59, s61
              s_lshl_b32 s61, {sWAVE}, 13
              s_add_u32 s61, s61, {WO}
              s_mov_b32 m0, s61""")
        lq = self.lab('wqskip')
        lq2 = self.lab('wq2')
        a(f"""s_cmp_lt_u32 {sWAVE}, 4
              s_cbranch_scc0 {lq}""")
        self.gemv16(4, F, 'v38', 128)
        a(f"""v_cvt_pk_bf16_f32 v8, v4, v5
              v_cvt_pk_bf16_f32 v9, v6, v7
              v_mov_b32 v10, {sTAG}
              v_mov_b32 v11, 0
              s_mov_b32 exec_lo, 0x000f000f
              s_mov_b32 exec_hi, 0x000f000f""")
        self.gstore(8, 'v40', 's57', local=True)
        a("s_mov_b64 exec, -1")
        a.label(lq)
        self.stamp(4)
        self.dma_loop('v32', R1, 's59', 8 * 1024, 8)
        a(f"""s_lshl_b32 s58, {sG}, 13
              s_add_u32 s58, s58, {WS_C}
              v_lshrrev_b32 v1, 5, v0
              v_lshlrev_b32 v41, 10, v1
              v_and_b32 v1, 3, v0
              v_lshl_add_u32 v41, v1, 5, v41
              v_bfe_u32 v1, v0, 4, 1
              v_lshl_add_u32 v41, v1, 4, v41
              s_lshl_b32 s57, s56, 13
              s_lshl_b32 s61, {sWAVE}, 11
              s_add_u32 s57, s57, s61
              s_lshl_b32 s61, {sG}, 7
              s_add_u32 s57, s57, s61
              s_add_u32 s57, s57, {WS_C2}
              v_lshlrev_b32 v42, 4, v0
              s_lshl_b32 s62, s56, 3
              s_add_u32 s62, s62, {sWAVE}
              s_lshl_b32 s62, s62, 10
              s_add_u32 s63, s62, {WS_ML}
              s_add_u32 s62, s62, {WS_C2}
              ; D publish: ((g*4 + b)*2 + u)*2048 + Q*16, Q = 16i + 2w + q
              v_bfe_u32 v1, v0, 1, 2
              v_lshlrev_b32 v43, 12, v1
              v_and_b32 v1, 1, v0
              v_lshl_add_u32 v43, v1, 4, v43
              s_lshl_b32 s66, {sG}, 14
              s_lshl_b32 s61, s56, 8
              s_add_u32 s66, s66, s61
              s_lshl_b32 s61, {sWAVE}, 5
              s_add_u32 s66, s66, s61
              s_add_u32 s66, s66, {WS_D}""")
        self.sel_consts()
        self.tagbytes(48)
        lw2 = self.lab('w2')

        def first2():
            self.stamp(5)
            a("s_barrier")
            a(f"""s_cmp_lt_u32 {sWAVE}, 4
                  s_cbranch_scc0 {lw2}""")
            for s in range(16):
                for h in range(2):
                    q = F + 4 * s + 2 * h
                    a(f"ds_read_b64_tr_b16 v[{q}:{q+1}], v37 offset:{4096*s+2048*h}")
                if s in (6, 13):
                    a("s_waitcnt lgkmcnt(0)")
            a.label(lw2)
        self.poll('C', [self.gload(4, 'v33', 's58')], lambda ok: self.check_tags(['v6'], ok), first_extra=first2, local=['s58'])
        a("""ds_write_b64 v35, v[4:5]
             s_waitcnt lgkmcnt(0)
             s_barrier""")
        self.stamp(6)
        lo = self.lab('wo')
        a(f"""s_cmp_lt_u32 {sWAVE}, 4
              s_cbranch_scc0 {lo}""")
        self.gemv16(4, F, 'v39', 128)
        self.steal(4, 48)
        a("""s_mov_b32 exec_lo, 0x000f000f
             s_mov_b32 exec_hi, 0x000f000f""")
        self.gstore(4, 'v41', 's57')
        a("s_mov_b64 exec, -1")
        a.label(lo)
        self.stamp(7)

        def stolen_check(q):
            def chk(ok):
                self.stolen_tag(q, 'v12', 'v13')
                self.check_tags(['v12'], ok)
            return chk
        self.poll('ML', [self.gload(4, 'v42', 's63')], stolen_check(4))
        for r in range(4):
            a(f"v_and_b32 v{4+r}, 0xffffff00, v{4+r}")
        for r in range(4):
            a(f"v_add_f32_dpp v{4+r}, v{4+r}, v{4+r} row_ror:8 row_mask:0xf bank_mask:0xf")
        for r in range(4):
            self.rnd(f'v{4+r}', f'v{4+r}')
        a("""s_mov_b32 exec_lo, 0
             s_mov_b32 exec_hi, 0x0000ffff""")
        for r in range(4):
            a(f"v_add_f32 v{4+r}, 1.0, v{4+r}")
        for r in range(4):
            self.rnd(f'v{4+r}', f'v{4+r}')
        a("s_mov_b64 exec, -1")
        a("""v_cvt_pk_bf16_f32 v8, v4, v5
             v_cvt_pk_bf16_f32 v9, v6, v7""")
        a("""v_permlane16_swap_b32 v4, v5
             v_permlane16_swap_b32 v6, v7
             v_permlane32_swap_b32 v4, v6
             v_permlane32_swap_b32 v5, v7
             v_mov_b32 v56, v4
             v_mov_b32 v57, v7""")
        a("""v_mov_b32 v10, v8
             v_mov_b32 v11, v9
             v_mov_b32 v14, v8
             v_mov_b32 v15, v9
             v_mov_b32 v16, 0
             v_mov_b32 v17, 0
             v_mov_b32 v18, 0
             v_mov_b32 v19, 0
             v_permlane32_swap_b32 v10, v16
             v_permlane32_swap_b32 v11, v17
             v_permlane16_swap_b32 v14, v18
             v_permlane16_swap_b32 v15, v19""")
        a(f"""v_mov_b32 v58, v16
              v_mov_b32 v20, v17
              v_mov_b32 v21, v18
              v_mov_b32 v22, v19
              v_mov_b32 v23, {sTAG}
              s_mov_b64 exec, 0xff""")
        self.gstore(20, 'v43', 's66', 2048, local=True)
        a("s_mov_b64 exec, -1")
        a("v_lshlrev_b32 v60, 16, v60")
        self.stamp(8)
        self.poll('C2', [self.gload(4, 'v42', 's62')], stolen_check(4))
        self.stamp(9)
        for r in range(4):
            a(f"v_and_b32 v{4+r}, 0xffffff00, v{4+r}")
        self.red_rows(4)
        self.rnd('v4', 'v4')
        a("v_mul_f32 v4, v56, v4")
        self.rnd('v4', 'v4')
        a("v_add_f32 v4, v60, v4")
        self.rnd('v59', 'v4')
        self.rows_to_quad('v8', 'v9', 'v59', 'v12')
        a(f"""v_mov_b32 v10, v58
              v_mov_b32 v11, {sTAG}
              s_mov_b64 exec, 0xff""")
        self.gstore(8, 'v43', 's66', local=True)
        a("s_mov_b64 exec, -1")
        self.stamp(10)
        end = self.lab('wend')
        a(f"""s_cmp_eq_u32 {sWAVE}, {sG}
              s_cbranch_scc0 {end}
              s_lshl_b32 s59, s56, 3
              s_add_u32 s59, s59, {sG}
              s_mul_i32 s59, s59, {56*128}
              s_add_u32 s59, s59, {WS_E}
              s_add_u32 s61, s59, 4096""")
        loads = []
        for m in range(7):
            if m < 4:
                loads.append(self.gload(64 + 4 * m, 'v42', 's59', 1024 * m))
            else:
                loads.append(self.gload(64 + 4 * m, 'v42', 's61', 1024 * (m - 4)))

        def echk(ok):
            for m in range(7):
                self.stolen_tag(64 + 4 * m, f'v{12+m}', 'v20')
            self.check_tags([f'v{12+m}' for m in range(7)], ok)
        self.poll('E', loads, echk)
        self.stamp(11)
        for m in range(7):
            for r in range(4):
                a(f"v_and_b32 v{64+4*m+r}, 0xffffff00, v{64+4*m+r}")
        for m in range(1, 7):
            for r in range(4):
                a(f"v_add_f32 v{64+r}, v{64+r}, v{64+4*m+r}")
        self.red_rows(64)
        self.rnd('v64', 'v64')
        a("v_mul_f32 v64, v57, v64")
        self.rnd('v64', 'v64')
        a("""v_add_f32 v64, v59, v64
             v_cvt_pk_bf16_f32 v64, v64, v64""")
        self.srd(44, sOUT, 4096)
        a(f"""v_bfe_u32 v1, v0, 1, 2
              v_lshlrev_b32 v1, 10, v1
              v_and_b32 v2, 1, v0
              v_lshl_add_u32 v1, v2, 3, v1
              v_lshrrev_b32 v2, 4, v0
              v_lshl_add_u32 v1, v2, 1, v1
              s_lshl_b32 s61, s56, 7
              s_lshl_b32 s59, {sG}, 4
              s_add_u32 s61, s61, s59
              s_mov_b32 exec_lo, 0x00ff00ff
              s_mov_b32 exec_hi, 0x00ff00ff
              buffer_store_short v64, v1, {R1}, s61 offen
              s_mov_b64 exec, -1""")
        noep = self.lab('noep')
        a(f"""s_cmp_eq_u32 s2, 64
              s_cbranch_scc0 {noep}
              v_mov_b32 v1, 0
              v_mov_b32 v2, {sTAG}
              s_mov_b64 exec, 1
              buffer_store_dword v2, v1, {WSR}, 0 offen offset:{WS_EPOCH}
              s_mov_b64 exec, -1""")
        a.label(noep)
        self.stamp(12)
        a.label(end)
        self.stamps_out(16)
        a("s_endpgm")

    def build(self):
        self.prologue()
        self.role_m()
        self.role_w()
        self.role_k()
        self.role_v()
        self.a.label("L_END")
        self.a("s_endpgm")
        body = self.a.finalize()
        vg = 256 if self.o['PROF'] else 208
        hdr = HEADER.format(lds=LDS_BYTES)
        return hdr + f""".amdgcn_target "amdgcn-amd-amdhsa--gfx950"
.text
.globl {NAME}
.p2align 8
.type {NAME},@function
{NAME}:
{body}.section .rodata,"a"
.p2align 6
.amdhsa_kernel {NAME}
  .amdhsa_next_free_vgpr {vg}
  .amdhsa_next_free_sgpr 102
  .amdhsa_accum_offset {vg}
  .amdhsa_group_segment_fixed_size 0
  .amdhsa_kernarg_size 112
  .amdhsa_user_sgpr_count 2
  .amdhsa_user_sgpr_kernarg_segment_ptr 1
  .amdhsa_system_sgpr_workgroup_id_x 1
.end_amdhsa_kernel
"""


HEADER = """; adaLN + sliding-window GQA decode attention + ReGLU MLP, one persistent launch (256 workgroups, 1 per CU).
; @launch grid=(256,1,1) block=(512,1,1) lds={lds}
"""

if __name__ == '__main__':
    opt = {}
    out = None
    for arg in sys.argv[1:]:
        if '=' in arg:
            k, v = arg.split('=', 1)
            opt[k] = int(v) if v.lstrip('-').isdigit() else v
        else:
            out = arg
    g = Gen(opt)
    txt = g.build()
    if out:
        open(out, 'w').write(txt)
    else:
        sys.stdout.write(txt)
    sys.stderr.write(f"instructions: {g.a.count()}\n")
```

```python
import sys, os
sys.path.insert(0, os.path.dirname(os.path.abspath(__file__)))
import gen as G1
from gen import *

OPT2 = dict(WWAIT=0, KWAIT=1, VWAIT=1, MTRIG=1, GTRIG=0, PF=0, KSLEEP=0, VSLEEP=0, WSLEEP=0, TOUCH=1, KWIN=0, VWIN=0, WWIN=0, BARDMA=1, VN1=0, WO1=0, MG1=0)


class Gen2(Gen):
    def __init__(self, opt):
        o = dict(OPT2)
        o.update(opt)
        super().__init__(o)

    def kwait(self):
        a = self.a
        a("s_waitcnt lgkmcnt(0)")
        if self.o['PROF']:
            a("s_mov_b32 s70, s96")
            for k in range(1, 16):
                a(f"s_mov_b32 s{70+k}, 0")
            a(f"""s_cmp_eq_u32 {sWAVE}, 0
                  s_cselect_b32 s99, 1, 0
                  s_cmp_eq_u32 {sWAVE}, 7
                  s_cselect_b32 s99, 1, s99""")
            if self.role == 'W':
                a(f"""s_cmp_eq_u32 {sWAVE}, {sG}
                      s_cselect_b32 s99, 1, s99""")
            self.stamp(14)
        a(f"s_load_dword {sE}, s[{sWS}:{sWS+1}], {WS_EPOCH}")
        self.srd(40, sWS, WS_SIZE)

    def code_prefetch(self):
        if not self.o['PF']:
            return
        a = self.a
        l = self.lab('pf')
        lp = self.lab('pc')
        a(f"""s_cmp_eq_u32 {sWAVE}, 7
              s_cbranch_scc0 {l}
              s_getpc_b64 s[56:57]""")
        a.label(lp)
        a(f"""s_lshl_b32 s58, {sJ}, 10
              s_sub_u32 s56, s56, {lp}-L_START
              s_subb_u32 s57, s57, 0
              v_lshl_add_u32 v1, v0, 4, s58
              v_min_u32 v1, (L_END-L_START-16)&0xfffffff0, v1
              v_mov_b32 v3, s57
              v_add_co_u32 v2, vcc, s56, v1
              v_addc_co_u32 v3, vcc, 0, v3, vcc
              global_load_dwordx4 v[200:203], v[2:3], off""")
        a.label(l)

    def st_local(self, q, voff, soff, imm=0):
        i = f" offset:{imm}" if imm else ""
        if self.o['LOCAL']:
            self.a(f"""s_or_b32 s39, {soff}, {WS_LOC}
                       buffer_store_dwordx4 v[{q}:{q+3}], {voff}, {WSR}, s39 offen{i}""")
        else:
            self.a(f"buffer_store_dwordx4 v[{q}:{q+3}], {voff}, {WSR}, {soff} offen{i} {self.o['ST']}")

    def st_global(self, q, voff, soff, imm=0):
        i = f" offset:{imm}" if imm else ""
        if self.o['LOCAL'] and not self.o.get('NOGLOBAL'):
            self.a(f"buffer_store_dwordx4 v[{q}:{q+3}], {voff}, {WSR}, {soff} offen{i} {self.o['ST']}")

    def silu1(self, x, t):
        a = self.a
        e, r, q, u = [f"v{t+i}" for i in range(4)]
        a(f"""s_mov_b32 s94, 0xbfb8aa3b
              s_mov_b32 s95, 0xb2a57060
              v_mul_f32 {e}, 0xbfb8aa3b, {x}
              v_fma_f32 {r}, {x}, s94, -{e}
              v_fma_f32 {r}, {x}, s95, {r}
              v_exp_f32 {e}, {e}
              v_mul_f32 {r}, 0x3f317218, {r}
              v_add_f32 {r}, 1.0, {r}
              v_mul_f32 {e}, {e}, {r}
              v_add_f32 {e}, 1.0, {e}
              v_rcp_f32 {r}, {e}
              v_cmp_eq_f32 vcc, 0x7f800000, {e}
              v_mul_f32 {q}, {x}, {r}
              v_fma_f32 {u}, -{q}, {e}, {x}
              v_fma_f32 {u}, {u}, {r}, {q}
              v_cndmask_b32 {x}, {u}, {q}, vcc""")

    def wave_sum2(self, v, w, t, u):
        a = self.a
        for pat in ("quad_perm:[1,0,3,2]", "quad_perm:[2,3,0,1]", "row_half_mirror", "row_mirror"):
            a(f"v_add_f32_dpp {v}, {v}, {v} {pat} row_mask:0xf bank_mask:0xf")
            a(f"v_add_f32_dpp {w}, {w}, {w} {pat} row_mask:0xf bank_mask:0xf")
        a(f"""v_mov_b32 {t}, {v}
              v_mov_b32 {u}, {w}
              v_permlane16_swap_b32 {v}, {t}
              v_permlane16_swap_b32 {w}, {u}
              v_add_f32 {v}, {v}, {t}
              v_add_f32 {w}, {w}, {u}
              v_mov_b32 {t}, {v}
              v_mov_b32 {u}, {w}
              v_permlane32_swap_b32 {v}, {t}
              v_permlane32_swap_b32 {w}, {u}
              v_add_f32 {v}, {v}, {t}
              v_add_f32 {w}, {w}, {u}""")

    def ln_stats_pivot(self, x, M2, SD2, RC2, t):
        a = self.a
        t0, t1, t2, t3 = [f"v{t+i}" for i in range(4)]
        a(f"v_readfirstlane_b32 s39, v{x}")
        D = t + 4
        for k in range(8):
            a(f"v_subrev_f32 v{D+k}, s39, v{x+k}")
        a(f"""v_add_f32 {t0}, v{D}, v{D+1}
              v_mul_f32 {t1}, v{D}, v{D}
              v_add_f32 {t2}, v{D+2}, v{D+3}
              v_mul_f32 {t3}, v{D+1}, v{D+1}
              v_add_f32 {t0}, {t0}, {t2}
              v_fmac_f32 {t1}, v{D+2}, v{D+2}
              v_add_f32 {t2}, v{D+4}, v{D+5}
              v_fmac_f32 {t3}, v{D+3}, v{D+3}
              v_add_f32 {t0}, {t0}, {t2}
              v_fmac_f32 {t1}, v{D+4}, v{D+4}
              v_add_f32 {t2}, v{D+6}, v{D+7}
              v_fmac_f32 {t3}, v{D+5}, v{D+5}
              v_add_f32 {t0}, {t0}, {t2}
              v_fmac_f32 {t1}, v{D+6}, v{D+6}
              v_fmac_f32 {t3}, v{D+7}, v{D+7}
              v_add_f32 {t1}, {t1}, {t3}""")
        self.wave_sum2(t0, t1, t2, t3)
        a(f"""v_mul_f32 {t0}, 0x3b000000, {t0}
              v_mul_f32 {t1}, 0x3b000000, {t1}
              v_fma_f32 {t1}, -{t0}, {t0}, {t1}
              v_add_f32 {t0}, s39, {t0}
              v_max_f32 {t1}, 0, {t1}
              v_cvt_pk_bf16_f32 {t1}, {t0}, {t1}
              v_lshlrev_b32 v{M2}, 16, {t1}
              v_and_b32 {t1}, 0xffff0000, {t1}
              v_add_f32 {t1}, 0x3727c5ac, {t1}
              v_mov_b32 v{M2+1}, v{M2}""")
        self.rnd(t1, t1)
        a(f"v_sqrt_f32 {t1}, {t1}")
        self.rnd(f"v{SD2}", t1)
        a(f"""v_rcp_f32 v{RC2}, v{SD2}
              v_mov_b32 v{SD2+1}, v{SD2}
              v_mov_b32 v{RC2+1}, v{RC2}""")

    def pk_rnd(self, p, t):
        self.a(f"""v_cvt_pk_bf16_f32 {t}, v{p}, v{p+1}
                   v_lshlrev_b32 v{p}, 16, {t}
                   v_and_b32 v{p+1}, 0xffff0000, {t}""")

    def prologue(self):
        a = self.a
        a.label("L_START")
        a(f"""s_cmp_ge_u32 s2, 256
              s_cbranch_scc1 L_END
              s_load_dwordx16 s[4:19], s[0:1], 0
              s_load_dwordx8 s[20:27], s[0:1], 64
              s_load_dwordx4 s[28:31], s[0:1], 96""")
        if self.o['PROF']:
            a("s_memrealtime s[96:97]")
        a(f"""v_lshrrev_b32 v1, 6, v0
              v_and_b32 v0, 63, v0
              s_and_b32 {sG}, s2, 7
              s_lshr_b32 {sJ}, s2, 3
              v_readfirstlane_b32 {sWAVE}, v1
              s_cmp_ge_u32 {sJ}, 24
              s_cbranch_scc1 L_ROLE_V
              s_cmp_ge_u32 {sJ}, 16
              s_cbranch_scc1 L_ROLE_K
              s_cmp_ge_u32 {sJ}, 8
              s_cbranch_scc1 L_ROLE_W""")

    def role_v(self):
        a = self.a
        o = self.o
        RED, ST = 131072, 139776
        F = 64
        a.label("L_ROLE_V")
        self.role = 'V'
        a(f"""s_sub_u32 s56, {sJ}, 24
              s_lshr_b32 s57, s56, 1
              s_and_b32 s58, s56, 1
              s_lshl_b32 s60, s57, 3
              s_add_u32 s60, s60, {sG}
              s_lshl_b32 s59, s60, 20
              s_add_u32 s59, s59, {3072*256}
              s_lshl_b32 s61, s58, 7
              s_add_u32 s59, s59, s61
              s_lshl_b32 s61, {sWAVE}, 15
              s_add_u32 s59, s59, s61
              s_lshl_b32 s62, {sWAVE}, 14
              s_mov_b32 m0, s62""")
        self.dma_off_p128('v32', 256, 'v1', 'v2')
        a(f"""v_bfe_u32 v1, v0, 2, 2
              v_lshlrev_b32 v33, 9, v1
              v_lshrrev_b32 v2, 4, v0
              v_lshl_add_u32 v33, v2, 6, v33
              v_and_b32 v3, 3, v0
              v_lshl_add_u32 v33, v3, 4, v33
              s_lshl_b32 s63, s60, 14
              s_add_u32 s63, s63, {WS_S}
              s_lshl_b32 s61, {sWAVE}, 11
              s_add_u32 s63, s63, s61""")
        a(f"""v_mul_u32_u24 v38, 272, v3
              v_lshl_add_u32 v38, v1, 6, v38
              v_lshl_add_u32 v38, v2, 4, v38
              s_mul_i32 s61, {sWAVE}, 1088
              s_add_u32 s61, s61, {RED}
              v_add_u32 v38, s61, v38""")
        a(f"""v_lshlrev_b32 v39, 6, v3
              v_add_u32 v40, {ST}, v39
              s_lshl_b32 s61, {sWAVE}, 3
              v_add_u32 v39, s61, v40
              v_lshl_add_u32 v40, v1, 3, v40
              v_and_b32 v2, 1, v2
              v_lshl_add_u32 v40, v2, 5, v40""")
        for t in range(4):
            self.tr_addr_p128(f'v{34+t}', 32 * t, 's62', 'v1', 'v2')
        a(f"""v_lshrrev_b32 v1, 4, v0
              v_mul_u32_u24 v1, 272, v1
              v_and_b32 v2, 15, v0
              v_lshl_add_u32 v1, v2, 4, v1
              v_add_u32 v41, {RED}, v1
              v_lshlrev_b32 v42, 4, v0
              s_lshl_b32 s66, {sG}, 2
              s_add_u32 s66, s66, s57
              s_lshl_b32 s66, s66, 1
              s_add_u32 s66, s66, s58
              s_lshl_b32 s66, s66, 10
              s_add_u32 s66, s66, {WS_C}""")
        self.kwait()
        self.srd(44, sV, 0x2000000)
        if o['VWAIT']:
            a("s_waitcnt lgkmcnt(0)")
        if o['VSLEEP']:
            a(f"s_sleep {o['VSLEEP']}")
        self.stamp(15)
        self.only_exit('V', pre=True)
        self.code_prefetch()
        if o['VN1']:
            self.dma_loop('v32', R1, 's59', 2048, o['VN1'], win=o['VWIN'])
            self.dma_loop('v32', R1, 's59', 2048, 16 - o['VN1'])
        else:
            self.dma_loop('v32', R1, 's59', 2048, 16, win=o['VWIN'])
        self.only_exit('V')
        self.tag_ready()
        self.stamp(1)

        def first():
            self.stamp(2)
            for s in range(4):
                for t in range(4):
                    for h in range(2):
                        q = F + 16 * s + 4 * t + 2 * h
                        a(f"ds_read_b64_tr_b16 v[{q}:{q+1}], v{34+t} offset:{4096*s+2048*h}")
                if s < 3:
                    a("s_waitcnt lgkmcnt(6)")
        self.poll('S', [self.gload(4, 'v33', 's63'), self.gload(8, 'v33', 's63', 256)],
                  lambda ok: self.check_tags(['v6', 'v10'], ok), first_extra=first, local=['s63'])
        self.stamp(3)
        self.unpack('v12', 'v13', 'v4')
        self.unpack('v14', 'v15', 'v5')
        self.unpack('v16', 'v17', 'v8')
        self.unpack('v18', 'v19', 'v9')
        a("""s_mov_b32 s94, 0x3fb8aa3b
             v_max3_f32 v20, v12, v13, v14
             v_max3_f32 v21, v15, v16, v17
             v_max3_f32 v20, v20, v18, v19
             v_max_f32 v20, v20, v21
             v_max_f32_dpp v20, v20, v20 row_ror:4 row_mask:0xf bank_mask:0xf
             v_max_f32_dpp v20, v20, v20 row_ror:8 row_mask:0xf bank_mask:0xf
             v_mov_b32 v21, v20
             v_permlane16_swap_b32 v20, v21
             v_max_f32 v20, v20, v21
             v_mov_b32 v21, v20
             v_permlane32_swap_b32 v20, v21
             v_max_f32 v20, v20, v21""")
        for k in range(8):
            a(f"v_sub_f32 v{12+k}, v{12+k}, v20")
        for k in range(8):
            a(f"v_mul_f32 v{12+k}, s94, v{12+k}")
        for k in range(8):
            a(f"v_exp_f32 v{12+k}, v{12+k}")
        a("""v_add_f32 v22, v12, v13
             v_add_f32 v23, v14, v15
             v_add_f32 v24, v16, v17
             v_add_f32 v25, v18, v19
             v_add_f32 v22, v22, v23
             v_add_f32 v24, v24, v25
             v_add_f32 v21, v22, v24
             v_add_f32_dpp v21, v21, v21 row_ror:4 row_mask:0xf bank_mask:0xf
             v_add_f32_dpp v21, v21, v21 row_ror:8 row_mask:0xf bank_mask:0xf
             v_mov_b32 v22, v21
             v_permlane16_swap_b32 v21, v22
             v_add_f32 v21, v21, v22
             v_mov_b32 v22, v21
             v_permlane32_swap_b32 v21, v22
             v_add_f32 v21, v21, v22
             s_mov_b64 exec, 0xf
             ds_write_b64 v39, v[20:21]
             s_mov_b64 exec, -1
             s_waitcnt lgkmcnt(0)
             s_barrier
             ds_read_b64 v[22:23], v40
             s_waitcnt lgkmcnt(0)
             v_mov_b32 v24, v22
             v_max_f32_dpp v24, v24, v24 row_ror:4 row_mask:0xf bank_mask:0xf
             v_max_f32_dpp v24, v24, v24 row_ror:8 row_mask:0xf bank_mask:0xf
             v_mov_b32 v25, v24
             v_permlane16_swap_b32 v24, v25
             v_max_f32 v24, v24, v25
             v_sub_f32 v22, v22, v24
             v_sub_f32 v20, v20, v24
             v_mul_f32 v22, s94, v22
             v_mul_f32 v20, s94, v20
             v_exp_f32 v22, v22
             v_exp_f32 v20, v20
             v_mul_f32 v22, v22, v23
             v_add_f32_dpp v22, v22, v22 row_ror:4 row_mask:0xf bank_mask:0xf
             v_add_f32_dpp v22, v22, v22 row_ror:8 row_mask:0xf bank_mask:0xf
             v_mov_b32 v23, v22
             v_permlane16_swap_b32 v22, v23
             v_add_f32 v22, v22, v23
             v_rcp_f32 v22, v22
             v_mul_f32 v20, v20, v22""")
        for k in range(8):
            a(f"v_mul_f32 v{12+k}, v{12+k}, v20")
        for k in range(4):
            a(f"v_cvt_pk_bf16_f32 v{44+k}, v{12+2*k}, v{13+2*k}")
        D = [4, 8, 12, 16]
        rot = ((2, 8), (1, 12), (3, 4))
        done = set()

        def mf(s, t):
            rho = (s - t) & 3
            q = F + 16 * s + 4 * t
            c = f"v[{D[t]}:{D[t]+3}]" if t in done else "0"
            done.add(t)
            a(f"v_mfma_f32_16x16x32_bf16 v[{D[t]}:{D[t]+3}], v[{q}:{q+3}], v[{44+4*rho}:{47+4*rho}], {c}")
        for rho, n in rot:
            for k in range(4):
                a(f"v_mov_b32_dpp v{44+4*rho+k}, v{44+k} row_ror:{n} row_mask:0xf bank_mask:0xf")
        for rho in (0, 2, 1, 3):
            for t in range(4):
                mf((t + rho) & 3, t)
        self.select_tiles(D)
        a("""ds_write_b128 v38, v[4:7]
             s_waitcnt lgkmcnt(0)
             s_barrier""")
        self.stamp(4)
        done = self.lab('vdone')
        a(f"""s_cmp_eq_u32 {sWAVE}, 0
              s_cbranch_scc0 {done}""")
        for w in range(8):
            a(f"ds_read_b128 v[{64+4*w}:{67+4*w}], v41 offset:{1088*w}")
        a(f"""v_mov_b32 v6, {sTAG}
              v_mov_b32 v7, 0""")

        def pk(d, s_):
            a(f"v_pk_add_f32 v[{d}:{d+1}], v[{d}:{d+1}], v[{s_}:{s_+1}]")
        for n, (d, s_) in enumerate(((64, 68), (72, 76), (80, 84), (88, 92))):
            a(f"s_waitcnt lgkmcnt({6-2*n})")
            pk(d, s_)
            pk(d + 2, s_ + 2)
        for d, s_ in ((64, 72), (80, 88), (64, 80)):
            pk(d, s_)
            pk(d + 2, s_ + 2)
        a("""v_cvt_pk_bf16_f32 v4, v64, v65
             v_cvt_pk_bf16_f32 v5, v66, v67""")
        self.gstore(4, 'v42', 's66', local=True)
        a.label(done)
        self.stamp(5)
        self.stamps_out(16)
        a("s_endpgm")

    def role_k(self):
        a = self.a
        o = self.o
        QL, SC2 = 131072, 132224
        F = 64
        a.label("L_ROLE_K")
        self.role = 'K'
        a(f"""s_sub_u32 s56, {sJ}, 16
              s_lshr_b32 s57, s56, 1
              s_and_b32 s58, s56, 1
              s_lshl_b32 s66, {sG}, 3
              s_add_u32 s66, s66, s56
              s_and_b32 s67, s66, 1
              s_lshl_b32 s60, s57, 3
              s_add_u32 s60, s60, {sG}
              s_lshl_b32 s59, s60, 20
              s_add_u32 s59, s59, {3072*256}
              s_lshl_b32 s61, s58, 17
              s_add_u32 s59, s59, s61
              s_lshl_b32 s62, {sWAVE}, 14
              s_add_u32 s59, s59, s62
              s_mov_b32 m0, s62
              v_lshrrev_b32 v1, 4, v0
              v_and_b32 v2, 15, v0""")
        for v in range(4):
            a(f"""v_add_u32 v3, {4*v}, v1
                  v_xor_b32 v3, v3, v2
                  v_lshlrev_b32 v3, 4, v3
                  v_lshl_add_u32 v{32+v}, v1, 8, v3""")
        a("""v_and_b32 v4, 3, v2
             v_xor_b32 v4, v4, v1
             v_and_b32 v5, 12, v2
             v_lshlrev_b32 v6, 8, v2
             v_add_u32 v6, s62, v6""")
        for t in range(4):
            a(f"""v_xor_b32 v3, {4*t}, v5
                  v_add_u32 v3, v3, v4
                  v_lshl_add_u32 v{36+t}, v3, 4, v6""")
        a(f"""s_lshl_b32 s61, {sWAVE}, 6
              v_add_u32 v5, s61, v0
              v_lshrrev_b32 v6, 2, v5
              v_lshlrev_b32 v6, 8, v6
              v_and_b32 v7, 3, v5
              v_lshl_add_u32 v40, v7, 4, v6
              v_lshrrev_b32 v6, 5, v5
              v_mul_u32_u24 v6, 288, v6
              v_and_b32 v7, 31, v5
              v_lshl_add_u32 v6, v7, 3, v6
              v_add_u32 v41, {QL}, v6
              s_lshl_b32 s69, {sG}, 13
              s_lshl_b32 s61, s57, 6
              s_add_u32 s69, s69, s61
              s_add_u32 s69, s69, {WS_B}""")
        self.act_addr('v42', QL, 288, 'v5')
        a(f"""v_bfe_u32 v5, v0, 2, 2
              v_lshl_add_u32 v5, v5, 2, v1
              v_lshlrev_b32 v5, 6, v5
              v_and_b32 v6, 3, v0
              v_lshl_add_u32 v43, v6, 4, v5
              s_lshl_b32 s63, s60, 14
              s_add_u32 s63, s63, {WS_S}
              s_lshl_b32 s61, s58, 13
              s_add_u32 s63, s63, s61
              s_lshl_b32 s61, {sWAVE}, 10
              s_add_u32 s63, s63, s61""")
        a(f"""s_lshl_b32 s61, {sWAVE}, 10
              s_lshl_b32 s68, s67, 9
              s_add_u32 s68, s68, s61
              v_lshlrev_b32 v7, 3, v0""")
        self.kwait()
        self.srd(48, sC, 4096)
        self.srd(44, sK, 0x2000000)
        skipc = self.lab('kc')
        a(f"""s_cmp_lt_u32 {sWAVE}, 4
              s_cbranch_scc0 {skipc}
              buffer_load_dwordx2 v[24:25], v7, {R2}, s68 offen""")
        a.label(skipc)
        if o['KWAIT']:
            a("s_waitcnt lgkmcnt(0)")
        if o['KSLEEP']:
            a(f"s_sleep {o['KSLEEP']}")
        self.stamp(15)
        self.only_exit('K', pre=True)
        self.code_prefetch()
        l = self.lab('kdma')
        a("s_mov_b32 s38, 4")
        a.label(l)
        for v in range(4):
            i = f" offset:{1024*v}" if v else ""
            if o['KWIN']:
                a(f"s_waitcnt vmcnt({o['KWIN']-1})")
            a(f"buffer_load_dwordx4 v{32+v}, {R1}, s59 offen{i} {self.nt()}lds")
        a(f"""s_add_u32 s59, s59, 4096
              s_add_u32 m0, m0, 4096
              s_sub_u32 s38, s38, 1
              s_cmp_lg_u32 s38, 0
              s_cbranch_scc1 {l}""")
        self.only_exit('K')
        skips = self.lab('ks')
        npf = 1 if o['PF'] else 0
        a(f"""s_cmp_lt_u32 {sWAVE}, 4
              s_cbranch_scc0 {skips}
              s_waitcnt vmcnt({min(16, o['KWIN']) if o['KWIN'] else 16})""")
        self.unpack('v8', 'v9', 'v24')
        self.unpack('v10', 'v11', 'v25')
        self.silu4(8, 12)
        a("""v_cvt_pk_bf16_f32 v8, v8, v9
             v_cvt_pk_bf16_f32 v9, v10, v11""")
        self.perm_pos_bytes('v5', 'v0', 'v6')
        a(f"""s_mul_i32 s61, {sWAVE}, 544
              s_add_u32 s61, s61, {SC2}
              v_add_u32 v5, s61, v5
              ds_write_b64 v5, v[8:9]""")
        a.label(skips)
        a(f"""s_lshr_b32 s68, s66, 4
              s_add_u32 s68, s68, 1
              s_lshr_b32 s56, s66, 1
              s_and_b32 s56, s56, 7""")
        self.srd(48, sWM, 512 * 6144)
        self.dma_off_p128('v32', 6144, 'v1', 'v2')
        a(f"""s_lshl_b32 s59, s67, 8
              s_lshl_b32 s61, {sWAVE}, 5
              s_add_u32 s59, s59, s61
              s_mul_i32 s59, s59, 6144
              s_lshl_b32 s61, s68, 10
              s_add_u32 s59, s59, s61
              s_lshl_b32 s61, s56, 7
              s_add_u32 s59, s59, s61
              s_add_u32 s59, s59, 2048""")
        self.tag_ready()
        self.stamp(1)

        def kfrags():
            for T in range(4):
                for t in range(4):
                    q = F + 16 * T + 4 * t
                    a(f"ds_read_b128 v[{q}:{q+3}], v{36+t} offset:{4096*T}")
                if T == 2:
                    a("s_waitcnt lgkmcnt(6)")
        nopoll = self.lab('knp')
        join = self.lab('kj')
        a(f"""s_cmp_lt_u32 {sWAVE}, 2
              s_cbranch_scc0 {nopoll}""")

        def first():
            self.stamp(2)
            kfrags()
        self.poll('B', [self.gload(4, 'v40', 's69')], lambda ok: self.check_tags(['v6'], ok), first_extra=first, local=['s69'])
        a(f"""ds_write_b64 v41, v[4:5]
              s_branch {join}""")
        a.label(nopoll)
        a("s_waitcnt vmcnt(0)")
        self.stamp(2)
        kfrags()
        a.label(join)
        a("""s_waitcnt lgkmcnt(0)
             s_barrier""")
        self.stamp(3)
        for t in range(4):
            a(f"ds_read_b128 v[{44+4*t}:{47+4*t}], v42 offset:{64*t}")
        D = [4, 8, 12, 16]
        for t in range(4):
            a(f"s_waitcnt lgkmcnt({3-t})")
            for T in range(4):
                q = F + 16 * T + 4 * t
                c = "0" if t == 0 else f"v[{D[T]}:{D[T]+3}]"
                a(f"v_mfma_f32_16x16x32_bf16 v[{D[T]}:{D[T]+3}], v[{q}:{q+3}], v[{44+4*t}:{47+4*t}], {c}")
        self.select_tiles(D)
        a("""v_cvt_pk_bf16_f32 v8, v4, v5
             v_cvt_pk_bf16_f32 v9, v6, v7""")
        self.unpack('v4', 'v5', 'v8')
        self.unpack('v6', 'v7', 'v9')
        for r in range(4):
            a(f"v_mul_f32 v{4+r}, 0x3db504f3, v{4+r}")
        a(f"""v_cvt_pk_bf16_f32 v8, v4, v5
              v_cvt_pk_bf16_f32 v9, v6, v7
              v_mov_b32 v10, {sTAG}
              v_mov_b32 v11, 0""")
        self.st_local(8, 'v43', 's63')
        self.stamp(4)
        end = self.lab('kend')
        a("s_barrier")
        self.st_global(8, 'v43', 's63')
        a(f"""s_cmp_lt_u32 s66, 48
              s_cbranch_scc0 {end}
              s_mov_b32 m0, s62""")
        self.dma_loop('v32', R2, 's59', 8 * 6144, 4)
        a(f"s_lshl_b32 s61, {sWAVE}, 5")
        self.tr_addr_p128('v33', 's61', '0', 'v1', 'v2')
        a("v_add_u32 v34, 65536, v33")
        self.act_addr('v35', SC2, 544, 'v1')
        a(f"""v_lshrrev_b32 v1, 5, v0
              v_lshlrev_b32 v36, 10, v1
              v_and_b32 v1, 3, v0
              v_lshl_add_u32 v36, v1, 5, v36
              v_bfe_u32 v1, v0, 4, 1
              v_lshl_add_u32 v36, v1, 4, v36
              s_lshl_b32 s59, s56, 13
              s_lshl_b32 s61, {sWAVE}, 11
              s_add_u32 s59, s59, s61
              s_lshl_b32 s61, s68, 8
              s_add_u32 s59, s59, s61
              s_lshl_b32 s61, s67, 7
              s_add_u32 s59, s59, s61
              s_add_u32 s59, s59, {WS_ML}""")
        self.sel_consts()
        self.tagbytes(28)
        a("""s_waitcnt vmcnt(0)
             s_barrier""")
        a(f"""s_cmp_lt_u32 {sWAVE}, 4
              s_cbranch_scc0 {end}""")
        for s in range(8):
            a(f"ds_read_b128 v[{96+4*s}:{99+4*s}], v35 offset:{64*s}")
        a("s_waitcnt lgkmcnt(2)")
        for s in range(8):
            va = 'v33' if s < 4 else 'v34'
            for h in range(2):
                q = F + 4 * s + 2 * h
                a(f"ds_read_b64_tr_b16 v[{q}:{q+1}], {va} offset:{16384*(s&3)+2048*h}")
            if s == 5:
                a("s_waitcnt lgkmcnt(6)")
        for s in range(8):
            a(f"s_waitcnt lgkmcnt({max(0, 14-2*s) if s >= 4 else 6})" if s >= 4 else "s_waitcnt lgkmcnt(8)" if s == 0 else "s_nop 0")
            c = "0" if s == 0 else "v[4:7]"
            a(f"v_mfma_f32_16x16x32_bf16 v[4:7], v[{F+4*s}:{F+4*s+3}], v[{96+4*s}:{99+4*s}], {c}")
        self.steal(4, 28)
        a("s_mov_b32 exec_lo, 0x000f000f")
        a("s_mov_b32 exec_hi, 0x000f000f")
        self.gstore(4, 'v36', 's59')
        a("s_mov_b64 exec, -1")
        self.stamp(5)
        a.label(end)
        self.stamps_out(16)
        a("s_endpgm")

    def role_m(self):
        a = self.a
        o = self.o
        M1W, SC, STAT = 0, 16384, 17024
        GATE, UP, DOWN, H2, GU = 32768, 65536, 98304, 131072, 135296
        F = 64
        a.label("L_ROLE_M")
        self.role = 'M'
        a(f"""v_lshrrev_b32 v1, 4, v0
              v_and_b32 v3, 15, v0
              v_lshlrev_b32 v2, 1, v1
              v_xor_b32 v2, v2, v3
              v_and_b32 v4, 7, v2
              v_lshlrev_b32 v4, 4, v4
              v_lshrrev_b32 v2, 3, v2
              v_lshl_add_u32 v4, v2, 10, v4
              v_xor_b32 v5, 1024, v4
              v_mul_u32_u24 v1, 6144, v1
              v_add_u32 v32, v1, v4
              v_add_u32 v33, v1, v5
              s_lshl_b32 s59, {sJ}, 6
              s_lshl_b32 s61, {sWAVE}, 3
              s_add_u32 s59, s59, s61
              s_mul_i32 s59, s59, 6144
              s_lshl_b32 s61, {sG}, 7
              s_add_u32 s59, s59, s61
              s_lshl_b32 s61, {sWAVE}, 11
              s_mov_b32 m0, s61
              s_and_b32 s62, {sWAVE}, 3
              s_lshl_b32 s62, s62, 10
              v_lshlrev_b32 v6, 4, v0
              v_lshlrev_b32 v7, 1, v0
              s_lshl_b32 s63, {sJ}, 7
              s_add_u32 s63, s63, s62""")
        self.kwait()
        self.srd(44, sWM, 512 * 6144)
        self.srd(48, sC, 4096)
        self.srd(52, sX, 4096)
        l4 = self.lab('m4')
        lx = self.lab('mx')
        a(f"""s_cmp_lt_u32 {sWAVE}, 4
              s_cbranch_scc0 {l4}
              buffer_load_dwordx4 v[24:27], v6, {R3}, s62 offen
              s_branch {lx}""")
        a.label(l4)
        a(f"buffer_load_ushort v24, v7, {R2}, s63 offen")
        a.label(lx)
        self.stamp(15)
        self.only_exit('M', pre=True)
        a(f"""buffer_load_dwordx4 v32, {R1}, s59 offen {self.nt()}lds
              s_add_u32 s59, s59, {4*6144}
              s_add_u32 m0, m0, 1024
              s_nop 0
              buffer_load_dwordx4 v33, {R1}, s59 offen {self.nt()}lds""")
        self.only_exit('M')
        a(f"""v_bfe_u32 v1, v0, 1, 2
              v_lshlrev_b32 v1, 10, v1
              v_and_b32 v2, 1, v0
              v_lshl_add_u32 v1, v2, 3, v1
              v_lshrrev_b32 v2, 4, v0
              v_lshl_add_u32 v1, v2, 1, v1
              s_lshl_b32 s61, {sG}, 7
              s_lshl_b32 s56, {sJ}, 4
              s_add_u32 s61, s61, s56
              buffer_load_ushort v28, v1, {R3}, s61 offen""")
        self.code_prefetch()
        if o['TOUCH']:
            lt0 = self.lab('mt0')
            a(f"""s_cmp_eq_u32 {sWAVE}, 0
                  s_cbranch_scc0 {lt0}
                  s_lshl_b32 s61, {sG}, 3
                  s_add_u32 s61, s61, {sJ}
                  s_lshl_b32 s61, s61, 12
                  s_add_u32 s61, s61, {WS_A1 + WS_LOC}
                  v_lshlrev_b32 v2, 4, v0""")
            for m in range(4):
                a(self.gload(8 + 4 * m, 'v2', 's61', 1024 * m))
            a.label(lt0)
        a(f"""v_lshrrev_b32 v1, 4, v0
              v_bfe_u32 v2, v0, 2, 2
              v_lshl_add_u32 v3, v1, 2, v2
              v_lshlrev_b32 v34, 8, v3
              v_and_b32 v3, 1, v1
              v_lshlrev_b32 v3, 3, v3
              v_lshl_add_u32 v3, v2, 1, v3
              s_lshl_b32 s61, {sWAVE}, 1
              v_xor_b32 v3, s61, v3
              v_lshl_add_u32 v34, v3, 4, v34
              v_and_b32 v3, 3, v0
              v_lshl_add_u32 v34, v3, 3, v34""")
        self.act_addr('v35', SC, 160, 'v1')
        a(f"""v_lshrrev_b32 v1, 5, v0
              v_lshlrev_b32 v36, 12, v1
              v_bfe_u32 v1, v0, 2, 1
              v_lshl_add_u32 v36, v1, 10, v36
              v_and_b32 v1, 3, v0
              v_lshl_add_u32 v36, v1, 5, v36
              v_bfe_u32 v1, v0, 4, 1
              v_lshl_add_u32 v36, v1, 4, v36
              s_lshl_b32 s60, {sG}, 15
              s_and_b32 s61, {sWAVE}, 3
              s_lshl_b32 s61, s61, 13
              s_add_u32 s60, s60, s61
              s_lshr_b32 s61, {sWAVE}, 2
              s_lshl_b32 s61, s61, 11
              s_add_u32 s60, s60, s61
              s_lshl_b32 s61, {sJ}, 7
              s_add_u32 s60, s60, s61
              s_add_u32 s60, s60, {WS_A1}""")
        lb = self.lab('mb')
        npf = 1 if o['PF'] else 0
        a(f"""s_cmp_ge_u32 {sWAVE}, 4
              s_cbranch_scc0 {lb}""")
        a("v_lshrrev_b32 v4, 2, v0")
        self.perm_pos_bytes('v5', 'v4', 'v6')
        a(f"""v_and_b32 v6, 3, v0
              v_lshl_add_u32 v5, v6, 1, v5
              s_and_b32 s61, {sWAVE}, 3
              s_mul_i32 s61, s61, 160
              s_add_u32 s61, s61, {SC}
              v_add_u32 v5, s61, v5
              s_waitcnt vmcnt(3)
              v_lshlrev_b32 v8, 16, v24""")
        self.silu1('v8', 12)
        a("""v_cvt_pk_bf16_f32 v8, v8, v8
             ds_write_b16 v5, v8""")
        a.label(lb)
        a("""s_waitcnt vmcnt(0) lgkmcnt(0)
             s_barrier""")
        self.stamp(1)
        self.frags(F, 'v34', 2, 8192, 4096)
        a(f"""ds_read_b128 v[72:75], v35
              ds_read_b128 v[76:79], v35 offset:64
              s_add_u32 {sTAG}, {sE}, {TAGC}
              s_waitcnt lgkmcnt(0)
              v_mfma_f32_16x16x32_bf16 v[4:7], v[64:67], v[72:75], 0
              v_mfma_f32_16x16x32_bf16 v[4:7], v[68:71], v[76:79], v[4:7]""")
        a(f"""s_mov_b32 exec_lo, 0x00f000f0
              s_mov_b32 exec_hi, 0x00f000f0
              v_mov_b32 v4, v6
              v_mov_b32 v5, v7
              s_mov_b32 exec_lo, 0x00ff00ff
              s_mov_b32 exec_hi, 0x00ff00ff
              v_mov_b32 v6, {sTAG}
              v_mov_b32 v7, 0""")
        self.st_local(4, 'v36', 's60')
        a("s_mov_b64 exec, -1")
        self.stamp(2)
        ls = self.lab('ms')
        a(f"""s_cmp_lt_u32 {sWAVE}, 4
              s_cbranch_scc0 {ls}""")
        for k in range(4):
            self.unpack(f'v{8+2*k}', f'v{9+2*k}', f'v{24+k}')
        self.ln_stats(8, 'v20', 'v21', 'v22', 16)
        a(f"""s_lshl_b32 s61, {sWAVE}, 3
              s_add_u32 s61, s61, {STAT}
              v_mov_b32 v1, s61
              s_mov_b64 exec, 1
              ds_write_b64 v1, v[20:21]
              s_mov_b64 exec, -1
              s_waitcnt lgkmcnt(0)""")
        a.label(ls)
        a("""s_barrier
             s_mov_b32 exec_lo, 0x00ff00ff
             s_mov_b32 exec_hi, 0x00ff00ff""")
        self.st_global(4, 'v36', 's60')
        a("s_mov_b64 exec, -1")
        lh = self.lab('mh')
        a(f"""s_cmp_eq_u32 {sWAVE}, 0
              s_cbranch_scc0 {lh}
              v_bfe_u32 v1, v0, 1, 2
              v_lshlrev_b32 v1, 3, v1
              v_add_u32 v1, {STAT}, v1
              ds_read_b64 v[20:21], v1
              v_lshlrev_b32 v28, 16, v28
              s_lshl_b32 s59, {sG}, 3
              s_add_u32 s59, s59, {sJ}
              s_lshl_b32 s59, s59, 12
              s_add_u32 s59, s59, {WS_A1}
              v_lshlrev_b32 v2, 4, v0
              s_waitcnt lgkmcnt(0)
              v_rcp_f32 v22, v21""")
        self.ln_elem('v29', 'v28', 'v20', 'v21', 'v22', 'v23', 'v30')
        a(f"""v_mov_b32 v22, {sTAG}
              v_mov_b32 v23, 0
              s_lshl_b32 s57, {sG}, 3
              s_add_u32 s57, s57, {sJ}
              s_lshl_b32 s57, s57, 7
              s_add_u32 s57, s57, {WS_A2}""")
        self.poll('A1', [self.gload(4 + 4 * m, 'v2', 's59', 1024 * m) for m in range(4)],
                  lambda ok: self.check_tags(['v6', 'v10', 'v14', 'v18'], ok), local=['s59'])
        self.stamp(3)
        a("""v_mov_b32 v6, v8
             v_mov_b32 v7, v9
             v_mov_b32 v14, v16
             v_mov_b32 v15, v17""")
        for r in range(4):
            a(f"v_add_f32_dpp v{4+r}, v{4+r}, v{4+r} row_ror:8 row_mask:0xf bank_mask:0xf")
        for r in range(4):
            a(f"v_add_f32_dpp v{12+r}, v{12+r}, v{12+r} row_ror:8 row_mask:0xf bank_mask:0xf")
        a("""v_permlane16_swap_b32 v4, v5
             v_permlane16_swap_b32 v6, v7
             v_permlane16_swap_b32 v12, v13
             v_permlane16_swap_b32 v14, v15
             v_add_f32 v4, v4, v5
             v_add_f32 v6, v6, v7
             v_add_f32 v12, v12, v13
             v_add_f32 v14, v14, v15
             v_permlane32_swap_b32 v4, v6
             v_permlane32_swap_b32 v12, v14
             v_add_f32 v4, v4, v6
             v_add_f32 v12, v12, v14
             v_cvt_pk_bf16_f32 v4, v4, v12
             v_and_b32 v12, 0xffff0000, v4
             v_lshlrev_b32 v4, 16, v4
             v_add_f32 v12, 1.0, v12""")
        self.rnd('v12', 'v12')
        a("v_mul_f32 v12, v29, v12")
        self.rnd('v12', 'v12')
        a("v_add_f32 v12, v12, v4")
        self.rows_to_quad('v20', 'v21', 'v12', 'v8')
        a("s_mov_b64 exec, 0xff")
        self.gstore(20, 'v2', 's57')
        a("s_mov_b64 exec, -1")
        self.stamp(4)
        a.label(lh)
        a(f"""s_cmp_eq_u32 {sJ}, 7
              s_cbranch_scc1 L_ROLE_GA""")
        a(f"""s_mul_i32 s66, {sG}, 7
              s_add_u32 s66, s66, {sJ}""")
        self.srd(44, sWG, 512 * 3584)
        self.srd(48, sWU, 512 * 3584)
        self.srd(52, sWD, 1792 * 1024)
        a(f"""v_lshrrev_b32 v1, 2, v0
              v_mul_u32_u24 v1, 3584, v1
              v_bfe_u32 v2, v0, 4, 1
              v_lshlrev_b32 v2, 1, v2
              v_and_b32 v3, 3, v0
              v_xor_b32 v2, v2, v3
              v_lshl_add_u32 v32, v2, 4, v1
              s_lshl_b32 s59, {sWAVE}, 6
              s_mul_i32 s59, s59, 3584
              s_lshl_b32 s61, s66, 6
              s_add_u32 s59, s59, s61
              s_mov_b32 s60, s59
              s_lshl_b32 s67, s66, 5
              s_lshl_b32 s61, {sWAVE}, 2
              s_add_u32 s67, s67, s61
              s_lshl_b32 s67, s67, 10
              s_and_b32 s62, {sWAVE}, 1
              s_lshl_b32 s62, s62, 3""")
        for n in range(4):
            a(f"""s_add_u32 s63, s62, {2*n}
                  v_xor_b32 v1, s63, v0
                  v_lshlrev_b32 v{40+n}, 4, v1""")
        a(f"""v_lshrrev_b32 v1, 4, v0
              v_bfe_u32 v2, v0, 2, 2
              v_lshl_add_u32 v3, v1, 2, v2
              v_lshlrev_b32 v33, 6, v3
              v_and_b32 v3, 1, v1
              s_and_b32 s61, {sWAVE}, 1
              v_xor_b32 v3, s61, v3
              v_lshl_add_u32 v33, v3, 5, v33
              v_and_b32 v3, 3, v0
              v_lshl_add_u32 v33, v3, 3, v33
              s_bfe_u32 s61, {sWAVE}, 0x10001
              s_lshl_b32 s61, s61, 15
              s_add_u32 s61, s61, {GATE}
              v_add_u32 v33, s61, v33""")
        a(f"""v_lshl_add_u32 v3, v1, 2, v2
              v_lshlrev_b32 v4, 10, v3
              v_and_b32 v5, 3, v0
              v_lshl_add_u32 v4, v5, 3, v4
              v_add_u32 v4, {DOWN}, v4
              v_and_b32 v3, 7, v3
              v_lshlrev_b32 v3, 1, v3
              s_lshl_b32 s61, {sWAVE}, 3
              v_xor_b32 v3, s61, v3""")
        for t in range(4):
            a(f"""v_xor_b32 v5, {2*t}, v3
                  v_lshl_add_u32 v{34+t}, v5, 4, v4""")
        self.act_addr('v38', H2, 1056, 'v1')
        self.act_addr('v39', GU, 96, 'v1')
        a(f"""v_lshlrev_b32 v44, 4, v0
              s_lshl_b32 s68, {sG}, 2
              s_add_u32 s68, s68, {sWAVE}
              s_lshl_b32 s68, s68, 12
              s_add_u32 s68, s68, {WS_D}""")
        self.perm_pos_bytes('v45', 'v0', 'v1')
        a(f"""s_mul_i32 s61, {sWAVE}, 1056
              s_add_u32 s61, s61, {H2}
              v_add_u32 v45, s61, v45""")
        a(f"""v_and_b32 v1, 3, v0
              v_mul_u32_u24 v46, 96, v1
              v_lshrrev_b32 v1, 4, v0
              v_lshl_add_u32 v46, v1, 4, v46
              s_and_b32 s61, {sWAVE}, 1
              s_lshl_b32 s61, s61, 3
              s_bfe_u32 s62, {sWAVE}, 0x10001
              s_mul_i32 s62, s62, 384
              s_add_u32 s61, s61, s62
              s_add_u32 s61, s61, {GU}
              v_add_u32 v46, s61, v46""")
        a(f"""v_bfe_u32 v1, v0, 2, 2
              v_lshlrev_b32 v1, 1, v1
              v_lshrrev_b32 v2, 5, v0
              v_add_u32 v1, v1, v2
              v_mul_u32_u24 v47, {56*128}, v1
              v_and_b32 v1, 3, v0
              v_lshl_add_u32 v47, v1, 5, v47
              v_bfe_u32 v1, v0, 4, 1
              v_lshl_add_u32 v47, v1, 4, v47
              s_mul_i32 s63, {sWAVE}, {8*56*128}
              s_lshl_b32 s61, s66, 7
              s_add_u32 s63, s63, s61
              s_add_u32 s63, s63, {WS_E}""")
        self.sel_consts()
        self.tagbytes(48)
        if o['MG1']:
            a(f"""s_barrier
                  s_lshl_b32 s61, {sWAVE}, 12
                  s_add_u32 s61, s61, {GATE}
                  s_mov_b32 m0, s61""")
            self.dma_loop('v32', R1, 's59', 16 * 3584, o['MG1'])
        if o['MTRIG']:
            lt = self.lab('mt')
            a(f"""s_cmp_eq_u32 {sWAVE}, 0
                  s_cbranch_scc0 {lt}
                  v_lshlrev_b32 v2, 10, v0
                  s_lshl_b32 s61, {sG}, 13
                  s_add_u32 s61, s61, {WS_B}""")
            if o['MTRIG'] == 2:
                a(f"""v_lshrrev_b32 v2, 1, v0
                      v_lshlrev_b32 v2, 17, v2
                      v_and_b32 v3, 1, v0
                      v_lshl_add_u32 v2, v3, 13, v2
                      s_lshl_b32 s61, {sG}, 14
                      s_add_u32 s61, s61, {WS_S}""")
            a("s_mov_b64 exec, 0xff")
            self.poll('T', [self.gload(4, 'v2', 's61')], lambda ok: self.check_tags(['v6'], ok), local=['s61'])
            a("s_mov_b64 exec, -1")
            a.label(lt)
        a("s_barrier")
        a(f"""s_lshl_b32 s61, {sWAVE}, 12
              s_add_u32 s61, s61, {GATE + 1024 * o['MG1']}
              s_mov_b32 m0, s61""")
        if o['MG1'] < 4:
            self.dma_loop('v32', R1, 's59', 16 * 3584, 4 - o['MG1'])
        a(f"""s_sub_u32 s61, s61, {1024 * o['MG1']}
              s_add_u32 s61, s61, {UP-GATE}
              s_mov_b32 m0, s61""")
        self.dma_loop('v32', R2, 's60', 16 * 3584, 4)
        a(f"""s_add_u32 s61, s61, {DOWN-UP}
              s_mov_b32 m0, s61
              s_nop 0""")
        for n in range(4):
            a(f"""buffer_load_dwordx4 v{40+n}, {R3}, s67 offen {self.nt()}lds
                  s_add_u32 s67, s67, 1024
                  s_add_u32 m0, m0, 1024
                  s_nop 0""")
        a("""s_waitcnt vmcnt(0)
             s_barrier""")
        self.stamp(5)
        for t in range(4):
            for h in range(2):
                q = 128 + 4 * t + 2 * h
                a(f"ds_read_b64_tr_b16 v[{q}:{q+1}], v{34+t} offset:{16384*h}")
        lw = self.lab('mw')
        a(f"""s_cmp_lt_u32 {sWAVE}, 4
              s_cbranch_scc0 {lw}
              s_waitcnt lgkmcnt(0)""")
        for s in range(16):
            for h in range(2):
                q = F + 4 * s + 2 * h
                a(f"ds_read_b64_tr_b16 v[{q}:{q+1}], v33 offset:{2048*s+1024*h}")
            if s in (6, 10):
                a("s_waitcnt lgkmcnt(6)")
        self.poll('D', [self.gload(4, 'v44', 's68'), self.gload(8, 'v44', 's68', 2048),
                        self.gload(12, 'v44', 's68', 1024), self.gload(16, 'v44', 's68', 3072)],
                  lambda ok: self.check_tags(['v7', 'v11', 'v15', 'v19'], ok), local=['s68'])
        self.stamp(6)
        X = 20
        self.unpack(f'v{X}', f'v{X+1}', 'v4')
        self.unpack(f'v{X+2}', f'v{X+3}', 'v5')
        self.unpack(f'v{X+4}', f'v{X+5}', 'v12')
        self.unpack(f'v{X+6}', f'v{X+7}', 'v13')
        M2, SD2, RC2 = 52, 54, 56
        self.ln_stats_pivot(X, M2, SD2, RC2, 144)
        csrc = ['v6', 'v8', 'v14', 'v16']
        ssrc = ['v9', 'v10', 'v17', 'v18']
        for p in range(4):
            x = X + 2 * p
            a(f"v_pk_add_f32 v[{x}:{x+1}], v[{x}:{x+1}], v[{M2}:{M2+1}] neg_lo:[0,1] neg_hi:[0,1]")
        for p in range(4):
            self.pk_rnd(X + 2 * p, f'v{144+p}')
        for p in range(4):
            x, q = X + 2 * p, 148 + 2 * p
            a(f"v_pk_mul_f32 v[{q}:{q+1}], v[{x}:{x+1}], v[{RC2}:{RC2+1}]")
        for p in range(4):
            x, q = X + 2 * p, 148 + 2 * p
            a(f"v_pk_fma_f32 v[{x}:{x+1}], v[{q}:{q+1}], v[{SD2}:{SD2+1}], v[{x}:{x+1}] neg_lo:[1,0,0] neg_hi:[1,0,0]")
        for p in range(4):
            x, q = X + 2 * p, 148 + 2 * p
            a(f"v_pk_fma_f32 v[{x}:{x+1}], v[{x}:{x+1}], v[{RC2}:{RC2+1}], v[{q}:{q+1}]")
        for p in range(4):
            self.pk_rnd(X + 2 * p, f'v{144+p}')
        for p in range(4):
            q = 148 + 2 * p
            self.unpack(f'v{q}', f'v{q+1}', csrc[p])
        for p in range(4):
            x, q = X + 2 * p, 148 + 2 * p
            a(f"v_pk_mul_f32 v[{x}:{x+1}], v[{x}:{x+1}], v[{q}:{q+1}]")
        for p in range(4):
            q = 148 + 2 * p
            self.unpack(f'v{q}', f'v{q+1}', ssrc[p])
        for p in range(4):
            self.pk_rnd(X + 2 * p, f'v{144+p}')
        for p in range(4):
            x, q = X + 2 * p, 148 + 2 * p
            a(f"v_pk_add_f32 v[{x}:{x+1}], v[{x}:{x+1}], v[{q}:{q+1}]")
        for p in range(4):
            a(f"v_cvt_pk_bf16_f32 v{4+p}, v{X+2*p}, v{X+2*p+1}")
        a("""ds_write_b64 v45, v[4:5]
             ds_write_b64 v45, v[6:7] offset:512""")
        a.label(lw)
        a("""s_waitcnt lgkmcnt(0)
             s_barrier""")
        self.stamp(7)
        lg = self.lab('mg')
        a(f"""s_cmp_lt_u32 {sWAVE}, 4
              s_cbranch_scc0 {lg}""")
        self.gemv16(4, F, 'v38', 144)
        a("""v_cvt_pk_bf16_f32 v8, v4, v5
             v_cvt_pk_bf16_f32 v9, v6, v7
             s_mov_b32 exec_lo, 0x000f000f
             s_mov_b32 exec_hi, 0x000f000f
             ds_write_b64 v46, v[8:9]
             s_mov_b64 exec, -1""")
        a.label(lg)
        a("""s_waitcnt lgkmcnt(0)
             s_barrier
             ds_read_b128 v[4:7], v39
             ds_read_b128 v[8:11], v39 offset:384
             s_waitcnt lgkmcnt(0)""")
        for k in range(4):
            self.unpack(f'v{20+2*k}', f'v{21+2*k}', f'v{4+k}')
        for k in range(4):
            self.unpack(f'v{144+2*k}', f'v{145+2*k}', f'v{8+k}')
        for k in range(8):
            a(f"v_max_f32 v{20+k}, 0, v{20+k}")
        for k in range(4):
            a(f"v_pk_mul_f32 v[{20+2*k}:{21+2*k}], v[{20+2*k}:{21+2*k}], v[{144+2*k}:{145+2*k}]")
        for k in range(4):
            a(f"v_cvt_pk_bf16_f32 v{16+k}, v{20+2*k}, v{21+2*k}")
        D = [4, 8, 12, 20]
        for t in range(4):
            a(f"v_mfma_f32_16x16x32_bf16 v[{D[t]}:{D[t]+3}], v[{128+4*t}:{131+4*t}], v[16:19], 0")
        self.select_tiles(D)
        self.steal(4, 48)
        self.gstore(4, 'v47', 's63')
        self.stamp(8)
        self.stamps_out(16)
        a("s_endpgm")

        a.label("L_ROLE_GA")
        S = 131072
        self.srd(48, sC, 4096)
        self.dma_off_p128('v32', 6144, 'v1', 'v2')
        a(f"""s_lshl_b32 s59, {sWAVE}, 6
              s_mul_i32 s59, s59, 6144
              s_lshl_b32 s61, {sG}, 7
              s_add_u32 s59, s59, s61
              s_add_u32 s59, s59, 2048
              s_lshl_b32 s61, {sWAVE}, 13
              s_add_u32 s61, s61, {GATE}
              s_mov_b32 m0, s61
              s_barrier""")
        lc = self.lab('gc')
        a(f"""s_cmp_lt_u32 {sWAVE}, 4
              s_cbranch_scc0 {lc}
              s_lshl_b32 s61, {sWAVE}, 10
              v_lshlrev_b32 v1, 3, v0
              buffer_load_dwordx2 v[24:25], v1, {R2}, s61 offen
              buffer_load_dwordx2 v[26:27], v1, {R2}, s61 offen offset:512""")
        a.label(lc)
        self.dma_loop('v32', R1, 's59', 8 * 6144, 8)
        lc2 = self.lab('gc2')
        a(f"""s_cmp_lt_u32 {sWAVE}, 4
              s_cbranch_scc0 {lc2}
              s_waitcnt vmcnt(8)""")
        self.perm_pos_bytes('v5', 'v0', 'v6')
        a(f"""s_mul_i32 s61, {sWAVE}, 1056
              s_add_u32 s61, s61, {S}
              v_add_u32 v5, s61, v5""")
        for hf in range(2):
            self.unpack('v8', 'v9', f'v{24+2*hf}')
            self.unpack('v10', 'v11', f'v{25+2*hf}')
            self.silu4(8, 12)
            a(f"""v_cvt_pk_bf16_f32 v8, v8, v9
                  v_cvt_pk_bf16_f32 v9, v10, v11
                  ds_write_b64 v5, v[8:9] offset:{512*hf}""")
        a.label(lc2)
        a(f"s_lshl_b32 s61, {sWAVE}, 5")
        self.tr_addr_p128('v33', 's61', GATE, 'v1', 'v2')
        self.act_addr('v35', S, 1056, 'v1')
        a(f"""v_lshrrev_b32 v1, 5, v0
              v_lshlrev_b32 v36, 10, v1
              v_bfe_u32 v1, v0, 2, 1
              v_lshl_add_u32 v36, v1, 7, v36
              v_and_b32 v1, 3, v0
              v_lshl_add_u32 v36, v1, 5, v36
              v_bfe_u32 v1, v0, 4, 1
              v_lshl_add_u32 v36, v1, 4, v36
              s_lshl_b32 s59, {sG}, 13
              s_lshl_b32 s61, {sWAVE}, 11
              s_add_u32 s59, s59, s61
              s_add_u32 s59, s59, {WS_ML}""")
        self.sel_consts()
        self.tagbytes(28)
        a("""s_waitcnt vmcnt(0) lgkmcnt(0)
             s_barrier""")
        le = self.lab('ge')
        a(f"""s_cmp_lt_u32 {sWAVE}, 4
              s_cbranch_scc0 {le}""")
        for s in range(16):
            for h in range(2):
                q = F + 4 * s + 2 * h
                a(f"ds_read_b64_tr_b16 v[{q}:{q+1}], v33 offset:{4096*s+2048*h}")
            if s in (6, 13):
                a("s_waitcnt lgkmcnt(0)")
        a("s_waitcnt lgkmcnt(0)")
        self.gemv16(4, F, 'v35', 144)
        a("""s_mov_b32 exec_lo, 0x00f000f0
             s_mov_b32 exec_hi, 0x00f000f0""")
        for r in range(4):
            a(f"v_mov_b32 v{4+r}, 0")
        a("""s_mov_b32 exec_lo, 0x00ff00ff
             s_mov_b32 exec_hi, 0x00ff00ff""")
        self.steal(4, 28)
        self.gstore(4, 'v36', 's59')
        a("s_mov_b64 exec, -1")
        a.label(le)
        self.stamp(5)
        self.stamps_out(16)
        a("s_endpgm")

    def role_w(self):
        a = self.a
        o = self.o
        WQ, WO, H, O = 0, 65536, 131072, 135296
        F = 64
        a.label("L_ROLE_W")
        self.role = 'W'
        a(f"s_sub_u32 s56, {sJ}, 8")
        self.dma_off_p128('v32', 8192, 'v1', 'v2')
        a(f"""s_lshl_b32 s59, {sWAVE}, 19
              s_lshl_b32 s61, {sG}, 10
              s_add_u32 s59, s59, s61
              s_lshl_b32 s61, s56, 7
              s_add_u32 s59, s59, s61
              s_lshl_b32 s61, {sWAVE}, 13
              s_mov_b32 m0, s61""")
        if o['WWAIT']:
            self.w_setup1(H, O, WQ, WO)
        self.kwait()
        self.srd(44, sWQ, 512 * 8192)
        if o['WWAIT']:
            a("s_waitcnt lgkmcnt(0)")
        if o['WSLEEP']:
            a(f"s_sleep {o['WSLEEP']}")
        self.stamp(15)
        self.only_exit('W', pre=True)
        self.dma_loop('v32', R1, 's59', 8 * 8192, 8, win=o['WWIN'])
        self.only_exit('W')
        self.code_prefetch()
        if not o['WWAIT']:
            self.w_setup1(H, O, WQ, WO)
        self.srd(52, sX, 4096)
        a(f"""v_bfe_u32 v1, v0, 1, 2
              v_lshlrev_b32 v1, 10, v1
              v_and_b32 v2, 1, v0
              v_lshl_add_u32 v1, v2, 3, v1
              v_lshrrev_b32 v2, 4, v0
              v_lshl_add_u32 v1, v2, 1, v1
              s_lshl_b32 s61, s56, 7
              s_lshl_b32 s62, {sWAVE}, 4
              s_add_u32 s61, s61, s62
              buffer_load_ushort v60, v1, {R3}, s61 offen""")
        self.srd(44, sWO, 4096 * 1024)
        self.dma_off_p128('v32', 1024, 'v1', 'v2')
        a(f"""s_lshl_b32 s59, {sG}, 9
              s_lshl_b32 s61, {sWAVE}, 6
              s_add_u32 s59, s59, s61
              s_lshl_b32 s59, s59, 10
              s_lshl_b32 s61, s56, 7
              s_add_u32 s59, s59, s61
              s_lshl_b32 s67, {sWAVE}, 13
              s_add_u32 s67, s67, {WO}""")
        if o['WO1']:
            a("s_mov_b32 m0, s67")
            self.dma_loop('v32', R1, 's59', 8 * 1024, o['WO1'])
            a(f"s_add_u32 s67, s67, {1024 * o['WO1']}")
        self.tag_ready()
        self.stamp(1)
        lw1 = self.lab('w1')

        def first():
            self.stamp(2)
            a("s_barrier")
            a(f"""s_cmp_lt_u32 {sWAVE}, 4
                  s_cbranch_scc0 {lw1}""")
            for s in range(16):
                for h in range(2):
                    q = F + 4 * s + 2 * h
                    a(f"ds_read_b64_tr_b16 v[{q}:{q+1}], v36 offset:{4096*s+2048*h}")
                if s in (6, 10):
                    a("s_waitcnt lgkmcnt(6)")
            a.label(lw1)
        self.poll('A2', [self.gload(4, 'v33', 's58')],
                  lambda ok: self.check_tags(['v6'], ok), first_extra=first)
        a("""ds_write_b64 v34, v[4:5]
             s_waitcnt lgkmcnt(0)
             s_barrier""")
        self.stamp(3)
        lq = self.lab('wqskip')
        a(f"""s_mov_b32 m0, s67
              s_cmp_lt_u32 {sWAVE}, 4
              s_cbranch_scc0 {lq}""")
        self.gemv16(4, F, 'v38', 128)
        a(f"""v_cvt_pk_bf16_f32 v8, v4, v5
              v_cvt_pk_bf16_f32 v9, v6, v7
              v_mov_b32 v10, {sTAG}
              v_mov_b32 v11, 0
              s_mov_b32 exec_lo, 0x000f000f
              s_mov_b32 exec_hi, 0x000f000f""")
        self.st_local(8, 'v40', 's57')
        a("s_mov_b64 exec, -1")
        a.label(lq)
        a("s_barrier")
        self.stamp(4)
        lq3 = self.lab('wq3')
        a(f"""s_cmp_lt_u32 {sWAVE}, 4
              s_cbranch_scc0 {lq3}
              s_mov_b32 exec_lo, 0x000f000f
              s_mov_b32 exec_hi, 0x000f000f""")
        self.st_global(8, 'v40', 's57')
        a("s_mov_b64 exec, -1")
        a.label(lq3)
        if o['WO1'] < 8:
            self.dma_loop('v32', R1, 's59', 8 * 1024, 8 - o['WO1'])
        a(f"""s_lshl_b32 s58, {sG}, 13
              s_add_u32 s58, s58, {WS_C}
              v_lshrrev_b32 v1, 5, v0
              v_lshlrev_b32 v41, 10, v1
              v_and_b32 v1, 3, v0
              v_lshl_add_u32 v41, v1, 5, v41
              v_bfe_u32 v1, v0, 4, 1
              v_lshl_add_u32 v41, v1, 4, v41
              s_lshl_b32 s57, s56, 13
              s_lshl_b32 s61, {sWAVE}, 11
              s_add_u32 s57, s57, s61
              s_lshl_b32 s61, {sG}, 7
              s_add_u32 s57, s57, s61
              s_add_u32 s57, s57, {WS_C2}
              v_lshlrev_b32 v42, 4, v0
              s_lshl_b32 s62, s56, 3
              s_add_u32 s62, s62, {sWAVE}
              s_lshl_b32 s62, s62, 10
              s_add_u32 s63, s62, {WS_ML}
              s_add_u32 s62, s62, {WS_C2}
              ; D publish: ((g*4 + b)*2 + u)*2048 + Q*16, Q = 16i + 2w + q
              v_bfe_u32 v1, v0, 1, 2
              v_lshlrev_b32 v43, 12, v1
              v_and_b32 v1, 1, v0
              v_lshl_add_u32 v43, v1, 4, v43
              s_lshl_b32 s66, {sG}, 14
              s_lshl_b32 s61, s56, 8
              s_add_u32 s66, s66, s61
              s_lshl_b32 s61, {sWAVE}, 5
              s_add_u32 s66, s66, s61
              s_add_u32 s66, s66, {WS_D}
              v_bfe_u32 v1, v0, 1, 2
              v_lshlrev_b32 v61, 10, v1
              v_and_b32 v2, 1, v0
              v_lshl_add_u32 v61, v2, 3, v61
              v_lshrrev_b32 v2, 4, v0
              v_lshl_add_u32 v61, v2, 1, v61
              s_lshl_b32 s68, s56, 7
              s_lshl_b32 s61, {sG}, 4
              s_add_u32 s68, s68, s61
              s_lshl_b32 s69, s56, 3
              s_add_u32 s69, s69, {sG}
              s_mul_i32 s69, s69, {56*128}
              s_add_u32 s69, s69, {WS_E}""")
        if o['TOUCH']:
            a(self.gload(4, 'v42', 's62'))
            a(self.gload(8, 'v42', 's63'))
            lt1 = self.lab('wt1')
            a(f"""s_cmp_eq_u32 {sWAVE}, {sG}
                  s_cbranch_scc0 {lt1}
                  s_add_u32 s61, s69, 4096""")
            for m in range(7):
                a(self.gload(64 + 4 * m, 'v42', 's69' if m < 4 else 's61', 1024 * (m & 3)))
            a.label(lt1)
        self.srd(48, sOUT, 4096)
        self.sel_consts()
        self.tagbytes(48)
        a("v_lshlrev_b32 v60, 16, v60")
        lw2 = self.lab('w2')

        def first2():
            self.stamp(5)
            a("s_barrier")
            a(f"""s_cmp_lt_u32 {sWAVE}, 4
                  s_cbranch_scc0 {lw2}""")
            for s in range(16):
                for h in range(2):
                    q = F + 4 * s + 2 * h
                    a(f"ds_read_b64_tr_b16 v[{q}:{q+1}], v37 offset:{4096*s+2048*h}")
                if s in (6, 10):
                    a("s_waitcnt lgkmcnt(6)")
            a.label(lw2)
        self.poll('C', [self.gload(4, 'v33', 's58')], lambda ok: self.check_tags(['v6'], ok), first_extra=first2, local=['s58'])
        a("""ds_write_b64 v35, v[4:5]
             s_waitcnt lgkmcnt(0)
             s_barrier""")
        self.stamp(6)
        lo = self.lab('wo')
        a(f"""s_cmp_lt_u32 {sWAVE}, 4
              s_cbranch_scc0 {lo}""")
        self.gemv16(4, F, 'v39', 128)
        self.steal(4, 48)
        a("""s_mov_b32 exec_lo, 0x000f000f
             s_mov_b32 exec_hi, 0x000f000f""")
        self.gstore(4, 'v41', 's57')
        a("s_mov_b64 exec, -1")
        a.label(lo)
        self.stamp(7)

        def stolen_check(q):
            def chk(ok):
                self.stolen_tag(q, 'v12', 'v13')
                self.check_tags(['v12'], ok)
            return chk
        self.poll('ML', [self.gload(4, 'v42', 's63')], stolen_check(4))
        for r in range(4):
            a(f"v_and_b32 v{4+r}, 0xffffff00, v{4+r}")
        for r in range(4):
            a(f"v_add_f32_dpp v{4+r}, v{4+r}, v{4+r} row_ror:8 row_mask:0xf bank_mask:0xf")
        self.pk_rnd(4, 'v12')
        self.pk_rnd(6, 'v13')
        a("""s_mov_b32 exec_lo, 0
             s_mov_b32 exec_hi, 0x0000ffff""")
        for r in range(4):
            a(f"v_add_f32 v{4+r}, 1.0, v{4+r}")
        self.pk_rnd(4, 'v12')
        self.pk_rnd(6, 'v13')
        a("s_mov_b64 exec, -1")
        a("""v_cvt_pk_bf16_f32 v8, v4, v5
             v_cvt_pk_bf16_f32 v9, v6, v7
             v_mov_b32 v16, 0
             v_mov_b32 v17, 0
             v_mov_b32 v18, 0
             v_mov_b32 v19, 0
             v_mov_b32 v10, v8
             v_mov_b32 v11, v9
             v_mov_b32 v14, v8
             v_mov_b32 v15, v9
             v_permlane32_swap_b32 v10, v16
             v_permlane32_swap_b32 v11, v17
             v_permlane16_swap_b32 v14, v18
             v_permlane16_swap_b32 v15, v19""")
        a(f"""v_mov_b32 v58, v16
              v_mov_b32 v20, v17
              v_mov_b32 v21, v18
              v_mov_b32 v22, v19
              v_mov_b32 v23, {sTAG}
              s_mov_b64 exec, 0xff""")
        self.gstore(20, 'v43', 's66', 2048, local=True)
        a("s_mov_b64 exec, -1")
        a("""v_permlane16_swap_b32 v4, v5
             v_permlane16_swap_b32 v6, v7
             v_permlane32_swap_b32 v4, v6
             v_permlane32_swap_b32 v5, v7
             v_mov_b32 v56, v4
             v_mov_b32 v57, v7""")
        self.stamp(8)
        self.poll('C2', [self.gload(4, 'v42', 's62')], stolen_check(4))
        self.stamp(9)
        for r in range(4):
            a(f"v_and_b32 v{4+r}, 0xffffff00, v{4+r}")
        self.red_rows(4)
        self.rnd('v4', 'v4')
        a("v_mul_f32 v4, v56, v4")
        self.rnd('v4', 'v4')
        a("v_add_f32 v4, v60, v4")
        self.rnd('v59', 'v4')
        a(f"""v_mov_b32 v10, v58
              v_mov_b32 v11, {sTAG}""")
        self.rows_to_quad('v8', 'v9', 'v59', 'v12')
        a("s_mov_b64 exec, 0xff")
        self.st_local(8, 'v43', 's66')
        self.stamp(10)
        a("s_barrier")
        self.st_global(8, 'v43', 's66')
        a("s_mov_b64 exec, -1")
        end = self.lab('wend')
        a(f"""s_cmp_eq_u32 {sWAVE}, {sG}
              s_cbranch_scc0 {end}
              s_add_u32 s61, s69, 4096""")
        loads = []
        for m in range(7):
            if m < 4:
                loads.append(self.gload(64 + 4 * m, 'v42', 's69', 1024 * m))
            else:
                loads.append(self.gload(64 + 4 * m, 'v42', 's61', 1024 * (m - 4)))

        def echk(ok):
            for m in range(7):
                self.stolen_tag(64 + 4 * m, f'v{12+m}', 'v20')
            self.check_tags([f'v{12+m}' for m in range(7)], ok)
        self.poll('E', loads, echk)
        self.stamp(11)
        for m in range(7):
            for r in range(4):
                a(f"v_and_b32 v{64+4*m+r}, 0xffffff00, v{64+4*m+r}")
        def pk(d, s):
            a(f"v_pk_add_f32 v[{d}:{d+1}], v[{d}:{d+1}], v[{s}:{s+1}]")
        for d, s in ((64, 68), (72, 76), (80, 84), (64, 72), (80, 88), (64, 80)):
            pk(d, s)
            pk(d + 2, s + 2)
        self.red_rows(64)
        self.rnd('v64', 'v64')
        a("v_mul_f32 v64, v57, v64")
        self.rnd('v64', 'v64')
        a(f"""v_add_f32 v64, v59, v64
              v_cvt_pk_bf16_f32 v64, v64, v64
              s_mov_b32 exec_lo, 0x00ff00ff
              s_mov_b32 exec_hi, 0x00ff00ff
              buffer_store_short v64, v61, {R2}, s68 offen
              s_mov_b64 exec, -1""")
        noep = self.lab('noep')
        a(f"""s_cmp_eq_u32 s2, 64
              s_cbranch_scc0 {noep}
              v_mov_b32 v1, 0
              v_mov_b32 v2, {sTAG}
              s_mov_b64 exec, 1
              buffer_store_dword v2, v1, {WSR}, 0 offen offset:{WS_EPOCH}
              s_mov_b64 exec, -1""")
        a.label(noep)
        self.stamp(12)
        a.label(end)
        self.stamps_out(16)
        a("s_endpgm")

    def w_setup1(self, H, O, WQ, WO):
        a = self.a
        a(f"""s_lshl_b32 s61, {sWAVE}, 6
              v_add_u32 v1, s61, v0
              v_lshlrev_b32 v33, 4, v1
              v_lshrrev_b32 v2, 3, v1
              v_lshlrev_b32 v2, 1, v2
              v_and_b32 v3, 1, v1
              v_add_u32 v2, v2, v3""")
        self.perm_pos_bytes('v34', 'v2', 'v3')
        a(f"""v_bfe_u32 v3, v1, 1, 2
              v_mul_u32_u24 v3, 1056, v3
              v_add_u32 v34, v34, v3
              v_add_u32 v34, {H}, v34""")
        a(f"""v_bfe_u32 v2, v1, 4, 2
              v_lshlrev_b32 v2, 5, v2
              v_bfe_u32 v3, v1, 6, 1
              v_lshl_add_u32 v2, v3, 4, v2
              v_and_b32 v3, 15, v1
              v_add_u32 v2, v2, v3""")
        self.perm_pos_bytes('v35', 'v2', 'v3')
        a(f"""v_lshrrev_b32 v3, 7, v1
              v_mul_u32_u24 v3, 1056, v3
              v_add_u32 v35, v35, v3
              v_add_u32 v35, {O}, v35""")
        a(f"""s_and_b32 s61, {sWAVE}, 3
              s_lshl_b32 s61, s61, 5""")
        self.tr_addr_p128('v36', 's61', WQ, 'v1', 'v2')
        a(f"v_add_u32 v37, {WO-WQ}, v36")
        self.act_addr('v38', H, 1056, 'v1')
        a(f"v_add_u32 v39, {O-H}, v38")
        a(f"""v_and_b32 v1, 3, v0
              v_lshlrev_b32 v40, 6, v1
              v_lshrrev_b32 v1, 4, v0
              v_lshl_add_u32 v40, v1, 4, v40
              s_lshl_b32 s57, {sG}, 3
              s_add_u32 s57, s57, s56
              s_lshl_b32 s57, s57, 2
              s_add_u32 s57, s57, {sWAVE}
              s_lshl_b32 s57, s57, 8
              s_add_u32 s57, s57, {WS_B}
              s_mov_b32 s58, {WS_A2}""")

    def build(self):
        self.prologue()
        self.role_m()
        self.role_w()
        self.role_k()
        self.role_v()
        self.a.label("L_END")
        self.a("s_endpgm")
        body = self.a.finalize()
        vg = 256 if self.o['PROF'] else 208
        hdr = HEADER.format(lds=LDS_BYTES)
        return hdr + f""".amdgcn_target "amdgcn-amd-amdhsa--gfx950"
.text
.globl {NAME}
.p2align 8
.type {NAME},@function
{NAME}:
{body}.section .rodata,"a"
.p2align 6
.amdhsa_kernel {NAME}
  .amdhsa_next_free_vgpr {vg}
  .amdhsa_next_free_sgpr 102
  .amdhsa_accum_offset {vg}
  .amdhsa_group_segment_fixed_size 0
  .amdhsa_kernarg_size 112
  .amdhsa_user_sgpr_count 2
  .amdhsa_user_sgpr_kernarg_segment_ptr 1
  .amdhsa_system_sgpr_workgroup_id_x 1
.end_amdhsa_kernel
"""


if __name__ == '__main__':
    opt = {}
    out = None
    for arg in sys.argv[1:]:
        if '=' in arg:
            k, v = arg.split('=', 1)
            opt[k] = int(v) if v.lstrip('-').isdigit() else v
        else:
            out = arg
    g = Gen2(opt)
    txt = g.build()
    if out:
        open(out, 'w').write(txt)
    else:
        sys.stdout.write(txt)
    sys.stderr.write(f"instructions: {g.a.count()}\n")
```

```python
import sys, os
sys.path.insert(0, os.path.dirname(os.path.abspath(__file__)))
import gen as G1
from gen import *

OPT2 = dict(WWAIT=0, KWAIT=1, VWAIT=1, MTRIG=1, GTRIG=0, PF=0, KSLEEP=0, VSLEEP=0, WSLEEP=0, TOUCH=1, KWIN=0, VWIN=0, WWIN=0, BARDMA=1, VN1=0, WO1=0, MG1=0)


class Gen2(Gen):
    def __init__(self, opt):
        o = dict(OPT2)
        o.update(opt)
        super().__init__(o)

    def kwait(self):
        a = self.a
        a("s_waitcnt lgkmcnt(0)")
        if self.o['PROF']:
            a("s_mov_b32 s70, s96")
            for k in range(1, 16):
                a(f"s_mov_b32 s{70+k}, 0")
            a(f"""s_cmp_eq_u32 {sWAVE}, 0
                  s_cselect_b32 s99, 1, 0
                  s_cmp_eq_u32 {sWAVE}, 7
                  s_cselect_b32 s99, 1, s99""")
            if self.role == 'W':
                a(f"""s_cmp_eq_u32 {sWAVE}, {sG}
                      s_cselect_b32 s99, 1, s99""")
            self.stamp(14)
        a(f"s_load_dword {sE}, s[{sWS}:{sWS+1}], {WS_EPOCH}")
        self.srd(40, sWS, WS_SIZE)

    def code_prefetch(self):
        if not self.o['PF']:
            return
        a = self.a
        l = self.lab('pf')
        lp = self.lab('pc')
        a(f"""s_cmp_eq_u32 {sWAVE}, 7
              s_cbranch_scc0 {l}
              s_getpc_b64 s[86:87]""")
        a.label(lp)
        a(f"""s_lshl_b32 s88, {sJ}, 10
              s_sub_u32 s86, s86, {lp}-L_START
              s_subb_u32 s87, s87, 0
              v_lshl_add_u32 v204, v0, 4, s88
              v_min_u32 v204, (L_END-L_START-16)&0xfffffff0, v204
              v_mov_b32 v207, s87
              v_add_co_u32 v206, vcc, s86, v204
              v_addc_co_u32 v207, vcc, 0, v207, vcc
              global_load_dwordx4 v[200:203], v[206:207], off""")
        a.label(l)

    def st_local(self, q, voff, soff, imm=0):
        i = f" offset:{imm}" if imm else ""
        if self.o['LOCAL']:
            self.a(f"""s_or_b32 s39, {soff}, {WS_LOC}
                       buffer_store_dwordx4 v[{q}:{q+3}], {voff}, {WSR}, s39 offen{i}""")
        else:
            self.a(f"buffer_store_dwordx4 v[{q}:{q+3}], {voff}, {WSR}, {soff} offen{i} {self.o['ST']}")

    def st_global(self, q, voff, soff, imm=0):
        i = f" offset:{imm}" if imm else ""
        if self.o['LOCAL'] and not self.o.get('NOGLOBAL'):
            self.a(f"buffer_store_dwordx4 v[{q}:{q+3}], {voff}, {WSR}, {soff} offen{i} {self.o['ST']}")

    def silu1(self, x, t):
        a = self.a
        e, r, q, u = [f"v{t+i}" for i in range(4)]
        a(f"""s_mov_b32 s94, 0xbfb8aa3b
              s_mov_b32 s95, 0xb2a57060
              v_mul_f32 {e}, 0xbfb8aa3b, {x}
              v_fma_f32 {r}, {x}, s94, -{e}
              v_fma_f32 {r}, {x}, s95, {r}
              v_exp_f32 {e}, {e}
              v_mul_f32 {r}, 0x3f317218, {r}
              v_add_f32 {r}, 1.0, {r}
              v_mul_f32 {e}, {e}, {r}
              v_add_f32 {e}, 1.0, {e}
              v_rcp_f32 {r}, {e}
              v_cmp_eq_f32 vcc, 0x7f800000, {e}
              v_mul_f32 {q}, {x}, {r}
              v_fma_f32 {u}, -{q}, {e}, {x}
              v_fma_f32 {u}, {u}, {r}, {q}
              v_cndmask_b32 {x}, {u}, {q}, vcc""")

    def wave_sum2(self, v, w, t, u):
        a = self.a
        for pat in ("quad_perm:[1,0,3,2]", "quad_perm:[2,3,0,1]", "row_half_mirror", "row_mirror"):
            a(f"v_add_f32_dpp {v}, {v}, {v} {pat} row_mask:0xf bank_mask:0xf")
            a(f"v_add_f32_dpp {w}, {w}, {w} {pat} row_mask:0xf bank_mask:0xf")
        a(f"""v_mov_b32 {t}, {v}
              v_mov_b32 {u}, {w}
              v_permlane16_swap_b32 {v}, {t}
              v_permlane16_swap_b32 {w}, {u}
              v_add_f32 {v}, {v}, {t}
              v_add_f32 {w}, {w}, {u}
              v_mov_b32 {t}, {v}
              v_mov_b32 {u}, {w}
              v_permlane32_swap_b32 {v}, {t}
              v_permlane32_swap_b32 {w}, {u}
              v_add_f32 {v}, {v}, {t}
              v_add_f32 {w}, {w}, {u}""")

    def ln_stats_pivot(self, x, M2, SD2, RC2, t):
        a = self.a
        t0, t1, t2, t3 = [f"v{t+i}" for i in range(4)]
        a(f"v_readfirstlane_b32 s39, v{x}")
        D = t + 4
        for k in range(8):
            a(f"v_subrev_f32 v{D+k}, s39, v{x+k}")
        a(f"""v_add_f32 {t0}, v{D}, v{D+1}
              v_mul_f32 {t1}, v{D}, v{D}
              v_add_f32 {t2}, v{D+2}, v{D+3}
              v_mul_f32 {t3}, v{D+1}, v{D+1}
              v_add_f32 {t0}, {t0}, {t2}
              v_fmac_f32 {t1}, v{D+2}, v{D+2}
              v_add_f32 {t2}, v{D+4}, v{D+5}
              v_fmac_f32 {t3}, v{D+3}, v{D+3}
              v_add_f32 {t0}, {t0}, {t2}
              v_fmac_f32 {t1}, v{D+4}, v{D+4}
              v_add_f32 {t2}, v{D+6}, v{D+7}
              v_fmac_f32 {t3}, v{D+5}, v{D+5}
              v_add_f32 {t0}, {t0}, {t2}
              v_fmac_f32 {t1}, v{D+6}, v{D+6}
              v_fmac_f32 {t3}, v{D+7}, v{D+7}
              v_add_f32 {t1}, {t1}, {t3}""")
        self.wave_sum2(t0, t1, t2, t3)
        a(f"""v_mul_f32 {t0}, 0x3b000000, {t0}
              v_mul_f32 {t1}, 0x3b000000, {t1}
              v_fma_f32 {t1}, -{t0}, {t0}, {t1}
              v_add_f32 {t0}, s39, {t0}
              v_max_f32 {t1}, 0, {t1}
              v_cvt_pk_bf16_f32 {t1}, {t0}, {t1}
              v_lshlrev_b32 v{M2}, 16, {t1}
              v_and_b32 {t1}, 0xffff0000, {t1}
              v_add_f32 {t1}, 0x3727c5ac, {t1}
              v_mov_b32 v{M2+1}, v{M2}""")
        self.rnd(t1, t1)
        a(f"v_sqrt_f32 {t1}, {t1}")
        self.rnd(f"v{SD2}", t1)
        a(f"""v_rcp_f32 v{RC2}, v{SD2}
              v_mov_b32 v{SD2+1}, v{SD2}
              v_mov_b32 v{RC2+1}, v{RC2}""")

    def pk_rnd(self, p, t):
        self.a(f"""v_cvt_pk_bf16_f32 {t}, v{p}, v{p+1}
                   v_lshlrev_b32 v{p}, 16, {t}
                   v_and_b32 v{p+1}, 0xffff0000, {t}""")

    def prologue(self):
        a = self.a
        a.label("L_START")
        a(f"""s_cmp_ge_u32 s2, 256
              s_cbranch_scc1 L_END
              s_load_dwordx16 s[4:19], s[0:1], 0
              s_load_dwordx8 s[20:27], s[0:1], 64
              s_load_dwordx4 s[28:31], s[0:1], 96""")
        if self.o['PROF']:
            a("s_memrealtime s[96:97]")
        a(f"""v_lshrrev_b32 v1, 6, v0
              v_and_b32 v0, 63, v0
              s_and_b32 {sG}, s2, 7
              s_lshr_b32 {sJ}, s2, 3
              v_readfirstlane_b32 {sWAVE}, v1
              s_cmp_ge_u32 {sJ}, 24
              s_cbranch_scc1 L_ROLE_V
              s_cmp_ge_u32 {sJ}, 16
              s_cbranch_scc1 L_ROLE_K
              s_cmp_ge_u32 {sJ}, 8
              s_cbranch_scc1 L_ROLE_W""")

    def role_v(self):
        a = self.a
        o = self.o
        RED, ST = 131072, 139776
        F = 64
        a.label("L_ROLE_V")
        self.role = 'V'
        a(f"""s_sub_u32 s56, {sJ}, 24
              s_lshr_b32 s57, s56, 1
              s_and_b32 s58, s56, 1
              s_lshl_b32 s60, s57, 3
              s_add_u32 s60, s60, {sG}
              s_lshl_b32 s59, s60, 20
              s_add_u32 s59, s59, {3072*256}
              s_lshl_b32 s61, s58, 7
              s_add_u32 s59, s59, s61
              s_lshl_b32 s61, {sWAVE}, 15
              s_add_u32 s59, s59, s61
              s_lshl_b32 s62, {sWAVE}, 14
              s_mov_b32 m0, s62""")
        self.dma_off_p128('v32', 256, 'v1', 'v2')
        a(f"""v_bfe_u32 v1, v0, 2, 2
              v_lshlrev_b32 v33, 9, v1
              v_lshrrev_b32 v2, 4, v0
              v_lshl_add_u32 v33, v2, 6, v33
              v_and_b32 v3, 3, v0
              v_lshl_add_u32 v33, v3, 4, v33
              s_lshl_b32 s63, s60, 14
              s_add_u32 s63, s63, {WS_S}
              s_lshl_b32 s61, {sWAVE}, 11
              s_add_u32 s63, s63, s61""")
        a(f"""v_mul_u32_u24 v38, 272, v3
              v_lshl_add_u32 v38, v1, 6, v38
              v_lshl_add_u32 v38, v2, 4, v38
              s_mul_i32 s61, {sWAVE}, 1088
              s_add_u32 s61, s61, {RED}
              v_add_u32 v38, s61, v38""")
        a(f"""v_lshlrev_b32 v39, 6, v3
              v_add_u32 v40, {ST}, v39
              s_lshl_b32 s61, {sWAVE}, 3
              v_add_u32 v39, s61, v40
              v_lshl_add_u32 v40, v1, 3, v40
              v_and_b32 v2, 1, v2
              v_lshl_add_u32 v40, v2, 5, v40""")
        for t in range(4):
            self.tr_addr_p128(f'v{34+t}', 32 * t, 's62', 'v1', 'v2')
        a(f"""v_lshrrev_b32 v1, 4, v0
              v_mul_u32_u24 v1, 272, v1
              v_and_b32 v2, 15, v0
              v_lshl_add_u32 v1, v2, 4, v1
              v_add_u32 v41, {RED}, v1
              v_lshlrev_b32 v42, 4, v0
              s_lshl_b32 s66, {sG}, 2
              s_add_u32 s66, s66, s57
              s_lshl_b32 s66, s66, 1
              s_add_u32 s66, s66, s58
              s_lshl_b32 s66, s66, 10
              s_add_u32 s66, s66, {WS_C}""")
        self.kwait()
        self.srd(44, sV, 0x2000000)
        if o['VWAIT']:
            a("s_waitcnt lgkmcnt(0)")
        if o['VSLEEP']:
            a(f"s_sleep {o['VSLEEP']}")
        self.stamp(15)
        self.only_exit('V', pre=True)
        self.code_prefetch()
        if o['VN1']:
            self.dma_loop('v32', R1, 's59', 2048, o['VN1'], win=o['VWIN'])
            self.dma_loop('v32', R1, 's59', 2048, 16 - o['VN1'])
        else:
            self.dma_loop('v32', R1, 's59', 2048, 16, win=o['VWIN'])
        self.only_exit('V')
        self.tag_ready()
        self.stamp(1)

        def first():
            self.stamp(2)
            for s in range(4):
                for t in range(4):
                    for h in range(2):
                        q = F + 16 * s + 4 * t + 2 * h
                        a(f"ds_read_b64_tr_b16 v[{q}:{q+1}], v{34+t} offset:{4096*s+2048*h}")
                if s < 3:
                    a("s_waitcnt lgkmcnt(6)")
        self.poll('S', [self.gload(4, 'v33', 's63'), self.gload(8, 'v33', 's63', 256)],
                  lambda ok: self.check_tags(['v6', 'v10'], ok), first_extra=first, local=['s63'])
        self.stamp(3)
        self.unpack('v12', 'v13', 'v4')
        self.unpack('v14', 'v15', 'v5')
        self.unpack('v16', 'v17', 'v8')
        self.unpack('v18', 'v19', 'v9')
        a("""s_mov_b32 s94, 0x3fb8aa3b
             v_max3_f32 v20, v12, v13, v14
             v_max3_f32 v21, v15, v16, v17
             v_max3_f32 v20, v20, v18, v19
             v_max_f32 v20, v20, v21
             v_max_f32_dpp v20, v20, v20 row_ror:4 row_mask:0xf bank_mask:0xf
             v_max_f32_dpp v20, v20, v20 row_ror:8 row_mask:0xf bank_mask:0xf
             v_mov_b32 v21, v20
             v_permlane16_swap_b32 v20, v21
             v_max_f32 v20, v20, v21
             v_mov_b32 v21, v20
             v_permlane32_swap_b32 v20, v21
             v_max_f32 v20, v20, v21""")
        for k in range(8):
            a(f"v_sub_f32 v{12+k}, v{12+k}, v20")
        for k in range(8):
            a(f"v_mul_f32 v{12+k}, s94, v{12+k}")
        for k in range(8):
            a(f"v_exp_f32 v{12+k}, v{12+k}")
        a("""v_add_f32 v22, v12, v13
             v_add_f32 v23, v14, v15
             v_add_f32 v24, v16, v17
             v_add_f32 v25, v18, v19
             v_add_f32 v22, v22, v23
             v_add_f32 v24, v24, v25
             v_add_f32 v21, v22, v24
             v_add_f32_dpp v21, v21, v21 row_ror:4 row_mask:0xf bank_mask:0xf
             v_add_f32_dpp v21, v21, v21 row_ror:8 row_mask:0xf bank_mask:0xf
             v_mov_b32 v22, v21
             v_permlane16_swap_b32 v21, v22
             v_add_f32 v21, v21, v22
             v_mov_b32 v22, v21
             v_permlane32_swap_b32 v21, v22
             v_add_f32 v21, v21, v22
             s_mov_b64 exec, 0xf
             ds_write_b64 v39, v[20:21]
             s_mov_b64 exec, -1
             s_waitcnt lgkmcnt(0)
             s_barrier
             ds_read_b64 v[22:23], v40
             s_waitcnt lgkmcnt(0)
             v_mov_b32 v24, v22
             v_max_f32_dpp v24, v24, v24 row_ror:4 row_mask:0xf bank_mask:0xf
             v_max_f32_dpp v24, v24, v24 row_ror:8 row_mask:0xf bank_mask:0xf
             v_mov_b32 v25, v24
             v_permlane16_swap_b32 v24, v25
             v_max_f32 v24, v24, v25
             v_sub_f32 v22, v22, v24
             v_sub_f32 v20, v20, v24
             v_mul_f32 v22, s94, v22
             v_mul_f32 v20, s94, v20
             v_exp_f32 v22, v22
             v_exp_f32 v20, v20
             v_mul_f32 v22, v22, v23
             v_add_f32_dpp v22, v22, v22 row_ror:4 row_mask:0xf bank_mask:0xf
             v_add_f32_dpp v22, v22, v22 row_ror:8 row_mask:0xf bank_mask:0xf
             v_mov_b32 v23, v22
             v_permlane16_swap_b32 v22, v23
             v_add_f32 v22, v22, v23
             v_rcp_f32 v22, v22
             v_mul_f32 v20, v20, v22""")
        for k in range(8):
            a(f"v_mul_f32 v{12+k}, v{12+k}, v20")
        for k in range(4):
            a(f"v_cvt_pk_bf16_f32 v{44+k}, v{12+2*k}, v{13+2*k}")
        D = [4, 8, 12, 16]
        rot = ((2, 8), (1, 12), (3, 4))
        done = set()

        def mf(s, t):
            rho = (s - t) & 3
            q = F + 16 * s + 4 * t
            c = f"v[{D[t]}:{D[t]+3}]" if t in done else "0"
            done.add(t)
            a(f"v_mfma_f32_16x16x32_bf16 v[{D[t]}:{D[t]+3}], v[{q}:{q+3}], v[{44+4*rho}:{47+4*rho}], {c}")
        for rho, n in rot:
            for k in range(4):
                a(f"v_mov_b32_dpp v{44+4*rho+k}, v{44+k} row_ror:{n} row_mask:0xf bank_mask:0xf")
        for rho in (0, 2, 1, 3):
            for t in range(4):
                mf((t + rho) & 3, t)
        self.select_tiles(D)
        a("""ds_write_b128 v38, v[4:7]
             s_waitcnt lgkmcnt(0)
             s_barrier""")
        self.stamp(4)
        done = self.lab('vdone')
        a(f"""s_cmp_eq_u32 {sWAVE}, 0
              s_cbranch_scc0 {done}""")
        for w in range(8):
            a(f"ds_read_b128 v[{64+4*w}:{67+4*w}], v41 offset:{1088*w}")
        a(f"""v_mov_b32 v6, {sTAG}
              v_mov_b32 v7, 0""")

        def pk(d, s_):
            a(f"v_pk_add_f32 v[{d}:{d+1}], v[{d}:{d+1}], v[{s_}:{s_+1}]")
        for n, (d, s_) in enumerate(((64, 68), (72, 76), (80, 84), (88, 92))):
            a(f"s_waitcnt lgkmcnt({6-2*n})")
            pk(d, s_)
            pk(d + 2, s_ + 2)
        for d, s_ in ((64, 72), (80, 88), (64, 80)):
            pk(d, s_)
            pk(d + 2, s_ + 2)
        a("""v_cvt_pk_bf16_f32 v4, v64, v65
             v_cvt_pk_bf16_f32 v5, v66, v67""")
        self.gstore(4, 'v42', 's66', local=True)
        a.label(done)
        self.stamp(5)
        self.stamps_out(16)
        a("s_endpgm")

    def role_k(self):
        a = self.a
        o = self.o
        QL, SC2 = 131072, 132224
        F = 64
        a.label("L_ROLE_K")
        self.role = 'K'
        a(f"""s_sub_u32 s56, {sJ}, 16
              s_lshr_b32 s57, s56, 1
              s_and_b32 s58, s56, 1
              s_lshl_b32 s66, {sG}, 3
              s_add_u32 s66, s66, s56
              s_and_b32 s67, s66, 1
              s_lshl_b32 s60, s57, 3
              s_add_u32 s60, s60, {sG}
              s_lshl_b32 s59, s60, 20
              s_add_u32 s59, s59, {3072*256}
              s_lshl_b32 s61, s58, 17
              s_add_u32 s59, s59, s61
              s_lshl_b32 s62, {sWAVE}, 14
              s_add_u32 s59, s59, s62
              s_mov_b32 m0, s62
              v_lshrrev_b32 v1, 4, v0
              v_and_b32 v2, 15, v0""")
        for v in range(4):
            a(f"""v_add_u32 v3, {4*v}, v1
                  v_xor_b32 v3, v3, v2
                  v_lshlrev_b32 v3, 4, v3
                  v_lshl_add_u32 v{32+v}, v1, 8, v3""")
        a("""v_and_b32 v4, 3, v2
             v_xor_b32 v4, v4, v1
             v_and_b32 v5, 12, v2
             v_lshlrev_b32 v6, 8, v2
             v_add_u32 v6, s62, v6""")
        for t in range(4):
            a(f"""v_xor_b32 v3, {4*t}, v5
                  v_add_u32 v3, v3, v4
                  v_lshl_add_u32 v{36+t}, v3, 4, v6""")
        a(f"""s_lshl_b32 s61, {sWAVE}, 6
              v_add_u32 v5, s61, v0
              v_lshrrev_b32 v6, 2, v5
              v_lshlrev_b32 v6, 8, v6
              v_and_b32 v7, 3, v5
              v_lshl_add_u32 v40, v7, 4, v6
              v_lshrrev_b32 v6, 5, v5
              v_mul_u32_u24 v6, 288, v6
              v_and_b32 v7, 31, v5
              v_lshl_add_u32 v6, v7, 3, v6
              v_add_u32 v41, {QL}, v6
              s_lshl_b32 s69, {sG}, 13
              s_lshl_b32 s61, s57, 6
              s_add_u32 s69, s69, s61
              s_add_u32 s69, s69, {WS_B}""")
        self.act_addr('v42', QL, 288, 'v5')
        a(f"""v_bfe_u32 v5, v0, 2, 2
              v_lshl_add_u32 v5, v5, 2, v1
              v_lshlrev_b32 v5, 6, v5
              v_and_b32 v6, 3, v0
              v_lshl_add_u32 v43, v6, 4, v5
              s_lshl_b32 s63, s60, 14
              s_add_u32 s63, s63, {WS_S}
              s_lshl_b32 s61, s58, 13
              s_add_u32 s63, s63, s61
              s_lshl_b32 s61, {sWAVE}, 10
              s_add_u32 s63, s63, s61""")
        a(f"""s_lshl_b32 s61, {sWAVE}, 10
              s_lshl_b32 s68, s67, 9
              s_add_u32 s68, s68, s61
              v_lshlrev_b32 v7, 3, v0""")
        self.kwait()
        self.srd(48, sC, 4096)
        self.srd(44, sK, 0x2000000)
        skipc = self.lab('kc')
        a(f"""s_cmp_lt_u32 {sWAVE}, 4
              s_cbranch_scc0 {skipc}
              buffer_load_dwordx2 v[24:25], v7, {R2}, s68 offen""")
        a.label(skipc)
        if o['KWAIT']:
            a("s_waitcnt lgkmcnt(0)")
        if o['KSLEEP']:
            a(f"s_sleep {o['KSLEEP']}")
        self.stamp(15)
        self.only_exit('K', pre=True)
        self.code_prefetch()
        l = self.lab('kdma')
        a("s_mov_b32 s38, 4")
        a.label(l)
        for v in range(4):
            i = f" offset:{1024*v}" if v else ""
            if o['KWIN']:
                a(f"s_waitcnt vmcnt({o['KWIN']-1})")
            a(f"buffer_load_dwordx4 v{32+v}, {R1}, s59 offen{i} {self.nt()}lds")
        a(f"""s_add_u32 s59, s59, 4096
              s_add_u32 m0, m0, 4096
              s_sub_u32 s38, s38, 1
              s_cmp_lg_u32 s38, 0
              s_cbranch_scc1 {l}""")
        self.only_exit('K')
        skips = self.lab('ks')
        npf = 1 if o['PF'] else 0
        a(f"""s_cmp_lt_u32 {sWAVE}, 4
              s_cbranch_scc0 {skips}
              s_waitcnt vmcnt({min(16, o['KWIN']) if o['KWIN'] else 16})""")
        self.unpack('v8', 'v9', 'v24')
        self.unpack('v10', 'v11', 'v25')
        self.silu4(8, 12)
        a("""v_cvt_pk_bf16_f32 v8, v8, v9
             v_cvt_pk_bf16_f32 v9, v10, v11""")
        self.perm_pos_bytes('v5', 'v0', 'v6')
        a(f"""s_mul_i32 s61, {sWAVE}, 544
              s_add_u32 s61, s61, {SC2}
              v_add_u32 v5, s61, v5
              ds_write_b64 v5, v[8:9]""")
        a.label(skips)
        a(f"""s_lshr_b32 s68, s66, 4
              s_add_u32 s68, s68, 1
              s_lshr_b32 s56, s66, 1
              s_and_b32 s56, s56, 7""")
        self.srd(48, sWM, 512 * 6144)
        self.dma_off_p128('v32', 6144, 'v1', 'v2')
        a(f"""s_lshl_b32 s59, s67, 8
              s_lshl_b32 s61, {sWAVE}, 5
              s_add_u32 s59, s59, s61
              s_mul_i32 s59, s59, 6144
              s_lshl_b32 s61, s68, 10
              s_add_u32 s59, s59, s61
              s_lshl_b32 s61, s56, 7
              s_add_u32 s59, s59, s61
              s_add_u32 s59, s59, 2048""")
        self.tag_ready()
        self.stamp(1)

        def kfrags():
            for T in range(4):
                for t in range(4):
                    q = F + 16 * T + 4 * t
                    a(f"ds_read_b128 v[{q}:{q+3}], v{36+t} offset:{4096*T}")
                if T == 2:
                    a("s_waitcnt lgkmcnt(6)")
        nopoll = self.lab('knp')
        join = self.lab('kj')
        a(f"""s_cmp_lt_u32 {sWAVE}, 2
              s_cbranch_scc0 {nopoll}""")

        def first():
            self.stamp(2)
            kfrags()
        self.poll('B', [self.gload(4, 'v40', 's69')], lambda ok: self.check_tags(['v6'], ok), first_extra=first, local=['s69'])
        a(f"""ds_write_b64 v41, v[4:5]
              s_branch {join}""")
        a.label(nopoll)
        a("s_waitcnt vmcnt(0)")
        self.stamp(2)
        kfrags()
        a.label(join)
        a("""s_waitcnt lgkmcnt(0)
             s_barrier""")
        self.stamp(3)
        for t in range(4):
            a(f"ds_read_b128 v[{44+4*t}:{47+4*t}], v42 offset:{64*t}")
        D = [4, 8, 12, 16]
        for t in range(4):
            a(f"s_waitcnt lgkmcnt({3-t})")
            for T in range(4):
                q = F + 16 * T + 4 * t
                c = "0" if t == 0 else f"v[{D[T]}:{D[T]+3}]"
                a(f"v_mfma_f32_16x16x32_bf16 v[{D[T]}:{D[T]+3}], v[{q}:{q+3}], v[{44+4*t}:{47+4*t}], {c}")
        self.select_tiles(D)
        a("""v_cvt_pk_bf16_f32 v8, v4, v5
             v_cvt_pk_bf16_f32 v9, v6, v7""")
        self.unpack('v4', 'v5', 'v8')
        self.unpack('v6', 'v7', 'v9')
        for r in range(4):
            a(f"v_mul_f32 v{4+r}, 0x3db504f3, v{4+r}")
        a(f"""v_cvt_pk_bf16_f32 v8, v4, v5
              v_cvt_pk_bf16_f32 v9, v6, v7
              v_mov_b32 v10, {sTAG}
              v_mov_b32 v11, 0""")
        self.st_local(8, 'v43', 's63')
        self.stamp(4)
        end = self.lab('kend')
        a("s_barrier")
        self.st_global(8, 'v43', 's63')
        a(f"""s_cmp_lt_u32 s66, 48
              s_cbranch_scc0 {end}
              s_mov_b32 m0, s62""")
        self.dma_loop('v32', R2, 's59', 8 * 6144, 4)
        a(f"s_lshl_b32 s61, {sWAVE}, 5")
        self.tr_addr_p128('v33', 's61', '0', 'v1', 'v2')
        a("v_add_u32 v34, 65536, v33")
        self.act_addr('v35', SC2, 544, 'v1')
        a(f"""v_lshrrev_b32 v1, 5, v0
              v_lshlrev_b32 v36, 10, v1
              v_and_b32 v1, 3, v0
              v_lshl_add_u32 v36, v1, 5, v36
              v_bfe_u32 v1, v0, 4, 1
              v_lshl_add_u32 v36, v1, 4, v36
              s_lshl_b32 s59, s56, 13
              s_lshl_b32 s61, {sWAVE}, 11
              s_add_u32 s59, s59, s61
              s_lshl_b32 s61, s68, 8
              s_add_u32 s59, s59, s61
              s_lshl_b32 s61, s67, 7
              s_add_u32 s59, s59, s61
              s_add_u32 s59, s59, {WS_ML}""")
        self.sel_consts()
        self.tagbytes(28)
        a("""s_waitcnt vmcnt(0)
             s_barrier""")
        a(f"""s_cmp_lt_u32 {sWAVE}, 4
              s_cbranch_scc0 {end}""")
        for s in range(8):
            a(f"ds_read_b128 v[{96+4*s}:{99+4*s}], v35 offset:{64*s}")
        a("s_waitcnt lgkmcnt(2)")
        for s in range(8):
            va = 'v33' if s < 4 else 'v34'
            for h in range(2):
                q = F + 4 * s + 2 * h
                a(f"ds_read_b64_tr_b16 v[{q}:{q+1}], {va} offset:{16384*(s&3)+2048*h}")
            if s == 5:
                a("s_waitcnt lgkmcnt(6)")
        for s in range(8):
            a(f"s_waitcnt lgkmcnt({max(0, 14-2*s) if s >= 4 else 6})" if s >= 4 else "s_waitcnt lgkmcnt(8)" if s == 0 else "s_nop 0")
            c = "0" if s == 0 else "v[4:7]"
            a(f"v_mfma_f32_16x16x32_bf16 v[4:7], v[{F+4*s}:{F+4*s+3}], v[{96+4*s}:{99+4*s}], {c}")
        self.steal(4, 28)
        a("s_mov_b32 exec_lo, 0x000f000f")
        a("s_mov_b32 exec_hi, 0x000f000f")
        self.gstore(4, 'v36', 's59')
        a("s_mov_b64 exec, -1")
        self.stamp(5)
        a.label(end)
        self.stamps_out(16)
        a("s_endpgm")

    def role_m(self):
        a = self.a
        o = self.o
        M1W, SC, STAT = 0, 16384, 17024
        GATE, UP, DOWN, H2, GU = 32768, 65536, 98304, 131072, 135296
        F = 64
        a.label("L_ROLE_M")
        self.role = 'M'
        a(f"""v_lshrrev_b32 v1, 4, v0
              v_and_b32 v3, 15, v0
              v_lshlrev_b32 v2, 1, v1
              v_xor_b32 v2, v2, v3
              v_and_b32 v4, 7, v2
              v_lshlrev_b32 v4, 4, v4
              v_lshrrev_b32 v2, 3, v2
              v_lshl_add_u32 v4, v2, 10, v4
              v_xor_b32 v5, 1024, v4
              v_mul_u32_u24 v1, 6144, v1
              v_add_u32 v32, v1, v4
              v_add_u32 v33, v1, v5
              s_lshl_b32 s59, {sJ}, 6
              s_lshl_b32 s61, {sWAVE}, 3
              s_add_u32 s59, s59, s61
              s_mul_i32 s59, s59, 6144
              s_lshl_b32 s61, {sG}, 7
              s_add_u32 s59, s59, s61
              s_lshl_b32 s61, {sWAVE}, 11
              s_mov_b32 m0, s61
              s_and_b32 s62, {sWAVE}, 3
              s_lshl_b32 s62, s62, 10
              v_lshlrev_b32 v6, 4, v0
              v_lshlrev_b32 v7, 1, v0
              s_lshl_b32 s63, {sJ}, 7
              s_add_u32 s63, s63, s62""")
        self.kwait()
        self.srd(44, sWM, 512 * 6144)
        self.srd(48, sC, 4096)
        self.srd(52, sX, 4096)
        l4 = self.lab('m4')
        lx = self.lab('mx')
        a(f"""s_cmp_lt_u32 {sWAVE}, 4
              s_cbranch_scc0 {l4}
              buffer_load_dwordx4 v[24:27], v6, {R3}, s62 offen
              s_branch {lx}""")
        a.label(l4)
        a(f"buffer_load_ushort v24, v7, {R2}, s63 offen")
        a.label(lx)
        self.stamp(15)
        self.only_exit('M', pre=True)
        a(f"""buffer_load_dwordx4 v32, {R1}, s59 offen {self.nt()}lds
              s_add_u32 s59, s59, {4*6144}
              s_add_u32 m0, m0, 1024
              s_nop 0
              buffer_load_dwordx4 v33, {R1}, s59 offen {self.nt()}lds""")
        self.only_exit('M')
        a(f"""v_bfe_u32 v1, v0, 1, 2
              v_lshlrev_b32 v1, 10, v1
              v_and_b32 v2, 1, v0
              v_lshl_add_u32 v1, v2, 3, v1
              v_lshrrev_b32 v2, 4, v0
              v_lshl_add_u32 v1, v2, 1, v1
              s_lshl_b32 s61, {sG}, 7
              s_lshl_b32 s56, {sJ}, 4
              s_add_u32 s61, s61, s56
              buffer_load_ushort v28, v1, {R3}, s61 offen""")
        self.code_prefetch()
        if o['TOUCH']:
            lt0 = self.lab('mt0')
            a(f"""s_cmp_eq_u32 {sWAVE}, 0
                  s_cbranch_scc0 {lt0}
                  s_lshl_b32 s61, {sG}, 3
                  s_add_u32 s61, s61, {sJ}
                  s_lshl_b32 s61, s61, 12
                  s_add_u32 s61, s61, {WS_A1 + WS_LOC}
                  v_lshlrev_b32 v2, 4, v0""")
            for m in range(4):
                a(self.gload(8 + 4 * m, 'v2', 's61', 1024 * m))
            a.label(lt0)
        a(f"""v_lshrrev_b32 v1, 4, v0
              v_bfe_u32 v2, v0, 2, 2
              v_lshl_add_u32 v3, v1, 2, v2
              v_lshlrev_b32 v34, 8, v3
              v_and_b32 v3, 1, v1
              v_lshlrev_b32 v3, 3, v3
              v_lshl_add_u32 v3, v2, 1, v3
              s_lshl_b32 s61, {sWAVE}, 1
              v_xor_b32 v3, s61, v3
              v_lshl_add_u32 v34, v3, 4, v34
              v_and_b32 v3, 3, v0
              v_lshl_add_u32 v34, v3, 3, v34""")
        self.act_addr('v35', SC, 160, 'v1')
        a(f"""v_lshrrev_b32 v1, 5, v0
              v_lshlrev_b32 v36, 12, v1
              v_bfe_u32 v1, v0, 2, 1
              v_lshl_add_u32 v36, v1, 10, v36
              v_and_b32 v1, 3, v0
              v_lshl_add_u32 v36, v1, 5, v36
              v_bfe_u32 v1, v0, 4, 1
              v_lshl_add_u32 v36, v1, 4, v36
              s_lshl_b32 s60, {sG}, 15
              s_and_b32 s61, {sWAVE}, 3
              s_lshl_b32 s61, s61, 13
              s_add_u32 s60, s60, s61
              s_lshr_b32 s61, {sWAVE}, 2
              s_lshl_b32 s61, s61, 11
              s_add_u32 s60, s60, s61
              s_lshl_b32 s61, {sJ}, 7
              s_add_u32 s60, s60, s61
              s_add_u32 s60, s60, {WS_A1}""")
        lb = self.lab('mb')
        npf = 1 if o['PF'] else 0
        a(f"""s_cmp_ge_u32 {sWAVE}, 4
              s_cbranch_scc0 {lb}""")
        a("v_lshrrev_b32 v4, 2, v0")
        self.perm_pos_bytes('v5', 'v4', 'v6')
        a(f"""v_and_b32 v6, 3, v0
              v_lshl_add_u32 v5, v6, 1, v5
              s_and_b32 s61, {sWAVE}, 3
              s_mul_i32 s61, s61, 160
              s_add_u32 s61, s61, {SC}
              v_add_u32 v5, s61, v5
              s_waitcnt vmcnt(3)
              v_lshlrev_b32 v8, 16, v24""")
        self.silu1('v8', 12)
        a("""v_cvt_pk_bf16_f32 v8, v8, v8
             ds_write_b16 v5, v8""")
        a.label(lb)
        a("""s_waitcnt vmcnt(0) lgkmcnt(0)
             s_barrier""")
        self.stamp(1)
        self.frags(F, 'v34', 2, 8192, 4096)
        a(f"""ds_read_b128 v[72:75], v35
              ds_read_b128 v[76:79], v35 offset:64
              s_add_u32 {sTAG}, {sE}, {TAGC}
              s_waitcnt lgkmcnt(0)
              v_mfma_f32_16x16x32_bf16 v[4:7], v[64:67], v[72:75], 0
              v_mfma_f32_16x16x32_bf16 v[4:7], v[68:71], v[76:79], v[4:7]""")
        a(f"""s_mov_b32 exec_lo, 0x00f000f0
              s_mov_b32 exec_hi, 0x00f000f0
              v_mov_b32 v4, v6
              v_mov_b32 v5, v7
              s_mov_b32 exec_lo, 0x00ff00ff
              s_mov_b32 exec_hi, 0x00ff00ff
              v_mov_b32 v6, {sTAG}
              v_mov_b32 v7, 0""")
        self.st_local(4, 'v36', 's60')
        a("s_mov_b64 exec, -1")
        self.stamp(2)
        ls = self.lab('ms')
        a(f"""s_cmp_lt_u32 {sWAVE}, 4
              s_cbranch_scc0 {ls}""")
        for k in range(4):
            self.unpack(f'v{8+2*k}', f'v{9+2*k}', f'v{24+k}')
        self.ln_stats(8, 'v20', 'v21', 'v22', 16)
        a(f"""s_lshl_b32 s61, {sWAVE}, 3
              s_add_u32 s61, s61, {STAT}
              v_mov_b32 v1, s61
              s_mov_b64 exec, 1
              ds_write_b64 v1, v[20:21]
              s_mov_b64 exec, -1
              s_waitcnt lgkmcnt(0)""")
        a.label(ls)
        a("""s_barrier
             s_mov_b32 exec_lo, 0x00ff00ff
             s_mov_b32 exec_hi, 0x00ff00ff""")
        self.st_global(4, 'v36', 's60')
        a("s_mov_b64 exec, -1")
        lh = self.lab('mh')
        a(f"""s_cmp_eq_u32 {sWAVE}, 0
              s_cbranch_scc0 {lh}
              v_bfe_u32 v1, v0, 1, 2
              v_lshlrev_b32 v1, 3, v1
              v_add_u32 v1, {STAT}, v1
              ds_read_b64 v[20:21], v1
              v_lshlrev_b32 v28, 16, v28
              s_lshl_b32 s59, {sG}, 3
              s_add_u32 s59, s59, {sJ}
              s_lshl_b32 s59, s59, 12
              s_add_u32 s59, s59, {WS_A1}
              v_lshlrev_b32 v2, 4, v0
              s_waitcnt lgkmcnt(0)
              v_rcp_f32 v22, v21""")
        self.ln_elem('v29', 'v28', 'v20', 'v21', 'v22', 'v23', 'v30')
        a(f"""v_mov_b32 v22, {sTAG}
              v_mov_b32 v23, 0
              s_lshl_b32 s57, {sG}, 3
              s_add_u32 s57, s57, {sJ}
              s_lshl_b32 s57, s57, 7
              s_add_u32 s57, s57, {WS_A2}""")
        self.poll('A1', [self.gload(4 + 4 * m, 'v2', 's59', 1024 * m) for m in range(4)],
                  lambda ok: self.check_tags(['v6', 'v10', 'v14', 'v18'], ok), local=['s59'])
        self.stamp(3)
        a("""v_mov_b32 v6, v8
             v_mov_b32 v7, v9
             v_mov_b32 v14, v16
             v_mov_b32 v15, v17""")
        for r in range(4):
            a(f"v_add_f32_dpp v{4+r}, v{4+r}, v{4+r} row_ror:8 row_mask:0xf bank_mask:0xf")
        for r in range(4):
            a(f"v_add_f32_dpp v{12+r}, v{12+r}, v{12+r} row_ror:8 row_mask:0xf bank_mask:0xf")
        a("""v_permlane16_swap_b32 v4, v5
             v_permlane16_swap_b32 v6, v7
             v_permlane16_swap_b32 v12, v13
             v_permlane16_swap_b32 v14, v15
             v_add_f32 v4, v4, v5
             v_add_f32 v6, v6, v7
             v_add_f32 v12, v12, v13
             v_add_f32 v14, v14, v15
             v_permlane32_swap_b32 v4, v6
             v_permlane32_swap_b32 v12, v14
             v_add_f32 v4, v4, v6
             v_add_f32 v12, v12, v14
             v_cvt_pk_bf16_f32 v4, v4, v12
             v_and_b32 v12, 0xffff0000, v4
             v_lshlrev_b32 v4, 16, v4
             v_add_f32 v12, 1.0, v12""")
        self.rnd('v12', 'v12')
        a("v_mul_f32 v12, v29, v12")
        self.rnd('v12', 'v12')
        a("v_add_f32 v12, v12, v4")
        self.rows_to_quad('v20', 'v21', 'v12', 'v8')
        a("s_mov_b64 exec, 0xff")
        self.gstore(20, 'v2', 's57')
        a("s_mov_b64 exec, -1")
        self.stamp(4)
        a.label(lh)
        a(f"""s_cmp_eq_u32 {sJ}, 7
              s_cbranch_scc1 L_ROLE_GA""")
        a(f"""s_mul_i32 s66, {sG}, 7
              s_add_u32 s66, s66, {sJ}""")
        self.srd(44, sWG, 512 * 3584)
        self.srd(48, sWU, 512 * 3584)
        self.srd(52, sWD, 1792 * 1024)
        a(f"""v_lshrrev_b32 v1, 2, v0
              v_mul_u32_u24 v1, 3584, v1
              v_bfe_u32 v2, v0, 4, 1
              v_lshlrev_b32 v2, 1, v2
              v_and_b32 v3, 3, v0
              v_xor_b32 v2, v2, v3
              v_lshl_add_u32 v32, v2, 4, v1
              s_lshl_b32 s59, {sWAVE}, 6
              s_mul_i32 s59, s59, 3584
              s_lshl_b32 s61, s66, 6
              s_add_u32 s59, s59, s61
              s_mov_b32 s60, s59
              s_lshl_b32 s67, s66, 5
              s_lshl_b32 s61, {sWAVE}, 2
              s_add_u32 s67, s67, s61
              s_lshl_b32 s67, s67, 10
              s_and_b32 s62, {sWAVE}, 1
              s_lshl_b32 s62, s62, 3""")
        for n in range(4):
            a(f"""s_add_u32 s63, s62, {2*n}
                  v_xor_b32 v1, s63, v0
                  v_lshlrev_b32 v{40+n}, 4, v1""")
        a(f"""v_lshrrev_b32 v1, 4, v0
              v_bfe_u32 v2, v0, 2, 2
              v_lshl_add_u32 v3, v1, 2, v2
              v_lshlrev_b32 v33, 6, v3
              v_and_b32 v3, 1, v1
              s_and_b32 s61, {sWAVE}, 1
              v_xor_b32 v3, s61, v3
              v_lshl_add_u32 v33, v3, 5, v33
              v_and_b32 v3, 3, v0
              v_lshl_add_u32 v33, v3, 3, v33
              s_bfe_u32 s61, {sWAVE}, 0x10001
              s_lshl_b32 s61, s61, 15
              s_add_u32 s61, s61, {GATE}
              v_add_u32 v33, s61, v33""")
        a(f"""v_lshl_add_u32 v3, v1, 2, v2
              v_lshlrev_b32 v4, 10, v3
              v_and_b32 v5, 3, v0
              v_lshl_add_u32 v4, v5, 3, v4
              v_add_u32 v4, {DOWN}, v4
              v_and_b32 v3, 7, v3
              v_lshlrev_b32 v3, 1, v3
              s_lshl_b32 s61, {sWAVE}, 3
              v_xor_b32 v3, s61, v3""")
        for t in range(4):
            a(f"""v_xor_b32 v5, {2*t}, v3
                  v_lshl_add_u32 v{34+t}, v5, 4, v4""")
        self.act_addr('v38', H2, 1056, 'v1')
        self.act_addr('v39', GU, 96, 'v1')
        a(f"""v_lshlrev_b32 v44, 4, v0
              s_lshl_b32 s68, {sG}, 2
              s_add_u32 s68, s68, {sWAVE}
              s_lshl_b32 s68, s68, 12
              s_add_u32 s68, s68, {WS_D}""")
        self.perm_pos_bytes('v45', 'v0', 'v1')
        a(f"""s_mul_i32 s61, {sWAVE}, 1056
              s_add_u32 s61, s61, {H2}
              v_add_u32 v45, s61, v45""")
        a(f"""v_and_b32 v1, 3, v0
              v_mul_u32_u24 v46, 96, v1
              v_lshrrev_b32 v1, 4, v0
              v_lshl_add_u32 v46, v1, 4, v46
              s_and_b32 s61, {sWAVE}, 1
              s_lshl_b32 s61, s61, 3
              s_bfe_u32 s62, {sWAVE}, 0x10001
              s_mul_i32 s62, s62, 384
              s_add_u32 s61, s61, s62
              s_add_u32 s61, s61, {GU}
              v_add_u32 v46, s61, v46""")
        a(f"""v_bfe_u32 v1, v0, 2, 2
              v_lshlrev_b32 v1, 1, v1
              v_lshrrev_b32 v2, 5, v0
              v_add_u32 v1, v1, v2
              v_mul_u32_u24 v47, {56*128}, v1
              v_and_b32 v1, 3, v0
              v_lshl_add_u32 v47, v1, 5, v47
              v_bfe_u32 v1, v0, 4, 1
              v_lshl_add_u32 v47, v1, 4, v47
              s_mul_i32 s63, {sWAVE}, {8*56*128}
              s_lshl_b32 s61, s66, 7
              s_add_u32 s63, s63, s61
              s_add_u32 s63, s63, {WS_E}""")
        self.sel_consts()
        self.tagbytes(48)
        if o['MG1']:
            a(f"""s_barrier
                  s_lshl_b32 s61, {sWAVE}, 12
                  s_add_u32 s61, s61, {GATE}
                  s_mov_b32 m0, s61""")
            self.dma_loop('v32', R1, 's59', 16 * 3584, o['MG1'])
        if o['MTRIG']:
            lt = self.lab('mt')
            a(f"""s_cmp_eq_u32 {sWAVE}, 0
                  s_cbranch_scc0 {lt}
                  v_lshlrev_b32 v2, 10, v0
                  s_lshl_b32 s61, {sG}, 13
                  s_add_u32 s61, s61, {WS_B}""")
            if o['MTRIG'] == 2:
                a(f"""v_lshrrev_b32 v2, 1, v0
                      v_lshlrev_b32 v2, 17, v2
                      v_and_b32 v3, 1, v0
                      v_lshl_add_u32 v2, v3, 13, v2
                      s_lshl_b32 s61, {sG}, 14
                      s_add_u32 s61, s61, {WS_S}""")
            a("s_mov_b64 exec, 0xff")
            self.poll('T', [self.gload(4, 'v2', 's61')], lambda ok: self.check_tags(['v6'], ok), local=['s61'])
            a("s_mov_b64 exec, -1")
            a.label(lt)
        a("s_barrier")
        a(f"""s_lshl_b32 s61, {sWAVE}, 12
              s_add_u32 s61, s61, {GATE + 1024 * o['MG1']}
              s_mov_b32 m0, s61""")
        if o['MG1'] < 4:
            self.dma_loop('v32', R1, 's59', 16 * 3584, 4 - o['MG1'])
        a(f"""s_sub_u32 s61, s61, {1024 * o['MG1']}
              s_add_u32 s61, s61, {UP-GATE}
              s_mov_b32 m0, s61""")
        self.dma_loop('v32', R2, 's60', 16 * 3584, 4)
        a(f"""s_add_u32 s61, s61, {DOWN-UP}
              s_mov_b32 m0, s61
              s_nop 0""")
        for n in range(4):
            a(f"""buffer_load_dwordx4 v{40+n}, {R3}, s67 offen {self.nt()}lds
                  s_add_u32 s67, s67, 1024
                  s_add_u32 m0, m0, 1024
                  s_nop 0""")
        a("""s_waitcnt vmcnt(0)
             s_barrier""")
        self.stamp(5)
        for t in range(4):
            for h in range(2):
                q = 128 + 4 * t + 2 * h
                a(f"ds_read_b64_tr_b16 v[{q}:{q+1}], v{34+t} offset:{16384*h}")
        lw = self.lab('mw')
        a(f"""s_cmp_lt_u32 {sWAVE}, 4
              s_cbranch_scc0 {lw}
              s_waitcnt lgkmcnt(0)""")
        for s in range(16):
            for h in range(2):
                q = F + 4 * s + 2 * h
                a(f"ds_read_b64_tr_b16 v[{q}:{q+1}], v33 offset:{2048*s+1024*h}")
            if s in (6, 10):
                a("s_waitcnt lgkmcnt(6)")
        self.poll('D', [self.gload(4, 'v44', 's68'), self.gload(8, 'v44', 's68', 2048),
                        self.gload(12, 'v44', 's68', 1024), self.gload(16, 'v44', 's68', 3072)],
                  lambda ok: self.check_tags(['v7', 'v11', 'v15', 'v19'], ok), local=['s68'])
        self.stamp(6)
        X = 20
        self.unpack(f'v{X}', f'v{X+1}', 'v4')
        self.unpack(f'v{X+2}', f'v{X+3}', 'v5')
        self.unpack(f'v{X+4}', f'v{X+5}', 'v12')
        self.unpack(f'v{X+6}', f'v{X+7}', 'v13')
        M2, SD2, RC2 = 52, 54, 56
        self.ln_stats_pivot(X, M2, SD2, RC2, 144)
        csrc = ['v6', 'v8', 'v14', 'v16']
        ssrc = ['v9', 'v10', 'v17', 'v18']
        for p in range(4):
            x = X + 2 * p
            a(f"v_pk_add_f32 v[{x}:{x+1}], v[{x}:{x+1}], v[{M2}:{M2+1}] neg_lo:[0,1] neg_hi:[0,1]")
        for p in range(4):
            self.pk_rnd(X + 2 * p, f'v{144+p}')
        for p in range(4):
            x, q = X + 2 * p, 148 + 2 * p
            a(f"v_pk_mul_f32 v[{q}:{q+1}], v[{x}:{x+1}], v[{RC2}:{RC2+1}]")
        for p in range(4):
            x, q = X + 2 * p, 148 + 2 * p
            a(f"v_pk_fma_f32 v[{x}:{x+1}], v[{q}:{q+1}], v[{SD2}:{SD2+1}], v[{x}:{x+1}] neg_lo:[1,0,0] neg_hi:[1,0,0]")
        for p in range(4):
            x, q = X + 2 * p, 148 + 2 * p
            a(f"v_pk_fma_f32 v[{x}:{x+1}], v[{x}:{x+1}], v[{RC2}:{RC2+1}], v[{q}:{q+1}]")
        for p in range(4):
            self.pk_rnd(X + 2 * p, f'v{144+p}')
        for p in range(4):
            q = 148 + 2 * p
            self.unpack(f'v{q}', f'v{q+1}', csrc[p])
        for p in range(4):
            x, q = X + 2 * p, 148 + 2 * p
            a(f"v_pk_mul_f32 v[{x}:{x+1}], v[{x}:{x+1}], v[{q}:{q+1}]")
        for p in range(4):
            q = 148 + 2 * p
            self.unpack(f'v{q}', f'v{q+1}', ssrc[p])
        for p in range(4):
            self.pk_rnd(X + 2 * p, f'v{144+p}')
        for p in range(4):
            x, q = X + 2 * p, 148 + 2 * p
            a(f"v_pk_add_f32 v[{x}:{x+1}], v[{x}:{x+1}], v[{q}:{q+1}]")
        for p in range(4):
            a(f"v_cvt_pk_bf16_f32 v{4+p}, v{X+2*p}, v{X+2*p+1}")
        a("""ds_write_b64 v45, v[4:5]
             ds_write_b64 v45, v[6:7] offset:512""")
        a.label(lw)
        a("""s_waitcnt lgkmcnt(0)
             s_barrier""")
        self.stamp(7)
        lg = self.lab('mg')
        a(f"""s_cmp_lt_u32 {sWAVE}, 4
              s_cbranch_scc0 {lg}""")
        self.gemv16(4, F, 'v38', 144)
        a("""v_cvt_pk_bf16_f32 v8, v4, v5
             v_cvt_pk_bf16_f32 v9, v6, v7
             s_mov_b32 exec_lo, 0x000f000f
             s_mov_b32 exec_hi, 0x000f000f
             ds_write_b64 v46, v[8:9]
             s_mov_b64 exec, -1""")
        a.label(lg)
        a("""s_waitcnt lgkmcnt(0)
             s_barrier
             ds_read_b128 v[4:7], v39
             ds_read_b128 v[8:11], v39 offset:384
             s_waitcnt lgkmcnt(0)""")
        for k in range(4):
            self.unpack(f'v{20+2*k}', f'v{21+2*k}', f'v{4+k}')
        for k in range(4):
            self.unpack(f'v{144+2*k}', f'v{145+2*k}', f'v{8+k}')
        for k in range(8):
            a(f"v_max_f32 v{20+k}, 0, v{20+k}")
        for k in range(4):
            a(f"v_pk_mul_f32 v[{20+2*k}:{21+2*k}], v[{20+2*k}:{21+2*k}], v[{144+2*k}:{145+2*k}]")
        for k in range(4):
            a(f"v_cvt_pk_bf16_f32 v{16+k}, v{20+2*k}, v{21+2*k}")
        D = [4, 8, 12, 20]
        for t in range(4):
            a(f"v_mfma_f32_16x16x32_bf16 v[{D[t]}:{D[t]+3}], v[{128+4*t}:{131+4*t}], v[16:19], 0")
        self.select_tiles(D)
        self.steal(4, 48)
        self.gstore(4, 'v47', 's63')
        self.stamp(8)
        self.stamps_out(16)
        a("s_endpgm")

        a.label("L_ROLE_GA")
        S = 131072
        self.srd(48, sC, 4096)
        self.dma_off_p128('v32', 6144, 'v1', 'v2')
        a(f"""s_lshl_b32 s59, {sWAVE}, 6
              s_mul_i32 s59, s59, 6144
              s_lshl_b32 s61, {sG}, 7
              s_add_u32 s59, s59, s61
              s_add_u32 s59, s59, 2048
              s_lshl_b32 s61, {sWAVE}, 13
              s_add_u32 s61, s61, {GATE}
              s_mov_b32 m0, s61
              s_barrier""")
        lc = self.lab('gc')
        a(f"""s_cmp_lt_u32 {sWAVE}, 4
              s_cbranch_scc0 {lc}
              s_lshl_b32 s61, {sWAVE}, 10
              v_lshlrev_b32 v1, 3, v0
              buffer_load_dwordx2 v[24:25], v1, {R2}, s61 offen
              buffer_load_dwordx2 v[26:27], v1, {R2}, s61 offen offset:512""")
        a.label(lc)
        self.dma_loop('v32', R1, 's59', 8 * 6144, 8)
        lc2 = self.lab('gc2')
        a(f"""s_cmp_lt_u32 {sWAVE}, 4
              s_cbranch_scc0 {lc2}
              s_waitcnt vmcnt(8)""")
        self.perm_pos_bytes('v5', 'v0', 'v6')
        a(f"""s_mul_i32 s61, {sWAVE}, 1056
              s_add_u32 s61, s61, {S}
              v_add_u32 v5, s61, v5""")
        for hf in range(2):
            self.unpack('v8', 'v9', f'v{24+2*hf}')
            self.unpack('v10', 'v11', f'v{25+2*hf}')
            self.silu4(8, 12)
            a(f"""v_cvt_pk_bf16_f32 v8, v8, v9
                  v_cvt_pk_bf16_f32 v9, v10, v11
                  ds_write_b64 v5, v[8:9] offset:{512*hf}""")
        a.label(lc2)
        a(f"s_lshl_b32 s61, {sWAVE}, 5")
        self.tr_addr_p128('v33', 's61', GATE, 'v1', 'v2')
        self.act_addr('v35', S, 1056, 'v1')
        a(f"""v_lshrrev_b32 v1, 5, v0
              v_lshlrev_b32 v36, 10, v1
              v_bfe_u32 v1, v0, 2, 1
              v_lshl_add_u32 v36, v1, 7, v36
              v_and_b32 v1, 3, v0
              v_lshl_add_u32 v36, v1, 5, v36
              v_bfe_u32 v1, v0, 4, 1
              v_lshl_add_u32 v36, v1, 4, v36
              s_lshl_b32 s59, {sG}, 13
              s_lshl_b32 s61, {sWAVE}, 11
              s_add_u32 s59, s59, s61
              s_add_u32 s59, s59, {WS_ML}""")
        self.sel_consts()
        self.tagbytes(28)
        a("""s_waitcnt vmcnt(0) lgkmcnt(0)
             s_barrier""")
        le = self.lab('ge')
        a(f"""s_cmp_lt_u32 {sWAVE}, 4
              s_cbranch_scc0 {le}""")
        for s in range(16):
            for h in range(2):
                q = F + 4 * s + 2 * h
                a(f"ds_read_b64_tr_b16 v[{q}:{q+1}], v33 offset:{4096*s+2048*h}")
            if s in (6, 13):
                a("s_waitcnt lgkmcnt(0)")
        a("s_waitcnt lgkmcnt(0)")
        self.gemv16(4, F, 'v35', 144)
        a("""s_mov_b32 exec_lo, 0x00f000f0
             s_mov_b32 exec_hi, 0x00f000f0""")
        for r in range(4):
            a(f"v_mov_b32 v{4+r}, 0")
        a("""s_mov_b32 exec_lo, 0x00ff00ff
             s_mov_b32 exec_hi, 0x00ff00ff""")
        self.steal(4, 28)
        self.gstore(4, 'v36', 's59')
        a("s_mov_b64 exec, -1")
        a.label(le)
        self.stamp(5)
        self.stamps_out(16)
        a("s_endpgm")

    def role_w(self):
        a = self.a
        o = self.o
        WQ, WO, H, O = 0, 65536, 131072, 135296
        F = 64
        a.label("L_ROLE_W")
        self.role = 'W'
        a(f"s_sub_u32 s56, {sJ}, 8")
        self.dma_off_p128('v32', 8192, 'v1', 'v2')
        a(f"""s_lshl_b32 s59, {sWAVE}, 19
              s_lshl_b32 s61, {sG}, 10
              s_add_u32 s59, s59, s61
              s_lshl_b32 s61, s56, 7
              s_add_u32 s59, s59, s61
              s_lshl_b32 s61, {sWAVE}, 13
              s_mov_b32 m0, s61""")
        if o['WWAIT']:
            self.w_setup1(H, O, WQ, WO)
        self.kwait()
        self.srd(44, sWQ, 512 * 8192)
        if o['WWAIT']:
            a("s_waitcnt lgkmcnt(0)")
        if o['WSLEEP']:
            a(f"s_sleep {o['WSLEEP']}")
        self.stamp(15)
        self.only_exit('W', pre=True)
        self.dma_loop('v32', R1, 's59', 8 * 8192, 8, win=o['WWIN'])
        self.only_exit('W')
        self.code_prefetch()
        if not o['WWAIT']:
            self.w_setup1(H, O, WQ, WO)
        self.srd(52, sX, 4096)
        a(f"""v_bfe_u32 v1, v0, 1, 2
              v_lshlrev_b32 v1, 10, v1
              v_and_b32 v2, 1, v0
              v_lshl_add_u32 v1, v2, 3, v1
              v_lshrrev_b32 v2, 4, v0
              v_lshl_add_u32 v1, v2, 1, v1
              s_lshl_b32 s61, s56, 7
              s_lshl_b32 s62, {sWAVE}, 4
              s_add_u32 s61, s61, s62
              buffer_load_ushort v60, v1, {R3}, s61 offen""")
        self.srd(44, sWO, 4096 * 1024)
        self.dma_off_p128('v32', 1024, 'v1', 'v2')
        a(f"""s_lshl_b32 s59, {sG}, 9
              s_lshl_b32 s61, {sWAVE}, 6
              s_add_u32 s59, s59, s61
              s_lshl_b32 s59, s59, 10
              s_lshl_b32 s61, s56, 7
              s_add_u32 s59, s59, s61
              s_lshl_b32 s67, {sWAVE}, 13
              s_add_u32 s67, s67, {WO}""")
        if o['WO1']:
            a("s_mov_b32 m0, s67")
            self.dma_loop('v32', R1, 's59', 8 * 1024, o['WO1'])
            a(f"s_add_u32 s67, s67, {1024 * o['WO1']}")
        self.tag_ready()
        self.stamp(1)
        lw1 = self.lab('w1')

        def first():
            self.stamp(2)
            a("s_barrier")
            a(f"""s_cmp_lt_u32 {sWAVE}, 4
                  s_cbranch_scc0 {lw1}""")
            for s in range(16):
                for h in range(2):
                    q = F + 4 * s + 2 * h
                    a(f"ds_read_b64_tr_b16 v[{q}:{q+1}], v36 offset:{4096*s+2048*h}")
                if s in (6, 10):
                    a("s_waitcnt lgkmcnt(6)")
            a.label(lw1)
        self.poll('A2', [self.gload(4, 'v33', 's58')],
                  lambda ok: self.check_tags(['v6'], ok), first_extra=first)
        a("""ds_write_b64 v34, v[4:5]
             s_waitcnt lgkmcnt(0)
             s_barrier""")
        self.stamp(3)
        lq = self.lab('wqskip')
        a(f"""s_mov_b32 m0, s67
              s_cmp_lt_u32 {sWAVE}, 4
              s_cbranch_scc0 {lq}""")
        self.gemv16(4, F, 'v38', 128)
        a(f"""v_cvt_pk_bf16_f32 v8, v4, v5
              v_cvt_pk_bf16_f32 v9, v6, v7
              v_mov_b32 v10, {sTAG}
              v_mov_b32 v11, 0
              s_mov_b32 exec_lo, 0x000f000f
              s_mov_b32 exec_hi, 0x000f000f""")
        self.st_local(8, 'v40', 's57')
        a("s_mov_b64 exec, -1")
        a.label(lq)
        a("s_barrier")
        self.stamp(4)
        lq3 = self.lab('wq3')
        a(f"""s_cmp_lt_u32 {sWAVE}, 4
              s_cbranch_scc0 {lq3}
              s_mov_b32 exec_lo, 0x000f000f
              s_mov_b32 exec_hi, 0x000f000f""")
        self.st_global(8, 'v40', 's57')
        a("s_mov_b64 exec, -1")
        a.label(lq3)
        if o['WO1'] < 8:
            self.dma_loop('v32', R1, 's59', 8 * 1024, 8 - o['WO1'])
        a(f"""s_lshl_b32 s58, {sG}, 13
              s_add_u32 s58, s58, {WS_C}
              v_lshrrev_b32 v1, 5, v0
              v_lshlrev_b32 v41, 10, v1
              v_and_b32 v1, 3, v0
              v_lshl_add_u32 v41, v1, 5, v41
              v_bfe_u32 v1, v0, 4, 1
              v_lshl_add_u32 v41, v1, 4, v41
              s_lshl_b32 s57, s56, 13
              s_lshl_b32 s61, {sWAVE}, 11
              s_add_u32 s57, s57, s61
              s_lshl_b32 s61, {sG}, 7
              s_add_u32 s57, s57, s61
              s_add_u32 s57, s57, {WS_C2}
              v_lshlrev_b32 v42, 4, v0
              s_lshl_b32 s62, s56, 3
              s_add_u32 s62, s62, {sWAVE}
              s_lshl_b32 s62, s62, 10
              s_add_u32 s63, s62, {WS_ML}
              s_add_u32 s62, s62, {WS_C2}
              ; D publish: ((g*4 + b)*2 + u)*2048 + Q*16, Q = 16i + 2w + q
              v_bfe_u32 v1, v0, 1, 2
              v_lshlrev_b32 v43, 12, v1
              v_and_b32 v1, 1, v0
              v_lshl_add_u32 v43, v1, 4, v43
              s_lshl_b32 s66, {sG}, 14
              s_lshl_b32 s61, s56, 8
              s_add_u32 s66, s66, s61
              s_lshl_b32 s61, {sWAVE}, 5
              s_add_u32 s66, s66, s61
              s_add_u32 s66, s66, {WS_D}
              v_bfe_u32 v1, v0, 1, 2
              v_lshlrev_b32 v61, 10, v1
              v_and_b32 v2, 1, v0
              v_lshl_add_u32 v61, v2, 3, v61
              v_lshrrev_b32 v2, 4, v0
              v_lshl_add_u32 v61, v2, 1, v61
              s_lshl_b32 s68, s56, 7
              s_lshl_b32 s61, {sG}, 4
              s_add_u32 s68, s68, s61
              s_lshl_b32 s69, s56, 3
              s_add_u32 s69, s69, {sG}
              s_mul_i32 s69, s69, {56*128}
              s_add_u32 s69, s69, {WS_E}""")
        if o['TOUCH']:
            a(self.gload(4, 'v42', 's62'))
            a(self.gload(8, 'v42', 's63'))
            lt1 = self.lab('wt1')
            a(f"""s_cmp_eq_u32 {sWAVE}, {sG}
                  s_cbranch_scc0 {lt1}
                  s_add_u32 s61, s69, 4096""")
            for m in range(7):
                a(self.gload(64 + 4 * m, 'v42', 's69' if m < 4 else 's61', 1024 * (m & 3)))
            a.label(lt1)
        self.srd(48, sOUT, 4096)
        self.sel_consts()
        self.tagbytes(48)
        a("v_lshlrev_b32 v60, 16, v60")
        lw2 = self.lab('w2')

        def first2():
            self.stamp(5)
            a("s_barrier")
            a(f"""s_cmp_lt_u32 {sWAVE}, 4
                  s_cbranch_scc0 {lw2}""")
            for s in range(16):
                for h in range(2):
                    q = F + 4 * s + 2 * h
                    a(f"ds_read_b64_tr_b16 v[{q}:{q+1}], v37 offset:{4096*s+2048*h}")
                if s in (6, 10):
                    a("s_waitcnt lgkmcnt(6)")
            a.label(lw2)
        self.poll('C', [self.gload(4, 'v33', 's58')], lambda ok: self.check_tags(['v6'], ok), first_extra=first2, local=['s58'])
        a("""ds_write_b64 v35, v[4:5]
             s_waitcnt lgkmcnt(0)
             s_barrier""")
        self.stamp(6)
        lo = self.lab('wo')
        a(f"""s_cmp_lt_u32 {sWAVE}, 4
              s_cbranch_scc0 {lo}""")
        self.gemv16(4, F, 'v39', 128)
        self.steal(4, 48)
        a("""s_mov_b32 exec_lo, 0x000f000f
             s_mov_b32 exec_hi, 0x000f000f""")
        self.gstore(4, 'v41', 's57')
        a("s_mov_b64 exec, -1")
        a.label(lo)
        self.stamp(7)

        def stolen_check(q):
            def chk(ok):
                self.stolen_tag(q, 'v12', 'v13')
                self.check_tags(['v12'], ok)
            return chk
        self.poll('ML', [self.gload(4, 'v42', 's63')], stolen_check(4))
        for r in range(4):
            a(f"v_and_b32 v{4+r}, 0xffffff00, v{4+r}")
        for r in range(4):
            a(f"v_add_f32_dpp v{4+r}, v{4+r}, v{4+r} row_ror:8 row_mask:0xf bank_mask:0xf")
        self.pk_rnd(4, 'v12')
        self.pk_rnd(6, 'v13')
        a("""s_mov_b32 exec_lo, 0
             s_mov_b32 exec_hi, 0x0000ffff""")
        for r in range(4):
            a(f"v_add_f32 v{4+r}, 1.0, v{4+r}")
        self.pk_rnd(4, 'v12')
        self.pk_rnd(6, 'v13')
        a("s_mov_b64 exec, -1")
        a("""v_cvt_pk_bf16_f32 v8, v4, v5
             v_cvt_pk_bf16_f32 v9, v6, v7
             v_mov_b32 v16, 0
             v_mov_b32 v17, 0
             v_mov_b32 v18, 0
             v_mov_b32 v19, 0
             v_mov_b32 v10, v8
             v_mov_b32 v11, v9
             v_mov_b32 v14, v8
             v_mov_b32 v15, v9
             v_permlane32_swap_b32 v10, v16
             v_permlane32_swap_b32 v11, v17
             v_permlane16_swap_b32 v14, v18
             v_permlane16_swap_b32 v15, v19""")
        a(f"""v_mov_b32 v58, v16
              v_mov_b32 v20, v17
              v_mov_b32 v21, v18
              v_mov_b32 v22, v19
              v_mov_b32 v23, {sTAG}
              s_mov_b64 exec, 0xff""")
        self.gstore(20, 'v43', 's66', 2048, local=True)
        a("s_mov_b64 exec, -1")
        a("""v_permlane16_swap_b32 v4, v5
             v_permlane16_swap_b32 v6, v7
             v_permlane32_swap_b32 v4, v6
             v_permlane32_swap_b32 v5, v7
             v_mov_b32 v56, v4
             v_mov_b32 v57, v7""")
        self.stamp(8)
        self.poll('C2', [self.gload(4, 'v42', 's62')], stolen_check(4))
        self.stamp(9)
        for r in range(4):
            a(f"v_and_b32 v{4+r}, 0xffffff00, v{4+r}")
        self.red_rows(4)
        self.rnd('v4', 'v4')
        a("v_mul_f32 v4, v56, v4")
        self.rnd('v4', 'v4')
        a("v_add_f32 v4, v60, v4")
        self.rnd('v59', 'v4')
        a(f"""v_mov_b32 v10, v58
              v_mov_b32 v11, {sTAG}""")
        self.rows_to_quad('v8', 'v9', 'v59', 'v12')
        a("s_mov_b64 exec, 0xff")
        self.st_local(8, 'v43', 's66')
        self.stamp(10)
        a("s_barrier")
        self.st_global(8, 'v43', 's66')
        a("s_mov_b64 exec, -1")
        end = self.lab('wend')
        a(f"""s_cmp_eq_u32 {sWAVE}, {sG}
              s_cbranch_scc0 {end}
              s_add_u32 s61, s69, 4096""")
        loads = []
        for m in range(7):
            if m < 4:
                loads.append(self.gload(64 + 4 * m, 'v42', 's69', 1024 * m))
            else:
                loads.append(self.gload(64 + 4 * m, 'v42', 's61', 1024 * (m - 4)))

        def echk(ok):
            for m in range(7):
                self.stolen_tag(64 + 4 * m, f'v{12+m}', 'v20')
            self.check_tags([f'v{12+m}' for m in range(7)], ok)
        self.poll('E', loads, echk)
        self.stamp(11)
        for m in range(7):
            for r in range(4):
                a(f"v_and_b32 v{64+4*m+r}, 0xffffff00, v{64+4*m+r}")
        def pk(d, s):
            a(f"v_pk_add_f32 v[{d}:{d+1}], v[{d}:{d+1}], v[{s}:{s+1}]")
        for d, s in ((64, 68), (72, 76), (80, 84), (64, 72), (80, 88), (64, 80)):
            pk(d, s)
            pk(d + 2, s + 2)
        self.red_rows(64)
        self.rnd('v64', 'v64')
        a("v_mul_f32 v64, v57, v64")
        self.rnd('v64', 'v64')
        a(f"""v_add_f32 v64, v59, v64
              v_cvt_pk_bf16_f32 v64, v64, v64
              s_mov_b32 exec_lo, 0x00ff00ff
              s_mov_b32 exec_hi, 0x00ff00ff
              buffer_store_short v64, v61, {R2}, s68 offen
              s_mov_b64 exec, -1""")
        noep = self.lab('noep')
        a(f"""s_cmp_eq_u32 s2, 64
              s_cbranch_scc0 {noep}
              v_mov_b32 v1, 0
              v_mov_b32 v2, {sTAG}
              s_mov_b64 exec, 1
              buffer_store_dword v2, v1, {WSR}, 0 offen offset:{WS_EPOCH}
              s_mov_b64 exec, -1""")
        a.label(noep)
        self.stamp(12)
        a.label(end)
        self.stamps_out(16)
        a("s_endpgm")

    def w_setup1(self, H, O, WQ, WO):
        a = self.a
        a(f"""s_lshl_b32 s61, {sWAVE}, 6
              v_add_u32 v1, s61, v0
              v_lshlrev_b32 v33, 4, v1
              v_lshrrev_b32 v2, 3, v1
              v_lshlrev_b32 v2, 1, v2
              v_and_b32 v3, 1, v1
              v_add_u32 v2, v2, v3""")
        self.perm_pos_bytes('v34', 'v2', 'v3')
        a(f"""v_bfe_u32 v3, v1, 1, 2
              v_mul_u32_u24 v3, 1056, v3
              v_add_u32 v34, v34, v3
              v_add_u32 v34, {H}, v34""")
        a(f"""v_bfe_u32 v2, v1, 4, 2
              v_lshlrev_b32 v2, 5, v2
              v_bfe_u32 v3, v1, 6, 1
              v_lshl_add_u32 v2, v3, 4, v2
              v_and_b32 v3, 15, v1
              v_add_u32 v2, v2, v3""")
        self.perm_pos_bytes('v35', 'v2', 'v3')
        a(f"""v_lshrrev_b32 v3, 7, v1
              v_mul_u32_u24 v3, 1056, v3
              v_add_u32 v35, v35, v3
              v_add_u32 v35, {O}, v35""")
        a(f"""s_and_b32 s61, {sWAVE}, 3
              s_lshl_b32 s61, s61, 5""")
        self.tr_addr_p128('v36', 's61', WQ, 'v1', 'v2')
        a(f"v_add_u32 v37, {WO-WQ}, v36")
        self.act_addr('v38', H, 1056, 'v1')
        a(f"v_add_u32 v39, {O-H}, v38")
        a(f"""v_and_b32 v1, 3, v0
              v_lshlrev_b32 v40, 6, v1
              v_lshrrev_b32 v1, 4, v0
              v_lshl_add_u32 v40, v1, 4, v40
              s_lshl_b32 s57, {sG}, 3
              s_add_u32 s57, s57, s56
              s_lshl_b32 s57, s57, 2
              s_add_u32 s57, s57, {sWAVE}
              s_lshl_b32 s57, s57, 8
              s_add_u32 s57, s57, {WS_B}
              s_mov_b32 s58, {WS_A2}""")

    def build(self):
        self.prologue()
        self.role_m()
        self.role_w()
        self.role_k()
        self.role_v()
        self.a.label("L_END")
        self.a("s_endpgm")
        body = self.a.finalize()
        vg = 256 if self.o['PROF'] else 208
        hdr = HEADER.format(lds=LDS_BYTES)
        return hdr + f""".amdgcn_target "amdgcn-amd-amdhsa--gfx950"
.text
.globl {NAME}
.p2align 8
.type {NAME},@function
{NAME}:
{body}.section .rodata,"a"
.p2align 6
.amdhsa_kernel {NAME}
  .amdhsa_next_free_vgpr {vg}
  .amdhsa_next_free_sgpr 102
  .amdhsa_accum_offset {vg}
  .amdhsa_group_segment_fixed_size 0
  .amdhsa_kernarg_size 112
  .amdhsa_user_sgpr_count 2
  .amdhsa_user_sgpr_kernarg_segment_ptr 1
  .amdhsa_system_sgpr_workgroup_id_x 1
.end_amdhsa_kernel
"""


if __name__ == '__main__':
    opt = {}
    out = None
    for arg in sys.argv[1:]:
        if '=' in arg:
            k, v = arg.split('=', 1)
            opt[k] = int(v) if v.lstrip('-').isdigit() else v
        else:
            out = arg
    g = Gen2(opt)
    txt = g.build()
    if out:
        open(out, 'w').write(txt)
    else:
        sys.stdout.write(txt)
    sys.stderr.write(f"instructions: {g.a.count()}\n")
```

```python
import sys, os
sys.path.insert(0, os.path.dirname(os.path.abspath(__file__)))
import gen as G1
from gen import *

OPT2 = dict(WWAIT=0, KWAIT=1, VWAIT=1, MTRIG=1, GTRIG=0, PF=1, KSLEEP=0, VSLEEP=0, WSLEEP=0, TOUCH=1, KWIN=4, VWIN=1, WWIN=0, BARDMA=1, VN1=3, WO1=0, MG1=0, IOX=4, WO3=2, VN1ODD=2, PIPE_A2=0, SLP_A2=4, PIPE_C2=0, SLP_C2=2, PIPE_E=3, SLP_E=1, MLTOUCH=0, C2EARLY=1)


class Gen5(Gen):
    def __init__(self, opt):
        o = dict(OPT2)
        o.update(opt)
        super().__init__(o)

    def kwait(self, ws=True):
        a = self.a
        a("s_waitcnt lgkmcnt(0)")
        if self.o['PROF']:
            a("s_mov_b32 s70, s96")
            for k in range(1, 16):
                a(f"s_mov_b32 s{70+k}, 0")
            a(f"""s_cmp_eq_u32 {sWAVE}, 0
                  s_cselect_b32 s99, 1, 0
                  s_cmp_eq_u32 {sWAVE}, 7
                  s_cselect_b32 s99, 1, s99""")
            if self.role == 'W':
                a(f"""s_cmp_eq_u32 {sWAVE}, {sG}
                      s_cselect_b32 s99, 1, s99""")
            self.stamp(14)
        a(f"s_load_dword {sE}, s[{sWS}:{sWS+1}], {WS_EPOCH}")
        if ws:
            self.srd(40, sWS, WS_SIZE)

    def code_prefetch(self):
        if not self.o['PF']:
            return
        a = self.a
        l = self.lab('pf')
        lp = self.lab('pc')
        a(f"""s_cmp_eq_u32 {sWAVE}, 7
              s_cbranch_scc0 {l}
              s_getpc_b64 s[86:87]""")
        a.label(lp)
        a(f"""s_lshl_b32 s88, {sJ}, 10
              s_sub_u32 s86, s86, {lp}-L_START
              s_subb_u32 s87, s87, 0
              v_lshl_add_u32 v204, v0, 4, s88
              v_min_u32 v204, (L_END-L_START-16)&0xfffffff0, v204
              v_mov_b32 v207, s87
              v_add_co_u32 v206, vcc, s86, v204
              v_addc_co_u32 v207, vcc, 0, v207, vcc
              global_load_dwordx4 v[200:203], v[206:207], off""")
        a.label(l)

    def st_local(self, q, voff, soff, imm=0):
        i = f" offset:{imm}" if imm else ""
        if self.o['LOCAL']:
            self.a(f"""s_or_b32 s39, {soff}, {WS_LOC}
                       buffer_store_dwordx4 v[{q}:{q+3}], {voff}, {WSR}, s39 offen{i}""")
        else:
            self.a(f"buffer_store_dwordx4 v[{q}:{q+3}], {voff}, {WSR}, {soff} offen{i} {self.o['ST']}")

    def st_global(self, q, voff, soff, imm=0):
        i = f" offset:{imm}" if imm else ""
        if self.o['LOCAL'] and not self.o.get('NOGLOBAL'):
            self.a(f"buffer_store_dwordx4 v[{q}:{q+3}], {voff}, {WSR}, {soff} offen{i} {self.o['ST']}")

    def poll_pipe(self, name, nsets, load, check, take, sleep):
        a = self.a
        per = len(load(0))
        oks = [self.lab(name + f'ok{k}_') for k in range(nsets)]
        done = self.lab(name + 'done')
        lp = self.lab(name)
        for k in range(nsets - 1):
            for l in load(k):
                a(l)
            if sleep:
                a(f"s_sleep {sleep}")
        a(f"s_mov_b32 {sCNT}, {self.o['LIMIT'] // nsets}")
        a.label(lp)
        for k in range(nsets):
            kn = (k + nsets - 1) % nsets
            for l in load(kn):
                a(l)
            a(f"s_waitcnt vmcnt({per * (nsets - 1)})")
            check(k, oks[k])
            if sleep:
                a(f"s_sleep {sleep}")
        a(f"""s_sub_u32 {sCNT}, {sCNT}, 1
              s_cbranch_scc0 {lp}
              s_branch {oks[0]}""")
        for k in range(nsets - 1, -1, -1):
            a.label(oks[k])
            take(k)
            if k:
                a(f"s_branch {done}")
        a.label(done)

    def silu1(self, x, t):
        a = self.a
        e, r, q, u = [f"v{t+i}" for i in range(4)]
        a(f"""s_mov_b32 s94, 0xbfb8aa3b
              s_mov_b32 s95, 0xb2a57060
              v_mul_f32 {e}, 0xbfb8aa3b, {x}
              v_fma_f32 {r}, {x}, s94, -{e}
              v_fma_f32 {r}, {x}, s95, {r}
              v_exp_f32 {e}, {e}
              v_mul_f32 {r}, 0x3f317218, {r}
              v_add_f32 {r}, 1.0, {r}
              v_mul_f32 {e}, {e}, {r}
              v_add_f32 {e}, 1.0, {e}
              v_rcp_f32 {r}, {e}
              v_cmp_eq_f32 vcc, 0x7f800000, {e}
              v_mul_f32 {q}, {x}, {r}
              v_fma_f32 {u}, -{q}, {e}, {x}
              v_fma_f32 {u}, {u}, {r}, {q}
              v_cndmask_b32 {x}, {u}, {q}, vcc""")

    def wave_sum2(self, v, w, t, u):
        a = self.a
        for pat in ("quad_perm:[1,0,3,2]", "quad_perm:[2,3,0,1]", "row_half_mirror", "row_mirror"):
            a(f"v_add_f32_dpp {v}, {v}, {v} {pat} row_mask:0xf bank_mask:0xf")
            a(f"v_add_f32_dpp {w}, {w}, {w} {pat} row_mask:0xf bank_mask:0xf")
        a(f"""v_mov_b32 {t}, {v}
              v_mov_b32 {u}, {w}
              v_permlane16_swap_b32 {v}, {t}
              v_permlane16_swap_b32 {w}, {u}
              v_add_f32 {v}, {v}, {t}
              v_add_f32 {w}, {w}, {u}
              v_mov_b32 {t}, {v}
              v_mov_b32 {u}, {w}
              v_permlane32_swap_b32 {v}, {t}
              v_permlane32_swap_b32 {w}, {u}
              v_add_f32 {v}, {v}, {t}
              v_add_f32 {w}, {w}, {u}""")

    def ln_stats_pivot(self, x, M2, SD2, RC2, t):
        a = self.a
        t0, t1, t2, t3 = [f"v{t+i}" for i in range(4)]
        a(f"v_readfirstlane_b32 s39, v{x}")
        D = t + 4
        for k in range(8):
            a(f"v_subrev_f32 v{D+k}, s39, v{x+k}")
        a(f"""v_add_f32 {t0}, v{D}, v{D+1}
              v_mul_f32 {t1}, v{D}, v{D}
              v_add_f32 {t2}, v{D+2}, v{D+3}
              v_mul_f32 {t3}, v{D+1}, v{D+1}
              v_add_f32 {t0}, {t0}, {t2}
              v_fmac_f32 {t1}, v{D+2}, v{D+2}
              v_add_f32 {t2}, v{D+4}, v{D+5}
              v_fmac_f32 {t3}, v{D+3}, v{D+3}
              v_add_f32 {t0}, {t0}, {t2}
              v_fmac_f32 {t1}, v{D+4}, v{D+4}
              v_add_f32 {t2}, v{D+6}, v{D+7}
              v_fmac_f32 {t3}, v{D+5}, v{D+5}
              v_add_f32 {t0}, {t0}, {t2}
              v_fmac_f32 {t1}, v{D+6}, v{D+6}
              v_fmac_f32 {t3}, v{D+7}, v{D+7}
              v_add_f32 {t1}, {t1}, {t3}""")
        self.wave_sum2(t0, t1, t2, t3)
        a(f"""v_mul_f32 {t0}, 0x3b000000, {t0}
              v_mul_f32 {t1}, 0x3b000000, {t1}
              v_fma_f32 {t1}, -{t0}, {t0}, {t1}
              v_add_f32 {t0}, s39, {t0}
              v_max_f32 {t1}, 0, {t1}
              v_cvt_pk_bf16_f32 {t1}, {t0}, {t1}
              v_lshlrev_b32 v{M2}, 16, {t1}
              v_and_b32 {t1}, 0xffff0000, {t1}
              v_add_f32 {t1}, 0x3727c5ac, {t1}
              v_mov_b32 v{M2+1}, v{M2}""")
        self.rnd(t1, t1)
        a(f"v_sqrt_f32 {t1}, {t1}")
        self.rnd(f"v{SD2}", t1)
        a(f"""v_rcp_f32 v{RC2}, v{SD2}
              v_mov_b32 v{SD2+1}, v{SD2}
              v_mov_b32 v{RC2+1}, v{RC2}""")

    def pk_rnd(self, p, t):
        self.a(f"""v_cvt_pk_bf16_f32 {t}, v{p}, v{p+1}
                   v_lshlrev_b32 v{p}, 16, {t}
                   v_and_b32 v{p+1}, 0xffff0000, {t}""")

    def prologue(self):
        a = self.a
        a.label("L_START")
        a(f"""s_cmp_ge_u32 s2, 256
              s_cbranch_scc1 L_END
              s_load_dwordx16 s[4:19], s[0:1], 0
              s_load_dwordx8 s[20:27], s[0:1], 64
              s_load_dwordx4 s[28:31], s[0:1], 96""")
        if self.o['PROF']:
            a("s_memrealtime s[96:97]")
        a(f"""v_lshrrev_b32 v1, 6, v0
              v_and_b32 v0, 63, v0
              s_and_b32 {sG}, s2, 7
              s_lshr_b32 {sJ}, s2, 3
              v_readfirstlane_b32 {sWAVE}, v1""")
        self.code_prefetch()
        a(f"""s_cmp_ge_u32 {sJ}, 24
              s_cbranch_scc1 L_ENT_V
              s_cmp_ge_u32 {sJ}, 16
              s_cbranch_scc1 L_ENT_K
              s_cmp_ge_u32 {sJ}, 8
              s_cbranch_scc1 L_ENT_W""")

    def ent_v(self):
        a = self.a
        o = self.o
        a.label("L_ENT_V")
        self.role = 'V'
        a(f"""s_sub_u32 s56, {sJ}, 24
              s_lshr_b32 s57, s56, 1
              s_and_b32 s58, s56, 1
              s_lshl_b32 s60, s57, 3
              s_add_u32 s60, s60, {sG}
              s_lshl_b32 s59, s60, 20
              s_add_u32 s59, s59, {3072*256}
              s_lshl_b32 s61, s58, 7
              s_add_u32 s59, s59, s61
              s_lshl_b32 s61, {sWAVE}, 15
              s_add_u32 s59, s59, s61
              s_lshl_b32 s62, {sWAVE}, 14
              s_mov_b32 m0, s62""")
        self.dma_off_p128('v32', 256, 'v1', 'v2')
        self.kwait(ws=False)
        self.srd(44, sV, 0x2000000)
        if o['VWAIT']:
            a("s_waitcnt lgkmcnt(0)")
        if o['VSLEEP']:
            a(f"s_sleep {o['VSLEEP']}")
        self.stamp(15)
        self.only_exit('V', pre=True)
        if o['VN1'] and o['VN1ODD'] != o['VN1']:
            a(f"""s_cmp_eq_u32 s58, 1
                  s_cselect_b32 s63, {o['VN1ODD']}, {o['VN1']}
                  s_sub_u32 s66, 16, s63""")
            self.dma_loop('v32', R1, 's59', 2048, 's63', win=o['VWIN'])
            self.dma_loop('v32', R1, 's59', 2048, 's66')
        elif o['VN1']:
            self.dma_loop('v32', R1, 's59', 2048, o['VN1'], win=o['VWIN'])
            self.dma_loop('v32', R1, 's59', 2048, 16 - o['VN1'])
        else:
            self.dma_loop('v32', R1, 's59', 2048, 16, win=o['VWIN'])
        a("s_branch L_ROLE_V")

    def role_v(self):
        a = self.a
        o = self.o
        RED, ST = 131072, 139776
        F = 64
        a.label("L_ROLE_V")
        self.role = 'V'
        self.srd(40, sWS, WS_SIZE)
        self.only_exit('V')
        a(f"""v_bfe_u32 v1, v0, 2, 2
              v_lshlrev_b32 v33, 9, v1
              v_lshrrev_b32 v2, 4, v0
              v_lshl_add_u32 v33, v2, 6, v33
              v_and_b32 v3, 3, v0
              v_lshl_add_u32 v33, v3, 4, v33
              s_lshl_b32 s63, s60, 14
              s_add_u32 s63, s63, {WS_S}
              s_lshl_b32 s61, {sWAVE}, 11
              s_add_u32 s63, s63, s61""")
        a(f"""v_mul_u32_u24 v38, 272, v3
              v_lshl_add_u32 v38, v1, 6, v38
              v_lshl_add_u32 v38, v2, 4, v38
              s_mul_i32 s61, {sWAVE}, 1088
              s_add_u32 s61, s61, {RED}
              v_add_u32 v38, s61, v38""")
        a(f"""v_lshlrev_b32 v39, 6, v3
              v_add_u32 v40, {ST}, v39
              s_lshl_b32 s61, {sWAVE}, 3
              v_add_u32 v39, s61, v40
              v_lshl_add_u32 v40, v1, 3, v40
              v_and_b32 v2, 1, v2
              v_lshl_add_u32 v40, v2, 5, v40""")
        for t in range(4):
            self.tr_addr_p128(f'v{34+t}', 32 * t, 's62', 'v1', 'v2')
        a(f"""v_lshrrev_b32 v1, 4, v0
              v_mul_u32_u24 v1, 272, v1
              v_and_b32 v2, 15, v0
              v_lshl_add_u32 v1, v2, 4, v1
              v_add_u32 v41, {RED}, v1
              v_lshlrev_b32 v42, 4, v0
              s_lshl_b32 s66, {sG}, 2
              s_add_u32 s66, s66, s57
              s_lshl_b32 s66, s66, 1
              s_add_u32 s66, s66, s58
              s_lshl_b32 s66, s66, 10
              s_add_u32 s66, s66, {WS_C}""")
        self.tag_ready()
        self.stamp(1)

        def first():
            self.stamp(2)
            for s in range(4):
                for t in range(4):
                    for h in range(2):
                        q = F + 16 * s + 4 * t + 2 * h
                        a(f"ds_read_b64_tr_b16 v[{q}:{q+1}], v{34+t} offset:{4096*s+2048*h}")
                if s < 3:
                    a("s_waitcnt lgkmcnt(6)")
        self.poll('S', [self.gload(4, 'v33', 's63'), self.gload(8, 'v33', 's63', 256)],
                  lambda ok: self.check_tags(['v6', 'v10'], ok), first_extra=first, local=['s63'])
        self.stamp(3)
        self.unpack('v12', 'v13', 'v4')
        self.unpack('v14', 'v15', 'v5')
        self.unpack('v16', 'v17', 'v8')
        self.unpack('v18', 'v19', 'v9')
        a("""s_mov_b32 s94, 0x3fb8aa3b
             v_max3_f32 v20, v12, v13, v14
             v_max3_f32 v21, v15, v16, v17
             v_max3_f32 v20, v20, v18, v19
             v_max_f32 v20, v20, v21
             v_max_f32_dpp v20, v20, v20 row_ror:4 row_mask:0xf bank_mask:0xf
             v_max_f32_dpp v20, v20, v20 row_ror:8 row_mask:0xf bank_mask:0xf
             v_mov_b32 v21, v20
             v_permlane16_swap_b32 v20, v21
             v_max_f32 v20, v20, v21
             v_mov_b32 v21, v20
             v_permlane32_swap_b32 v20, v21
             v_max_f32 v20, v20, v21""")
        for k in range(8):
            a(f"v_sub_f32 v{12+k}, v{12+k}, v20")
        for k in range(8):
            a(f"v_mul_f32 v{12+k}, s94, v{12+k}")
        for k in range(8):
            a(f"v_exp_f32 v{12+k}, v{12+k}")
        a("""v_add_f32 v22, v12, v13
             v_add_f32 v23, v14, v15
             v_add_f32 v24, v16, v17
             v_add_f32 v25, v18, v19
             v_add_f32 v22, v22, v23
             v_add_f32 v24, v24, v25
             v_add_f32 v21, v22, v24
             v_add_f32_dpp v21, v21, v21 row_ror:4 row_mask:0xf bank_mask:0xf
             v_add_f32_dpp v21, v21, v21 row_ror:8 row_mask:0xf bank_mask:0xf
             v_mov_b32 v22, v21
             v_permlane16_swap_b32 v21, v22
             v_add_f32 v21, v21, v22
             v_mov_b32 v22, v21
             v_permlane32_swap_b32 v21, v22
             v_add_f32 v21, v21, v22
             s_mov_b64 exec, 0xf
             ds_write_b64 v39, v[20:21]
             s_mov_b64 exec, -1
             s_waitcnt lgkmcnt(0)
             s_barrier
             ds_read_b64 v[22:23], v40
             s_waitcnt lgkmcnt(0)
             v_mov_b32 v24, v22
             v_max_f32_dpp v24, v24, v24 row_ror:4 row_mask:0xf bank_mask:0xf
             v_max_f32_dpp v24, v24, v24 row_ror:8 row_mask:0xf bank_mask:0xf
             v_mov_b32 v25, v24
             v_permlane16_swap_b32 v24, v25
             v_max_f32 v24, v24, v25
             v_sub_f32 v22, v22, v24
             v_sub_f32 v20, v20, v24
             v_mul_f32 v22, s94, v22
             v_mul_f32 v20, s94, v20
             v_exp_f32 v22, v22
             v_exp_f32 v20, v20
             v_mul_f32 v22, v22, v23
             v_add_f32_dpp v22, v22, v22 row_ror:4 row_mask:0xf bank_mask:0xf
             v_add_f32_dpp v22, v22, v22 row_ror:8 row_mask:0xf bank_mask:0xf
             v_mov_b32 v23, v22
             v_permlane16_swap_b32 v22, v23
             v_add_f32 v22, v22, v23
             v_rcp_f32 v22, v22
             v_mul_f32 v20, v20, v22""")
        for k in range(8):
            a(f"v_mul_f32 v{12+k}, v{12+k}, v20")
        for k in range(4):
            a(f"v_cvt_pk_bf16_f32 v{44+k}, v{12+2*k}, v{13+2*k}")
        D = [4, 8, 12, 16]
        rot = ((2, 8), (1, 12), (3, 4))
        done = set()

        def mf(s, t):
            rho = (s - t) & 3
            q = F + 16 * s + 4 * t
            c = f"v[{D[t]}:{D[t]+3}]" if t in done else "0"
            done.add(t)
            a(f"v_mfma_f32_16x16x32_bf16 v[{D[t]}:{D[t]+3}], v[{q}:{q+3}], v[{44+4*rho}:{47+4*rho}], {c}")
        for rho, n in rot:
            for k in range(4):
                a(f"v_mov_b32_dpp v{44+4*rho+k}, v{44+k} row_ror:{n} row_mask:0xf bank_mask:0xf")
        for rho in (0, 2, 1, 3):
            for t in range(4):
                mf((t + rho) & 3, t)
        self.select_tiles(D)
        a("""ds_write_b128 v38, v[4:7]
             s_waitcnt lgkmcnt(0)
             s_barrier""")
        self.stamp(4)
        done = self.lab('vdone')
        a(f"""s_cmp_eq_u32 {sWAVE}, 0
              s_cbranch_scc0 {done}""")
        for w in range(8):
            a(f"ds_read_b128 v[{64+4*w}:{67+4*w}], v41 offset:{1088*w}")
        a(f"""v_mov_b32 v6, {sTAG}
              v_mov_b32 v7, 0""")

        def pk(d, s_):
            a(f"v_pk_add_f32 v[{d}:{d+1}], v[{d}:{d+1}], v[{s_}:{s_+1}]")
        for n, (d, s_) in enumerate(((64, 68), (72, 76), (80, 84), (88, 92))):
            a(f"s_waitcnt lgkmcnt({6-2*n})")
            pk(d, s_)
            pk(d + 2, s_ + 2)
        for d, s_ in ((64, 72), (80, 88), (64, 80)):
            pk(d, s_)
            pk(d + 2, s_ + 2)
        a("""v_cvt_pk_bf16_f32 v4, v64, v65
             v_cvt_pk_bf16_f32 v5, v66, v67""")
        self.gstore(4, 'v42', 's66', local=True)
        a.label(done)
        self.stamp(5)
        self.stamps_out(16)
        a("s_endpgm")

    def ent_k(self):
        a = self.a
        o = self.o
        a.label("L_ENT_K")
        self.role = 'K'
        a(f"""s_sub_u32 s56, {sJ}, 16
              s_lshr_b32 s57, s56, 1
              s_and_b32 s58, s56, 1
              s_lshl_b32 s60, s57, 3
              s_add_u32 s60, s60, {sG}
              s_lshl_b32 s59, s60, 20
              s_add_u32 s59, s59, {3072*256}
              s_lshl_b32 s61, s58, 17
              s_add_u32 s59, s59, s61
              s_lshl_b32 s62, {sWAVE}, 14
              s_add_u32 s59, s59, s62
              s_mov_b32 m0, s62
              v_lshrrev_b32 v1, 4, v0
              v_and_b32 v2, 15, v0
              v_xor_b32 v3, v1, v2
              v_lshlrev_b32 v3, 4, v3""")
        for v in range(4):
            if v:
                a(f"v_xor_b32 v4, {64*v}, v3")
            a(f"v_lshl_add_u32 v{32+v}, v1, 8, {'v4' if v else 'v3'}")
        self.kwait(ws=False)
        self.srd(44, sK, 0x2000000)
        if o['KWAIT']:
            a("s_waitcnt lgkmcnt(0)")
        if o['KSLEEP']:
            a(f"s_sleep {o['KSLEEP']}")
        self.stamp(15)
        self.only_exit('K', pre=True)
        l = self.lab('kdma')
        a("s_mov_b32 s38, 4")
        a.label(l)
        for v in range(4):
            i = f" offset:{1024*v}" if v else ""
            if o['KWIN']:
                a(f"s_waitcnt vmcnt({o['KWIN']-1})")
            a(f"buffer_load_dwordx4 v{32+v}, {R1}, s59 offen{i} {self.nt()}lds")
        a(f"""s_add_u32 s59, s59, 4096
              s_add_u32 m0, m0, 4096
              s_sub_u32 s38, s38, 1
              s_cmp_lg_u32 s38, 0
              s_cbranch_scc1 {l}
              s_branch L_ROLE_K""")

    def role_k(self):
        a = self.a
        o = self.o
        QL, SC2 = 131072, 132224
        F = 64
        a.label("L_ROLE_K")
        self.role = 'K'
        self.srd(40, sWS, WS_SIZE)
        self.only_exit('K')
        a(f"""s_lshl_b32 s66, {sG}, 3
              s_add_u32 s66, s66, s56
              s_and_b32 s67, s66, 1
              v_lshrrev_b32 v1, 4, v0
              v_and_b32 v2, 15, v0""")
        a("""v_and_b32 v4, 3, v2
             v_xor_b32 v4, v4, v1
             v_and_b32 v5, 12, v2
             v_lshlrev_b32 v6, 8, v2
             v_add_u32 v6, s62, v6""")
        for t in range(4):
            a(f"""v_xor_b32 v3, {4*t}, v5
                  v_add_u32 v3, v3, v4
                  v_lshl_add_u32 v{36+t}, v3, 4, v6""")
        a(f"""s_lshl_b32 s61, {sWAVE}, 6
              v_add_u32 v5, s61, v0
              v_lshrrev_b32 v6, 2, v5
              v_lshlrev_b32 v6, 8, v6
              v_and_b32 v7, 3, v5
              v_lshl_add_u32 v40, v7, 4, v6
              v_lshrrev_b32 v6, 5, v5
              v_mul_u32_u24 v6, 288, v6
              v_and_b32 v7, 31, v5
              v_lshl_add_u32 v6, v7, 3, v6
              v_add_u32 v41, {QL}, v6
              s_lshl_b32 s69, {sG}, 13
              s_lshl_b32 s61, s57, 6
              s_add_u32 s69, s69, s61
              s_add_u32 s69, s69, {WS_B}""")
        self.act_addr('v42', QL, 288, 'v5')
        a(f"""v_bfe_u32 v5, v0, 2, 2
              v_lshl_add_u32 v5, v5, 2, v1
              v_lshlrev_b32 v5, 6, v5
              v_and_b32 v6, 3, v0
              v_lshl_add_u32 v43, v6, 4, v5
              s_lshl_b32 s63, s60, 14
              s_add_u32 s63, s63, {WS_S}
              s_lshl_b32 s61, s58, 13
              s_add_u32 s63, s63, s61
              s_lshl_b32 s61, {sWAVE}, 10
              s_add_u32 s63, s63, s61""")
        a(f"""s_lshr_b32 s68, s66, 4
              s_add_u32 s68, s68, 1
              s_lshr_b32 s56, s66, 1
              s_and_b32 s56, s56, 7""")
        self.srd(48, sWM, 512 * 6144)
        self.dma_off_p128('v32', 6144, 'v1', 'v2')
        a(f"""s_lshl_b32 s59, s67, 8
              s_lshl_b32 s61, {sWAVE}, 5
              s_add_u32 s59, s59, s61
              s_mul_i32 s59, s59, 6144
              s_lshl_b32 s61, s68, 10
              s_add_u32 s59, s59, s61
              s_lshl_b32 s61, s56, 7
              s_add_u32 s59, s59, s61
              s_add_u32 s59, s59, 2048""")
        self.tag_ready()
        self.stamp(1)

        def kfrags():
            for T in range(4):
                for t in range(4):
                    q = F + 16 * T + 4 * t
                    a(f"ds_read_b128 v[{q}:{q+3}], v{36+t} offset:{4096*T}")
                if T == 2:
                    a("s_waitcnt lgkmcnt(6)")
        nopoll = self.lab('knp')
        join = self.lab('kj')
        a(f"""s_cmp_lt_u32 {sWAVE}, 2
              s_cbranch_scc0 {nopoll}""")

        def first():
            self.stamp(2)
            kfrags()
        self.poll('B', [self.gload(4, 'v40', 's69')], lambda ok: self.check_tags(['v6'], ok), first_extra=first, local=['s69'])
        a(f"""ds_write_b64 v41, v[4:5]
              s_branch {join}""")
        a.label(nopoll)
        a("s_waitcnt vmcnt(0)")
        self.stamp(2)
        kfrags()
        a.label(join)
        a("""s_waitcnt lgkmcnt(0)
             s_barrier""")
        self.stamp(3)
        for t in range(4):
            a(f"ds_read_b128 v[{44+4*t}:{47+4*t}], v42 offset:{64*t}")
        D = [4, 8, 12, 16]
        for t in range(4):
            a(f"s_waitcnt lgkmcnt({3-t})")
            for T in range(4):
                q = F + 16 * T + 4 * t
                c = "0" if t == 0 else f"v[{D[T]}:{D[T]+3}]"
                a(f"v_mfma_f32_16x16x32_bf16 v[{D[T]}:{D[T]+3}], v[{q}:{q+3}], v[{44+4*t}:{47+4*t}], {c}")
        self.select_tiles(D)
        a("""v_cvt_pk_bf16_f32 v8, v4, v5
             v_cvt_pk_bf16_f32 v9, v6, v7""")
        self.unpack('v4', 'v5', 'v8')
        self.unpack('v6', 'v7', 'v9')
        for r in range(4):
            a(f"v_mul_f32 v{4+r}, 0x3db504f3, v{4+r}")
        a(f"""v_cvt_pk_bf16_f32 v8, v4, v5
              v_cvt_pk_bf16_f32 v9, v6, v7
              v_mov_b32 v10, {sTAG}
              v_mov_b32 v11, 0""")
        self.st_local(8, 'v43', 's63')
        self.stamp(4)
        end = self.lab('kend')
        a("s_barrier")
        self.st_global(8, 'v43', 's63')
        a(f"""s_cmp_lt_u32 s66, 48
              s_cbranch_scc0 {end}
              s_mov_b32 m0, s62""")
        self.srd(52, sC, 4096)
        skipc = self.lab('kc')
        a(f"""s_cmp_lt_u32 {sWAVE}, 4
              s_cbranch_scc0 {skipc}
              s_lshl_b32 s61, {sWAVE}, 10
              s_lshl_b32 s69, s67, 9
              s_add_u32 s69, s69, s61
              v_lshlrev_b32 v7, 3, v0
              buffer_load_dwordx2 v[24:25], v7, {R3}, s69 offen""")
        a.label(skipc)
        self.dma_loop('v32', R2, 's59', 8 * 6144, 4)
        skips = self.lab('ks')
        a(f"""s_cmp_lt_u32 {sWAVE}, 4
              s_cbranch_scc0 {skips}
              s_waitcnt vmcnt(4)""")
        self.unpack('v8', 'v9', 'v24')
        self.unpack('v10', 'v11', 'v25')
        self.silu4(8, 12)
        a("""v_cvt_pk_bf16_f32 v8, v8, v9
             v_cvt_pk_bf16_f32 v9, v10, v11""")
        self.perm_pos_bytes('v5', 'v0', 'v6')
        a(f"""s_mul_i32 s61, {sWAVE}, 544
              s_add_u32 s61, s61, {SC2}
              v_add_u32 v5, s61, v5
              ds_write_b64 v5, v[8:9]""")
        a.label(skips)
        a(f"s_lshl_b32 s61, {sWAVE}, 5")
        self.tr_addr_p128('v33', 's61', '0', 'v1', 'v2')
        a("v_add_u32 v34, 65536, v33")
        self.act_addr('v35', SC2, 544, 'v1')
        a(f"""v_lshrrev_b32 v1, 5, v0
              v_lshlrev_b32 v36, 10, v1
              v_and_b32 v1, 3, v0
              v_lshl_add_u32 v36, v1, 5, v36
              v_bfe_u32 v1, v0, 4, 1
              v_lshl_add_u32 v36, v1, 4, v36
              s_lshl_b32 s59, s56, 13
              s_lshl_b32 s61, {sWAVE}, 11
              s_add_u32 s59, s59, s61
              s_lshl_b32 s61, s68, 8
              s_add_u32 s59, s59, s61
              s_lshl_b32 s61, s67, 7
              s_add_u32 s59, s59, s61
              s_add_u32 s59, s59, {WS_ML}""")
        self.sel_consts()
        self.tagbytes(28)
        a("""s_waitcnt vmcnt(0) lgkmcnt(0)
             s_barrier""")
        a(f"""s_cmp_lt_u32 {sWAVE}, 4
              s_cbranch_scc0 {end}""")
        for s in range(8):
            a(f"ds_read_b128 v[{96+4*s}:{99+4*s}], v35 offset:{64*s}")
        a("s_waitcnt lgkmcnt(2)")
        for s in range(8):
            va = 'v33' if s < 4 else 'v34'
            for h in range(2):
                q = F + 4 * s + 2 * h
                a(f"ds_read_b64_tr_b16 v[{q}:{q+1}], {va} offset:{16384*(s&3)+2048*h}")
            if s == 5:
                a("s_waitcnt lgkmcnt(6)")
        for s in range(8):
            a(f"s_waitcnt lgkmcnt({max(0, 14-2*s) if s >= 4 else 6})" if s >= 4 else "s_waitcnt lgkmcnt(8)" if s == 0 else "s_nop 0")
            c = "0" if s == 0 else "v[4:7]"
            a(f"v_mfma_f32_16x16x32_bf16 v[4:7], v[{F+4*s}:{F+4*s+3}], v[{96+4*s}:{99+4*s}], {c}")
        self.steal(4, 28)
        a("s_mov_b32 exec_lo, 0x000f000f")
        a("s_mov_b32 exec_hi, 0x000f000f")
        self.gstore(4, 'v36', 's59')
        a("s_mov_b64 exec, -1")
        self.stamp(5)
        a.label(end)
        self.stamps_out(16)
        a("s_endpgm")

    def role_m(self):
        a = self.a
        o = self.o
        M1W, SC, STAT = 0, 16384, 17024
        GATE, UP, DOWN, H2, GU = 32768, 65536, 98304, 131072, 135296
        F = 64
        a.label("L_ENT_M")
        self.role = 'M'
        a(f"""v_lshrrev_b32 v1, 4, v0
              v_and_b32 v3, 15, v0
              v_lshlrev_b32 v2, 1, v1
              v_xor_b32 v2, v2, v3
              v_and_b32 v4, 7, v2
              v_lshlrev_b32 v4, 4, v4
              v_lshrrev_b32 v2, 3, v2
              v_lshl_add_u32 v4, v2, 10, v4
              v_xor_b32 v5, 1024, v4
              v_mul_u32_u24 v1, 6144, v1
              v_add_u32 v32, v1, v4
              v_add_u32 v33, v1, v5
              s_lshl_b32 s59, {sJ}, 6
              s_lshl_b32 s61, {sWAVE}, 3
              s_add_u32 s59, s59, s61
              s_mul_i32 s59, s59, 6144
              s_lshl_b32 s61, {sG}, 7
              s_add_u32 s59, s59, s61
              s_lshl_b32 s61, {sWAVE}, 11
              s_mov_b32 m0, s61
              s_and_b32 s62, {sWAVE}, 3
              s_lshl_b32 s62, s62, 10
              v_lshlrev_b32 v6, 4, v0
              v_lshlrev_b32 v7, 1, v0
              s_lshl_b32 s63, {sJ}, 7
              s_add_u32 s63, s63, s62""")
        self.kwait(ws=False)
        self.srd(44, sWM, 512 * 6144)
        self.srd(48, sC, 4096)
        self.srd(52, sX, 4096)
        l4 = self.lab('m4')
        lx = self.lab('mx')
        a(f"""s_cmp_lt_u32 {sWAVE}, 4
              s_cbranch_scc0 {l4}
              buffer_load_dwordx4 v[24:27], v6, {R3}, s62 offen
              s_branch {lx}""")
        a.label(l4)
        a(f"buffer_load_ushort v24, v7, {R2}, s63 offen")
        a.label(lx)
        self.stamp(15)
        self.only_exit('M', pre=True)
        a(f"""buffer_load_dwordx4 v32, {R1}, s59 offen {self.nt()}lds
              s_add_u32 s59, s59, {4*6144}
              s_add_u32 m0, m0, 1024
              s_nop 0
              buffer_load_dwordx4 v33, {R1}, s59 offen {self.nt()}lds
              s_branch L_ROLE_M""")
        self.ent_w()
        self.ent_k()
        self.ent_v()
        a.label("L_ROLE_M")
        self.role = 'M'
        self.srd(40, sWS, WS_SIZE)
        self.only_exit('M')
        a(f"""v_bfe_u32 v1, v0, 1, 2
              v_lshlrev_b32 v1, 10, v1
              v_and_b32 v2, 1, v0
              v_lshl_add_u32 v1, v2, 3, v1
              v_lshrrev_b32 v2, 4, v0
              v_lshl_add_u32 v1, v2, 1, v1
              s_lshl_b32 s61, {sG}, 7
              s_lshl_b32 s56, {sJ}, 4
              s_add_u32 s61, s61, s56
              buffer_load_ushort v28, v1, {R3}, s61 offen""")
        if o['TOUCH']:
            lt0 = self.lab('mt0')
            a(f"""s_cmp_eq_u32 {sWAVE}, 4
                  s_cbranch_scc0 {lt0}
                  s_lshl_b32 s61, {sG}, 3
                  s_add_u32 s61, s61, {sJ}
                  s_lshl_b32 s61, s61, 12
                  s_add_u32 s61, s61, {WS_A1 + WS_LOC}
                  v_lshlrev_b32 v2, 4, v0""")
            for m in range(4):
                a(self.gload(64 + 4 * m, 'v2', 's61', 1024 * m))
            a.label(lt0)
        a(f"""v_lshrrev_b32 v1, 4, v0
              v_bfe_u32 v2, v0, 2, 2
              v_lshl_add_u32 v3, v1, 2, v2
              v_lshlrev_b32 v34, 8, v3
              v_and_b32 v3, 1, v1
              v_lshlrev_b32 v3, 3, v3
              v_lshl_add_u32 v3, v2, 1, v3
              s_lshl_b32 s61, {sWAVE}, 1
              v_xor_b32 v3, s61, v3
              v_lshl_add_u32 v34, v3, 4, v34
              v_and_b32 v3, 3, v0
              v_lshl_add_u32 v34, v3, 3, v34""")
        self.act_addr('v35', SC, 160, 'v1')
        a(f"""v_lshrrev_b32 v1, 5, v0
              v_lshlrev_b32 v36, 12, v1
              v_bfe_u32 v1, v0, 2, 1
              v_lshl_add_u32 v36, v1, 10, v36
              v_and_b32 v1, 3, v0
              v_lshl_add_u32 v36, v1, 5, v36
              v_bfe_u32 v1, v0, 4, 1
              v_lshl_add_u32 v36, v1, 4, v36
              s_lshl_b32 s60, {sG}, 15
              s_and_b32 s61, {sWAVE}, 3
              s_lshl_b32 s61, s61, 13
              s_add_u32 s60, s60, s61
              s_lshr_b32 s61, {sWAVE}, 2
              s_lshl_b32 s61, s61, 11
              s_add_u32 s60, s60, s61
              s_lshl_b32 s61, {sJ}, 7
              s_add_u32 s60, s60, s61
              s_add_u32 s60, s60, {WS_A1}""")
        lb = self.lab('mb')
        npf = 1 if o['PF'] else 0
        a(f"""s_cmp_ge_u32 {sWAVE}, 4
              s_cbranch_scc0 {lb}""")
        a("v_lshrrev_b32 v4, 2, v0")
        self.perm_pos_bytes('v5', 'v4', 'v6')
        a(f"""v_and_b32 v6, 3, v0
              v_lshl_add_u32 v5, v6, 1, v5
              s_and_b32 s61, {sWAVE}, 3
              s_mul_i32 s61, s61, 160
              s_add_u32 s61, s61, {SC}
              v_add_u32 v5, s61, v5""")
        if o['TOUCH']:
            lc3 = self.lab('mc3')
            lc7 = self.lab('mc7')
            a(f"""s_cmp_eq_u32 {sWAVE}, 4
                  s_cbranch_scc1 {lc7}
                  s_waitcnt vmcnt(3)""")
            a.label(lc7)
            a("s_waitcnt vmcnt(7)")
        else:
            a("s_waitcnt vmcnt(3)")
        a("v_lshlrev_b32 v8, 16, v24")
        self.silu1('v8', 12)
        a("""v_cvt_pk_bf16_f32 v8, v8, v8
             ds_write_b16 v5, v8""")
        a.label(lb)
        a("""s_waitcnt vmcnt(0) lgkmcnt(0)
             s_barrier""")
        self.stamp(1)
        self.frags(F, 'v34', 2, 8192, 4096)
        a(f"""ds_read_b128 v[72:75], v35
              ds_read_b128 v[76:79], v35 offset:64
              s_add_u32 {sTAG}, {sE}, {TAGC}
              s_waitcnt lgkmcnt(0)
              v_mfma_f32_16x16x32_bf16 v[4:7], v[64:67], v[72:75], 0
              v_mfma_f32_16x16x32_bf16 v[4:7], v[68:71], v[76:79], v[4:7]""")
        a(f"""s_mov_b32 exec_lo, 0x00f000f0
              s_mov_b32 exec_hi, 0x00f000f0
              v_mov_b32 v4, v6
              v_mov_b32 v5, v7
              s_mov_b32 exec_lo, 0x00ff00ff
              s_mov_b32 exec_hi, 0x00ff00ff
              v_mov_b32 v6, {sTAG}
              v_mov_b32 v7, 0""")
        self.st_local(4, 'v36', 's60')
        a("s_mov_b64 exec, -1")
        self.stamp(2)
        ls = self.lab('ms')
        lh4 = self.lab('mh4')
        lh = self.lab('mh')
        a(f"""s_cmp_eq_u32 {sWAVE}, 4
              s_cbranch_scc1 {lh4}
              s_cmp_lt_u32 {sWAVE}, 4
              s_cbranch_scc0 {ls}""")
        for k in range(4):
            self.unpack(f'v{8+2*k}', f'v{9+2*k}', f'v{24+k}')
        self.ln_stats(8, 'v20', 'v21', 'v22', 16)
        a(f"""s_lshl_b32 s61, {sWAVE}, 3
              s_add_u32 s61, s61, {STAT}
              v_mov_b32 v1, s61
              s_mov_b64 exec, 1
              ds_write_b64 v1, v[20:21]
              s_mov_b64 exec, -1
              s_waitcnt lgkmcnt(0)""")
        a.label(ls)
        a("""s_mov_b32 exec_lo, 0x00ff00ff
             s_mov_b32 exec_hi, 0x00ff00ff""")
        self.st_global(4, 'v36', 's60')
        a(f"""s_mov_b64 exec, -1
              s_barrier
              s_branch {lh}""")
        a.label(lh4)
        a("""s_mov_b32 exec_lo, 0x00ff00ff
             s_mov_b32 exec_hi, 0x00ff00ff""")
        self.st_global(4, 'v36', 's60')
        a(f"""s_mov_b64 exec, -1
              v_bfe_u32 v1, v0, 1, 2
              v_lshlrev_b32 v1, 3, v1
              v_add_u32 v1, {STAT}, v1
              v_lshlrev_b32 v28, 16, v28
              s_lshl_b32 s59, {sG}, 3
              s_add_u32 s59, s59, {sJ}
              s_lshl_b32 s57, s59, 7
              s_add_u32 s57, s57, {WS_A2}
              s_lshl_b32 s59, s59, 12
              s_add_u32 s59, s59, {WS_A1}
              v_lshlrev_b32 v2, 4, v0""")
        self.poll('A1', [self.gload(4 + 4 * m, 'v2', 's59', 1024 * m) for m in range(4)],
                  lambda ok: self.check_tags(['v6', 'v10', 'v14', 'v18'], ok), local=['s59'])
        self.stamp(3)
        a("""s_barrier
             ds_read_b64 v[20:21], v1
             v_mov_b32 v6, v8
             v_mov_b32 v7, v9
             v_mov_b32 v14, v16
             v_mov_b32 v15, v17""")
        for r in range(4):
            a(f"v_add_f32_dpp v{4+r}, v{4+r}, v{4+r} row_ror:8 row_mask:0xf bank_mask:0xf")
        for r in range(4):
            a(f"v_add_f32_dpp v{12+r}, v{12+r}, v{12+r} row_ror:8 row_mask:0xf bank_mask:0xf")
        a("""v_permlane16_swap_b32 v4, v5
             v_permlane16_swap_b32 v6, v7
             v_permlane16_swap_b32 v12, v13
             v_permlane16_swap_b32 v14, v15
             v_add_f32 v4, v4, v5
             v_add_f32 v6, v6, v7
             v_add_f32 v12, v12, v13
             v_add_f32 v14, v14, v15
             v_permlane32_swap_b32 v4, v6
             v_permlane32_swap_b32 v12, v14
             v_add_f32 v4, v4, v6
             v_add_f32 v12, v12, v14
             s_waitcnt lgkmcnt(0)
             v_rcp_f32 v22, v21
             v_cvt_pk_bf16_f32 v4, v4, v12
             v_and_b32 v12, 0xffff0000, v4
             v_lshlrev_b32 v4, 16, v4
             v_add_f32 v12, 1.0, v12""")
        self.ln_elem('v29', 'v28', 'v20', 'v21', 'v22', 'v23', 'v30')
        a(f"""v_mov_b32 v22, {sTAG}
              v_mov_b32 v23, 0""")
        self.rnd('v12', 'v12')
        a("v_mul_f32 v12, v29, v12")
        self.rnd('v12', 'v12')
        a("v_add_f32 v12, v12, v4")
        self.rows_to_quad('v20', 'v21', 'v12', 'v8')
        a("s_mov_b64 exec, 0xff")
        self.gstore(20, 'v2', 's57')
        a("s_mov_b64 exec, -1")
        self.stamp(4)
        a.label(lh)
        a(f"""s_cmp_eq_u32 {sJ}, 7
              s_cbranch_scc1 L_ROLE_GA""")
        a(f"""s_mul_i32 s66, {sG}, 7
              s_add_u32 s66, s66, {sJ}""")
        self.srd(44, sWG, 512 * 3584)
        self.srd(48, sWU, 512 * 3584)
        self.srd(52, sWD, 1792 * 1024)
        a(f"""v_lshrrev_b32 v1, 2, v0
              v_mul_u32_u24 v1, 3584, v1
              v_bfe_u32 v2, v0, 4, 1
              v_lshlrev_b32 v2, 1, v2
              v_and_b32 v3, 3, v0
              v_xor_b32 v2, v2, v3
              v_lshl_add_u32 v32, v2, 4, v1
              s_lshl_b32 s59, {sWAVE}, 6
              s_mul_i32 s59, s59, 3584
              s_lshl_b32 s61, s66, 6
              s_add_u32 s59, s59, s61
              s_mov_b32 s60, s59
              s_lshl_b32 s67, s66, 5
              s_lshl_b32 s61, {sWAVE}, 2
              s_add_u32 s67, s67, s61
              s_lshl_b32 s67, s67, 10
              s_and_b32 s62, {sWAVE}, 1
              s_lshl_b32 s62, s62, 3""")
        for n in range(4):
            a(f"""s_add_u32 s63, s62, {2*n}
                  v_xor_b32 v1, s63, v0
                  v_lshlrev_b32 v{40+n}, 4, v1""")
        a(f"""v_lshrrev_b32 v1, 4, v0
              v_bfe_u32 v2, v0, 2, 2
              v_lshl_add_u32 v3, v1, 2, v2
              v_lshlrev_b32 v33, 6, v3
              v_and_b32 v3, 1, v1
              s_and_b32 s61, {sWAVE}, 1
              v_xor_b32 v3, s61, v3
              v_lshl_add_u32 v33, v3, 5, v33
              v_and_b32 v3, 3, v0
              v_lshl_add_u32 v33, v3, 3, v33
              s_bfe_u32 s61, {sWAVE}, 0x10001
              s_lshl_b32 s61, s61, 15
              s_add_u32 s61, s61, {GATE}
              v_add_u32 v33, s61, v33""")
        a(f"""v_lshl_add_u32 v3, v1, 2, v2
              v_lshlrev_b32 v4, 10, v3
              v_and_b32 v5, 3, v0
              v_lshl_add_u32 v4, v5, 3, v4
              v_add_u32 v4, {DOWN}, v4
              v_and_b32 v3, 7, v3
              v_lshlrev_b32 v3, 1, v3
              s_lshl_b32 s61, {sWAVE}, 3
              v_xor_b32 v3, s61, v3""")
        for t in range(4):
            a(f"""v_xor_b32 v5, {2*t}, v3
                  v_lshl_add_u32 v{34+t}, v5, 4, v4""")
        self.act_addr('v38', H2, 1056, 'v1')
        self.act_addr('v39', GU, 96, 'v1')
        a(f"""v_lshlrev_b32 v44, 4, v0
              s_lshl_b32 s68, {sG}, 2
              s_add_u32 s68, s68, {sWAVE}
              s_lshl_b32 s68, s68, 12
              s_add_u32 s68, s68, {WS_D}""")
        self.perm_pos_bytes('v45', 'v0', 'v1')
        a(f"""s_mul_i32 s61, {sWAVE}, 1056
              s_add_u32 s61, s61, {H2}
              v_add_u32 v45, s61, v45""")
        a(f"""v_and_b32 v1, 3, v0
              v_mul_u32_u24 v46, 96, v1
              v_lshrrev_b32 v1, 4, v0
              v_lshl_add_u32 v46, v1, 4, v46
              s_and_b32 s61, {sWAVE}, 1
              s_lshl_b32 s61, s61, 3
              s_bfe_u32 s62, {sWAVE}, 0x10001
              s_mul_i32 s62, s62, 384
              s_add_u32 s61, s61, s62
              s_add_u32 s61, s61, {GU}
              v_add_u32 v46, s61, v46""")
        a(f"""v_bfe_u32 v1, v0, 2, 2
              v_lshlrev_b32 v1, 1, v1
              v_lshrrev_b32 v2, 5, v0
              v_add_u32 v1, v1, v2
              v_mul_u32_u24 v47, {56*128}, v1
              v_and_b32 v1, 3, v0
              v_lshl_add_u32 v47, v1, 5, v47
              v_bfe_u32 v1, v0, 4, 1
              v_lshl_add_u32 v47, v1, 4, v47
              s_mul_i32 s63, {sWAVE}, {8*56*128}
              s_lshl_b32 s61, s66, 7
              s_add_u32 s63, s63, s61
              s_add_u32 s63, s63, {WS_E}""")
        self.sel_consts()
        self.tagbytes(48)
        if o['MG1']:
            a(f"""s_barrier
                  s_lshl_b32 s61, {sWAVE}, 12
                  s_add_u32 s61, s61, {GATE}
                  s_mov_b32 m0, s61""")
            self.dma_loop('v32', R1, 's59', 16 * 3584, o['MG1'])
        if o['MTRIG']:
            lt = self.lab('mt')
            a(f"""s_cmp_eq_u32 {sWAVE}, 0
                  s_cbranch_scc0 {lt}
                  v_lshlrev_b32 v2, 10, v0
                  s_lshl_b32 s61, {sG}, 13
                  s_add_u32 s61, s61, {WS_B}""")
            if o['MTRIG'] == 2:
                a(f"""v_lshrrev_b32 v2, 1, v0
                      v_lshlrev_b32 v2, 17, v2
                      v_and_b32 v3, 1, v0
                      v_lshl_add_u32 v2, v3, 13, v2
                      s_lshl_b32 s61, {sG}, 14
                      s_add_u32 s61, s61, {WS_S}""")
            a("s_mov_b64 exec, 0xff")
            self.poll('T', [self.gload(4, 'v2', 's61')], lambda ok: self.check_tags(['v6'], ok), local=['s61'])
            a("s_mov_b64 exec, -1")
            a.label(lt)
        a("s_barrier")
        a(f"""s_lshl_b32 s61, {sWAVE}, 12
              s_add_u32 s61, s61, {GATE + 1024 * o['MG1']}
              s_mov_b32 m0, s61""")
        if o['MG1'] < 4:
            self.dma_loop('v32', R1, 's59', 16 * 3584, 4 - o['MG1'])
        a(f"""s_sub_u32 s61, s61, {1024 * o['MG1']}
              s_add_u32 s61, s61, {UP-GATE}
              s_mov_b32 m0, s61""")
        self.dma_loop('v32', R2, 's60', 16 * 3584, 4)
        a(f"""s_add_u32 s61, s61, {DOWN-UP}
              s_mov_b32 m0, s61
              s_nop 0""")
        for n in range(4):
            a(f"""buffer_load_dwordx4 v{40+n}, {R3}, s67 offen {self.nt()}lds
                  s_add_u32 s67, s67, 1024
                  s_add_u32 m0, m0, 1024
                  s_nop 0""")
        a("""s_waitcnt vmcnt(0)
             s_barrier""")
        self.stamp(5)
        for t in range(4):
            for h in range(2):
                q = 128 + 4 * t + 2 * h
                a(f"ds_read_b64_tr_b16 v[{q}:{q+1}], v{34+t} offset:{16384*h}")
        lw = self.lab('mw')
        a(f"""s_cmp_lt_u32 {sWAVE}, 4
              s_cbranch_scc0 {lw}
              s_waitcnt lgkmcnt(0)""")
        for s in range(16):
            for h in range(2):
                q = F + 4 * s + 2 * h
                a(f"ds_read_b64_tr_b16 v[{q}:{q+1}], v33 offset:{2048*s+1024*h}")
            if s in (6, 10):
                a("s_waitcnt lgkmcnt(6)")
        self.poll('D', [self.gload(4, 'v44', 's68'), self.gload(8, 'v44', 's68', 2048),
                        self.gload(12, 'v44', 's68', 1024), self.gload(16, 'v44', 's68', 3072)],
                  lambda ok: self.check_tags(['v7', 'v11', 'v15', 'v19'], ok), local=['s68'])
        self.stamp(6)
        X = 20
        self.unpack(f'v{X}', f'v{X+1}', 'v4')
        self.unpack(f'v{X+2}', f'v{X+3}', 'v5')
        self.unpack(f'v{X+4}', f'v{X+5}', 'v12')
        self.unpack(f'v{X+6}', f'v{X+7}', 'v13')
        M2, SD2, RC2 = 52, 54, 56
        self.ln_stats_pivot(X, M2, SD2, RC2, 144)
        csrc = ['v6', 'v8', 'v14', 'v16']
        ssrc = ['v9', 'v10', 'v17', 'v18']
        for p in range(4):
            x = X + 2 * p
            a(f"v_pk_add_f32 v[{x}:{x+1}], v[{x}:{x+1}], v[{M2}:{M2+1}] neg_lo:[0,1] neg_hi:[0,1]")
        for p in range(4):
            self.pk_rnd(X + 2 * p, f'v{144+p}')
        for p in range(4):
            x, q = X + 2 * p, 148 + 2 * p
            a(f"v_pk_mul_f32 v[{q}:{q+1}], v[{x}:{x+1}], v[{RC2}:{RC2+1}]")
        for p in range(4):
            x, q = X + 2 * p, 148 + 2 * p
            a(f"v_pk_fma_f32 v[{x}:{x+1}], v[{q}:{q+1}], v[{SD2}:{SD2+1}], v[{x}:{x+1}] neg_lo:[1,0,0] neg_hi:[1,0,0]")
        for p in range(4):
            x, q = X + 2 * p, 148 + 2 * p
            a(f"v_pk_fma_f32 v[{x}:{x+1}], v[{x}:{x+1}], v[{RC2}:{RC2+1}], v[{q}:{q+1}]")
        for p in range(4):
            self.pk_rnd(X + 2 * p, f'v{144+p}')
        for p in range(4):
            q = 148 + 2 * p
            self.unpack(f'v{q}', f'v{q+1}', csrc[p])
        for p in range(4):
            x, q = X + 2 * p, 148 + 2 * p
            a(f"v_pk_mul_f32 v[{x}:{x+1}], v[{x}:{x+1}], v[{q}:{q+1}]")
        for p in range(4):
            q = 148 + 2 * p
            self.unpack(f'v{q}', f'v{q+1}', ssrc[p])
        for p in range(4):
            self.pk_rnd(X + 2 * p, f'v{144+p}')
        for p in range(4):
            x, q = X + 2 * p, 148 + 2 * p
            a(f"v_pk_add_f32 v[{x}:{x+1}], v[{x}:{x+1}], v[{q}:{q+1}]")
        for p in range(4):
            a(f"v_cvt_pk_bf16_f32 v{4+p}, v{X+2*p}, v{X+2*p+1}")
        a("""ds_write_b64 v45, v[4:5]
             ds_write_b64 v45, v[6:7] offset:512""")
        a.label(lw)
        a("""s_waitcnt lgkmcnt(0)
             s_barrier""")
        self.stamp(7)
        lg = self.lab('mg')
        a(f"""s_cmp_lt_u32 {sWAVE}, 4
              s_cbranch_scc0 {lg}""")
        self.gemv16(4, F, 'v38', 144)
        a("""v_cvt_pk_bf16_f32 v8, v4, v5
             v_cvt_pk_bf16_f32 v9, v6, v7
             s_mov_b32 exec_lo, 0x000f000f
             s_mov_b32 exec_hi, 0x000f000f
             ds_write_b64 v46, v[8:9]
             s_mov_b64 exec, -1""")
        a.label(lg)
        a("""s_waitcnt lgkmcnt(0)
             s_barrier
             ds_read_b128 v[4:7], v39
             ds_read_b128 v[8:11], v39 offset:384
             s_waitcnt lgkmcnt(0)""")
        for k in range(4):
            self.unpack(f'v{20+2*k}', f'v{21+2*k}', f'v{4+k}')
        for k in range(4):
            self.unpack(f'v{144+2*k}', f'v{145+2*k}', f'v{8+k}')
        for k in range(8):
            a(f"v_max_f32 v{20+k}, 0, v{20+k}")
        for k in range(4):
            a(f"v_pk_mul_f32 v[{20+2*k}:{21+2*k}], v[{20+2*k}:{21+2*k}], v[{144+2*k}:{145+2*k}]")
        for k in range(4):
            a(f"v_cvt_pk_bf16_f32 v{16+k}, v{20+2*k}, v{21+2*k}")
        D = [4, 8, 12, 20]
        for t in range(4):
            a(f"v_mfma_f32_16x16x32_bf16 v[{D[t]}:{D[t]+3}], v[{128+4*t}:{131+4*t}], v[16:19], 0")
        self.select_tiles(D)
        self.steal(4, 48)
        self.gstore(4, 'v47', 's63')
        self.stamp(8)
        self.stamps_out(16)
        a("s_endpgm")

        a.label("L_ROLE_GA")
        S = 131072
        self.srd(48, sC, 4096)
        self.dma_off_p128('v32', 6144, 'v1', 'v2')
        a(f"""s_lshl_b32 s59, {sWAVE}, 6
              s_mul_i32 s59, s59, 6144
              s_lshl_b32 s61, {sG}, 7
              s_add_u32 s59, s59, s61
              s_add_u32 s59, s59, 2048
              s_lshl_b32 s61, {sWAVE}, 13
              s_add_u32 s61, s61, {GATE}
              s_mov_b32 m0, s61
              s_barrier""")
        lc = self.lab('gc')
        a(f"""s_cmp_lt_u32 {sWAVE}, 4
              s_cbranch_scc0 {lc}
              s_lshl_b32 s61, {sWAVE}, 10
              v_lshlrev_b32 v1, 3, v0
              buffer_load_dwordx2 v[24:25], v1, {R2}, s61 offen
              buffer_load_dwordx2 v[26:27], v1, {R2}, s61 offen offset:512""")
        a.label(lc)
        self.dma_loop('v32', R1, 's59', 8 * 6144, 8)
        lc2 = self.lab('gc2')
        a(f"""s_cmp_lt_u32 {sWAVE}, 4
              s_cbranch_scc0 {lc2}
              s_waitcnt vmcnt(8)""")
        self.perm_pos_bytes('v5', 'v0', 'v6')
        a(f"""s_mul_i32 s61, {sWAVE}, 1056
              s_add_u32 s61, s61, {S}
              v_add_u32 v5, s61, v5""")
        for hf in range(2):
            self.unpack('v8', 'v9', f'v{24+2*hf}')
            self.unpack('v10', 'v11', f'v{25+2*hf}')
            self.silu4(8, 12)
            a(f"""v_cvt_pk_bf16_f32 v8, v8, v9
                  v_cvt_pk_bf16_f32 v9, v10, v11
                  ds_write_b64 v5, v[8:9] offset:{512*hf}""")
        a.label(lc2)
        a(f"s_lshl_b32 s61, {sWAVE}, 5")
        self.tr_addr_p128('v33', 's61', GATE, 'v1', 'v2')
        self.act_addr('v35', S, 1056, 'v1')
        a(f"""v_lshrrev_b32 v1, 5, v0
              v_lshlrev_b32 v36, 10, v1
              v_bfe_u32 v1, v0, 2, 1
              v_lshl_add_u32 v36, v1, 7, v36
              v_and_b32 v1, 3, v0
              v_lshl_add_u32 v36, v1, 5, v36
              v_bfe_u32 v1, v0, 4, 1
              v_lshl_add_u32 v36, v1, 4, v36
              s_lshl_b32 s59, {sG}, 13
              s_lshl_b32 s61, {sWAVE}, 11
              s_add_u32 s59, s59, s61
              s_add_u32 s59, s59, {WS_ML}""")
        self.sel_consts()
        self.tagbytes(28)
        a("""s_waitcnt vmcnt(0) lgkmcnt(0)
             s_barrier""")
        le = self.lab('ge')
        a(f"""s_cmp_lt_u32 {sWAVE}, 4
              s_cbranch_scc0 {le}""")
        for s in range(16):
            for h in range(2):
                q = F + 4 * s + 2 * h
                a(f"ds_read_b64_tr_b16 v[{q}:{q+1}], v33 offset:{4096*s+2048*h}")
            if s in (6, 13):
                a("s_waitcnt lgkmcnt(0)")
        a("s_waitcnt lgkmcnt(0)")
        self.gemv16(4, F, 'v35', 144)
        a("""s_mov_b32 exec_lo, 0x00f000f0
             s_mov_b32 exec_hi, 0x00f000f0""")
        for r in range(4):
            a(f"v_mov_b32 v{4+r}, 0")
        a("""s_mov_b32 exec_lo, 0x00ff00ff
             s_mov_b32 exec_hi, 0x00ff00ff""")
        self.steal(4, 28)
        self.gstore(4, 'v36', 's59')
        a("s_mov_b64 exec, -1")
        a.label(le)
        self.stamp(5)
        self.stamps_out(16)
        a("s_endpgm")

    def ent_w(self):
        a = self.a
        o = self.o
        a.label("L_ENT_W")
        self.role = 'W'
        a(f"s_sub_u32 s56, {sJ}, 8")
        if o.get('ISWZ'):
            a(f"s_xor_b32 s56, s56, {o['ISWZ']}")
        self.dma_off_p128('v32', 8192, 'v1', 'v2')
        a(f"""s_lshl_b32 s59, {sWAVE}, 19
              s_lshl_b32 s61, {sG}, 10
              s_add_u32 s59, s59, s61
              s_lshl_b32 s61, s56, 7
              s_add_u32 s59, s59, s61
              s_lshl_b32 s61, {sWAVE}, 13
              s_mov_b32 m0, s61""")
        self.kwait(ws=False)
        self.srd(44, sWQ, 512 * 8192)
        if o['WWAIT']:
            a("s_waitcnt lgkmcnt(0)")
        if o['WSLEEP']:
            a(f"s_sleep {o['WSLEEP']}")
        self.stamp(15)
        self.only_exit('W', pre=True)
        self.dma_loop('v32', R1, 's59', 8 * 8192, 8, win=o['WWIN'])
        a("s_branch L_ROLE_W")

    def role_w(self):
        a = self.a
        o = self.o
        WQ, WO, H, O = 0, 65536, 131072, 135296
        F = 64
        a.label("L_ROLE_W")
        self.role = 'W'
        self.srd(40, sWS, WS_SIZE)
        self.only_exit('W')
        self.w_setup1(H, O, WQ, WO)
        if o['IOX']:
            a(f"s_xor_b32 s56, s56, {o['IOX']}")
        self.srd(52, sX, 4096)
        a(f"""v_bfe_u32 v1, v0, 1, 2
              v_lshlrev_b32 v1, 10, v1
              v_and_b32 v2, 1, v0
              v_lshl_add_u32 v1, v2, 3, v1
              v_lshrrev_b32 v2, 4, v0
              v_lshl_add_u32 v1, v2, 1, v1
              s_lshl_b32 s61, s56, 7
              s_lshl_b32 s62, {sWAVE}, 4
              s_add_u32 s61, s61, s62
              buffer_load_ushort v60, v1, {R3}, s61 offen""")
        self.srd(44, sWO, 4096 * 1024)
        self.dma_off_p128('v32', 1024, 'v1', 'v2')
        a(f"""s_lshl_b32 s59, {sG}, 9
              s_lshl_b32 s61, {sWAVE}, 6
              s_add_u32 s59, s59, s61
              s_lshl_b32 s59, s59, 10
              s_lshl_b32 s61, s56, 7
              s_add_u32 s59, s59, s61
              s_lshl_b32 s67, {sWAVE}, 13
              s_add_u32 s67, s67, {WO}""")
        if o['WO1']:
            a("s_mov_b32 m0, s67")
            self.dma_loop('v32', R1, 's59', 8 * 1024, o['WO1'])
            a(f"s_add_u32 s67, s67, {1024 * o['WO1']}")
        a("s_mov_b32 s89, 8")
        if o['WO3']:
            l3 = self.lab('wo3')
            a(f"""s_cmp_eq_u32 s56, 3
                  s_cbranch_scc0 {l3}
                  s_mov_b32 m0, s67""")
            self.dma_loop('v32', R1, 's59', 8 * 1024, o['WO3'])
            a(f"""s_add_u32 s67, s67, {1024 * o['WO3']}
                  s_mov_b32 s89, {8 - o['WO3']}""")
            a.label(l3)
        self.tag_ready()
        self.stamp(1)
        lw1 = self.lab('w1')

        def first():
            self.stamp(2)
            a("s_barrier")
            a(f"""s_cmp_lt_u32 {sWAVE}, 4
                  s_cbranch_scc0 {lw1}""")
            for s in range(16):
                for h in range(2):
                    q = F + 4 * s + 2 * h
                    a(f"ds_read_b64_tr_b16 v[{q}:{q+1}], v36 offset:{4096*s+2048*h}")
                if s in (6, 10):
                    a("s_waitcnt lgkmcnt(6)")
            a.label(lw1)
        if o['PIPE_A2']:
            okA = self.lab('a2first')
            a(self.gload(4, 'v33', 's58'))
            a("s_waitcnt vmcnt(0)")
            first()
            self.check_tags(['v6'], okA)
            NS = o['PIPE_A2']

            def takeA(k):
                a(f"""v_mov_b32 v4, v{192+4*k}
                      v_mov_b32 v5, v{193+4*k}""")
            self.poll_pipe('A2', NS, lambda k: [self.gload(192 + 4 * k, 'v33', 's58')],
                           lambda k, ok: self.check_tags([f'v{194+4*k}'], ok), takeA, o['SLP_A2'])
            a.label(okA)
        else:
            self.poll('A2', [self.gload(4, 'v33', 's58')],
                      lambda ok: self.check_tags(['v6'], ok), first_extra=first)
        a("""ds_write_b64 v34, v[4:5]
             s_waitcnt lgkmcnt(0)
             s_barrier""")
        self.stamp(3)
        lq = self.lab('wqskip')
        a(f"""s_mov_b32 m0, s67
              s_cmp_lt_u32 {sWAVE}, 4
              s_cbranch_scc0 {lq}""")
        self.gemv16(4, F, 'v38', 128)
        a(f"""v_cvt_pk_bf16_f32 v8, v4, v5
              v_cvt_pk_bf16_f32 v9, v6, v7
              v_mov_b32 v10, {sTAG}
              v_mov_b32 v11, 0
              s_mov_b32 exec_lo, 0x000f000f
              s_mov_b32 exec_hi, 0x000f000f""")
        self.st_local(8, 'v40', 's57')
        a("s_mov_b64 exec, -1")
        a.label(lq)
        a("s_barrier")
        self.stamp(4)
        lq3 = self.lab('wq3')
        a(f"""s_cmp_lt_u32 {sWAVE}, 4
              s_cbranch_scc0 {lq3}
              s_mov_b32 exec_lo, 0x000f000f
              s_mov_b32 exec_hi, 0x000f000f""")
        self.st_global(8, 'v40', 's57')
        a("s_mov_b64 exec, -1")
        a.label(lq3)
        if o['WO3']:
            self.dma_loop('v32', R1, 's59', 8 * 1024, 's89')
        elif o['WO1'] < 8:
            self.dma_loop('v32', R1, 's59', 8 * 1024, 8 - o['WO1'])
        a(f"""s_lshl_b32 s58, {sG}, 13
              s_add_u32 s58, s58, {WS_C}
              v_lshrrev_b32 v1, 5, v0
              v_lshlrev_b32 v41, 10, v1
              v_and_b32 v1, 3, v0
              v_lshl_add_u32 v41, v1, 5, v41
              v_bfe_u32 v1, v0, 4, 1
              v_lshl_add_u32 v41, v1, 4, v41
              s_lshl_b32 s57, s56, 13
              s_lshl_b32 s61, {sWAVE}, 11
              s_add_u32 s57, s57, s61
              s_lshl_b32 s61, {sG}, 7
              s_add_u32 s57, s57, s61
              s_add_u32 s57, s57, {WS_C2}
              v_lshlrev_b32 v42, 4, v0
              s_lshl_b32 s62, s56, 3
              s_add_u32 s62, s62, {sWAVE}
              s_lshl_b32 s62, s62, 10
              s_add_u32 s63, s62, {WS_ML}
              s_add_u32 s62, s62, {WS_C2}
              ; D publish: ((g*4 + b)*2 + u)*2048 + Q*16, Q = 16i + 2w + q
              v_bfe_u32 v1, v0, 1, 2
              v_lshlrev_b32 v43, 12, v1
              v_and_b32 v1, 1, v0
              v_lshl_add_u32 v43, v1, 4, v43
              s_lshl_b32 s66, {sG}, 14
              s_lshl_b32 s61, s56, 8
              s_add_u32 s66, s66, s61
              s_lshl_b32 s61, {sWAVE}, 5
              s_add_u32 s66, s66, s61
              s_add_u32 s66, s66, {WS_D}
              v_bfe_u32 v1, v0, 1, 2
              v_lshlrev_b32 v61, 10, v1
              v_and_b32 v2, 1, v0
              v_lshl_add_u32 v61, v2, 3, v61
              v_lshrrev_b32 v2, 4, v0
              v_lshl_add_u32 v61, v2, 1, v61
              s_lshl_b32 s68, s56, 7
              s_lshl_b32 s61, {sG}, 4
              s_add_u32 s68, s68, s61
              s_lshl_b32 s69, s56, 3
              s_add_u32 s69, s69, {sG}
              s_mul_i32 s69, s69, {56*128}
              s_add_u32 s69, s69, {WS_E}""")
        if o['TOUCH']:
            a(self.gload(4, 'v42', 's62'))
            a(self.gload(8, 'v42', 's63'))
            lt1 = self.lab('wt1')
            a(f"""s_cmp_eq_u32 {sWAVE}, {sG}
                  s_cbranch_scc0 {lt1}
                  s_add_u32 s61, s69, 4096""")
            for m in range(7):
                a(self.gload(64 + 4 * m, 'v42', 's69' if m < 4 else 's61', 1024 * (m & 3)))
            a.label(lt1)
        self.srd(48, sOUT, 4096)
        self.sel_consts()
        self.tagbytes(48)
        a("v_lshlrev_b32 v60, 16, v60")
        lw2 = self.lab('w2')

        def first2():
            self.stamp(5)
            a("s_barrier")
            a(f"""s_cmp_lt_u32 {sWAVE}, 4
                  s_cbranch_scc0 {lw2}""")
            for s in range(16):
                for h in range(2):
                    q = F + 4 * s + 2 * h
                    a(f"ds_read_b64_tr_b16 v[{q}:{q+1}], v37 offset:{4096*s+2048*h}")
                if s in (6, 10):
                    a("s_waitcnt lgkmcnt(6)")
            a.label(lw2)
        self.poll('C', [self.gload(4, 'v33', 's58')], lambda ok: self.check_tags(['v6'], ok), first_extra=first2, local=['s58'])
        a("""ds_write_b64 v35, v[4:5]
             s_waitcnt lgkmcnt(0)
             s_barrier""")
        self.stamp(6)
        lo = self.lab('wo')
        a(f"""s_cmp_lt_u32 {sWAVE}, 4
              s_cbranch_scc0 {lo}""")
        self.gemv16(4, F, 'v39', 128)
        self.steal(4, 48)
        a("""s_mov_b32 exec_lo, 0x000f000f
             s_mov_b32 exec_hi, 0x000f000f""")
        self.gstore(4, 'v41', 's57')
        a("s_mov_b64 exec, -1")
        a.label(lo)
        self.stamp(7)

        def stolen_check(q):
            def chk(ok):
                self.stolen_tag(q, 'v12', 'v13')
                self.check_tags(['v12'], ok)
            return chk
        self.poll('ML', [self.gload(4, 'v42', 's63')] + ([self.gload(28, 'v42', 's62')] if o['MLTOUCH'] else []), stolen_check(4))
        if o['C2EARLY']:
            a(self.gload(24, 'v42', 's62'))
        for r in range(4):
            a(f"v_and_b32 v{4+r}, 0xffffff00, v{4+r}")
        for r in range(4):
            a(f"v_add_f32_dpp v{4+r}, v{4+r}, v{4+r} row_ror:8 row_mask:0xf bank_mask:0xf")
        self.pk_rnd(4, 'v12')
        self.pk_rnd(6, 'v13')
        a("""s_mov_b32 exec_lo, 0
             s_mov_b32 exec_hi, 0x0000ffff""")
        for r in range(4):
            a(f"v_add_f32 v{4+r}, 1.0, v{4+r}")
        self.pk_rnd(4, 'v12')
        self.pk_rnd(6, 'v13')
        a("s_mov_b64 exec, -1")
        a("""v_cvt_pk_bf16_f32 v8, v4, v5
             v_cvt_pk_bf16_f32 v9, v6, v7
             v_mov_b32 v16, 0
             v_mov_b32 v17, 0
             v_mov_b32 v18, 0
             v_mov_b32 v19, 0
             v_mov_b32 v10, v8
             v_mov_b32 v11, v9
             v_mov_b32 v14, v8
             v_mov_b32 v15, v9
             v_permlane32_swap_b32 v10, v16
             v_permlane32_swap_b32 v11, v17
             v_permlane16_swap_b32 v14, v18
             v_permlane16_swap_b32 v15, v19""")
        a(f"""v_mov_b32 v58, v16
              v_mov_b32 v20, v17
              v_mov_b32 v21, v18
              v_mov_b32 v22, v19
              v_mov_b32 v23, {sTAG}
              s_mov_b64 exec, 0xff""")
        self.gstore(20, 'v43', 's66', 2048, local=True)
        a("s_mov_b64 exec, -1")
        a("""v_permlane16_swap_b32 v4, v5
             v_permlane16_swap_b32 v6, v7
             v_permlane32_swap_b32 v4, v6
             v_permlane32_swap_b32 v5, v7
             v_mov_b32 v56, v4
             v_mov_b32 v57, v7""")
        self.stamp(8)
        okc = self.lab('c2first')
        lc2 = self.lab('c2got')
        if o['C2EARLY']:
            a(f"s_waitcnt vmcnt({2 if (o['LOCAL'] and not o.get('NOGLOBAL')) else 1})")
            self.stolen_tag(24, 'v12', 'v13')
            self.check_tags(['v12'], okc)
        self.poll('C2', [self.gload(4, 'v42', 's62')], stolen_check(4))
        a(f"s_branch {lc2}")
        a.label(okc)
        for r in range(4):
            a(f"v_mov_b32 v{4+r}, v{24+r}")
        a.label(lc2)
        self.stamp(9)
        for r in range(4):
            a(f"v_and_b32 v{4+r}, 0xffffff00, v{4+r}")
        self.red_rows(4)
        self.rnd('v4', 'v4')
        a("v_mul_f32 v4, v56, v4")
        self.rnd('v4', 'v4')
        a("v_add_f32 v4, v60, v4")
        self.rnd('v59', 'v4')
        a(f"""v_mov_b32 v10, v58
              v_mov_b32 v11, {sTAG}""")
        self.rows_to_quad('v8', 'v9', 'v59', 'v12')
        a("s_mov_b64 exec, 0xff")
        self.st_local(8, 'v43', 's66')
        self.stamp(10)
        a("s_barrier")
        self.st_global(8, 'v43', 's66')
        a("s_mov_b64 exec, -1")
        end = self.lab('wend')
        a(f"""s_cmp_eq_u32 {sWAVE}, {sG}
              s_cbranch_scc0 {end}
              s_add_u32 s61, s69, 4096""")
        loads = []
        for m in range(7):
            if m < 4:
                loads.append(self.gload(64 + 4 * m, 'v42', 's69', 1024 * m))
            else:
                loads.append(self.gload(64 + 4 * m, 'v42', 's61', 1024 * (m - 4)))

        def echk(ok):
            for m in range(7):
                self.stolen_tag(64 + 4 * m, f'v{12+m}', 'v20')
            self.check_tags([f'v{12+m}' for m in range(7)], ok)
        if o['PIPE_E']:
            def loadE(k):
                b = 64 + 28 * k
                return [self.gload(b + 4 * m, 'v42', 's69' if m < 4 else 's61', 1024 * (m & 3)) for m in range(7)]

            def chkE(k, ok):
                b = 64 + 28 * k
                for m in range(7):
                    self.stolen_tag(b + 4 * m, f'v{12+m}', 'v20')
                self.check_tags([f'v{12+m}' for m in range(7)], ok)

            def takeE(k):
                for r in range(28):
                    a(f"v_and_b32 v{160+r}, 0xffffff00, v{64+28*k+r}")
            self.poll_pipe('E', o['PIPE_E'], loadE, chkE, takeE, o['SLP_E'])
            EB = 160
        else:
            self.poll('E', loads, echk)
            EB = 64
            for m in range(7):
                for r in range(4):
                    a(f"v_and_b32 v{64+4*m+r}, 0xffffff00, v{64+4*m+r}")
        self.stamp(11)
        def pk(d, s_):
            a(f"v_pk_add_f32 v[{d}:{d+1}], v[{d}:{d+1}], v[{s_}:{s_+1}]")
        for d, s_ in ((0, 4), (8, 12), (16, 20), (0, 8), (16, 24), (0, 16)):
            pk(EB + d, EB + s_)
            pk(EB + d + 2, EB + s_ + 2)
        self.red_rows(EB)
        e = f"v{EB}"
        self.rnd(e, e)
        a(f"v_mul_f32 {e}, v57, {e}")
        self.rnd(e, e)
        a(f"""v_add_f32 {e}, v59, {e}
              v_cvt_pk_bf16_f32 {e}, {e}, {e}
              s_mov_b32 exec_lo, 0x00ff00ff
              s_mov_b32 exec_hi, 0x00ff00ff
              buffer_store_short {e}, v61, {R2}, s68 offen
              s_mov_b64 exec, -1""")
        noep = self.lab('noep')
        a(f"""s_cmp_eq_u32 s2, 64
              s_cbranch_scc0 {noep}
              v_mov_b32 v1, 0
              v_mov_b32 v2, {sTAG}
              s_mov_b64 exec, 1
              buffer_store_dword v2, v1, {WSR}, 0 offen offset:{WS_EPOCH}
              s_mov_b64 exec, -1""")
        a.label(noep)
        self.stamp(12)
        a.label(end)
        self.stamps_out(16)
        a("s_endpgm")

    def w_setup1(self, H, O, WQ, WO):
        a = self.a
        a(f"""s_lshl_b32 s61, {sWAVE}, 6
              v_add_u32 v1, s61, v0
              v_lshlrev_b32 v33, 4, v1
              v_lshrrev_b32 v2, 3, v1
              v_lshlrev_b32 v2, 1, v2
              v_and_b32 v3, 1, v1
              v_add_u32 v2, v2, v3""")
        self.perm_pos_bytes('v34', 'v2', 'v3')
        a(f"""v_bfe_u32 v3, v1, 1, 2
              v_mul_u32_u24 v3, 1056, v3
              v_add_u32 v34, v34, v3
              v_add_u32 v34, {H}, v34""")
        a(f"""v_bfe_u32 v2, v1, 4, 2
              v_lshlrev_b32 v2, 5, v2
              v_bfe_u32 v3, v1, 6, 1
              v_lshl_add_u32 v2, v3, 4, v2
              v_and_b32 v3, 15, v1
              v_add_u32 v2, v2, v3""")
        self.perm_pos_bytes('v35', 'v2', 'v3')
        a(f"""v_lshrrev_b32 v3, 7, v1
              v_mul_u32_u24 v3, 1056, v3
              v_add_u32 v35, v35, v3
              v_add_u32 v35, {O}, v35""")
        a(f"""s_and_b32 s61, {sWAVE}, 3
              s_lshl_b32 s61, s61, 5""")
        self.tr_addr_p128('v36', 's61', WQ, 'v1', 'v2')
        a(f"v_add_u32 v37, {WO-WQ}, v36")
        self.act_addr('v38', H, 1056, 'v1')
        a(f"v_add_u32 v39, {O-H}, v38")
        a(f"""v_and_b32 v1, 3, v0
              v_lshlrev_b32 v40, 6, v1
              v_lshrrev_b32 v1, 4, v0
              v_lshl_add_u32 v40, v1, 4, v40
              s_lshl_b32 s57, {sG}, 3
              s_add_u32 s57, s57, s56
              s_lshl_b32 s57, s57, 2
              s_add_u32 s57, s57, {sWAVE}
              s_lshl_b32 s57, s57, 8
              s_add_u32 s57, s57, {WS_B}
              s_mov_b32 s58, {WS_A2}""")

    def build(self):
        self.prologue()
        self.role_m()
        self.role_w()
        self.role_k()
        self.role_v()
        self.a.label("L_END")
        self.a("s_endpgm")
        body = self.a.finalize()
        vg = 256 if self.o['PROF'] else 208
        hdr = HEADER.format(lds=LDS_BYTES)
        return hdr + f""".amdgcn_target "amdgcn-amd-amdhsa--gfx950"
.text
.globl {NAME}
.p2align 8
.type {NAME},@function
{NAME}:
{body}.section .rodata,"a"
.p2align 6
.amdhsa_kernel {NAME}
  .amdhsa_next_free_vgpr {vg}
  .amdhsa_next_free_sgpr 102
  .amdhsa_accum_offset {vg}
  .amdhsa_group_segment_fixed_size 0
  .amdhsa_kernarg_size 112
  .amdhsa_user_sgpr_count 2
  .amdhsa_user_sgpr_kernarg_segment_ptr 1
  .amdhsa_system_sgpr_workgroup_id_x 1
.end_amdhsa_kernel
"""


if __name__ == '__main__':
    opt = {}
    out = None
    for arg in sys.argv[1:]:
        if '=' in arg:
            k, v = arg.split('=', 1)
            opt[k] = int(v) if v.lstrip('-').isdigit() else v
        else:
            out = arg
    g = Gen5(opt)
    txt = g.build()
    if out:
        open(out, 'w').write(txt)
    else:
        sys.stdout.write(txt)
    sys.stderr.write(f"instructions: {g.a.count()}\n")
```

```python
import sys, os
sys.path.insert(0, os.path.dirname(os.path.abspath(__file__)))
import gen as G1
from gen import *

OPT2 = dict(WWAIT=0, KWAIT=1, VWAIT=1, MTRIG=1, GTRIG=0, PF=1, KSLEEP=0, VSLEEP=0, WSLEEP=0, TOUCH=1, KWIN=4, VWIN=1, WWIN=0, BARDMA=1, VN1=3, WO1=0, MG1=0, IOX=4, WO3=2, VN1ODD=2, PIPE_A2=0, SLP_A2=4, PIPE_C2=0, SLP_C2=2, PIPE_E=3, SLP_E=1, MLTOUCH=0, C2EARLY=1, FASTV=1, FASTLN=1, MEARLY=1)


class Gen6(Gen):
    def __init__(self, opt):
        o = dict(OPT2)
        o.update(opt)
        super().__init__(o)

    def kwait(self, ws=True):
        a = self.a
        a("s_waitcnt lgkmcnt(0)")
        if self.o['PROF']:
            a("s_mov_b32 s70, s96")
            for k in range(1, 16):
                a(f"s_mov_b32 s{70+k}, 0")
            a(f"""s_cmp_eq_u32 {sWAVE}, 0
                  s_cselect_b32 s99, 1, 0
                  s_cmp_eq_u32 {sWAVE}, 7
                  s_cselect_b32 s99, 1, s99""")
            if self.role == 'M':
                a(f"""s_cmp_eq_u32 {sWAVE}, 4
                      s_cselect_b32 s99, 1, s99""")
            if self.role == 'W':
                a(f"""s_cmp_eq_u32 {sWAVE}, {sG}
                      s_cselect_b32 s99, 1, s99""")
            self.stamp(14)
        a(f"s_load_dword {sE}, s[{sWS}:{sWS+1}], {WS_EPOCH}")
        if ws:
            self.srd(40, sWS, WS_SIZE)

    def code_prefetch(self):
        if not self.o['PF']:
            return
        a = self.a
        l = self.lab('pf')
        lp = self.lab('pc')
        a(f"""s_cmp_eq_u32 {sWAVE}, 7
              s_cbranch_scc0 {l}
              s_getpc_b64 s[86:87]""")
        a.label(lp)
        a(f"""s_lshl_b32 s88, {sJ}, 10
              s_sub_u32 s86, s86, {lp}-L_START
              s_subb_u32 s87, s87, 0
              v_lshl_add_u32 v204, v0, 4, s88
              v_min_u32 v204, (L_END-L_START-16)&0xfffffff0, v204
              v_mov_b32 v207, s87
              v_add_co_u32 v206, vcc, s86, v204
              v_addc_co_u32 v207, vcc, 0, v207, vcc
              global_load_dwordx4 v[200:203], v[206:207], off""")
        a.label(l)

    def st_local(self, q, voff, soff, imm=0):
        i = f" offset:{imm}" if imm else ""
        if self.o['LOCAL']:
            self.a(f"""s_or_b32 s39, {soff}, {WS_LOC}
                       buffer_store_dwordx4 v[{q}:{q+3}], {voff}, {WSR}, s39 offen{i}""")
        else:
            self.a(f"buffer_store_dwordx4 v[{q}:{q+3}], {voff}, {WSR}, {soff} offen{i} {self.o['ST']}")

    def st_global(self, q, voff, soff, imm=0):
        i = f" offset:{imm}" if imm else ""
        if self.o['LOCAL'] and not self.o.get('NOGLOBAL'):
            self.a(f"buffer_store_dwordx4 v[{q}:{q+3}], {voff}, {WSR}, {soff} offen{i} {self.o['ST']}")

    def poll_pipe(self, name, nsets, load, check, take, sleep):
        a = self.a
        per = len(load(0))
        oks = [self.lab(name + f'ok{k}_') for k in range(nsets)]
        done = self.lab(name + 'done')
        lp = self.lab(name)
        for k in range(nsets - 1):
            for l in load(k):
                a(l)
            if sleep:
                a(f"s_sleep {sleep}")
        a(f"s_mov_b32 {sCNT}, {self.o['LIMIT'] // nsets}")
        a.label(lp)
        for k in range(nsets):
            kn = (k + nsets - 1) % nsets
            for l in load(kn):
                a(l)
            a(f"s_waitcnt vmcnt({per * (nsets - 1)})")
            check(k, oks[k])
            if sleep:
                a(f"s_sleep {sleep}")
        a(f"""s_sub_u32 {sCNT}, {sCNT}, 1
              s_cbranch_scc0 {lp}
              s_branch {oks[0]}""")
        for k in range(nsets - 1, -1, -1):
            a.label(oks[k])
            take(k)
            if k:
                a(f"s_branch {done}")
        a.label(done)

    def silu1(self, x, t):
        a = self.a
        e, r, q, u = [f"v{t+i}" for i in range(4)]
        a(f"""s_mov_b32 s94, 0xbfb8aa3b
              s_mov_b32 s95, 0xb2a57060
              v_mul_f32 {e}, 0xbfb8aa3b, {x}
              v_fma_f32 {r}, {x}, s94, -{e}
              v_fma_f32 {r}, {x}, s95, {r}
              v_exp_f32 {e}, {e}
              v_mul_f32 {r}, 0x3f317218, {r}
              v_add_f32 {r}, 1.0, {r}
              v_mul_f32 {e}, {e}, {r}
              v_add_f32 {e}, 1.0, {e}
              v_rcp_f32 {r}, {e}
              v_cmp_eq_f32 vcc, 0x7f800000, {e}
              v_mul_f32 {q}, {x}, {r}
              v_fma_f32 {u}, -{q}, {e}, {x}
              v_fma_f32 {u}, {u}, {r}, {q}
              v_cndmask_b32 {x}, {u}, {q}, vcc""")

    def wave_sum2(self, v, w, t, u):
        a = self.a
        for pat in ("quad_perm:[1,0,3,2]", "quad_perm:[2,3,0,1]", "row_half_mirror", "row_mirror"):
            a(f"v_add_f32_dpp {v}, {v}, {v} {pat} row_mask:0xf bank_mask:0xf")
            a(f"v_add_f32_dpp {w}, {w}, {w} {pat} row_mask:0xf bank_mask:0xf")
        a(f"""v_mov_b32 {t}, {v}
              v_mov_b32 {u}, {w}
              v_permlane16_swap_b32 {v}, {t}
              v_permlane16_swap_b32 {w}, {u}
              v_add_f32 {v}, {v}, {t}
              v_add_f32 {w}, {w}, {u}
              v_mov_b32 {t}, {v}
              v_mov_b32 {u}, {w}
              v_permlane32_swap_b32 {v}, {t}
              v_permlane32_swap_b32 {w}, {u}
              v_add_f32 {v}, {v}, {t}
              v_add_f32 {w}, {w}, {u}""")

    def ln_stats_pivot(self, x, M2, SD2, RC2, t):
        a = self.a
        t0, t1, t2, t3 = [f"v{t+i}" for i in range(4)]
        a(f"v_readfirstlane_b32 s39, v{x}")
        D = t + 4
        for k in range(8):
            a(f"v_subrev_f32 v{D+k}, s39, v{x+k}")
        a(f"""v_add_f32 {t0}, v{D}, v{D+1}
              v_mul_f32 {t1}, v{D}, v{D}
              v_add_f32 {t2}, v{D+2}, v{D+3}
              v_mul_f32 {t3}, v{D+1}, v{D+1}
              v_add_f32 {t0}, {t0}, {t2}
              v_fmac_f32 {t1}, v{D+2}, v{D+2}
              v_add_f32 {t2}, v{D+4}, v{D+5}
              v_fmac_f32 {t3}, v{D+3}, v{D+3}
              v_add_f32 {t0}, {t0}, {t2}
              v_fmac_f32 {t1}, v{D+4}, v{D+4}
              v_add_f32 {t2}, v{D+6}, v{D+7}
              v_fmac_f32 {t3}, v{D+5}, v{D+5}
              v_add_f32 {t0}, {t0}, {t2}
              v_fmac_f32 {t1}, v{D+6}, v{D+6}
              v_fmac_f32 {t3}, v{D+7}, v{D+7}
              v_add_f32 {t1}, {t1}, {t3}""")
        self.wave_sum2(t0, t1, t2, t3)
        a(f"""v_mul_f32 {t0}, 0x3b000000, {t0}
              v_mul_f32 {t1}, 0x3b000000, {t1}
              v_fma_f32 {t1}, -{t0}, {t0}, {t1}
              v_add_f32 {t0}, s39, {t0}
              v_max_f32 {t1}, 0, {t1}
              v_cvt_pk_bf16_f32 {t1}, {t0}, {t1}
              v_lshlrev_b32 v{M2}, 16, {t1}
              v_and_b32 {t1}, 0xffff0000, {t1}
              v_add_f32 {t1}, 0x3727c5ac, {t1}
              v_mov_b32 v{M2+1}, v{M2}""")
        self.rnd(t1, t1)
        a(f"v_sqrt_f32 {t1}, {t1}")
        self.rnd(f"v{SD2}", t1)
        a(f"""v_rcp_f32 v{RC2}, v{SD2}
              v_mov_b32 v{SD2+1}, v{SD2}
              v_mov_b32 v{RC2+1}, v{RC2}""")

    def ln2_fast(self, X):
        a = self.a
        t = 144
        t0, t1, t2, t3 = [f"v{t+i}" for i in range(4)]
        D = t + 4
        a(f"v_readfirstlane_b32 s39, v{X}")
        csrc = ['v6', 'v8', 'v14', 'v16']
        ssrc = ['v9', 'v10', 'v17', 'v18']
        C, S = 156, 164
        for p in range(4):
            self.unpack(f'v{C+2*p}', f'v{C+2*p+1}', csrc[p])
        for k in range(8):
            a(f"v_subrev_f32 v{D+k}, s39, v{X+k}")
        a(f"""v_add_f32 {t0}, v{D}, v{D+1}
              v_mul_f32 {t1}, v{D}, v{D}
              v_add_f32 {t2}, v{D+2}, v{D+3}
              v_mul_f32 {t3}, v{D+1}, v{D+1}
              v_add_f32 {t0}, {t0}, {t2}
              v_fmac_f32 {t1}, v{D+2}, v{D+2}
              v_add_f32 {t2}, v{D+4}, v{D+5}
              v_fmac_f32 {t3}, v{D+3}, v{D+3}
              v_add_f32 {t0}, {t0}, {t2}
              v_fmac_f32 {t1}, v{D+4}, v{D+4}
              v_add_f32 {t2}, v{D+6}, v{D+7}
              v_fmac_f32 {t3}, v{D+5}, v{D+5}
              v_add_f32 {t0}, {t0}, {t2}
              v_fmac_f32 {t1}, v{D+6}, v{D+6}
              v_fmac_f32 {t3}, v{D+7}, v{D+7}
              v_add_f32 {t1}, {t1}, {t3}""")
        fill = []
        for p in range(4):
            fill += [f"v_lshlrev_b32 v{S+2*p}, 16, {ssrc[p]}", f"v_and_b32 v{S+2*p+1}, 0xffff0000, {ssrc[p]}"]
        for pat in ("quad_perm:[1,0,3,2]", "quad_perm:[2,3,0,1]", "row_half_mirror", "row_mirror"):
            a(f"v_add_f32_dpp {t0}, {t0}, {t0} {pat} row_mask:0xf bank_mask:0xf")
            a(f"v_add_f32_dpp {t1}, {t1}, {t1} {pat} row_mask:0xf bank_mask:0xf")
            a(fill.pop(0))
        a(f"""v_mov_b32 {t2}, {t0}
              v_mov_b32 {t3}, {t1}""")
        a(fill.pop(0))
        a(f"""v_permlane16_swap_b32 {t0}, {t2}
              v_permlane16_swap_b32 {t1}, {t3}
              v_add_f32 {t0}, {t0}, {t2}
              v_add_f32 {t1}, {t1}, {t3}
              v_mov_b32 {t2}, {t0}
              v_mov_b32 {t3}, {t1}""")
        a(fill.pop(0))
        a(f"""v_permlane32_swap_b32 {t0}, {t2}
              v_permlane32_swap_b32 {t1}, {t3}
              v_add_f32 {t0}, {t0}, {t2}
              v_add_f32 {t1}, {t1}, {t3}""")
        while fill:
            a(fill.pop(0))
        a(f"""v_mul_f32 v52, 0x3b000000, {t0}
              v_mul_f32 {t1}, 0x3b000000, {t1}
              v_fma_f32 {t1}, -v52, v52, {t1}
              v_mov_b32 v53, v52
              v_max_f32 {t1}, 0, {t1}
              v_add_f32 {t1}, 0x3727c5ac, {t1}
              v_rsq_f32 v54, {t1}""")
        for p in range(4):
            d = D + 2 * p
            a(f"v_pk_add_f32 v[{d}:{d+1}], v[{d}:{d+1}], v[52:53] neg_lo:[0,1] neg_hi:[0,1]")
        a("v_mov_b32 v55, v54")
        for p in range(4):
            c = C + 2 * p
            a(f"v_pk_mul_f32 v[{c}:{c+1}], v[{c}:{c+1}], v[54:55]")
        for p in range(4):
            d, c, q = D + 2 * p, C + 2 * p, S + 2 * p
            a(f"v_pk_fma_f32 v[{d}:{d+1}], v[{d}:{d+1}], v[{c}:{c+1}], v[{q}:{q+1}]")
        for p in range(4):
            a(f"v_cvt_pk_bf16_f32 v{4+p}, v{D+2*p}, v{D+2*p+1}")

    def pk_rnd(self, p, t):
        self.a(f"""v_cvt_pk_bf16_f32 {t}, v{p}, v{p+1}
                   v_lshlrev_b32 v{p}, 16, {t}
                   v_and_b32 v{p+1}, 0xffff0000, {t}""")

    def prologue(self):
        a = self.a
        a.label("L_START")
        a(f"""s_cmp_ge_u32 s2, 256
              s_cbranch_scc1 L_END""")
        if self.o.get('RENUM'):
            a("""s_lshr_b32 s3, s2, 3
                 s_and_b32 s3, s3, 7
                 s_xor_b32 s2, s2, s3""")
        a(f"""              s_load_dwordx16 s[4:19], s[0:1], 0
              s_load_dwordx8 s[20:27], s[0:1], 64
              s_load_dwordx4 s[28:31], s[0:1], 96""")
        if self.o['PROF']:
            a("s_memrealtime s[96:97]")
        a(f"""v_lshrrev_b32 v1, 6, v0
              v_and_b32 v0, 63, v0
              s_and_b32 {sG}, s2, 7
              s_lshr_b32 {sJ}, s2, 3
              v_readfirstlane_b32 {sWAVE}, v1""")
        self.code_prefetch()
        a(f"""s_cmp_ge_u32 {sJ}, 24
              s_cbranch_scc1 L_ENT_V
              s_cmp_ge_u32 {sJ}, 16
              s_cbranch_scc1 L_ENT_K
              s_cmp_ge_u32 {sJ}, 8
              s_cbranch_scc1 L_ENT_W""")

    def ent_v(self):
        a = self.a
        o = self.o
        a.label("L_ENT_V")
        self.role = 'V'
        a(f"""s_sub_u32 s56, {sJ}, 24
              s_lshr_b32 s57, s56, 1
              s_and_b32 s58, s56, 1
              s_lshl_b32 s60, s57, 3
              s_add_u32 s60, s60, {sG}
              s_lshl_b32 s59, s60, 20
              s_add_u32 s59, s59, {3072*256}
              s_lshl_b32 s61, s58, 7
              s_add_u32 s59, s59, s61
              s_lshl_b32 s61, {sWAVE}, 15
              s_add_u32 s59, s59, s61
              s_lshl_b32 s62, {sWAVE}, 14
              s_mov_b32 m0, s62""")
        self.dma_off_p128('v32', 256, 'v1', 'v2')
        self.kwait(ws=False)
        self.srd(44, sV, 0x2000000)
        if o['VWAIT']:
            a("s_waitcnt lgkmcnt(0)")
        if o['VSLEEP']:
            a(f"s_sleep {o['VSLEEP']}")
        self.stamp(15)
        self.only_exit('V', pre=True)
        if o['VN1'] and o['VN1ODD'] != o['VN1']:
            a(f"""s_cmp_eq_u32 s58, 1
                  s_cselect_b32 s63, {o['VN1ODD']}, {o['VN1']}
                  s_sub_u32 s66, 16, s63""")
            self.dma_loop('v32', R1, 's59', 2048, 's63', win=o['VWIN'])
            self.dma_loop('v32', R1, 's59', 2048, 's66')
        elif o['VN1']:
            self.dma_loop('v32', R1, 's59', 2048, o['VN1'], win=o['VWIN'])
            self.dma_loop('v32', R1, 's59', 2048, 16 - o['VN1'])
        else:
            self.dma_loop('v32', R1, 's59', 2048, 16, win=o['VWIN'])
        a("s_branch L_ROLE_V")

    def role_v(self):
        a = self.a
        o = self.o
        RED, ST = 131072, 139776
        F = 64
        a.label("L_ROLE_V")
        self.role = 'V'
        self.srd(40, sWS, WS_SIZE)
        self.only_exit('V')
        a(f"""v_bfe_u32 v1, v0, 2, 2
              v_lshlrev_b32 v33, 9, v1
              v_lshrrev_b32 v2, 4, v0
              v_lshl_add_u32 v33, v2, 6, v33
              v_and_b32 v3, 3, v0
              v_lshl_add_u32 v33, v3, 4, v33
              s_lshl_b32 s63, s60, 14
              s_add_u32 s63, s63, {WS_S}
              s_lshl_b32 s61, {sWAVE}, 11
              s_add_u32 s63, s63, s61""")
        a(f"""v_mul_u32_u24 v38, 272, v3
              v_lshl_add_u32 v38, v1, 6, v38
              v_lshl_add_u32 v38, v2, 4, v38
              s_mul_i32 s61, {sWAVE}, 1088
              s_add_u32 s61, s61, {RED}
              v_add_u32 v38, s61, v38""")
        a(f"""v_lshlrev_b32 v39, 6, v3
              v_add_u32 v40, {ST}, v39
              s_lshl_b32 s61, {sWAVE}, 3
              v_add_u32 v39, s61, v40
              v_lshl_add_u32 v40, v1, 3, v40
              v_and_b32 v2, 1, v2
              v_lshl_add_u32 v40, v2, 5, v40""")
        for t in range(4):
            self.tr_addr_p128(f'v{34+t}', 32 * t, 's62', 'v1', 'v2')
        a(f"""v_lshrrev_b32 v1, 4, v0
              v_mul_u32_u24 v1, 272, v1
              v_and_b32 v2, 15, v0
              v_lshl_add_u32 v1, v2, 4, v1
              v_add_u32 v41, {RED}, v1
              v_lshrrev_b32 v1, 4, v0
              v_lshlrev_b32 v1, 6, v1
              v_add_u32 v43, {ST}, v1
              v_lshlrev_b32 v42, 4, v0
              s_lshl_b32 s66, {sG}, 2
              s_add_u32 s66, s66, s57
              s_lshl_b32 s66, s66, 1
              s_add_u32 s66, s66, s58
              s_lshl_b32 s66, s66, 10
              s_add_u32 s66, s66, {WS_C}""")
        self.tag_ready()
        self.stamp(1)

        def first():
            self.stamp(2)
            for s in range(4):
                for t in range(4):
                    for h in range(2):
                        q = F + 16 * s + 4 * t + 2 * h
                        a(f"ds_read_b64_tr_b16 v[{q}:{q+1}], v{34+t} offset:{4096*s+2048*h}")
                if s < 3:
                    a("s_waitcnt lgkmcnt(6)")
        self.poll('S', [self.gload(4, 'v33', 's63'), self.gload(8, 'v33', 's63', 256)],
                  lambda ok: self.check_tags(['v6', 'v10'], ok), first_extra=first, local=['s63'])
        self.stamp(3)
        self.unpack('v12', 'v13', 'v4')
        self.unpack('v14', 'v15', 'v5')
        self.unpack('v16', 'v17', 'v8')
        self.unpack('v18', 'v19', 'v9')
        a("""s_mov_b32 s94, 0x3fb8aa3b
             v_max3_f32 v20, v12, v13, v14
             v_max3_f32 v21, v15, v16, v17
             v_max3_f32 v20, v20, v18, v19
             v_max_f32 v20, v20, v21
             v_max_f32_dpp v20, v20, v20 row_ror:4 row_mask:0xf bank_mask:0xf
             v_max_f32_dpp v20, v20, v20 row_ror:8 row_mask:0xf bank_mask:0xf
             v_mov_b32 v21, v20
             v_permlane16_swap_b32 v20, v21
             v_max_f32 v20, v20, v21
             v_mov_b32 v21, v20
             v_permlane32_swap_b32 v20, v21
             v_max_f32 v20, v20, v21""")
        if o['FASTV']:
            self.v_fast(F)
        else:
            self.v_exact(F)
        self.stamp(5)
        self.stamps_out(16)
        a("s_endpgm")

    def v_fast(self, F):
        a = self.a
        ST = 139776
        a("v_mul_f32 v21, s94, v20")
        for k in range(8):
            a(f"v_fma_f32 v{12+k}, v{12+k}, s94, -v21")
        for k in range(8):
            a(f"v_exp_f32 v{12+k}, v{12+k}")
        for k in range(4):
            a(f"v_cvt_pk_bf16_f32 v{44+k}, v{12+2*k}, v{13+2*k}")
        D = [4, 8, 24, 28]
        done = set()

        def mf(s, t):
            rho = (s - t) & 3
            q = F + 16 * s + 4 * t
            c = f"v[{D[t]}:{D[t]+3}]" if t in done else "0"
            done.add(t)
            a(f"v_mfma_f32_16x16x32_bf16 v[{D[t]}:{D[t]+3}], v[{q}:{q+3}], v[{44+4*rho}:{47+4*rho}], {c}")

        def rot(rho, n):
            for k in range(4):
                a(f"v_mov_b32_dpp v{44+4*rho+k}, v{44+k} row_ror:{n} row_mask:0xf bank_mask:0xf")
        a("s_waitcnt lgkmcnt(0)")
        rot(2, 8)
        for t in range(4):
            mf(t, t)
        rot(1, 12)
        for t in range(4):
            mf((t + 2) & 3, t)
        rot(3, 4)
        for t in range(4):
            mf((t + 1) & 3, t)
        a("""v_add_f32 v22, v12, v13
             v_add_f32 v23, v14, v15
             v_add_f32 v12, v16, v17
             v_add_f32 v13, v18, v19""")
        mf(3, 0)
        a("""v_add_f32 v22, v22, v23
             v_add_f32 v12, v12, v13""")
        mf(0, 1)
        a("v_add_f32 v21, v22, v12")
        mf(1, 2)
        a("v_add_f32_dpp v21, v21, v21 row_ror:4 row_mask:0xf bank_mask:0xf")
        mf(2, 3)
        a("""v_add_f32_dpp v21, v21, v21 row_ror:8 row_mask:0xf bank_mask:0xf
             v_mov_b32 v22, v21
             v_permlane16_swap_b32 v21, v22
             v_add_f32 v21, v21, v22
             v_mov_b32 v22, v21
             v_permlane32_swap_b32 v21, v22
             v_add_f32 v21, v21, v22
             s_mov_b64 exec, 0xf
             ds_write_b64 v39, v[20:21]
             s_mov_b64 exec, -1""")
        self.select_tiles(D)
        a("""ds_write_b128 v38, v[4:7]
             s_waitcnt lgkmcnt(0)
             s_barrier""")
        self.stamp(4)
        done_l = self.lab('vdone')
        a(f"""s_cmp_eq_u32 {sWAVE}, 0
              s_cbranch_scc0 {done_l}""")
        for k in range(4):
            a(f"ds_read_b128 v[{44+4*k}:{47+4*k}], v43 offset:{16*k}")
        for w in range(8):
            a(f"ds_read_b128 v[{64+4*w}:{67+4*w}], v41 offset:{1088*w}")
        a(f"""v_mov_b32 v6, {sTAG}
              v_mov_b32 v7, 0
              s_waitcnt lgkmcnt(8)
              v_max3_f32 v22, v44, v46, v48
              v_max3_f32 v23, v50, v52, v54
              v_max3_f32 v22, v22, v56, v58
              v_max_f32 v22, v22, v23""")
        for k in range(8):
            a(f"v_sub_f32 v{44+2*k}, v{44+2*k}, v22")
        for k in range(8):
            a(f"v_mul_f32 v{44+2*k}, s94, v{44+2*k}")
        for k in range(8):
            a(f"v_exp_f32 v{44+2*k}, v{44+2*k}")
        a("v_mul_f32 v23, v44, v45")
        for k in range(1, 8):
            a(f"v_fmac_f32 v23, v{44+2*k}, v{45+2*k}")
        for k in range(8):
            a(f"v_mov_b32 v{45+2*k}, v{44+2*k}")
        a("v_rcp_f32 v22, v23")
        a("s_waitcnt lgkmcnt(0)")
        a("""v_pk_mul_f32 v[96:97], v[64:65], v[44:45]
             v_pk_mul_f32 v[98:99], v[66:67], v[44:45]
             v_pk_mul_f32 v[100:101], v[68:69], v[46:47]
             v_pk_mul_f32 v[102:103], v[70:71], v[46:47]""")
        for w in range(2, 8):
            d = 96 + 4 * (w & 1)
            a(f"""v_pk_fma_f32 v[{d}:{d+1}], v[{64+4*w}:{65+4*w}], v[{44+2*w}:{45+2*w}], v[{d}:{d+1}]
                  v_pk_fma_f32 v[{d+2}:{d+3}], v[{66+4*w}:{67+4*w}], v[{44+2*w}:{45+2*w}], v[{d+2}:{d+3}]""")
        a("""v_mov_b32 v23, v22
             v_pk_add_f32 v[96:97], v[96:97], v[100:101]
             v_pk_add_f32 v[98:99], v[98:99], v[102:103]
             v_pk_mul_f32 v[96:97], v[96:97], v[22:23]
             v_pk_mul_f32 v[98:99], v[98:99], v[22:23]
             v_cvt_pk_bf16_f32 v4, v96, v97
             v_cvt_pk_bf16_f32 v5, v98, v99""")
        self.gstore(4, 'v42', 's66', local=True)
        a.label(done_l)

    def v_exact(self, F):
        a = self.a
        for k in range(8):
            a(f"v_sub_f32 v{12+k}, v{12+k}, v20")
        for k in range(8):
            a(f"v_mul_f32 v{12+k}, s94, v{12+k}")
        for k in range(8):
            a(f"v_exp_f32 v{12+k}, v{12+k}")
        a("""v_add_f32 v22, v12, v13
             v_add_f32 v23, v14, v15
             v_add_f32 v24, v16, v17
             v_add_f32 v25, v18, v19
             v_add_f32 v22, v22, v23
             v_add_f32 v24, v24, v25
             v_add_f32 v21, v22, v24
             v_add_f32_dpp v21, v21, v21 row_ror:4 row_mask:0xf bank_mask:0xf
             v_add_f32_dpp v21, v21, v21 row_ror:8 row_mask:0xf bank_mask:0xf
             v_mov_b32 v22, v21
             v_permlane16_swap_b32 v21, v22
             v_add_f32 v21, v21, v22
             v_mov_b32 v22, v21
             v_permlane32_swap_b32 v21, v22
             v_add_f32 v21, v21, v22
             s_mov_b64 exec, 0xf
             ds_write_b64 v39, v[20:21]
             s_mov_b64 exec, -1
             s_waitcnt lgkmcnt(0)
             s_barrier
             ds_read_b64 v[22:23], v40
             s_waitcnt lgkmcnt(0)
             v_mov_b32 v24, v22
             v_max_f32_dpp v24, v24, v24 row_ror:4 row_mask:0xf bank_mask:0xf
             v_max_f32_dpp v24, v24, v24 row_ror:8 row_mask:0xf bank_mask:0xf
             v_mov_b32 v25, v24
             v_permlane16_swap_b32 v24, v25
             v_max_f32 v24, v24, v25
             v_sub_f32 v22, v22, v24
             v_sub_f32 v20, v20, v24
             v_mul_f32 v22, s94, v22
             v_mul_f32 v20, s94, v20
             v_exp_f32 v22, v22
             v_exp_f32 v20, v20
             v_mul_f32 v22, v22, v23
             v_add_f32_dpp v22, v22, v22 row_ror:4 row_mask:0xf bank_mask:0xf
             v_add_f32_dpp v22, v22, v22 row_ror:8 row_mask:0xf bank_mask:0xf
             v_mov_b32 v23, v22
             v_permlane16_swap_b32 v22, v23
             v_add_f32 v22, v22, v23
             v_rcp_f32 v22, v22
             v_mul_f32 v20, v20, v22""")
        for k in range(8):
            a(f"v_mul_f32 v{12+k}, v{12+k}, v20")
        for k in range(4):
            a(f"v_cvt_pk_bf16_f32 v{44+k}, v{12+2*k}, v{13+2*k}")
        D = [4, 8, 12, 16]
        rot = ((2, 8), (1, 12), (3, 4))
        done = set()

        def mf(s, t):
            rho = (s - t) & 3
            q = F + 16 * s + 4 * t
            c = f"v[{D[t]}:{D[t]+3}]" if t in done else "0"
            done.add(t)
            a(f"v_mfma_f32_16x16x32_bf16 v[{D[t]}:{D[t]+3}], v[{q}:{q+3}], v[{44+4*rho}:{47+4*rho}], {c}")
        for rho, n in rot:
            for k in range(4):
                a(f"v_mov_b32_dpp v{44+4*rho+k}, v{44+k} row_ror:{n} row_mask:0xf bank_mask:0xf")
        for rho in (0, 2, 1, 3):
            for t in range(4):
                mf((t + rho) & 3, t)
        self.select_tiles(D)
        a("""ds_write_b128 v38, v[4:7]
             s_waitcnt lgkmcnt(0)
             s_barrier""")
        self.stamp(4)
        done = self.lab('vdone')
        a(f"""s_cmp_eq_u32 {sWAVE}, 0
              s_cbranch_scc0 {done}""")
        for w in range(8):
            a(f"ds_read_b128 v[{64+4*w}:{67+4*w}], v41 offset:{1088*w}")
        a(f"""v_mov_b32 v6, {sTAG}
              v_mov_b32 v7, 0""")

        def pk(d, s_):
            a(f"v_pk_add_f32 v[{d}:{d+1}], v[{d}:{d+1}], v[{s_}:{s_+1}]")
        for n, (d, s_) in enumerate(((64, 68), (72, 76), (80, 84), (88, 92))):
            a(f"s_waitcnt lgkmcnt({6-2*n})")
            pk(d, s_)
            pk(d + 2, s_ + 2)
        for d, s_ in ((64, 72), (80, 88), (64, 80)):
            pk(d, s_)
            pk(d + 2, s_ + 2)
        a("""v_cvt_pk_bf16_f32 v4, v64, v65
             v_cvt_pk_bf16_f32 v5, v66, v67""")
        self.gstore(4, 'v42', 's66', local=True)
        a.label(done)

    def ent_k(self):
        a = self.a
        o = self.o
        a.label("L_ENT_K")
        self.role = 'K'
        a(f"""s_sub_u32 s56, {sJ}, 16
              s_lshr_b32 s57, s56, 1
              s_and_b32 s58, s56, 1
              s_lshl_b32 s60, s57, 3
              s_add_u32 s60, s60, {sG}
              s_lshl_b32 s59, s60, 20
              s_add_u32 s59, s59, {3072*256}
              s_lshl_b32 s61, s58, 17
              s_add_u32 s59, s59, s61
              s_lshl_b32 s62, {sWAVE}, 14
              s_add_u32 s59, s59, s62
              s_mov_b32 m0, s62
              v_lshrrev_b32 v1, 4, v0
              v_and_b32 v2, 15, v0
              v_xor_b32 v3, v1, v2
              v_lshlrev_b32 v3, 4, v3""")
        for v in range(4):
            if v:
                a(f"v_xor_b32 v4, {64*v}, v3")
            a(f"v_lshl_add_u32 v{32+v}, v1, 8, {'v4' if v else 'v3'}")
        self.kwait(ws=False)
        self.srd(44, sK, 0x2000000)
        if o['KWAIT']:
            a("s_waitcnt lgkmcnt(0)")
        if o['KSLEEP']:
            a(f"s_sleep {o['KSLEEP']}")
        self.stamp(15)
        self.only_exit('K', pre=True)
        l = self.lab('kdma')
        a("s_mov_b32 s38, 4")
        a.label(l)
        for v in range(4):
            i = f" offset:{1024*v}" if v else ""
            if o['KWIN']:
                a(f"s_waitcnt vmcnt({o['KWIN']-1})")
            a(f"buffer_load_dwordx4 v{32+v}, {R1}, s59 offen{i} {self.nt()}lds")
        a(f"""s_add_u32 s59, s59, 4096
              s_add_u32 m0, m0, 4096
              s_sub_u32 s38, s38, 1
              s_cmp_lg_u32 s38, 0
              s_cbranch_scc1 {l}
              s_branch L_ROLE_K""")

    def role_k(self):
        a = self.a
        o = self.o
        QL, SC2 = 131072, 132224
        F = 64
        a.label("L_ROLE_K")
        self.role = 'K'
        self.srd(40, sWS, WS_SIZE)
        self.only_exit('K')
        a(f"""s_lshl_b32 s66, {sG}, 3
              s_add_u32 s66, s66, s56
              s_and_b32 s67, s66, 1
              v_lshrrev_b32 v1, 4, v0
              v_and_b32 v2, 15, v0""")
        a("""v_and_b32 v4, 3, v2
             v_xor_b32 v4, v4, v1
             v_and_b32 v5, 12, v2
             v_lshlrev_b32 v6, 8, v2
             v_add_u32 v6, s62, v6""")
        for t in range(4):
            a(f"""v_xor_b32 v3, {4*t}, v5
                  v_add_u32 v3, v3, v4
                  v_lshl_add_u32 v{36+t}, v3, 4, v6""")
        a(f"""s_lshl_b32 s61, {sWAVE}, 6
              v_add_u32 v5, s61, v0
              v_lshrrev_b32 v6, 2, v5
              v_lshlrev_b32 v6, 8, v6
              v_and_b32 v7, 3, v5
              v_lshl_add_u32 v40, v7, 4, v6
              v_lshrrev_b32 v6, 5, v5
              v_mul_u32_u24 v6, 288, v6
              v_and_b32 v7, 31, v5
              v_lshl_add_u32 v6, v7, 3, v6
              v_add_u32 v41, {QL}, v6
              s_lshl_b32 s69, {sG}, 13
              s_lshl_b32 s61, s57, 6
              s_add_u32 s69, s69, s61
              s_add_u32 s69, s69, {WS_B}""")
        self.act_addr('v42', QL, 288, 'v5')
        a(f"""v_bfe_u32 v5, v0, 2, 2
              v_lshl_add_u32 v5, v5, 2, v1
              v_lshlrev_b32 v5, 6, v5
              v_and_b32 v6, 3, v0
              v_lshl_add_u32 v43, v6, 4, v5
              s_lshl_b32 s63, s60, 14
              s_add_u32 s63, s63, {WS_S}
              s_lshl_b32 s61, s58, 13
              s_add_u32 s63, s63, s61
              s_lshl_b32 s61, {sWAVE}, 10
              s_add_u32 s63, s63, s61""")
        a(f"""s_lshr_b32 s68, s66, 4
              s_add_u32 s68, s68, 1
              s_lshr_b32 s56, s66, 1
              s_and_b32 s56, s56, 7""")
        self.srd(48, sWM, 512 * 6144)
        self.dma_off_p128('v32', 6144, 'v1', 'v2')
        a(f"""s_lshl_b32 s59, s67, 8
              s_lshl_b32 s61, {sWAVE}, 5
              s_add_u32 s59, s59, s61
              s_mul_i32 s59, s59, 6144
              s_lshl_b32 s61, s68, 10
              s_add_u32 s59, s59, s61
              s_lshl_b32 s61, s56, 7
              s_add_u32 s59, s59, s61
              s_add_u32 s59, s59, 2048""")
        self.tag_ready()
        self.stamp(1)

        def kfrags():
            for T in range(4):
                for t in range(4):
                    q = F + 16 * T + 4 * t
                    a(f"ds_read_b128 v[{q}:{q+3}], v{36+t} offset:{4096*T}")
                if T == 2:
                    a("s_waitcnt lgkmcnt(6)")
        nopoll = self.lab('knp')
        join = self.lab('kj')
        a(f"""s_cmp_lt_u32 {sWAVE}, 2
              s_cbranch_scc0 {nopoll}""")

        def first():
            self.stamp(2)
            kfrags()
        self.poll('B', [self.gload(4, 'v40', 's69')], lambda ok: self.check_tags(['v6'], ok), first_extra=first, local=['s69'])
        a(f"""ds_write_b64 v41, v[4:5]
              s_branch {join}""")
        a.label(nopoll)
        a("s_waitcnt vmcnt(0)")
        self.stamp(2)
        kfrags()
        a.label(join)
        a("""s_waitcnt lgkmcnt(0)
             s_barrier""")
        self.stamp(3)
        for t in range(4):
            a(f"ds_read_b128 v[{44+4*t}:{47+4*t}], v42 offset:{64*t}")
        D = [4, 8, 12, 16]
        for t in range(4):
            a(f"s_waitcnt lgkmcnt({3-t})")
            for T in range(4):
                q = F + 16 * T + 4 * t
                c = "0" if t == 0 else f"v[{D[T]}:{D[T]+3}]"
                a(f"v_mfma_f32_16x16x32_bf16 v[{D[T]}:{D[T]+3}], v[{q}:{q+3}], v[{44+4*t}:{47+4*t}], {c}")
        self.select_tiles(D)
        a("""v_cvt_pk_bf16_f32 v8, v4, v5
             v_cvt_pk_bf16_f32 v9, v6, v7""")
        self.unpack('v4', 'v5', 'v8')
        self.unpack('v6', 'v7', 'v9')
        for r in range(4):
            a(f"v_mul_f32 v{4+r}, 0x3db504f3, v{4+r}")
        a(f"""v_cvt_pk_bf16_f32 v8, v4, v5
              v_cvt_pk_bf16_f32 v9, v6, v7
              v_mov_b32 v10, {sTAG}
              v_mov_b32 v11, 0""")
        self.st_local(8, 'v43', 's63')
        self.stamp(4)
        end = self.lab('kend')
        a("s_barrier")
        self.st_global(8, 'v43', 's63')
        a(f"""s_cmp_lt_u32 s66, 48
              s_cbranch_scc0 {end}
              s_mov_b32 m0, s62""")
        self.srd(52, sC, 4096)
        skipc = self.lab('kc')
        a(f"""s_cmp_lt_u32 {sWAVE}, 4
              s_cbranch_scc0 {skipc}
              s_lshl_b32 s61, {sWAVE}, 10
              s_lshl_b32 s69, s67, 9
              s_add_u32 s69, s69, s61
              v_lshlrev_b32 v7, 3, v0
              buffer_load_dwordx2 v[24:25], v7, {R3}, s69 offen""")
        a.label(skipc)
        self.dma_loop('v32', R2, 's59', 8 * 6144, 4)
        skips = self.lab('ks')
        a(f"""s_cmp_lt_u32 {sWAVE}, 4
              s_cbranch_scc0 {skips}
              s_waitcnt vmcnt(4)""")
        self.unpack('v8', 'v9', 'v24')
        self.unpack('v10', 'v11', 'v25')
        self.silu4(8, 12)
        a("""v_cvt_pk_bf16_f32 v8, v8, v9
             v_cvt_pk_bf16_f32 v9, v10, v11""")
        self.perm_pos_bytes('v5', 'v0', 'v6')
        a(f"""s_mul_i32 s61, {sWAVE}, 544
              s_add_u32 s61, s61, {SC2}
              v_add_u32 v5, s61, v5
              ds_write_b64 v5, v[8:9]""")
        a.label(skips)
        a(f"s_lshl_b32 s61, {sWAVE}, 5")
        self.tr_addr_p128('v33', 's61', '0', 'v1', 'v2')
        a("v_add_u32 v34, 65536, v33")
        self.act_addr('v35', SC2, 544, 'v1')
        a(f"""v_lshrrev_b32 v1, 5, v0
              v_lshlrev_b32 v36, 10, v1
              v_and_b32 v1, 3, v0
              v_lshl_add_u32 v36, v1, 5, v36
              v_bfe_u32 v1, v0, 4, 1
              v_lshl_add_u32 v36, v1, 4, v36
              s_lshl_b32 s59, s56, 13
              s_lshl_b32 s61, {sWAVE}, 11
              s_add_u32 s59, s59, s61
              s_lshl_b32 s61, s68, 8
              s_add_u32 s59, s59, s61
              s_lshl_b32 s61, s67, 7
              s_add_u32 s59, s59, s61
              s_add_u32 s59, s59, {WS_ML}""")
        self.sel_consts()
        self.tagbytes(28)
        a("""s_waitcnt vmcnt(0) lgkmcnt(0)
             s_barrier""")
        a(f"""s_cmp_lt_u32 {sWAVE}, 4
              s_cbranch_scc0 {end}""")
        for s in range(8):
            a(f"ds_read_b128 v[{96+4*s}:{99+4*s}], v35 offset:{64*s}")
        a("s_waitcnt lgkmcnt(2)")
        for s in range(8):
            va = 'v33' if s < 4 else 'v34'
            for h in range(2):
                q = F + 4 * s + 2 * h
                a(f"ds_read_b64_tr_b16 v[{q}:{q+1}], {va} offset:{16384*(s&3)+2048*h}")
            if s == 5:
                a("s_waitcnt lgkmcnt(6)")
        for s in range(8):
            a(f"s_waitcnt lgkmcnt({max(0, 14-2*s) if s >= 4 else 6})" if s >= 4 else "s_waitcnt lgkmcnt(8)" if s == 0 else "s_nop 0")
            c = "0" if s == 0 else "v[4:7]"
            a(f"v_mfma_f32_16x16x32_bf16 v[4:7], v[{F+4*s}:{F+4*s+3}], v[{96+4*s}:{99+4*s}], {c}")
        self.steal(4, 28)
        a("s_mov_b32 exec_lo, 0x000f000f")
        a("s_mov_b32 exec_hi, 0x000f000f")
        self.gstore(4, 'v36', 's59')
        a("s_mov_b64 exec, -1")
        self.stamp(5)
        a.label(end)
        self.stamps_out(16)
        a("s_endpgm")

    def role_m(self):
        a = self.a
        o = self.o
        M1W, SC, STAT = 0, 16384, 17024
        GATE, UP, DOWN, H2, GU = 32768, 65536, 98304, 131072, 135296
        F = 64
        a.label("L_ENT_M")
        self.role = 'M'
        a(f"""v_lshrrev_b32 v1, 4, v0
              v_and_b32 v3, 15, v0
              v_lshlrev_b32 v2, 1, v1
              v_xor_b32 v2, v2, v3
              v_and_b32 v4, 7, v2
              v_lshlrev_b32 v4, 4, v4
              v_lshrrev_b32 v2, 3, v2
              v_lshl_add_u32 v4, v2, 10, v4
              v_xor_b32 v5, 1024, v4
              v_mul_u32_u24 v1, 6144, v1
              v_add_u32 v32, v1, v4
              v_add_u32 v33, v1, v5
              s_lshl_b32 s59, {sJ}, 6
              s_lshl_b32 s61, {sWAVE}, 3
              s_add_u32 s59, s59, s61
              s_mul_i32 s59, s59, 6144
              s_lshl_b32 s61, {sG}, 7
              s_add_u32 s59, s59, s61
              s_lshl_b32 s61, {sWAVE}, 11
              s_mov_b32 m0, s61
              s_and_b32 s62, {sWAVE}, 3
              s_lshl_b32 s62, s62, 10
              v_lshlrev_b32 v6, 4, v0
              v_lshlrev_b32 v7, 1, v0
              s_lshl_b32 s63, {sJ}, 7
              s_add_u32 s63, s63, s62""")
        self.kwait(ws=False)
        self.srd(44, sWM, 512 * 6144)
        self.srd(48, sC, 4096)
        self.srd(52, sX, 4096)
        l4 = self.lab('m4')
        lx = self.lab('mx')
        a(f"""s_cmp_lt_u32 {sWAVE}, 4
              s_cbranch_scc0 {l4}
              buffer_load_dwordx4 v[24:27], v6, {R3}, s62 offen
              s_branch {lx}""")
        a.label(l4)
        a(f"buffer_load_ushort v24, v7, {R2}, s63 offen")
        a.label(lx)
        self.stamp(15)
        self.only_exit('M', pre=True)
        a(f"""buffer_load_dwordx4 v32, {R1}, s59 offen {self.nt()}lds
              s_add_u32 s59, s59, {4*6144}
              s_add_u32 m0, m0, 1024
              s_nop 0
              buffer_load_dwordx4 v33, {R1}, s59 offen {self.nt()}lds
              s_branch L_ROLE_M""")
        self.ent_w()
        self.ent_k()
        self.ent_v()
        a.label("L_ROLE_M")
        self.role = 'M'
        self.srd(40, sWS, WS_SIZE)
        self.only_exit('M')
        a(f"""v_bfe_u32 v1, v0, 1, 2
              v_lshlrev_b32 v1, 10, v1
              v_and_b32 v2, 1, v0
              v_lshl_add_u32 v1, v2, 3, v1
              v_lshrrev_b32 v2, 4, v0
              v_lshl_add_u32 v1, v2, 1, v1
              s_lshl_b32 s61, {sG}, 7
              s_lshl_b32 s56, {sJ}, 4
              s_add_u32 s61, s61, s56
              buffer_load_ushort v28, v1, {R3}, s61 offen""")
        if o['TOUCH']:
            lt0 = self.lab('mt0')
            a(f"""s_cmp_eq_u32 {sWAVE}, 4
                  s_cbranch_scc0 {lt0}
                  s_lshl_b32 s61, {sG}, 3
                  s_add_u32 s61, s61, {sJ}
                  s_lshl_b32 s61, s61, 12
                  s_add_u32 s61, s61, {WS_A1 + WS_LOC}
                  v_lshlrev_b32 v2, 4, v0""")
            for m in range(4):
                a(self.gload(64 + 4 * m, 'v2', 's61', 1024 * m))
            a.label(lt0)
        a(f"""v_lshrrev_b32 v1, 4, v0
              v_bfe_u32 v2, v0, 2, 2
              v_lshl_add_u32 v3, v1, 2, v2
              v_lshlrev_b32 v34, 8, v3
              v_and_b32 v3, 1, v1
              v_lshlrev_b32 v3, 3, v3
              v_lshl_add_u32 v3, v2, 1, v3
              s_lshl_b32 s61, {sWAVE}, 1
              v_xor_b32 v3, s61, v3
              v_lshl_add_u32 v34, v3, 4, v34
              v_and_b32 v3, 3, v0
              v_lshl_add_u32 v34, v3, 3, v34""")
        self.act_addr('v35', SC, 160, 'v1')
        a(f"""v_lshrrev_b32 v1, 5, v0
              v_lshlrev_b32 v36, 12, v1
              v_bfe_u32 v1, v0, 2, 1
              v_lshl_add_u32 v36, v1, 10, v36
              v_and_b32 v1, 3, v0
              v_lshl_add_u32 v36, v1, 5, v36
              v_bfe_u32 v1, v0, 4, 1
              v_lshl_add_u32 v36, v1, 4, v36
              s_lshl_b32 s60, {sG}, 15
              s_and_b32 s61, {sWAVE}, 3
              s_lshl_b32 s61, s61, 13
              s_add_u32 s60, s60, s61
              s_lshr_b32 s61, {sWAVE}, 2
              s_lshl_b32 s61, s61, 11
              s_add_u32 s60, s60, s61
              s_lshl_b32 s61, {sJ}, 7
              s_add_u32 s60, s60, s61
              s_add_u32 s60, s60, {WS_A1}""")
        lb = self.lab('mb')
        npf = 1 if o['PF'] else 0
        a(f"""s_cmp_ge_u32 {sWAVE}, 4
              s_cbranch_scc0 {lb}""")
        a("v_lshrrev_b32 v4, 2, v0")
        self.perm_pos_bytes('v5', 'v4', 'v6')
        a(f"""v_and_b32 v6, 3, v0
              v_lshl_add_u32 v5, v6, 1, v5
              s_and_b32 s61, {sWAVE}, 3
              s_mul_i32 s61, s61, 160
              s_add_u32 s61, s61, {SC}
              v_add_u32 v5, s61, v5""")
        if o['TOUCH']:
            lc3 = self.lab('mc3')
            lc7 = self.lab('mc7')
            a(f"""s_cmp_eq_u32 {sWAVE}, 4
                  s_cbranch_scc1 {lc7}
                  s_waitcnt vmcnt(3)""")
            a.label(lc7)
            a("s_waitcnt vmcnt(7)")
        else:
            a("s_waitcnt vmcnt(3)")
        a("v_lshlrev_b32 v8, 16, v24")
        self.silu1('v8', 12)
        a("""v_cvt_pk_bf16_f32 v8, v8, v8
             ds_write_b16 v5, v8""")
        a.label(lb)
        a("""s_waitcnt vmcnt(0) lgkmcnt(0)
             s_barrier""")
        self.stamp(1)
        self.frags(F, 'v34', 2, 8192, 4096)
        a(f"""ds_read_b128 v[72:75], v35
              ds_read_b128 v[76:79], v35 offset:64
              s_add_u32 {sTAG}, {sE}, {TAGC}
              s_waitcnt lgkmcnt(0)
              v_mfma_f32_16x16x32_bf16 v[4:7], v[64:67], v[72:75], 0
              v_mfma_f32_16x16x32_bf16 v[4:7], v[68:71], v[76:79], v[4:7]""")
        a(f"""s_mov_b32 exec_lo, 0x00f000f0
              s_mov_b32 exec_hi, 0x00f000f0
              v_mov_b32 v4, v6
              v_mov_b32 v5, v7
              s_mov_b32 exec_lo, 0x00ff00ff
              s_mov_b32 exec_hi, 0x00ff00ff
              v_mov_b32 v6, {sTAG}
              v_mov_b32 v7, 0""")
        self.st_local(4, 'v36', 's60')
        a("s_mov_b64 exec, -1")
        self.stamp(2)
        ls = self.lab('ms')
        lh4 = self.lab('mh4')
        lh = self.lab('mh')
        a(f"""s_cmp_eq_u32 {sWAVE}, 4
              s_cbranch_scc1 {lh4}
              s_cmp_lt_u32 {sWAVE}, 4
              s_cbranch_scc0 {ls}""")
        for k in range(4):
            self.unpack(f'v{8+2*k}', f'v{9+2*k}', f'v{24+k}')
        self.ln_stats(8, 'v20', 'v21', 'v22', 16)
        a(f"""s_lshl_b32 s61, {sWAVE}, 3
              s_add_u32 s61, s61, {STAT}
              v_mov_b32 v1, s61
              s_mov_b64 exec, 1
              ds_write_b64 v1, v[20:21]
              s_mov_b64 exec, -1
              s_waitcnt lgkmcnt(0)""")
        a.label(ls)
        a("""s_mov_b32 exec_lo, 0x00ff00ff
             s_mov_b32 exec_hi, 0x00ff00ff""")
        self.st_global(4, 'v36', 's60')
        a(f"""s_mov_b64 exec, -1
              s_barrier
              s_branch {lh}""")
        a.label(lh4)
        a("""s_mov_b32 exec_lo, 0x00ff00ff
             s_mov_b32 exec_hi, 0x00ff00ff""")
        self.st_global(4, 'v36', 's60')
        a(f"""s_mov_b64 exec, -1
              v_bfe_u32 v1, v0, 1, 2
              v_lshlrev_b32 v1, 3, v1
              v_add_u32 v1, {STAT}, v1
              v_lshlrev_b32 v28, 16, v28
              s_lshl_b32 s59, {sG}, 3
              s_add_u32 s59, s59, {sJ}
              s_lshl_b32 s57, s59, 7
              s_add_u32 s57, s57, {WS_A2}
              s_lshl_b32 s59, s59, 12
              s_add_u32 s59, s59, {WS_A1}
              v_lshlrev_b32 v2, 4, v0""")
        self.poll('A1', [self.gload(4 + 4 * m, 'v2', 's59', 1024 * m) for m in range(4)],
                  lambda ok: self.check_tags(['v6', 'v10', 'v14', 'v18'], ok), local=['s59'])
        self.stamp(3)
        a("""s_barrier
             ds_read_b64 v[20:21], v1
             v_mov_b32 v6, v8
             v_mov_b32 v7, v9
             v_mov_b32 v14, v16
             v_mov_b32 v15, v17""")
        for r in range(4):
            a(f"v_add_f32_dpp v{4+r}, v{4+r}, v{4+r} row_ror:8 row_mask:0xf bank_mask:0xf")
        for r in range(4):
            a(f"v_add_f32_dpp v{12+r}, v{12+r}, v{12+r} row_ror:8 row_mask:0xf bank_mask:0xf")
        a("""v_permlane16_swap_b32 v4, v5
             v_permlane16_swap_b32 v6, v7
             v_permlane16_swap_b32 v12, v13
             v_permlane16_swap_b32 v14, v15
             v_add_f32 v4, v4, v5
             v_add_f32 v6, v6, v7
             v_add_f32 v12, v12, v13
             v_add_f32 v14, v14, v15
             v_permlane32_swap_b32 v4, v6
             v_permlane32_swap_b32 v12, v14
             v_add_f32 v4, v4, v6
             v_add_f32 v12, v12, v14
             s_waitcnt lgkmcnt(0)
             v_rcp_f32 v22, v21
             v_cvt_pk_bf16_f32 v4, v4, v12
             v_and_b32 v12, 0xffff0000, v4
             v_lshlrev_b32 v4, 16, v4
             v_add_f32 v12, 1.0, v12""")
        self.ln_elem('v29', 'v28', 'v20', 'v21', 'v22', 'v23', 'v30')
        a(f"""v_mov_b32 v22, {sTAG}
              v_mov_b32 v23, 0""")
        self.rnd('v12', 'v12')
        a("v_mul_f32 v12, v29, v12")
        self.rnd('v12', 'v12')
        a("v_add_f32 v12, v12, v4")
        self.rows_to_quad('v20', 'v21', 'v12', 'v8')
        a("s_mov_b64 exec, 0xff")
        self.gstore(20, 'v2', 's57')
        a("s_mov_b64 exec, -1")
        self.stamp(4)
        a.label(lh)
        a(f"""s_cmp_eq_u32 {sJ}, 7
              s_cbranch_scc1 L_ROLE_GA""")
        a(f"""s_mul_i32 s66, {sG}, 7
              s_add_u32 s66, s66, {sJ}""")
        self.srd(44, sWG, 512 * 3584)
        self.srd(48, sWU, 512 * 3584)
        self.srd(52, sWD, 1792 * 1024)
        a(f"""v_lshrrev_b32 v1, 2, v0
              v_mul_u32_u24 v1, 3584, v1
              v_bfe_u32 v2, v0, 4, 1
              v_lshlrev_b32 v2, 1, v2
              v_and_b32 v3, 3, v0
              v_xor_b32 v2, v2, v3
              v_lshl_add_u32 v32, v2, 4, v1
              s_lshl_b32 s59, {sWAVE}, 6
              s_mul_i32 s59, s59, 3584
              s_lshl_b32 s61, s66, 6
              s_add_u32 s59, s59, s61
              s_mov_b32 s60, s59
              s_lshl_b32 s67, s66, 5
              s_lshl_b32 s61, {sWAVE}, 2
              s_add_u32 s67, s67, s61
              s_lshl_b32 s67, s67, 10
              s_and_b32 s62, {sWAVE}, 1
              s_lshl_b32 s62, s62, 3""")
        for n in range(4):
            a(f"""s_add_u32 s63, s62, {2*n}
                  v_xor_b32 v1, s63, v0
                  v_lshlrev_b32 v{40+n}, 4, v1""")
        a(f"""v_lshrrev_b32 v1, 4, v0
              v_bfe_u32 v2, v0, 2, 2
              v_lshl_add_u32 v3, v1, 2, v2
              v_lshlrev_b32 v33, 6, v3
              v_and_b32 v3, 1, v1
              s_and_b32 s61, {sWAVE}, 1
              v_xor_b32 v3, s61, v3
              v_lshl_add_u32 v33, v3, 5, v33
              v_and_b32 v3, 3, v0
              v_lshl_add_u32 v33, v3, 3, v33
              s_bfe_u32 s61, {sWAVE}, 0x10001
              s_lshl_b32 s61, s61, 15
              s_add_u32 s61, s61, {GATE}
              v_add_u32 v33, s61, v33""")
        a(f"""v_lshl_add_u32 v3, v1, 2, v2
              v_lshlrev_b32 v4, 10, v3
              v_and_b32 v5, 3, v0
              v_lshl_add_u32 v4, v5, 3, v4
              v_add_u32 v4, {DOWN}, v4
              v_and_b32 v3, 7, v3
              v_lshlrev_b32 v3, 1, v3
              s_lshl_b32 s61, {sWAVE}, 3
              v_xor_b32 v3, s61, v3""")
        for t in range(4):
            a(f"""v_xor_b32 v5, {2*t}, v3
                  v_lshl_add_u32 v{34+t}, v5, 4, v4""")
        self.act_addr('v38', H2, 1056, 'v1')
        self.act_addr('v39', GU, 96, 'v1')
        a(f"""v_lshlrev_b32 v44, 4, v0
              s_lshl_b32 s68, {sG}, 2
              s_add_u32 s68, s68, {sWAVE}
              s_lshl_b32 s68, s68, 12
              s_add_u32 s68, s68, {WS_D}""")
        self.perm_pos_bytes('v45', 'v0', 'v1')
        a(f"""s_mul_i32 s61, {sWAVE}, 1056
              s_add_u32 s61, s61, {H2}
              v_add_u32 v45, s61, v45""")
        a(f"""v_and_b32 v1, 3, v0
              v_mul_u32_u24 v46, 96, v1
              v_lshrrev_b32 v1, 4, v0
              v_lshl_add_u32 v46, v1, 4, v46
              s_and_b32 s61, {sWAVE}, 1
              s_lshl_b32 s61, s61, 3
              s_bfe_u32 s62, {sWAVE}, 0x10001
              s_mul_i32 s62, s62, 384
              s_add_u32 s61, s61, s62
              s_add_u32 s61, s61, {GU}
              v_add_u32 v46, s61, v46""")
        a(f"""v_bfe_u32 v1, v0, 2, 2
              v_lshlrev_b32 v1, 1, v1
              v_lshrrev_b32 v2, 5, v0
              v_add_u32 v1, v1, v2
              v_mul_u32_u24 v47, {56*128}, v1
              v_and_b32 v1, 3, v0
              v_lshl_add_u32 v47, v1, 5, v47
              v_bfe_u32 v1, v0, 4, 1
              v_lshl_add_u32 v47, v1, 4, v47
              s_mul_i32 s63, {sWAVE}, {8*56*128}
              s_lshl_b32 s61, s66, 7
              s_add_u32 s63, s63, s61
              s_add_u32 s63, s63, {WS_E}""")
        self.sel_consts()
        self.tagbytes(48)
        if o['MG1']:
            a(f"""s_barrier
                  s_lshl_b32 s61, {sWAVE}, 12
                  s_add_u32 s61, s61, {GATE}
                  s_mov_b32 m0, s61""")
            self.dma_loop('v32', R1, 's59', 16 * 3584, o['MG1'])
        if o['MTRIG']:
            lt = self.lab('mt')
            if o['MEARLY']:
                a(f"""s_lshr_b32 s61, s66, 1
                      s_and_b32 s61, s61, 3
                      s_cmp_eq_u32 s61, 3
                      s_cbranch_scc1 {lt}""")
            a(f"""s_cmp_eq_u32 {sWAVE}, 0
                  s_cbranch_scc0 {lt}
                  v_lshlrev_b32 v2, 10, v0
                  s_lshl_b32 s61, {sG}, 13
                  s_add_u32 s61, s61, {WS_B}""")
            if o['MTRIG'] == 2:
                a(f"""v_lshrrev_b32 v2, 1, v0
                      v_lshlrev_b32 v2, 17, v2
                      v_and_b32 v3, 1, v0
                      v_lshl_add_u32 v2, v3, 13, v2
                      s_lshl_b32 s61, {sG}, 14
                      s_add_u32 s61, s61, {WS_S}""")
            a("s_mov_b64 exec, 0xff")
            self.poll('T', [self.gload(4, 'v2', 's61')], lambda ok: self.check_tags(['v6'], ok), local=['s61'])
            a("s_mov_b64 exec, -1")
            a.label(lt)
        a("s_barrier")
        a(f"""s_lshl_b32 s61, {sWAVE}, 12
              s_add_u32 s61, s61, {GATE + 1024 * o['MG1']}
              s_mov_b32 m0, s61""")
        if o['MG1'] < 4:
            self.dma_loop('v32', R1, 's59', 16 * 3584, 4 - o['MG1'])
        a(f"""s_sub_u32 s61, s61, {1024 * o['MG1']}
              s_add_u32 s61, s61, {UP-GATE}
              s_mov_b32 m0, s61""")
        self.dma_loop('v32', R2, 's60', 16 * 3584, 4)
        a(f"""s_add_u32 s61, s61, {DOWN-UP}
              s_mov_b32 m0, s61
              s_nop 0""")
        for n in range(4):
            a(f"""buffer_load_dwordx4 v{40+n}, {R3}, s67 offen {self.nt()}lds
                  s_add_u32 s67, s67, 1024
                  s_add_u32 m0, m0, 1024
                  s_nop 0""")
        a("""s_waitcnt vmcnt(0)
             s_barrier""")
        self.stamp(5)
        for t in range(4):
            for h in range(2):
                q = 128 + 4 * t + 2 * h
                a(f"ds_read_b64_tr_b16 v[{q}:{q+1}], v{34+t} offset:{16384*h}")
        lw = self.lab('mw')
        a(f"""s_cmp_lt_u32 {sWAVE}, 4
              s_cbranch_scc0 {lw}
              s_waitcnt lgkmcnt(0)""")
        for s in range(16):
            for h in range(2):
                q = F + 4 * s + 2 * h
                a(f"ds_read_b64_tr_b16 v[{q}:{q+1}], v33 offset:{2048*s+1024*h}")
            if s in (6, 10):
                a("s_waitcnt lgkmcnt(6)")
        self.poll('D', [self.gload(4, 'v44', 's68'), self.gload(8, 'v44', 's68', 2048),
                        self.gload(12, 'v44', 's68', 1024), self.gload(16, 'v44', 's68', 3072)],
                  lambda ok: self.check_tags(['v7', 'v11', 'v15', 'v19'], ok), local=['s68'])
        self.stamp(6)
        X = 20
        self.unpack(f'v{X}', f'v{X+1}', 'v4')
        self.unpack(f'v{X+2}', f'v{X+3}', 'v5')
        self.unpack(f'v{X+4}', f'v{X+5}', 'v12')
        self.unpack(f'v{X+6}', f'v{X+7}', 'v13')
        if o['FASTLN']:
            self.ln2_fast(X)
        else:
            M2, SD2, RC2 = 52, 54, 56
            self.ln_stats_pivot(X, M2, SD2, RC2, 144)
            csrc = ['v6', 'v8', 'v14', 'v16']
            ssrc = ['v9', 'v10', 'v17', 'v18']
            for p in range(4):
                x = X + 2 * p
                a(f"v_pk_add_f32 v[{x}:{x+1}], v[{x}:{x+1}], v[{M2}:{M2+1}] neg_lo:[0,1] neg_hi:[0,1]")
            for p in range(4):
                self.pk_rnd(X + 2 * p, f'v{144+p}')
            for p in range(4):
                x, q = X + 2 * p, 148 + 2 * p
                a(f"v_pk_mul_f32 v[{q}:{q+1}], v[{x}:{x+1}], v[{RC2}:{RC2+1}]")
            for p in range(4):
                x, q = X + 2 * p, 148 + 2 * p
                a(f"v_pk_fma_f32 v[{x}:{x+1}], v[{q}:{q+1}], v[{SD2}:{SD2+1}], v[{x}:{x+1}] neg_lo:[1,0,0] neg_hi:[1,0,0]")
            for p in range(4):
                x, q = X + 2 * p, 148 + 2 * p
                a(f"v_pk_fma_f32 v[{x}:{x+1}], v[{x}:{x+1}], v[{RC2}:{RC2+1}], v[{q}:{q+1}]")
            for p in range(4):
                self.pk_rnd(X + 2 * p, f'v{144+p}')
            for p in range(4):
                q = 148 + 2 * p
                self.unpack(f'v{q}', f'v{q+1}', csrc[p])
            for p in range(4):
                x, q = X + 2 * p, 148 + 2 * p
                a(f"v_pk_mul_f32 v[{x}:{x+1}], v[{x}:{x+1}], v[{q}:{q+1}]")
            for p in range(4):
                q = 148 + 2 * p
                self.unpack(f'v{q}', f'v{q+1}', ssrc[p])
            for p in range(4):
                self.pk_rnd(X + 2 * p, f'v{144+p}')
            for p in range(4):
                x, q = X + 2 * p, 148 + 2 * p
                a(f"v_pk_add_f32 v[{x}:{x+1}], v[{x}:{x+1}], v[{q}:{q+1}]")
            for p in range(4):
                a(f"v_cvt_pk_bf16_f32 v{4+p}, v{X+2*p}, v{X+2*p+1}")
        a("""ds_write_b64 v45, v[4:5]
             ds_write_b64 v45, v[6:7] offset:512""")
        a.label(lw)
        a("""s_waitcnt lgkmcnt(0)
             s_barrier""")
        self.stamp(7)
        lg = self.lab('mg')
        a(f"""s_cmp_lt_u32 {sWAVE}, 4
              s_cbranch_scc0 {lg}""")
        self.gemv16(4, F, 'v38', 144)
        a("""v_cvt_pk_bf16_f32 v8, v4, v5
             v_cvt_pk_bf16_f32 v9, v6, v7
             s_mov_b32 exec_lo, 0x000f000f
             s_mov_b32 exec_hi, 0x000f000f
             ds_write_b64 v46, v[8:9]
             s_mov_b64 exec, -1""")
        a.label(lg)
        a("""s_waitcnt lgkmcnt(0)
             s_barrier
             ds_read_b128 v[4:7], v39
             ds_read_b128 v[8:11], v39 offset:384
             s_waitcnt lgkmcnt(0)""")
        for k in range(4):
            self.unpack(f'v{20+2*k}', f'v{21+2*k}', f'v{4+k}')
        for k in range(4):
            self.unpack(f'v{144+2*k}', f'v{145+2*k}', f'v{8+k}')
        for k in range(8):
            a(f"v_max_f32 v{20+k}, 0, v{20+k}")
        for k in range(4):
            a(f"v_pk_mul_f32 v[{20+2*k}:{21+2*k}], v[{20+2*k}:{21+2*k}], v[{144+2*k}:{145+2*k}]")
        for k in range(4):
            a(f"v_cvt_pk_bf16_f32 v{16+k}, v{20+2*k}, v{21+2*k}")
        D = [4, 8, 12, 20]
        for t in range(4):
            a(f"v_mfma_f32_16x16x32_bf16 v[{D[t]}:{D[t]+3}], v[{128+4*t}:{131+4*t}], v[16:19], 0")
        self.select_tiles(D)
        self.steal(4, 48)
        self.gstore(4, 'v47', 's63')
        self.stamp(8)
        self.stamps_out(16)
        a("s_endpgm")

        a.label("L_ROLE_GA")
        S = 131072
        self.srd(48, sC, 4096)
        self.dma_off_p128('v32', 6144, 'v1', 'v2')
        a(f"""s_lshl_b32 s59, {sWAVE}, 6
              s_mul_i32 s59, s59, 6144
              s_lshl_b32 s61, {sG}, 7
              s_add_u32 s59, s59, s61
              s_add_u32 s59, s59, 2048
              s_lshl_b32 s61, {sWAVE}, 13
              s_add_u32 s61, s61, {GATE}
              s_mov_b32 m0, s61
              s_barrier""")
        lc = self.lab('gc')
        a(f"""s_cmp_lt_u32 {sWAVE}, 4
              s_cbranch_scc0 {lc}
              s_lshl_b32 s61, {sWAVE}, 10
              v_lshlrev_b32 v1, 3, v0
              buffer_load_dwordx2 v[24:25], v1, {R2}, s61 offen
              buffer_load_dwordx2 v[26:27], v1, {R2}, s61 offen offset:512""")
        a.label(lc)
        self.dma_loop('v32', R1, 's59', 8 * 6144, 8)
        lc2 = self.lab('gc2')
        a(f"""s_cmp_lt_u32 {sWAVE}, 4
              s_cbranch_scc0 {lc2}
              s_waitcnt vmcnt(8)""")
        self.perm_pos_bytes('v5', 'v0', 'v6')
        a(f"""s_mul_i32 s61, {sWAVE}, 1056
              s_add_u32 s61, s61, {S}
              v_add_u32 v5, s61, v5""")
        for hf in range(2):
            self.unpack('v8', 'v9', f'v{24+2*hf}')
            self.unpack('v10', 'v11', f'v{25+2*hf}')
            self.silu4(8, 12)
            a(f"""v_cvt_pk_bf16_f32 v8, v8, v9
                  v_cvt_pk_bf16_f32 v9, v10, v11
                  ds_write_b64 v5, v[8:9] offset:{512*hf}""")
        a.label(lc2)
        a(f"s_lshl_b32 s61, {sWAVE}, 5")
        self.tr_addr_p128('v33', 's61', GATE, 'v1', 'v2')
        self.act_addr('v35', S, 1056, 'v1')
        a(f"""v_lshrrev_b32 v1, 5, v0
              v_lshlrev_b32 v36, 10, v1
              v_bfe_u32 v1, v0, 2, 1
              v_lshl_add_u32 v36, v1, 7, v36
              v_and_b32 v1, 3, v0
              v_lshl_add_u32 v36, v1, 5, v36
              v_bfe_u32 v1, v0, 4, 1
              v_lshl_add_u32 v36, v1, 4, v36
              s_lshl_b32 s59, {sG}, 13
              s_lshl_b32 s61, {sWAVE}, 11
              s_add_u32 s59, s59, s61
              s_add_u32 s59, s59, {WS_ML}""")
        self.sel_consts()
        self.tagbytes(28)
        a("""s_waitcnt vmcnt(0) lgkmcnt(0)
             s_barrier""")
        le = self.lab('ge')
        a(f"""s_cmp_lt_u32 {sWAVE}, 4
              s_cbranch_scc0 {le}""")
        for s in range(16):
            for h in range(2):
                q = F + 4 * s + 2 * h
                a(f"ds_read_b64_tr_b16 v[{q}:{q+1}], v33 offset:{4096*s+2048*h}")
            if s in (6, 13):
                a("s_waitcnt lgkmcnt(0)")
        a("s_waitcnt lgkmcnt(0)")
        self.gemv16(4, F, 'v35', 144)
        a("""s_mov_b32 exec_lo, 0x00f000f0
             s_mov_b32 exec_hi, 0x00f000f0""")
        for r in range(4):
            a(f"v_mov_b32 v{4+r}, 0")
        a("""s_mov_b32 exec_lo, 0x00ff00ff
             s_mov_b32 exec_hi, 0x00ff00ff""")
        self.steal(4, 28)
        self.gstore(4, 'v36', 's59')
        a("s_mov_b64 exec, -1")
        a.label(le)
        self.stamp(5)
        self.stamps_out(16)
        a("s_endpgm")

    def ent_w(self):
        a = self.a
        o = self.o
        a.label("L_ENT_W")
        self.role = 'W'
        a(f"s_sub_u32 s56, {sJ}, 8")
        if o.get('ISWZ'):
            a(f"s_xor_b32 s56, s56, {o['ISWZ']}")
        self.dma_off_p128('v32', 8192, 'v1', 'v2')
        a(f"""s_lshl_b32 s59, {sWAVE}, 19
              s_lshl_b32 s61, {sG}, 10
              s_add_u32 s59, s59, s61
              s_lshl_b32 s61, s56, 7
              s_add_u32 s59, s59, s61
              s_lshl_b32 s61, {sWAVE}, 13
              s_mov_b32 m0, s61""")
        self.kwait(ws=False)
        self.srd(44, sWQ, 512 * 8192)
        if o['WWAIT']:
            a("s_waitcnt lgkmcnt(0)")
        if o['WSLEEP']:
            a(f"s_sleep {o['WSLEEP']}")
        self.stamp(15)
        self.only_exit('W', pre=True)
        self.dma_loop('v32', R1, 's59', 8 * 8192, 8, win=o['WWIN'])
        a("s_branch L_ROLE_W")

    def role_w(self):
        a = self.a
        o = self.o
        WQ, WO, H, O = 0, 65536, 131072, 135296
        F = 64
        a.label("L_ROLE_W")
        self.role = 'W'
        self.srd(40, sWS, WS_SIZE)
        self.only_exit('W')
        self.w_setup1(H, O, WQ, WO)
        if o['IOX']:
            a(f"s_xor_b32 s56, s56, {o['IOX']}")
        self.srd(52, sX, 4096)
        a(f"""v_bfe_u32 v1, v0, 1, 2
              v_lshlrev_b32 v1, 10, v1
              v_and_b32 v2, 1, v0
              v_lshl_add_u32 v1, v2, 3, v1
              v_lshrrev_b32 v2, 4, v0
              v_lshl_add_u32 v1, v2, 1, v1
              s_lshl_b32 s61, s56, 7
              s_lshl_b32 s62, {sWAVE}, 4
              s_add_u32 s61, s61, s62
              buffer_load_ushort v60, v1, {R3}, s61 offen""")
        self.srd(44, sWO, 4096 * 1024)
        self.dma_off_p128('v32', 1024, 'v1', 'v2')
        a(f"""s_lshl_b32 s59, {sG}, 9
              s_lshl_b32 s61, {sWAVE}, 6
              s_add_u32 s59, s59, s61
              s_lshl_b32 s59, s59, 10
              s_lshl_b32 s61, s56, 7
              s_add_u32 s59, s59, s61
              s_lshl_b32 s67, {sWAVE}, 13
              s_add_u32 s67, s67, {WO}""")
        if o['WO1']:
            a("s_mov_b32 m0, s67")
            self.dma_loop('v32', R1, 's59', 8 * 1024, o['WO1'])
            a(f"s_add_u32 s67, s67, {1024 * o['WO1']}")
        a("s_mov_b32 s89, 8")
        if o['WO3']:
            l3 = self.lab('wo3')
            a(f"""s_cmp_eq_u32 s56, 3
                  s_cbranch_scc0 {l3}
                  s_mov_b32 m0, s67""")
            self.dma_loop('v32', R1, 's59', 8 * 1024, o['WO3'])
            a(f"""s_add_u32 s67, s67, {1024 * o['WO3']}
                  s_mov_b32 s89, {8 - o['WO3']}""")
            a.label(l3)
        self.tag_ready()
        self.stamp(1)
        lw1 = self.lab('w1')

        def first():
            self.stamp(2)
            a("s_barrier")
            a(f"""s_cmp_lt_u32 {sWAVE}, 4
                  s_cbranch_scc0 {lw1}""")
            for s in range(16):
                for h in range(2):
                    q = F + 4 * s + 2 * h
                    a(f"ds_read_b64_tr_b16 v[{q}:{q+1}], v36 offset:{4096*s+2048*h}")
                if s in (6, 10):
                    a("s_waitcnt lgkmcnt(6)")
            a.label(lw1)
        if o['PIPE_A2']:
            okA = self.lab('a2first')
            a(self.gload(4, 'v33', 's58'))
            a("s_waitcnt vmcnt(0)")
            first()
            self.check_tags(['v6'], okA)
            NS = o['PIPE_A2']

            def takeA(k):
                a(f"""v_mov_b32 v4, v{192+4*k}
                      v_mov_b32 v5, v{193+4*k}""")
            self.poll_pipe('A2', NS, lambda k: [self.gload(192 + 4 * k, 'v33', 's58')],
                           lambda k, ok: self.check_tags([f'v{194+4*k}'], ok), takeA, o['SLP_A2'])
            a.label(okA)
        else:
            self.poll('A2', [self.gload(4, 'v33', 's58')],
                      lambda ok: self.check_tags(['v6'], ok), first_extra=first)
        a("""ds_write_b64 v34, v[4:5]
             s_waitcnt lgkmcnt(0)
             s_barrier""")
        self.stamp(3)
        lq = self.lab('wqskip')
        a(f"""s_mov_b32 m0, s67
              s_cmp_lt_u32 {sWAVE}, 4
              s_cbranch_scc0 {lq}""")
        self.gemv16(4, F, 'v38', 128)
        a(f"""v_cvt_pk_bf16_f32 v8, v4, v5
              v_cvt_pk_bf16_f32 v9, v6, v7
              v_mov_b32 v10, {sTAG}
              v_mov_b32 v11, 0
              s_mov_b32 exec_lo, 0x000f000f
              s_mov_b32 exec_hi, 0x000f000f""")
        self.st_local(8, 'v40', 's57')
        a("s_mov_b64 exec, -1")
        a.label(lq)
        a("s_barrier")
        self.stamp(4)
        lq3 = self.lab('wq3')
        a(f"""s_cmp_lt_u32 {sWAVE}, 4
              s_cbranch_scc0 {lq3}
              s_mov_b32 exec_lo, 0x000f000f
              s_mov_b32 exec_hi, 0x000f000f""")
        self.st_global(8, 'v40', 's57')
        a("s_mov_b64 exec, -1")
        a.label(lq3)
        if o['WO3']:
            self.dma_loop('v32', R1, 's59', 8 * 1024, 's89')
        elif o['WO1'] < 8:
            self.dma_loop('v32', R1, 's59', 8 * 1024, 8 - o['WO1'])
        a(f"""s_lshl_b32 s58, {sG}, 13
              s_add_u32 s58, s58, {WS_C}
              v_lshrrev_b32 v1, 5, v0
              v_lshlrev_b32 v41, 10, v1
              v_and_b32 v1, 3, v0
              v_lshl_add_u32 v41, v1, 5, v41
              v_bfe_u32 v1, v0, 4, 1
              v_lshl_add_u32 v41, v1, 4, v41
              s_lshl_b32 s57, s56, 13
              s_lshl_b32 s61, {sWAVE}, 11
              s_add_u32 s57, s57, s61
              s_lshl_b32 s61, {sG}, 7
              s_add_u32 s57, s57, s61
              s_add_u32 s57, s57, {WS_C2}
              v_lshlrev_b32 v42, 4, v0
              s_lshl_b32 s62, s56, 3
              s_add_u32 s62, s62, {sWAVE}
              s_lshl_b32 s62, s62, 10
              s_add_u32 s63, s62, {WS_ML}
              s_add_u32 s62, s62, {WS_C2}
              ; D publish: ((g*4 + b)*2 + u)*2048 + Q*16, Q = 16i + 2w + q
              v_bfe_u32 v1, v0, 1, 2
              v_lshlrev_b32 v43, 12, v1
              v_and_b32 v1, 1, v0
              v_lshl_add_u32 v43, v1, 4, v43
              s_lshl_b32 s66, {sG}, 14
              s_lshl_b32 s61, s56, 8
              s_add_u32 s66, s66, s61
              s_lshl_b32 s61, {sWAVE}, 5
              s_add_u32 s66, s66, s61
              s_add_u32 s66, s66, {WS_D}
              v_bfe_u32 v1, v0, 1, 2
              v_lshlrev_b32 v61, 10, v1
              v_and_b32 v2, 1, v0
              v_lshl_add_u32 v61, v2, 3, v61
              v_lshrrev_b32 v2, 4, v0
              v_lshl_add_u32 v61, v2, 1, v61
              s_lshl_b32 s68, s56, 7
              s_lshl_b32 s61, {sG}, 4
              s_add_u32 s68, s68, s61
              s_lshl_b32 s69, s56, 3
              s_add_u32 s69, s69, {sG}
              s_mul_i32 s69, s69, {56*128}
              s_add_u32 s69, s69, {WS_E}""")
        if o['TOUCH']:
            a(self.gload(4, 'v42', 's62'))
            a(self.gload(8, 'v42', 's63'))
            lt1 = self.lab('wt1')
            a(f"""s_cmp_eq_u32 {sWAVE}, {sG}
                  s_cbranch_scc0 {lt1}
                  s_add_u32 s61, s69, 4096""")
            for m in range(7):
                a(self.gload(64 + 4 * m, 'v42', 's69' if m < 4 else 's61', 1024 * (m & 3)))
            a.label(lt1)
        self.srd(48, sOUT, 4096)
        self.sel_consts()
        self.tagbytes(48)
        a("v_lshlrev_b32 v60, 16, v60")
        lw2 = self.lab('w2')

        def first2():
            self.stamp(5)
            a("s_barrier")
            a(f"""s_cmp_lt_u32 {sWAVE}, 4
                  s_cbranch_scc0 {lw2}""")
            for s in range(16):
                for h in range(2):
                    q = F + 4 * s + 2 * h
                    a(f"ds_read_b64_tr_b16 v[{q}:{q+1}], v37 offset:{4096*s+2048*h}")
                if s in (6, 10):
                    a("s_waitcnt lgkmcnt(6)")
            a.label(lw2)
        self.poll('C', [self.gload(4, 'v33', 's58')], lambda ok: self.check_tags(['v6'], ok), first_extra=first2, local=['s58'])
        a("""ds_write_b64 v35, v[4:5]
             s_waitcnt lgkmcnt(0)
             s_barrier""")
        self.stamp(6)
        lo = self.lab('wo')
        a(f"""s_cmp_lt_u32 {sWAVE}, 4
              s_cbranch_scc0 {lo}""")
        self.gemv16(4, F, 'v39', 128)
        self.steal(4, 48)
        a("""s_mov_b32 exec_lo, 0x000f000f
             s_mov_b32 exec_hi, 0x000f000f""")
        self.gstore(4, 'v41', 's57')
        a("s_mov_b64 exec, -1")
        a.label(lo)
        self.stamp(7)

        def stolen_check(q):
            def chk(ok):
                self.stolen_tag(q, 'v12', 'v13')
                self.check_tags(['v12'], ok)
            return chk
        self.poll('ML', [self.gload(4, 'v42', 's63')] + ([self.gload(28, 'v42', 's62')] if o['MLTOUCH'] else []), stolen_check(4))
        if o['C2EARLY']:
            a(self.gload(24, 'v42', 's62'))
        for r in range(4):
            a(f"v_and_b32 v{4+r}, 0xffffff00, v{4+r}")
        for r in range(4):
            a(f"v_add_f32_dpp v{4+r}, v{4+r}, v{4+r} row_ror:8 row_mask:0xf bank_mask:0xf")
        self.pk_rnd(4, 'v12')
        self.pk_rnd(6, 'v13')
        a("""s_mov_b32 exec_lo, 0
             s_mov_b32 exec_hi, 0x0000ffff""")
        for r in range(4):
            a(f"v_add_f32 v{4+r}, 1.0, v{4+r}")
        self.pk_rnd(4, 'v12')
        self.pk_rnd(6, 'v13')
        a("s_mov_b64 exec, -1")
        a("""v_cvt_pk_bf16_f32 v8, v4, v5
             v_cvt_pk_bf16_f32 v9, v6, v7
             v_mov_b32 v16, 0
             v_mov_b32 v17, 0
             v_mov_b32 v18, 0
             v_mov_b32 v19, 0
             v_mov_b32 v10, v8
             v_mov_b32 v11, v9
             v_mov_b32 v14, v8
             v_mov_b32 v15, v9
             v_permlane32_swap_b32 v10, v16
             v_permlane32_swap_b32 v11, v17
             v_permlane16_swap_b32 v14, v18
             v_permlane16_swap_b32 v15, v19""")
        a(f"""v_mov_b32 v58, v16
              v_mov_b32 v20, v17
              v_mov_b32 v21, v18
              v_mov_b32 v22, v19
              v_mov_b32 v23, {sTAG}
              s_mov_b64 exec, 0xff""")
        self.gstore(20, 'v43', 's66', 2048, local=True)
        a("s_mov_b64 exec, -1")
        a("""v_permlane16_swap_b32 v4, v5
             v_permlane16_swap_b32 v6, v7
             v_permlane32_swap_b32 v4, v6
             v_permlane32_swap_b32 v5, v7
             v_mov_b32 v56, v4
             v_mov_b32 v57, v7""")
        self.stamp(8)
        okc = self.lab('c2first')
        lc2 = self.lab('c2got')
        if o['C2EARLY']:
            a(f"s_waitcnt vmcnt({2 if (o['LOCAL'] and not o.get('NOGLOBAL')) else 1})")
            self.stolen_tag(24, 'v12', 'v13')
            self.check_tags(['v12'], okc)
        self.poll('C2', [self.gload(4, 'v42', 's62')], stolen_check(4))
        a(f"s_branch {lc2}")
        a.label(okc)
        for r in range(4):
            a(f"v_mov_b32 v{4+r}, v{24+r}")
        a.label(lc2)
        self.stamp(9)
        for r in range(4):
            a(f"v_and_b32 v{4+r}, 0xffffff00, v{4+r}")
        self.red_rows(4)
        self.rnd('v4', 'v4')
        a("v_mul_f32 v4, v56, v4")
        self.rnd('v4', 'v4')
        a("v_add_f32 v4, v60, v4")
        self.rnd('v59', 'v4')
        a(f"""v_mov_b32 v10, v58
              v_mov_b32 v11, {sTAG}""")
        self.rows_to_quad('v8', 'v9', 'v59', 'v12')
        a("s_mov_b64 exec, 0xff")
        self.st_local(8, 'v43', 's66')
        self.stamp(10)
        a("s_barrier")
        self.st_global(8, 'v43', 's66')
        a("s_mov_b64 exec, -1")
        end = self.lab('wend')
        a(f"""s_cmp_eq_u32 {sWAVE}, {sG}
              s_cbranch_scc0 {end}
              s_add_u32 s61, s69, 4096""")
        loads = []
        for m in range(7):
            if m < 4:
                loads.append(self.gload(64 + 4 * m, 'v42', 's69', 1024 * m))
            else:
                loads.append(self.gload(64 + 4 * m, 'v42', 's61', 1024 * (m - 4)))

        def echk(ok):
            for m in range(7):
                self.stolen_tag(64 + 4 * m, f'v{12+m}', 'v20')
            self.check_tags([f'v{12+m}' for m in range(7)], ok)
        if o['PIPE_E']:
            def loadE(k):
                b = 64 + 28 * k
                return [self.gload(b + 4 * m, 'v42', 's69' if m < 4 else 's61', 1024 * (m & 3)) for m in range(7)]

            def chkE(k, ok):
                b = 64 + 28 * k
                for m in range(7):
                    self.stolen_tag(b + 4 * m, f'v{12+m}', 'v20')
                self.check_tags([f'v{12+m}' for m in range(7)], ok)

            def takeE(k):
                for r in range(28):
                    a(f"v_and_b32 v{160+r}, 0xffffff00, v{64+28*k+r}")
            self.poll_pipe('E', o['PIPE_E'], loadE, chkE, takeE, o['SLP_E'])
            EB = 160
        else:
            self.poll('E', loads, echk)
            EB = 64
            for m in range(7):
                for r in range(4):
                    a(f"v_and_b32 v{64+4*m+r}, 0xffffff00, v{64+4*m+r}")
        self.stamp(11)
        def pk(d, s_):
            a(f"v_pk_add_f32 v[{d}:{d+1}], v[{d}:{d+1}], v[{s_}:{s_+1}]")
        for d, s_ in ((0, 4), (8, 12), (16, 20), (0, 8), (16, 24), (0, 16)):
            pk(EB + d, EB + s_)
            pk(EB + d + 2, EB + s_ + 2)
        self.red_rows(EB)
        e = f"v{EB}"
        self.rnd(e, e)
        a(f"v_mul_f32 {e}, v57, {e}")
        self.rnd(e, e)
        a(f"""v_add_f32 {e}, v59, {e}
              v_cvt_pk_bf16_f32 {e}, {e}, {e}
              s_mov_b32 exec_lo, 0x00ff00ff
              s_mov_b32 exec_hi, 0x00ff00ff
              buffer_store_short {e}, v61, {R2}, s68 offen
              s_mov_b64 exec, -1""")
        noep = self.lab('noep')
        a(f"""s_cmp_eq_u32 s2, 64
              s_cbranch_scc0 {noep}
              v_mov_b32 v1, 0
              v_mov_b32 v2, {sTAG}
              s_mov_b64 exec, 1
              buffer_store_dword v2, v1, {WSR}, 0 offen offset:{WS_EPOCH}
              s_mov_b64 exec, -1""")
        a.label(noep)
        self.stamp(12)
        a.label(end)
        self.stamps_out(16)
        a("s_endpgm")

    def w_setup1(self, H, O, WQ, WO):
        a = self.a
        a(f"""s_lshl_b32 s61, {sWAVE}, 6
              v_add_u32 v1, s61, v0
              v_lshlrev_b32 v33, 4, v1
              v_lshrrev_b32 v2, 3, v1
              v_lshlrev_b32 v2, 1, v2
              v_and_b32 v3, 1, v1
              v_add_u32 v2, v2, v3""")
        self.perm_pos_bytes('v34', 'v2', 'v3')
        a(f"""v_bfe_u32 v3, v1, 1, 2
              v_mul_u32_u24 v3, 1056, v3
              v_add_u32 v34, v34, v3
              v_add_u32 v34, {H}, v34""")
        a(f"""v_bfe_u32 v2, v1, 4, 2
              v_lshlrev_b32 v2, 5, v2
              v_bfe_u32 v3, v1, 6, 1
              v_lshl_add_u32 v2, v3, 4, v2
              v_and_b32 v3, 15, v1
              v_add_u32 v2, v2, v3""")
        self.perm_pos_bytes('v35', 'v2', 'v3')
        a(f"""v_lshrrev_b32 v3, 7, v1
              v_mul_u32_u24 v3, 1056, v3
              v_add_u32 v35, v35, v3
              v_add_u32 v35, {O}, v35""")
        a(f"""s_and_b32 s61, {sWAVE}, 3
              s_lshl_b32 s61, s61, 5""")
        self.tr_addr_p128('v36', 's61', WQ, 'v1', 'v2')
        a(f"v_add_u32 v37, {WO-WQ}, v36")
        self.act_addr('v38', H, 1056, 'v1')
        a(f"v_add_u32 v39, {O-H}, v38")
        a(f"""v_and_b32 v1, 3, v0
              v_lshlrev_b32 v40, 6, v1
              v_lshrrev_b32 v1, 4, v0
              v_lshl_add_u32 v40, v1, 4, v40
              s_lshl_b32 s57, {sG}, 3
              s_add_u32 s57, s57, s56
              s_lshl_b32 s57, s57, 2
              s_add_u32 s57, s57, {sWAVE}
              s_lshl_b32 s57, s57, 8
              s_add_u32 s57, s57, {WS_B}
              s_mov_b32 s58, {WS_A2}""")

    def build(self):
        self.prologue()
        self.role_m()
        self.role_w()
        self.role_k()
        self.role_v()
        self.a.label("L_END")
        self.a("s_endpgm")
        body = self.a.finalize()
        vg = 256 if self.o['PROF'] else 208
        hdr = HEADER.format(lds=LDS_BYTES)
        return hdr + f""".amdgcn_target "amdgcn-amd-amdhsa--gfx950"
.text
.globl {NAME}
.p2align 8
.type {NAME},@function
{NAME}:
{body}.section .rodata,"a"
.p2align 6
.amdhsa_kernel {NAME}
  .amdhsa_next_free_vgpr {vg}
  .amdhsa_next_free_sgpr 102
  .amdhsa_accum_offset {vg}
  .amdhsa_group_segment_fixed_size 0
  .amdhsa_kernarg_size 112
  .amdhsa_user_sgpr_count 2
  .amdhsa_user_sgpr_kernarg_segment_ptr 1
  .amdhsa_system_sgpr_workgroup_id_x 1
.end_amdhsa_kernel
"""


if __name__ == '__main__':
    opt = {}
    out = None
    for arg in sys.argv[1:]:
        if '=' in arg:
            k, v = arg.split('=', 1)
            opt[k] = int(v) if v.lstrip('-').isdigit() else v
        else:
            out = arg
    g = Gen6(opt)
    txt = g.build()
    if out:
        open(out, 'w').write(txt)
    else:
        sys.stdout.write(txt)
    sys.stderr.write(f"instructions: {g.a.count()}\n")
```

```python
import sys, os
sys.path.insert(0, os.path.dirname(os.path.abspath(__file__)))
import gen as G1
from gen import *
WS_X = 0x800

OPT2 = dict(WWAIT=0, KWAIT=1, VWAIT=1, MTRIG=1, GTRIG=0, PF=1, KSLEEP=0, VSLEEP=0, WSLEEP=0, TOUCH=1, KWIN=4, VWIN=1, WWIN=0, BARDMA=1, VN1=3, WO1=0, MG1=0, IOX=4, WO3=2, VN1ODD=2, PIPE_A2=0, SLP_A2=4, PIPE_C2=0, SLP_C2=2, PIPE_E=3, SLP_E=1, MLTOUCH=0, C2EARLY=1, FASTV=1, FASTLN=1, MEARLY=1, MWIN=0, MSLEEP=0, XFLAG=1)


class Gen6(Gen):
    def __init__(self, opt):
        o = dict(OPT2)
        o.update(opt)
        super().__init__(o)

    def kwait(self, ws=True):
        a = self.a
        a("s_waitcnt lgkmcnt(0)")
        if self.o['PROF']:
            a("s_mov_b32 s70, s96")
            for k in range(1, 16):
                a(f"s_mov_b32 s{70+k}, 0")
            a(f"""s_cmp_eq_u32 {sWAVE}, 0
                  s_cselect_b32 s99, 1, 0
                  s_cmp_eq_u32 {sWAVE}, 7
                  s_cselect_b32 s99, 1, s99""")
            if self.role == 'M':
                a(f"""s_cmp_eq_u32 {sWAVE}, 4
                      s_cselect_b32 s99, 1, s99""")
            if self.role == 'W':
                a(f"""s_cmp_eq_u32 {sWAVE}, {sG}
                      s_cselect_b32 s99, 1, s99""")
            self.stamp(14)
        a(f"s_load_dword {sE}, s[{sWS}:{sWS+1}], {WS_EPOCH}")
        if ws:
            self.srd(40, sWS, WS_SIZE)

    def code_prefetch(self):
        if not self.o['PF']:
            return
        a = self.a
        l = self.lab('pf')
        lp = self.lab('pc')
        a(f"""s_cmp_eq_u32 {sWAVE}, 7
              s_cbranch_scc0 {l}
              s_getpc_b64 s[86:87]""")
        a.label(lp)
        a(f"""s_lshl_b32 s88, {sJ}, 10
              s_sub_u32 s86, s86, {lp}-L_START
              s_subb_u32 s87, s87, 0
              v_lshl_add_u32 v204, v0, 4, s88
              v_min_u32 v204, (L_END-L_START-16)&0xfffffff0, v204
              v_mov_b32 v207, s87
              v_add_co_u32 v206, vcc, s86, v204
              v_addc_co_u32 v207, vcc, 0, v207, vcc
              global_load_dwordx4 v[200:203], v[206:207], off""")
        a.label(l)

    def st_local(self, q, voff, soff, imm=0):
        i = f" offset:{imm}" if imm else ""
        if self.o['LOCAL']:
            self.a(f"""s_or_b32 s39, {soff}, {WS_LOC}
                       buffer_store_dwordx4 v[{q}:{q+3}], {voff}, {WSR}, s39 offen{i}""")
        else:
            self.a(f"buffer_store_dwordx4 v[{q}:{q+3}], {voff}, {WSR}, {soff} offen{i} {self.o['ST']}")

    def st_global(self, q, voff, soff, imm=0, flag=False):
        i = f" offset:{imm}" if imm else ""
        if self.o['LOCAL'] and not self.o.get('NOGLOBAL'):
            l = None
            if flag and self.o['XFLAG']:
                l = self.lab('sg')
                self.a(f"""s_cmp_eq_u32 s90, 1
                           s_cbranch_scc1 {l}""")
            self.a(f"buffer_store_dwordx4 v[{q}:{q+3}], {voff}, {WSR}, {soff} offen{i} {self.o['ST']}")
            if l:
                self.a.label(l)

    def x_publish(self, build_ws):
        if not (self.o['XFLAG'] and self.o['LOCAL']):
            return
        a = self.a
        l = self.lab('xp')
        a(f"""s_cmp_eq_u32 {sWAVE}, 0
              s_cbranch_scc0 {l}""")
        if build_ws:
            self.srd(40, sWS, WS_SIZE)
        a(f"""s_getreg_b32 s39, hwreg(HW_REG_XCC_ID, 0, 4)
              s_add_u32 s39, s39, {sE}
              s_add_u32 s39, s39, {TAGC}
              v_mov_b32 v209, s39
              s_lshl_b32 s39, {sG}, 5
              s_add_u32 s39, s39, {sJ}
              s_lshl_b32 s39, s39, 2
              v_mov_b32 v208, s39
              s_mov_b64 exec, 1
              buffer_store_dword v209, v208, {WSR}, 0 offen offset:{WS_X} {self.o['ST']}
              s_mov_b64 exec, -1""")
        a.label(l)

    def x_load(self):
        if not (self.o['XFLAG'] and self.o['LOCAL']):
            return
        self.a(f"""v_and_b32 v211, 31, v0
                   v_lshlrev_b32 v211, 2, v211
                   s_lshl_b32 s90, {sG}, 7
                   buffer_load_dword v210, v211, {WSR}, s90 offen offset:{WS_X} sc1""")

    def x_flag(self):
        if not (self.o['XFLAG'] and self.o['LOCAL']):
            return
        self.a(f"""s_getreg_b32 s39, hwreg(HW_REG_XCC_ID, 0, 4)
                   s_add_u32 s39, s39, {sTAG}
                   v_cmp_ne_u32 vcc, s39, v210
                   s_cmp_eq_u64 vcc, 0
                   s_cselect_b32 s90, 1, 0""")

    def poll_pipe(self, name, nsets, load, check, take, sleep):
        a = self.a
        per = len(load(0))
        oks = [self.lab(name + f'ok{k}_') for k in range(nsets)]
        done = self.lab(name + 'done')
        lp = self.lab(name)
        for k in range(nsets - 1):
            for l in load(k):
                a(l)
            if sleep:
                a(f"s_sleep {sleep}")
        a(f"s_mov_b32 {sCNT}, {self.o['LIMIT'] // nsets}")
        a.label(lp)
        for k in range(nsets):
            kn = (k + nsets - 1) % nsets
            for l in load(kn):
                a(l)
            a(f"s_waitcnt vmcnt({per * (nsets - 1)})")
            check(k, oks[k])
            if sleep:
                a(f"s_sleep {sleep}")
        a(f"""s_sub_u32 {sCNT}, {sCNT}, 1
              s_cbranch_scc0 {lp}
              s_branch {oks[0]}""")
        for k in range(nsets - 1, -1, -1):
            a.label(oks[k])
            take(k)
            if k:
                a(f"s_branch {done}")
        a.label(done)

    def silu1(self, x, t):
        a = self.a
        e, r, q, u = [f"v{t+i}" for i in range(4)]
        a(f"""s_mov_b32 s94, 0xbfb8aa3b
              s_mov_b32 s95, 0xb2a57060
              v_mul_f32 {e}, 0xbfb8aa3b, {x}
              v_fma_f32 {r}, {x}, s94, -{e}
              v_fma_f32 {r}, {x}, s95, {r}
              v_exp_f32 {e}, {e}
              v_mul_f32 {r}, 0x3f317218, {r}
              v_add_f32 {r}, 1.0, {r}
              v_mul_f32 {e}, {e}, {r}
              v_add_f32 {e}, 1.0, {e}
              v_rcp_f32 {r}, {e}
              v_cmp_eq_f32 vcc, 0x7f800000, {e}
              v_mul_f32 {q}, {x}, {r}
              v_fma_f32 {u}, -{q}, {e}, {x}
              v_fma_f32 {u}, {u}, {r}, {q}
              v_cndmask_b32 {x}, {u}, {q}, vcc""")

    def wave_sum2(self, v, w, t, u):
        a = self.a
        for pat in ("quad_perm:[1,0,3,2]", "quad_perm:[2,3,0,1]", "row_half_mirror", "row_mirror"):
            a(f"v_add_f32_dpp {v}, {v}, {v} {pat} row_mask:0xf bank_mask:0xf")
            a(f"v_add_f32_dpp {w}, {w}, {w} {pat} row_mask:0xf bank_mask:0xf")
        a(f"""v_mov_b32 {t}, {v}
              v_mov_b32 {u}, {w}
              v_permlane16_swap_b32 {v}, {t}
              v_permlane16_swap_b32 {w}, {u}
              v_add_f32 {v}, {v}, {t}
              v_add_f32 {w}, {w}, {u}
              v_mov_b32 {t}, {v}
              v_mov_b32 {u}, {w}
              v_permlane32_swap_b32 {v}, {t}
              v_permlane32_swap_b32 {w}, {u}
              v_add_f32 {v}, {v}, {t}
              v_add_f32 {w}, {w}, {u}""")

    def ln_stats_pivot(self, x, M2, SD2, RC2, t):
        a = self.a
        t0, t1, t2, t3 = [f"v{t+i}" for i in range(4)]
        a(f"v_readfirstlane_b32 s39, v{x}")
        D = t + 4
        for k in range(8):
            a(f"v_subrev_f32 v{D+k}, s39, v{x+k}")
        a(f"""v_add_f32 {t0}, v{D}, v{D+1}
              v_mul_f32 {t1}, v{D}, v{D}
              v_add_f32 {t2}, v{D+2}, v{D+3}
              v_mul_f32 {t3}, v{D+1}, v{D+1}
              v_add_f32 {t0}, {t0}, {t2}
              v_fmac_f32 {t1}, v{D+2}, v{D+2}
              v_add_f32 {t2}, v{D+4}, v{D+5}
              v_fmac_f32 {t3}, v{D+3}, v{D+3}
              v_add_f32 {t0}, {t0}, {t2}
              v_fmac_f32 {t1}, v{D+4}, v{D+4}
              v_add_f32 {t2}, v{D+6}, v{D+7}
              v_fmac_f32 {t3}, v{D+5}, v{D+5}
              v_add_f32 {t0}, {t0}, {t2}
              v_fmac_f32 {t1}, v{D+6}, v{D+6}
              v_fmac_f32 {t3}, v{D+7}, v{D+7}
              v_add_f32 {t1}, {t1}, {t3}""")
        self.wave_sum2(t0, t1, t2, t3)
        a(f"""v_mul_f32 {t0}, 0x3b000000, {t0}
              v_mul_f32 {t1}, 0x3b000000, {t1}
              v_fma_f32 {t1}, -{t0}, {t0}, {t1}
              v_add_f32 {t0}, s39, {t0}
              v_max_f32 {t1}, 0, {t1}
              v_cvt_pk_bf16_f32 {t1}, {t0}, {t1}
              v_lshlrev_b32 v{M2}, 16, {t1}
              v_and_b32 {t1}, 0xffff0000, {t1}
              v_add_f32 {t1}, 0x3727c5ac, {t1}
              v_mov_b32 v{M2+1}, v{M2}""")
        self.rnd(t1, t1)
        a(f"v_sqrt_f32 {t1}, {t1}")
        self.rnd(f"v{SD2}", t1)
        a(f"""v_rcp_f32 v{RC2}, v{SD2}
              v_mov_b32 v{SD2+1}, v{SD2}
              v_mov_b32 v{RC2+1}, v{RC2}""")

    def ln2_fast(self, X):
        a = self.a
        t = 144
        t0, t1, t2, t3 = [f"v{t+i}" for i in range(4)]
        D = t + 4
        a(f"v_readfirstlane_b32 s39, v{X}")
        csrc = ['v6', 'v8', 'v14', 'v16']
        ssrc = ['v9', 'v10', 'v17', 'v18']
        C, S = 156, 164
        for p in range(4):
            self.unpack(f'v{C+2*p}', f'v{C+2*p+1}', csrc[p])
        for k in range(8):
            a(f"v_subrev_f32 v{D+k}, s39, v{X+k}")
        a(f"""v_add_f32 {t0}, v{D}, v{D+1}
              v_mul_f32 {t1}, v{D}, v{D}
              v_add_f32 {t2}, v{D+2}, v{D+3}
              v_mul_f32 {t3}, v{D+1}, v{D+1}
              v_add_f32 {t0}, {t0}, {t2}
              v_fmac_f32 {t1}, v{D+2}, v{D+2}
              v_add_f32 {t2}, v{D+4}, v{D+5}
              v_fmac_f32 {t3}, v{D+3}, v{D+3}
              v_add_f32 {t0}, {t0}, {t2}
              v_fmac_f32 {t1}, v{D+4}, v{D+4}
              v_add_f32 {t2}, v{D+6}, v{D+7}
              v_fmac_f32 {t3}, v{D+5}, v{D+5}
              v_add_f32 {t0}, {t0}, {t2}
              v_fmac_f32 {t1}, v{D+6}, v{D+6}
              v_fmac_f32 {t3}, v{D+7}, v{D+7}
              v_add_f32 {t1}, {t1}, {t3}""")
        fill = []
        for p in range(4):
            fill += [f"v_lshlrev_b32 v{S+2*p}, 16, {ssrc[p]}", f"v_and_b32 v{S+2*p+1}, 0xffff0000, {ssrc[p]}"]
        for pat in ("quad_perm:[1,0,3,2]", "quad_perm:[2,3,0,1]", "row_half_mirror", "row_mirror"):
            a(f"v_add_f32_dpp {t0}, {t0}, {t0} {pat} row_mask:0xf bank_mask:0xf")
            a(f"v_add_f32_dpp {t1}, {t1}, {t1} {pat} row_mask:0xf bank_mask:0xf")
            a(fill.pop(0))
        a(f"""v_mov_b32 {t2}, {t0}
              v_mov_b32 {t3}, {t1}""")
        a(fill.pop(0))
        a(f"""v_permlane16_swap_b32 {t0}, {t2}
              v_permlane16_swap_b32 {t1}, {t3}
              v_add_f32 {t0}, {t0}, {t2}
              v_add_f32 {t1}, {t1}, {t3}
              v_mov_b32 {t2}, {t0}
              v_mov_b32 {t3}, {t1}""")
        a(fill.pop(0))
        a(f"""v_permlane32_swap_b32 {t0}, {t2}
              v_permlane32_swap_b32 {t1}, {t3}
              v_add_f32 {t0}, {t0}, {t2}
              v_add_f32 {t1}, {t1}, {t3}""")
        while fill:
            a(fill.pop(0))
        a(f"""v_mul_f32 v52, 0x3b000000, {t0}
              v_mul_f32 {t1}, 0x3b000000, {t1}
              v_fma_f32 {t1}, -v52, v52, {t1}
              v_mov_b32 v53, v52
              v_max_f32 {t1}, 0, {t1}
              v_add_f32 {t1}, 0x3727c5ac, {t1}
              v_rsq_f32 v54, {t1}""")
        for p in range(4):
            d = D + 2 * p
            a(f"v_pk_add_f32 v[{d}:{d+1}], v[{d}:{d+1}], v[52:53] neg_lo:[0,1] neg_hi:[0,1]")
        a("v_mov_b32 v55, v54")
        for p in range(4):
            c = C + 2 * p
            a(f"v_pk_mul_f32 v[{c}:{c+1}], v[{c}:{c+1}], v[54:55]")
        for p in range(4):
            d, c, q = D + 2 * p, C + 2 * p, S + 2 * p
            a(f"v_pk_fma_f32 v[{d}:{d+1}], v[{d}:{d+1}], v[{c}:{c+1}], v[{q}:{q+1}]")
        for p in range(4):
            a(f"v_cvt_pk_bf16_f32 v{4+p}, v{D+2*p}, v{D+2*p+1}")

    def pk_rnd(self, p, t):
        self.a(f"""v_cvt_pk_bf16_f32 {t}, v{p}, v{p+1}
                   v_lshlrev_b32 v{p}, 16, {t}
                   v_and_b32 v{p+1}, 0xffff0000, {t}""")

    def prologue(self):
        a = self.a
        a.label("L_START")
        a(f"""s_cmp_ge_u32 s2, 256
              s_cbranch_scc1 L_END""")
        if self.o.get('RENUM'):
            a("""s_lshr_b32 s3, s2, 3
                 s_and_b32 s3, s3, 7
                 s_xor_b32 s2, s2, s3""")
        a(f"""              s_load_dwordx16 s[4:19], s[0:1], 0
              s_load_dwordx8 s[20:27], s[0:1], 64
              s_load_dwordx4 s[28:31], s[0:1], 96""")
        if self.o['PROF']:
            a("s_memrealtime s[96:97]")
        a(f"""v_lshrrev_b32 v1, 6, v0
              v_and_b32 v0, 63, v0
              s_and_b32 {sG}, s2, 7
              s_lshr_b32 {sJ}, s2, 3
              v_readfirstlane_b32 {sWAVE}, v1""")
        self.code_prefetch()
        a(f"""s_cmp_ge_u32 {sJ}, 24
              s_cbranch_scc1 L_ENT_V
              s_cmp_ge_u32 {sJ}, 16
              s_cbranch_scc1 L_ENT_K
              s_cmp_ge_u32 {sJ}, 8
              s_cbranch_scc1 L_ENT_W""")

    def ent_v(self):
        a = self.a
        o = self.o
        a.label("L_ENT_V")
        self.role = 'V'
        a(f"""s_sub_u32 s56, {sJ}, 24
              s_lshr_b32 s57, s56, 1
              s_and_b32 s58, s56, 1
              s_lshl_b32 s60, s57, 3
              s_add_u32 s60, s60, {sG}
              s_lshl_b32 s59, s60, 20
              s_add_u32 s59, s59, {3072*256}
              s_lshl_b32 s61, s58, 7
              s_add_u32 s59, s59, s61
              s_lshl_b32 s61, {sWAVE}, 15
              s_add_u32 s59, s59, s61
              s_lshl_b32 s62, {sWAVE}, 14
              s_mov_b32 m0, s62""")
        self.dma_off_p128('v32', 256, 'v1', 'v2')
        self.kwait(ws=False)
        self.srd(44, sV, 0x2000000)
        if o['VWAIT'] or o['XFLAG']:
            a("s_waitcnt lgkmcnt(0)")
        self.x_publish(True)
        if o['VSLEEP']:
            a(f"s_sleep {o['VSLEEP']}")
        self.stamp(15)
        self.only_exit('V', pre=True)
        if o['VN1'] and o['VN1ODD'] != o['VN1']:
            a(f"""s_cmp_eq_u32 s58, 1
                  s_cselect_b32 s63, {o['VN1ODD']}, {o['VN1']}
                  s_sub_u32 s66, 16, s63""")
            self.dma_loop('v32', R1, 's59', 2048, 's63', win=o['VWIN'])
            self.dma_loop('v32', R1, 's59', 2048, 's66')
        elif o['VN1']:
            self.dma_loop('v32', R1, 's59', 2048, o['VN1'], win=o['VWIN'])
            self.dma_loop('v32', R1, 's59', 2048, 16 - o['VN1'])
        else:
            self.dma_loop('v32', R1, 's59', 2048, 16, win=o['VWIN'])
        a("s_branch L_ROLE_V")

    def role_v(self):
        a = self.a
        o = self.o
        RED, ST = 131072, 139776
        F = 64
        a.label("L_ROLE_V")
        self.role = 'V'
        self.srd(40, sWS, WS_SIZE)
        self.only_exit('V')
        a(f"""v_bfe_u32 v1, v0, 2, 2
              v_lshlrev_b32 v33, 9, v1
              v_lshrrev_b32 v2, 4, v0
              v_lshl_add_u32 v33, v2, 6, v33
              v_and_b32 v3, 3, v0
              v_lshl_add_u32 v33, v3, 4, v33
              s_lshl_b32 s63, s60, 14
              s_add_u32 s63, s63, {WS_S}
              s_lshl_b32 s61, {sWAVE}, 11
              s_add_u32 s63, s63, s61""")
        a(f"""v_mul_u32_u24 v38, 272, v3
              v_lshl_add_u32 v38, v1, 6, v38
              v_lshl_add_u32 v38, v2, 4, v38
              s_mul_i32 s61, {sWAVE}, 1088
              s_add_u32 s61, s61, {RED}
              v_add_u32 v38, s61, v38""")
        a(f"""v_lshlrev_b32 v39, 6, v3
              v_add_u32 v40, {ST}, v39
              s_lshl_b32 s61, {sWAVE}, 3
              v_add_u32 v39, s61, v40
              v_lshl_add_u32 v40, v1, 3, v40
              v_and_b32 v2, 1, v2
              v_lshl_add_u32 v40, v2, 5, v40""")
        for t in range(4):
            self.tr_addr_p128(f'v{34+t}', 32 * t, 's62', 'v1', 'v2')
        a(f"""v_lshrrev_b32 v1, 4, v0
              v_mul_u32_u24 v1, 272, v1
              v_and_b32 v2, 15, v0
              v_lshl_add_u32 v1, v2, 4, v1
              v_add_u32 v41, {RED}, v1
              v_lshrrev_b32 v1, 4, v0
              v_lshlrev_b32 v1, 6, v1
              v_add_u32 v43, {ST}, v1
              v_lshlrev_b32 v42, 4, v0
              s_lshl_b32 s66, {sG}, 2
              s_add_u32 s66, s66, s57
              s_lshl_b32 s66, s66, 1
              s_add_u32 s66, s66, s58
              s_lshl_b32 s66, s66, 10
              s_add_u32 s66, s66, {WS_C}""")
        self.tag_ready()
        self.x_load()
        self.stamp(1)

        def first():
            self.stamp(2)
            self.x_flag()
            for s in range(4):
                for t in range(4):
                    for h in range(2):
                        q = F + 16 * s + 4 * t + 2 * h
                        a(f"ds_read_b64_tr_b16 v[{q}:{q+1}], v{34+t} offset:{4096*s+2048*h}")
                if s < 3:
                    a("s_waitcnt lgkmcnt(6)")
        self.poll('S', [self.gload(4, 'v33', 's63'), self.gload(8, 'v33', 's63', 256)],
                  lambda ok: self.check_tags(['v6', 'v10'], ok), first_extra=first, local=['s63'])
        self.stamp(3)
        self.unpack('v12', 'v13', 'v4')
        self.unpack('v14', 'v15', 'v5')
        self.unpack('v16', 'v17', 'v8')
        self.unpack('v18', 'v19', 'v9')
        a("""s_mov_b32 s94, 0x3fb8aa3b
             v_max3_f32 v20, v12, v13, v14
             v_max3_f32 v21, v15, v16, v17
             v_max3_f32 v20, v20, v18, v19
             v_max_f32 v20, v20, v21
             v_max_f32_dpp v20, v20, v20 row_ror:4 row_mask:0xf bank_mask:0xf
             v_max_f32_dpp v20, v20, v20 row_ror:8 row_mask:0xf bank_mask:0xf
             v_mov_b32 v21, v20
             v_permlane16_swap_b32 v20, v21
             v_max_f32 v20, v20, v21
             v_mov_b32 v21, v20
             v_permlane32_swap_b32 v20, v21
             v_max_f32 v20, v20, v21""")
        if o['FASTV']:
            self.v_fast(F)
        else:
            self.v_exact(F)
        self.stamp(5)
        self.stamps_out(16)
        a("s_endpgm")

    def v_fast(self, F):
        a = self.a
        ST = 139776
        a("v_mul_f32 v21, s94, v20")
        for k in range(8):
            a(f"v_fma_f32 v{12+k}, v{12+k}, s94, -v21")
        for k in range(8):
            a(f"v_exp_f32 v{12+k}, v{12+k}")
        for k in range(4):
            a(f"v_cvt_pk_bf16_f32 v{44+k}, v{12+2*k}, v{13+2*k}")
        D = [4, 8, 24, 28]
        done = set()

        def mf(s, t):
            rho = (s - t) & 3
            q = F + 16 * s + 4 * t
            c = f"v[{D[t]}:{D[t]+3}]" if t in done else "0"
            done.add(t)
            a(f"v_mfma_f32_16x16x32_bf16 v[{D[t]}:{D[t]+3}], v[{q}:{q+3}], v[{44+4*rho}:{47+4*rho}], {c}")

        def rot(rho, n):
            for k in range(4):
                a(f"v_mov_b32_dpp v{44+4*rho+k}, v{44+k} row_ror:{n} row_mask:0xf bank_mask:0xf")
        a("s_waitcnt lgkmcnt(0)")
        rot(2, 8)
        for t in range(4):
            mf(t, t)
        rot(1, 12)
        for t in range(4):
            mf((t + 2) & 3, t)
        rot(3, 4)
        for t in range(4):
            mf((t + 1) & 3, t)
        a("""v_add_f32 v22, v12, v13
             v_add_f32 v23, v14, v15
             v_add_f32 v12, v16, v17
             v_add_f32 v13, v18, v19""")
        mf(3, 0)
        a("""v_add_f32 v22, v22, v23
             v_add_f32 v12, v12, v13""")
        mf(0, 1)
        a("v_add_f32 v21, v22, v12")
        mf(1, 2)
        a("v_add_f32_dpp v21, v21, v21 row_ror:4 row_mask:0xf bank_mask:0xf")
        mf(2, 3)
        a("""v_add_f32_dpp v21, v21, v21 row_ror:8 row_mask:0xf bank_mask:0xf
             v_mov_b32 v22, v21
             v_permlane16_swap_b32 v21, v22
             v_add_f32 v21, v21, v22
             v_mov_b32 v22, v21
             v_permlane32_swap_b32 v21, v22
             v_add_f32 v21, v21, v22
             s_mov_b64 exec, 0xf
             ds_write_b64 v39, v[20:21]
             s_mov_b64 exec, -1""")
        self.select_tiles(D)
        a("""ds_write_b128 v38, v[4:7]
             s_waitcnt lgkmcnt(0)
             s_barrier""")
        self.stamp(4)
        done_l = self.lab('vdone')
        a(f"""s_cmp_eq_u32 {sWAVE}, 0
              s_cbranch_scc0 {done_l}""")
        for k in range(4):
            a(f"ds_read_b128 v[{44+4*k}:{47+4*k}], v43 offset:{16*k}")
        for w in range(8):
            a(f"ds_read_b128 v[{64+4*w}:{67+4*w}], v41 offset:{1088*w}")
        a(f"""v_mov_b32 v6, {sTAG}
              v_mov_b32 v7, 0
              s_waitcnt lgkmcnt(8)
              v_max3_f32 v22, v44, v46, v48
              v_max3_f32 v23, v50, v52, v54
              v_max3_f32 v22, v22, v56, v58
              v_max_f32 v22, v22, v23""")
        for k in range(8):
            a(f"v_sub_f32 v{44+2*k}, v{44+2*k}, v22")
        for k in range(8):
            a(f"v_mul_f32 v{44+2*k}, s94, v{44+2*k}")
        for k in range(8):
            a(f"v_exp_f32 v{44+2*k}, v{44+2*k}")
        a("v_mul_f32 v23, v44, v45")
        for k in range(1, 8):
            a(f"v_fmac_f32 v23, v{44+2*k}, v{45+2*k}")
        for k in range(8):
            a(f"v_mov_b32 v{45+2*k}, v{44+2*k}")
        a("v_rcp_f32 v22, v23")
        a("s_waitcnt lgkmcnt(0)")
        a("""v_pk_mul_f32 v[96:97], v[64:65], v[44:45]
             v_pk_mul_f32 v[98:99], v[66:67], v[44:45]
             v_pk_mul_f32 v[100:101], v[68:69], v[46:47]
             v_pk_mul_f32 v[102:103], v[70:71], v[46:47]""")
        for w in range(2, 8):
            d = 96 + 4 * (w & 1)
            a(f"""v_pk_fma_f32 v[{d}:{d+1}], v[{64+4*w}:{65+4*w}], v[{44+2*w}:{45+2*w}], v[{d}:{d+1}]
                  v_pk_fma_f32 v[{d+2}:{d+3}], v[{66+4*w}:{67+4*w}], v[{44+2*w}:{45+2*w}], v[{d+2}:{d+3}]""")
        a("""v_mov_b32 v23, v22
             v_pk_add_f32 v[96:97], v[96:97], v[100:101]
             v_pk_add_f32 v[98:99], v[98:99], v[102:103]
             v_pk_mul_f32 v[96:97], v[96:97], v[22:23]
             v_pk_mul_f32 v[98:99], v[98:99], v[22:23]
             v_cvt_pk_bf16_f32 v4, v96, v97
             v_cvt_pk_bf16_f32 v5, v98, v99""")
        self.st_local(4, 'v42', 's66')
        self.st_global(4, 'v42', 's66', flag=True)
        a.label(done_l)

    def v_exact(self, F):
        a = self.a
        for k in range(8):
            a(f"v_sub_f32 v{12+k}, v{12+k}, v20")
        for k in range(8):
            a(f"v_mul_f32 v{12+k}, s94, v{12+k}")
        for k in range(8):
            a(f"v_exp_f32 v{12+k}, v{12+k}")
        a("""v_add_f32 v22, v12, v13
             v_add_f32 v23, v14, v15
             v_add_f32 v24, v16, v17
             v_add_f32 v25, v18, v19
             v_add_f32 v22, v22, v23
             v_add_f32 v24, v24, v25
             v_add_f32 v21, v22, v24
             v_add_f32_dpp v21, v21, v21 row_ror:4 row_mask:0xf bank_mask:0xf
             v_add_f32_dpp v21, v21, v21 row_ror:8 row_mask:0xf bank_mask:0xf
             v_mov_b32 v22, v21
             v_permlane16_swap_b32 v21, v22
             v_add_f32 v21, v21, v22
             v_mov_b32 v22, v21
             v_permlane32_swap_b32 v21, v22
             v_add_f32 v21, v21, v22
             s_mov_b64 exec, 0xf
             ds_write_b64 v39, v[20:21]
             s_mov_b64 exec, -1
             s_waitcnt lgkmcnt(0)
             s_barrier
             ds_read_b64 v[22:23], v40
             s_waitcnt lgkmcnt(0)
             v_mov_b32 v24, v22
             v_max_f32_dpp v24, v24, v24 row_ror:4 row_mask:0xf bank_mask:0xf
             v_max_f32_dpp v24, v24, v24 row_ror:8 row_mask:0xf bank_mask:0xf
             v_mov_b32 v25, v24
             v_permlane16_swap_b32 v24, v25
             v_max_f32 v24, v24, v25
             v_sub_f32 v22, v22, v24
             v_sub_f32 v20, v20, v24
             v_mul_f32 v22, s94, v22
             v_mul_f32 v20, s94, v20
             v_exp_f32 v22, v22
             v_exp_f32 v20, v20
             v_mul_f32 v22, v22, v23
             v_add_f32_dpp v22, v22, v22 row_ror:4 row_mask:0xf bank_mask:0xf
             v_add_f32_dpp v22, v22, v22 row_ror:8 row_mask:0xf bank_mask:0xf
             v_mov_b32 v23, v22
             v_permlane16_swap_b32 v22, v23
             v_add_f32 v22, v22, v23
             v_rcp_f32 v22, v22
             v_mul_f32 v20, v20, v22""")
        for k in range(8):
            a(f"v_mul_f32 v{12+k}, v{12+k}, v20")
        for k in range(4):
            a(f"v_cvt_pk_bf16_f32 v{44+k}, v{12+2*k}, v{13+2*k}")
        D = [4, 8, 12, 16]
        rot = ((2, 8), (1, 12), (3, 4))
        done = set()

        def mf(s, t):
            rho = (s - t) & 3
            q = F + 16 * s + 4 * t
            c = f"v[{D[t]}:{D[t]+3}]" if t in done else "0"
            done.add(t)
            a(f"v_mfma_f32_16x16x32_bf16 v[{D[t]}:{D[t]+3}], v[{q}:{q+3}], v[{44+4*rho}:{47+4*rho}], {c}")
        for rho, n in rot:
            for k in range(4):
                a(f"v_mov_b32_dpp v{44+4*rho+k}, v{44+k} row_ror:{n} row_mask:0xf bank_mask:0xf")
        for rho in (0, 2, 1, 3):
            for t in range(4):
                mf((t + rho) & 3, t)
        self.select_tiles(D)
        a("""ds_write_b128 v38, v[4:7]
             s_waitcnt lgkmcnt(0)
             s_barrier""")
        self.stamp(4)
        done = self.lab('vdone')
        a(f"""s_cmp_eq_u32 {sWAVE}, 0
              s_cbranch_scc0 {done}""")
        for w in range(8):
            a(f"ds_read_b128 v[{64+4*w}:{67+4*w}], v41 offset:{1088*w}")
        a(f"""v_mov_b32 v6, {sTAG}
              v_mov_b32 v7, 0""")

        def pk(d, s_):
            a(f"v_pk_add_f32 v[{d}:{d+1}], v[{d}:{d+1}], v[{s_}:{s_+1}]")
        for n, (d, s_) in enumerate(((64, 68), (72, 76), (80, 84), (88, 92))):
            a(f"s_waitcnt lgkmcnt({6-2*n})")
            pk(d, s_)
            pk(d + 2, s_ + 2)
        for d, s_ in ((64, 72), (80, 88), (64, 80)):
            pk(d, s_)
            pk(d + 2, s_ + 2)
        a("""v_cvt_pk_bf16_f32 v4, v64, v65
             v_cvt_pk_bf16_f32 v5, v66, v67""")
        self.st_local(4, 'v42', 's66')
        self.st_global(4, 'v42', 's66', flag=True)
        a.label(done)

    def ent_k(self):
        a = self.a
        o = self.o
        a.label("L_ENT_K")
        self.role = 'K'
        a(f"""s_sub_u32 s56, {sJ}, 16
              s_lshr_b32 s57, s56, 1
              s_and_b32 s58, s56, 1
              s_lshl_b32 s60, s57, 3
              s_add_u32 s60, s60, {sG}
              s_lshl_b32 s59, s60, 20
              s_add_u32 s59, s59, {3072*256}
              s_lshl_b32 s61, s58, 17
              s_add_u32 s59, s59, s61
              s_lshl_b32 s62, {sWAVE}, 14
              s_add_u32 s59, s59, s62
              s_mov_b32 m0, s62
              v_lshrrev_b32 v1, 4, v0
              v_and_b32 v2, 15, v0
              v_xor_b32 v3, v1, v2
              v_lshlrev_b32 v3, 4, v3""")
        for v in range(4):
            if v:
                a(f"v_xor_b32 v4, {64*v}, v3")
            a(f"v_lshl_add_u32 v{32+v}, v1, 8, {'v4' if v else 'v3'}")
        self.kwait(ws=False)
        self.srd(44, sK, 0x2000000)
        if o['KWAIT'] or o['XFLAG']:
            a("s_waitcnt lgkmcnt(0)")
        self.x_publish(True)
        if o['KSLEEP']:
            a(f"s_sleep {o['KSLEEP']}")
        self.stamp(15)
        self.only_exit('K', pre=True)
        l = self.lab('kdma')
        a("s_mov_b32 s38, 4")
        a.label(l)
        for v in range(4):
            i = f" offset:{1024*v}" if v else ""
            if o['KWIN']:
                a(f"s_waitcnt vmcnt({o['KWIN']-1})")
            a(f"buffer_load_dwordx4 v{32+v}, {R1}, s59 offen{i} {self.nt()}lds")
        a(f"""s_add_u32 s59, s59, 4096
              s_add_u32 m0, m0, 4096
              s_sub_u32 s38, s38, 1
              s_cmp_lg_u32 s38, 0
              s_cbranch_scc1 {l}
              s_branch L_ROLE_K""")

    def role_k(self):
        a = self.a
        o = self.o
        QL, SC2 = 131072, 132224
        F = 64
        a.label("L_ROLE_K")
        self.role = 'K'
        self.srd(40, sWS, WS_SIZE)
        self.only_exit('K')
        a(f"""s_lshl_b32 s66, {sG}, 3
              s_add_u32 s66, s66, s56
              s_and_b32 s67, s66, 1
              v_lshrrev_b32 v1, 4, v0
              v_and_b32 v2, 15, v0""")
        a("""v_and_b32 v4, 3, v2
             v_xor_b32 v4, v4, v1
             v_and_b32 v5, 12, v2
             v_lshlrev_b32 v6, 8, v2
             v_add_u32 v6, s62, v6""")
        for t in range(4):
            a(f"""v_xor_b32 v3, {4*t}, v5
                  v_add_u32 v3, v3, v4
                  v_lshl_add_u32 v{36+t}, v3, 4, v6""")
        a(f"""s_lshl_b32 s61, {sWAVE}, 6
              v_add_u32 v5, s61, v0
              v_lshrrev_b32 v6, 2, v5
              v_lshlrev_b32 v6, 8, v6
              v_and_b32 v7, 3, v5
              v_lshl_add_u32 v40, v7, 4, v6
              v_lshrrev_b32 v6, 5, v5
              v_mul_u32_u24 v6, 288, v6
              v_and_b32 v7, 31, v5
              v_lshl_add_u32 v6, v7, 3, v6
              v_add_u32 v41, {QL}, v6
              s_lshl_b32 s69, {sG}, 13
              s_lshl_b32 s61, s57, 6
              s_add_u32 s69, s69, s61
              s_add_u32 s69, s69, {WS_B}""")
        self.act_addr('v42', QL, 288, 'v5')
        a(f"""v_bfe_u32 v5, v0, 2, 2
              v_lshl_add_u32 v5, v5, 2, v1
              v_lshlrev_b32 v5, 6, v5
              v_and_b32 v6, 3, v0
              v_lshl_add_u32 v43, v6, 4, v5
              s_lshl_b32 s63, s60, 14
              s_add_u32 s63, s63, {WS_S}
              s_lshl_b32 s61, s58, 13
              s_add_u32 s63, s63, s61
              s_lshl_b32 s61, {sWAVE}, 10
              s_add_u32 s63, s63, s61""")
        a(f"""s_lshr_b32 s68, s66, 4
              s_add_u32 s68, s68, 1
              s_lshr_b32 s56, s66, 1
              s_and_b32 s56, s56, 7""")
        self.srd(48, sWM, 512 * 6144)
        self.dma_off_p128('v32', 6144, 'v1', 'v2')
        a(f"""s_lshl_b32 s59, s67, 8
              s_lshl_b32 s61, {sWAVE}, 5
              s_add_u32 s59, s59, s61
              s_mul_i32 s59, s59, 6144
              s_lshl_b32 s61, s68, 10
              s_add_u32 s59, s59, s61
              s_lshl_b32 s61, s56, 7
              s_add_u32 s59, s59, s61
              s_add_u32 s59, s59, 2048""")
        self.tag_ready()
        self.x_load()
        self.stamp(1)

        def kfrags():
            self.x_flag()
            for T in range(4):
                for t in range(4):
                    q = F + 16 * T + 4 * t
                    a(f"ds_read_b128 v[{q}:{q+3}], v{36+t} offset:{4096*T}")
                if T == 2:
                    a("s_waitcnt lgkmcnt(6)")
        nopoll = self.lab('knp')
        join = self.lab('kj')
        a(f"""s_cmp_lt_u32 {sWAVE}, 2
              s_cbranch_scc0 {nopoll}""")

        def first():
            self.stamp(2)
            kfrags()
        self.poll('B', [self.gload(4, 'v40', 's69')], lambda ok: self.check_tags(['v6'], ok), first_extra=first, local=['s69'])
        a(f"""ds_write_b64 v41, v[4:5]
              s_branch {join}""")
        a.label(nopoll)
        a("s_waitcnt vmcnt(0)")
        self.stamp(2)
        kfrags()
        a.label(join)
        a("""s_waitcnt lgkmcnt(0)
             s_barrier""")
        self.stamp(3)
        for t in range(4):
            a(f"ds_read_b128 v[{44+4*t}:{47+4*t}], v42 offset:{64*t}")
        D = [4, 8, 12, 16]
        for t in range(4):
            a(f"s_waitcnt lgkmcnt({3-t})")
            for T in range(4):
                q = F + 16 * T + 4 * t
                c = "0" if t == 0 else f"v[{D[T]}:{D[T]+3}]"
                a(f"v_mfma_f32_16x16x32_bf16 v[{D[T]}:{D[T]+3}], v[{q}:{q+3}], v[{44+4*t}:{47+4*t}], {c}")
        self.select_tiles(D)
        a("""v_cvt_pk_bf16_f32 v8, v4, v5
             v_cvt_pk_bf16_f32 v9, v6, v7""")
        self.unpack('v4', 'v5', 'v8')
        self.unpack('v6', 'v7', 'v9')
        for r in range(4):
            a(f"v_mul_f32 v{4+r}, 0x3db504f3, v{4+r}")
        a(f"""v_cvt_pk_bf16_f32 v8, v4, v5
              v_cvt_pk_bf16_f32 v9, v6, v7
              v_mov_b32 v10, {sTAG}
              v_mov_b32 v11, 0""")
        self.st_local(8, 'v43', 's63')
        self.stamp(4)
        end = self.lab('kend')
        a("s_barrier")
        self.st_global(8, 'v43', 's63', flag=True)
        a(f"""s_cmp_lt_u32 s66, 48
              s_cbranch_scc0 {end}
              s_mov_b32 m0, s62""")
        self.srd(52, sC, 4096)
        skipc = self.lab('kc')
        a(f"""s_cmp_lt_u32 {sWAVE}, 4
              s_cbranch_scc0 {skipc}
              s_lshl_b32 s61, {sWAVE}, 10
              s_lshl_b32 s69, s67, 9
              s_add_u32 s69, s69, s61
              v_lshlrev_b32 v7, 3, v0
              buffer_load_dwordx2 v[24:25], v7, {R3}, s69 offen""")
        a.label(skipc)
        self.dma_loop('v32', R2, 's59', 8 * 6144, 4)
        skips = self.lab('ks')
        a(f"""s_cmp_lt_u32 {sWAVE}, 4
              s_cbranch_scc0 {skips}
              s_waitcnt vmcnt(4)""")
        self.unpack('v8', 'v9', 'v24')
        self.unpack('v10', 'v11', 'v25')
        self.silu4(8, 12)
        a("""v_cvt_pk_bf16_f32 v8, v8, v9
             v_cvt_pk_bf16_f32 v9, v10, v11""")
        self.perm_pos_bytes('v5', 'v0', 'v6')
        a(f"""s_mul_i32 s61, {sWAVE}, 544
              s_add_u32 s61, s61, {SC2}
              v_add_u32 v5, s61, v5
              ds_write_b64 v5, v[8:9]""")
        a.label(skips)
        a(f"s_lshl_b32 s61, {sWAVE}, 5")
        self.tr_addr_p128('v33', 's61', '0', 'v1', 'v2')
        a("v_add_u32 v34, 65536, v33")
        self.act_addr('v35', SC2, 544, 'v1')
        a(f"""v_lshrrev_b32 v1, 5, v0
              v_lshlrev_b32 v36, 10, v1
              v_and_b32 v1, 3, v0
              v_lshl_add_u32 v36, v1, 5, v36
              v_bfe_u32 v1, v0, 4, 1
              v_lshl_add_u32 v36, v1, 4, v36
              s_lshl_b32 s59, s56, 13
              s_lshl_b32 s61, {sWAVE}, 11
              s_add_u32 s59, s59, s61
              s_lshl_b32 s61, s68, 8
              s_add_u32 s59, s59, s61
              s_lshl_b32 s61, s67, 7
              s_add_u32 s59, s59, s61
              s_add_u32 s59, s59, {WS_ML}""")
        self.sel_consts()
        self.tagbytes(28)
        a("""s_waitcnt vmcnt(0) lgkmcnt(0)
             s_barrier""")
        a(f"""s_cmp_lt_u32 {sWAVE}, 4
              s_cbranch_scc0 {end}""")
        for s in range(8):
            a(f"ds_read_b128 v[{96+4*s}:{99+4*s}], v35 offset:{64*s}")
        a("s_waitcnt lgkmcnt(2)")
        for s in range(8):
            va = 'v33' if s < 4 else 'v34'
            for h in range(2):
                q = F + 4 * s + 2 * h
                a(f"ds_read_b64_tr_b16 v[{q}:{q+1}], {va} offset:{16384*(s&3)+2048*h}")
            if s == 5:
                a("s_waitcnt lgkmcnt(6)")
        for s in range(8):
            a(f"s_waitcnt lgkmcnt({max(0, 14-2*s) if s >= 4 else 6})" if s >= 4 else "s_waitcnt lgkmcnt(8)" if s == 0 else "s_nop 0")
            c = "0" if s == 0 else "v[4:7]"
            a(f"v_mfma_f32_16x16x32_bf16 v[4:7], v[{F+4*s}:{F+4*s+3}], v[{96+4*s}:{99+4*s}], {c}")
        self.steal(4, 28)
        a("s_mov_b32 exec_lo, 0x000f000f")
        a("s_mov_b32 exec_hi, 0x000f000f")
        self.gstore(4, 'v36', 's59')
        a("s_mov_b64 exec, -1")
        self.stamp(5)
        a.label(end)
        self.stamps_out(16)
        a("s_endpgm")

    def role_m(self):
        a = self.a
        o = self.o
        M1W, SC, STAT = 0, 16384, 17024
        GATE, UP, DOWN, H2, GU = 32768, 65536, 98304, 131072, 135296
        F = 64
        a.label("L_ENT_M")
        self.role = 'M'
        a(f"""v_lshrrev_b32 v1, 4, v0
              v_and_b32 v3, 15, v0
              v_lshlrev_b32 v2, 1, v1
              v_xor_b32 v2, v2, v3
              v_and_b32 v4, 7, v2
              v_lshlrev_b32 v4, 4, v4
              v_lshrrev_b32 v2, 3, v2
              v_lshl_add_u32 v4, v2, 10, v4
              v_xor_b32 v5, 1024, v4
              v_mul_u32_u24 v1, 6144, v1
              v_add_u32 v32, v1, v4
              v_add_u32 v33, v1, v5
              s_lshl_b32 s59, {sJ}, 6
              s_lshl_b32 s61, {sWAVE}, 3
              s_add_u32 s59, s59, s61
              s_mul_i32 s59, s59, 6144
              s_lshl_b32 s61, {sG}, 7
              s_add_u32 s59, s59, s61
              s_lshl_b32 s61, {sWAVE}, 11
              s_mov_b32 m0, s61
              s_and_b32 s62, {sWAVE}, 3
              s_lshl_b32 s62, s62, 10
              v_lshlrev_b32 v6, 4, v0
              v_lshlrev_b32 v7, 1, v0
              s_lshl_b32 s63, {sJ}, 7
              s_add_u32 s63, s63, s62""")
        self.kwait(ws=False)
        self.srd(44, sWM, 512 * 6144)
        self.srd(48, sC, 4096)
        self.srd(52, sX, 4096)
        l4 = self.lab('m4')
        lx = self.lab('mx')
        a(f"""s_cmp_lt_u32 {sWAVE}, 4
              s_cbranch_scc0 {l4}
              buffer_load_dwordx4 v[24:27], v6, {R3}, s62 offen
              s_branch {lx}""")
        a.label(l4)
        a(f"buffer_load_ushort v24, v7, {R2}, s63 offen")
        a.label(lx)
        self.stamp(15)
        self.only_exit('M', pre=True)
        a(f"""buffer_load_dwordx4 v32, {R1}, s59 offen {self.nt()}lds
              s_add_u32 s59, s59, {4*6144}
              s_add_u32 m0, m0, 1024
              s_nop 0
              buffer_load_dwordx4 v33, {R1}, s59 offen {self.nt()}lds
              s_branch L_ROLE_M""")
        self.ent_w()
        self.ent_k()
        self.ent_v()
        a.label("L_ROLE_M")
        self.role = 'M'
        self.srd(40, sWS, WS_SIZE)
        self.only_exit('M')
        if o['XFLAG']:
            a("s_waitcnt lgkmcnt(0)")
            self.x_publish(False)
        a(f"""v_bfe_u32 v1, v0, 1, 2
              v_lshlrev_b32 v1, 10, v1
              v_and_b32 v2, 1, v0
              v_lshl_add_u32 v1, v2, 3, v1
              v_lshrrev_b32 v2, 4, v0
              v_lshl_add_u32 v1, v2, 1, v1
              s_lshl_b32 s61, {sG}, 7
              s_lshl_b32 s56, {sJ}, 4
              s_add_u32 s61, s61, s56
              buffer_load_ushort v28, v1, {R3}, s61 offen""")
        if o['TOUCH']:
            lt0 = self.lab('mt0')
            a(f"""s_cmp_eq_u32 {sWAVE}, 4
                  s_cbranch_scc0 {lt0}
                  s_lshl_b32 s61, {sG}, 3
                  s_add_u32 s61, s61, {sJ}
                  s_lshl_b32 s61, s61, 12
                  s_add_u32 s61, s61, {WS_A1 + WS_LOC}
                  v_lshlrev_b32 v2, 4, v0""")
            for m in range(4):
                a(self.gload(64 + 4 * m, 'v2', 's61', 1024 * m))
            a.label(lt0)
        a(f"""v_lshrrev_b32 v1, 4, v0
              v_bfe_u32 v2, v0, 2, 2
              v_lshl_add_u32 v3, v1, 2, v2
              v_lshlrev_b32 v34, 8, v3
              v_and_b32 v3, 1, v1
              v_lshlrev_b32 v3, 3, v3
              v_lshl_add_u32 v3, v2, 1, v3
              s_lshl_b32 s61, {sWAVE}, 1
              v_xor_b32 v3, s61, v3
              v_lshl_add_u32 v34, v3, 4, v34
              v_and_b32 v3, 3, v0
              v_lshl_add_u32 v34, v3, 3, v34""")
        self.act_addr('v35', SC, 160, 'v1')
        a(f"""v_lshrrev_b32 v1, 5, v0
              v_lshlrev_b32 v36, 12, v1
              v_bfe_u32 v1, v0, 2, 1
              v_lshl_add_u32 v36, v1, 10, v36
              v_and_b32 v1, 3, v0
              v_lshl_add_u32 v36, v1, 5, v36
              v_bfe_u32 v1, v0, 4, 1
              v_lshl_add_u32 v36, v1, 4, v36
              s_lshl_b32 s60, {sG}, 15
              s_and_b32 s61, {sWAVE}, 3
              s_lshl_b32 s61, s61, 13
              s_add_u32 s60, s60, s61
              s_lshr_b32 s61, {sWAVE}, 2
              s_lshl_b32 s61, s61, 11
              s_add_u32 s60, s60, s61
              s_lshl_b32 s61, {sJ}, 7
              s_add_u32 s60, s60, s61
              s_add_u32 s60, s60, {WS_A1}""")
        lb = self.lab('mb')
        npf = 1 if o['PF'] else 0
        a(f"""s_cmp_ge_u32 {sWAVE}, 4
              s_cbranch_scc0 {lb}""")
        a("v_lshrrev_b32 v4, 2, v0")
        self.perm_pos_bytes('v5', 'v4', 'v6')
        a(f"""v_and_b32 v6, 3, v0
              v_lshl_add_u32 v5, v6, 1, v5
              s_and_b32 s61, {sWAVE}, 3
              s_mul_i32 s61, s61, 160
              s_add_u32 s61, s61, {SC}
              v_add_u32 v5, s61, v5""")
        if o['TOUCH']:
            lc3 = self.lab('mc3')
            lc7 = self.lab('mc7')
            a(f"""s_cmp_eq_u32 {sWAVE}, 4
                  s_cbranch_scc1 {lc7}
                  s_waitcnt vmcnt(3)""")
            a.label(lc7)
            a("s_waitcnt vmcnt(7)")
        else:
            a("s_waitcnt vmcnt(3)")
        a("v_lshlrev_b32 v8, 16, v24")
        self.silu1('v8', 12)
        a("""v_cvt_pk_bf16_f32 v8, v8, v8
             ds_write_b16 v5, v8""")
        a.label(lb)
        a("""s_waitcnt vmcnt(0) lgkmcnt(0)
             s_barrier""")
        self.stamp(1)
        self.frags(F, 'v34', 2, 8192, 4096)
        a(f"""ds_read_b128 v[72:75], v35
              ds_read_b128 v[76:79], v35 offset:64
              s_add_u32 {sTAG}, {sE}, {TAGC}
              s_waitcnt lgkmcnt(0)
              v_mfma_f32_16x16x32_bf16 v[4:7], v[64:67], v[72:75], 0
              v_mfma_f32_16x16x32_bf16 v[4:7], v[68:71], v[76:79], v[4:7]""")
        a(f"""s_mov_b32 exec_lo, 0x00f000f0
              s_mov_b32 exec_hi, 0x00f000f0
              v_mov_b32 v4, v6
              v_mov_b32 v5, v7
              s_mov_b32 exec_lo, 0x00ff00ff
              s_mov_b32 exec_hi, 0x00ff00ff
              v_mov_b32 v6, {sTAG}
              v_mov_b32 v7, 0""")
        self.st_local(4, 'v36', 's60')
        a("s_mov_b64 exec, -1")
        self.stamp(2)
        ls = self.lab('ms')
        lh4 = self.lab('mh4')
        lh = self.lab('mh')
        a(f"""s_cmp_eq_u32 {sWAVE}, 4
              s_cbranch_scc1 {lh4}
              s_cmp_lt_u32 {sWAVE}, 4
              s_cbranch_scc0 {ls}""")
        for k in range(4):
            self.unpack(f'v{8+2*k}', f'v{9+2*k}', f'v{24+k}')
        self.ln_stats(8, 'v20', 'v21', 'v22', 16)
        a(f"""s_lshl_b32 s61, {sWAVE}, 3
              s_add_u32 s61, s61, {STAT}
              v_mov_b32 v1, s61
              s_mov_b64 exec, 1
              ds_write_b64 v1, v[20:21]
              s_mov_b64 exec, -1
              s_waitcnt lgkmcnt(0)""")
        a.label(ls)
        a("""s_mov_b32 exec_lo, 0x00ff00ff
             s_mov_b32 exec_hi, 0x00ff00ff""")
        self.st_global(4, 'v36', 's60')
        a(f"""s_mov_b64 exec, -1
              s_barrier
              s_branch {lh}""")
        a.label(lh4)
        a("""s_mov_b32 exec_lo, 0x00ff00ff
             s_mov_b32 exec_hi, 0x00ff00ff""")
        self.st_global(4, 'v36', 's60')
        a(f"""s_mov_b64 exec, -1
              v_bfe_u32 v1, v0, 1, 2
              v_lshlrev_b32 v1, 3, v1
              v_add_u32 v1, {STAT}, v1
              v_lshlrev_b32 v28, 16, v28
              s_lshl_b32 s59, {sG}, 3
              s_add_u32 s59, s59, {sJ}
              s_lshl_b32 s57, s59, 7
              s_add_u32 s57, s57, {WS_A2}
              s_lshl_b32 s59, s59, 12
              s_add_u32 s59, s59, {WS_A1}
              v_lshlrev_b32 v2, 4, v0""")
        self.poll('A1', [self.gload(4 + 4 * m, 'v2', 's59', 1024 * m) for m in range(4)],
                  lambda ok: self.check_tags(['v6', 'v10', 'v14', 'v18'], ok), local=['s59'])
        self.stamp(3)
        a("""s_barrier
             ds_read_b64 v[20:21], v1
             v_mov_b32 v6, v8
             v_mov_b32 v7, v9
             v_mov_b32 v14, v16
             v_mov_b32 v15, v17""")
        for r in range(4):
            a(f"v_add_f32_dpp v{4+r}, v{4+r}, v{4+r} row_ror:8 row_mask:0xf bank_mask:0xf")
        for r in range(4):
            a(f"v_add_f32_dpp v{12+r}, v{12+r}, v{12+r} row_ror:8 row_mask:0xf bank_mask:0xf")
        a("""v_permlane16_swap_b32 v4, v5
             v_permlane16_swap_b32 v6, v7
             v_permlane16_swap_b32 v12, v13
             v_permlane16_swap_b32 v14, v15
             v_add_f32 v4, v4, v5
             v_add_f32 v6, v6, v7
             v_add_f32 v12, v12, v13
             v_add_f32 v14, v14, v15
             v_permlane32_swap_b32 v4, v6
             v_permlane32_swap_b32 v12, v14
             v_add_f32 v4, v4, v6
             v_add_f32 v12, v12, v14
             s_waitcnt lgkmcnt(0)
             v_rcp_f32 v22, v21
             v_cvt_pk_bf16_f32 v4, v4, v12
             v_and_b32 v12, 0xffff0000, v4
             v_lshlrev_b32 v4, 16, v4
             v_add_f32 v12, 1.0, v12""")
        self.ln_elem('v29', 'v28', 'v20', 'v21', 'v22', 'v23', 'v30')
        a(f"""v_mov_b32 v22, {sTAG}
              v_mov_b32 v23, 0""")
        self.rnd('v12', 'v12')
        a("v_mul_f32 v12, v29, v12")
        self.rnd('v12', 'v12')
        a("v_add_f32 v12, v12, v4")
        self.rows_to_quad('v20', 'v21', 'v12', 'v8')
        a("s_mov_b64 exec, 0xff")
        self.gstore(20, 'v2', 's57')
        a("s_mov_b64 exec, -1")
        self.stamp(4)
        a.label(lh)
        a(f"""s_cmp_eq_u32 {sJ}, 7
              s_cbranch_scc1 L_ROLE_GA""")
        a(f"""s_mul_i32 s66, {sG}, 7
              s_add_u32 s66, s66, {sJ}""")
        self.srd(44, sWG, 512 * 3584)
        self.srd(48, sWU, 512 * 3584)
        self.srd(52, sWD, 1792 * 1024)
        a(f"""v_lshrrev_b32 v1, 2, v0
              v_mul_u32_u24 v1, 3584, v1
              v_bfe_u32 v2, v0, 4, 1
              v_lshlrev_b32 v2, 1, v2
              v_and_b32 v3, 3, v0
              v_xor_b32 v2, v2, v3
              v_lshl_add_u32 v32, v2, 4, v1
              s_lshl_b32 s59, {sWAVE}, 6
              s_mul_i32 s59, s59, 3584
              s_lshl_b32 s61, s66, 6
              s_add_u32 s59, s59, s61
              s_mov_b32 s60, s59
              s_lshl_b32 s67, s66, 5
              s_lshl_b32 s61, {sWAVE}, 2
              s_add_u32 s67, s67, s61
              s_lshl_b32 s67, s67, 10
              s_and_b32 s62, {sWAVE}, 1
              s_lshl_b32 s62, s62, 3""")
        for n in range(4):
            a(f"""s_add_u32 s63, s62, {2*n}
                  v_xor_b32 v1, s63, v0
                  v_lshlrev_b32 v{40+n}, 4, v1""")
        a(f"""v_lshrrev_b32 v1, 4, v0
              v_bfe_u32 v2, v0, 2, 2
              v_lshl_add_u32 v3, v1, 2, v2
              v_lshlrev_b32 v33, 6, v3
              v_and_b32 v3, 1, v1
              s_and_b32 s61, {sWAVE}, 1
              v_xor_b32 v3, s61, v3
              v_lshl_add_u32 v33, v3, 5, v33
              v_and_b32 v3, 3, v0
              v_lshl_add_u32 v33, v3, 3, v33
              s_bfe_u32 s61, {sWAVE}, 0x10001
              s_lshl_b32 s61, s61, 15
              s_add_u32 s61, s61, {GATE}
              v_add_u32 v33, s61, v33""")
        a(f"""v_lshl_add_u32 v3, v1, 2, v2
              v_lshlrev_b32 v4, 10, v3
              v_and_b32 v5, 3, v0
              v_lshl_add_u32 v4, v5, 3, v4
              v_add_u32 v4, {DOWN}, v4
              v_and_b32 v3, 7, v3
              v_lshlrev_b32 v3, 1, v3
              s_lshl_b32 s61, {sWAVE}, 3
              v_xor_b32 v3, s61, v3""")
        for t in range(4):
            a(f"""v_xor_b32 v5, {2*t}, v3
                  v_lshl_add_u32 v{34+t}, v5, 4, v4""")
        self.act_addr('v38', H2, 1056, 'v1')
        self.act_addr('v39', GU, 96, 'v1')
        a(f"""v_lshlrev_b32 v44, 4, v0
              s_lshl_b32 s68, {sG}, 2
              s_add_u32 s68, s68, {sWAVE}
              s_lshl_b32 s68, s68, 12
              s_add_u32 s68, s68, {WS_D}""")
        self.perm_pos_bytes('v45', 'v0', 'v1')
        a(f"""s_mul_i32 s61, {sWAVE}, 1056
              s_add_u32 s61, s61, {H2}
              v_add_u32 v45, s61, v45""")
        a(f"""v_and_b32 v1, 3, v0
              v_mul_u32_u24 v46, 96, v1
              v_lshrrev_b32 v1, 4, v0
              v_lshl_add_u32 v46, v1, 4, v46
              s_and_b32 s61, {sWAVE}, 1
              s_lshl_b32 s61, s61, 3
              s_bfe_u32 s62, {sWAVE}, 0x10001
              s_mul_i32 s62, s62, 384
              s_add_u32 s61, s61, s62
              s_add_u32 s61, s61, {GU}
              v_add_u32 v46, s61, v46""")
        a(f"""v_bfe_u32 v1, v0, 2, 2
              v_lshlrev_b32 v1, 1, v1
              v_lshrrev_b32 v2, 5, v0
              v_add_u32 v1, v1, v2
              v_mul_u32_u24 v47, {56*128}, v1
              v_and_b32 v1, 3, v0
              v_lshl_add_u32 v47, v1, 5, v47
              v_bfe_u32 v1, v0, 4, 1
              v_lshl_add_u32 v47, v1, 4, v47
              s_mul_i32 s63, {sWAVE}, {8*56*128}
              s_lshl_b32 s61, s66, 7
              s_add_u32 s63, s63, s61
              s_add_u32 s63, s63, {WS_E}""")
        self.sel_consts()
        self.tagbytes(48)
        if o['MG1']:
            a(f"""s_barrier
                  s_lshl_b32 s61, {sWAVE}, 12
                  s_add_u32 s61, s61, {GATE}
                  s_mov_b32 m0, s61""")
            self.dma_loop('v32', R1, 's59', 16 * 3584, o['MG1'])
        if o['MTRIG']:
            lt = self.lab('mt')
            if o['MEARLY']:
                a(f"""s_lshr_b32 s61, s66, 1
                      s_and_b32 s61, s61, 3
                      s_cmp_eq_u32 s61, 3
                      s_cbranch_scc1 {lt}""")
            a(f"""s_cmp_eq_u32 {sWAVE}, 0
                  s_cbranch_scc0 {lt}
                  v_lshlrev_b32 v2, 10, v0
                  s_lshl_b32 s61, {sG}, 13
                  s_add_u32 s61, s61, {WS_B}""")
            if o['MTRIG'] == 2:
                a(f"""v_lshrrev_b32 v2, 1, v0
                      v_lshlrev_b32 v2, 17, v2
                      v_and_b32 v3, 1, v0
                      v_lshl_add_u32 v2, v3, 13, v2
                      s_lshl_b32 s61, {sG}, 14
                      s_add_u32 s61, s61, {WS_S}""")
            a("s_mov_b64 exec, 0xff")
            self.poll('T', [self.gload(4, 'v2', 's61')], lambda ok: self.check_tags(['v6'], ok), local=['s61'])
            a("s_mov_b64 exec, -1")
            a.label(lt)
        a("s_barrier")
        if o['MSLEEP']:
            lms = self.lab('msl')
            a(f"""s_lshr_b32 s61, s66, 1
                  s_and_b32 s61, s61, 3
                  s_cmp_eq_u32 s61, 3
                  s_cbranch_scc1 {lms}
                  s_sleep {o['MSLEEP']}""")
            a.label(lms)
        a(f"""s_lshl_b32 s61, {sWAVE}, 12
              s_add_u32 s61, s61, {GATE + 1024 * o['MG1']}
              s_mov_b32 m0, s61""")
        if o['MG1'] < 4:
            self.dma_loop('v32', R1, 's59', 16 * 3584, 4 - o['MG1'], win=o['MWIN'])
        a(f"""s_sub_u32 s61, s61, {1024 * o['MG1']}
              s_add_u32 s61, s61, {UP-GATE}
              s_mov_b32 m0, s61""")
        self.dma_loop('v32', R2, 's60', 16 * 3584, 4)
        a(f"""s_add_u32 s61, s61, {DOWN-UP}
              s_mov_b32 m0, s61
              s_nop 0""")
        for n in range(4):
            a(f"""buffer_load_dwordx4 v{40+n}, {R3}, s67 offen {self.nt()}lds
                  s_add_u32 s67, s67, 1024
                  s_add_u32 m0, m0, 1024
                  s_nop 0""")
        a("""s_waitcnt vmcnt(0)
             s_barrier""")
        self.stamp(5)
        for t in range(4):
            for h in range(2):
                q = 128 + 4 * t + 2 * h
                a(f"ds_read_b64_tr_b16 v[{q}:{q+1}], v{34+t} offset:{16384*h}")
        lw = self.lab('mw')
        a(f"""s_cmp_lt_u32 {sWAVE}, 4
              s_cbranch_scc0 {lw}
              s_waitcnt lgkmcnt(0)""")
        for s in range(16):
            for h in range(2):
                q = F + 4 * s + 2 * h
                a(f"ds_read_b64_tr_b16 v[{q}:{q+1}], v33 offset:{2048*s+1024*h}")
            if s in (6, 10):
                a("s_waitcnt lgkmcnt(6)")
        self.poll('D', [self.gload(4, 'v44', 's68'), self.gload(8, 'v44', 's68', 2048),
                        self.gload(12, 'v44', 's68', 1024), self.gload(16, 'v44', 's68', 3072)],
                  lambda ok: self.check_tags(['v7', 'v11', 'v15', 'v19'], ok), local=['s68'])
        self.stamp(6)
        X = 20
        self.unpack(f'v{X}', f'v{X+1}', 'v4')
        self.unpack(f'v{X+2}', f'v{X+3}', 'v5')
        self.unpack(f'v{X+4}', f'v{X+5}', 'v12')
        self.unpack(f'v{X+6}', f'v{X+7}', 'v13')
        if o['FASTLN']:
            self.ln2_fast(X)
        else:
            M2, SD2, RC2 = 52, 54, 56
            self.ln_stats_pivot(X, M2, SD2, RC2, 144)
            csrc = ['v6', 'v8', 'v14', 'v16']
            ssrc = ['v9', 'v10', 'v17', 'v18']
            for p in range(4):
                x = X + 2 * p
                a(f"v_pk_add_f32 v[{x}:{x+1}], v[{x}:{x+1}], v[{M2}:{M2+1}] neg_lo:[0,1] neg_hi:[0,1]")
            for p in range(4):
                self.pk_rnd(X + 2 * p, f'v{144+p}')
            for p in range(4):
                x, q = X + 2 * p, 148 + 2 * p
                a(f"v_pk_mul_f32 v[{q}:{q+1}], v[{x}:{x+1}], v[{RC2}:{RC2+1}]")
            for p in range(4):
                x, q = X + 2 * p, 148 + 2 * p
                a(f"v_pk_fma_f32 v[{x}:{x+1}], v[{q}:{q+1}], v[{SD2}:{SD2+1}], v[{x}:{x+1}] neg_lo:[1,0,0] neg_hi:[1,0,0]")
            for p in range(4):
                x, q = X + 2 * p, 148 + 2 * p
                a(f"v_pk_fma_f32 v[{x}:{x+1}], v[{x}:{x+1}], v[{RC2}:{RC2+1}], v[{q}:{q+1}]")
            for p in range(4):
                self.pk_rnd(X + 2 * p, f'v{144+p}')
            for p in range(4):
                q = 148 + 2 * p
                self.unpack(f'v{q}', f'v{q+1}', csrc[p])
            for p in range(4):
                x, q = X + 2 * p, 148 + 2 * p
                a(f"v_pk_mul_f32 v[{x}:{x+1}], v[{x}:{x+1}], v[{q}:{q+1}]")
            for p in range(4):
                q = 148 + 2 * p
                self.unpack(f'v{q}', f'v{q+1}', ssrc[p])
            for p in range(4):
                self.pk_rnd(X + 2 * p, f'v{144+p}')
            for p in range(4):
                x, q = X + 2 * p, 148 + 2 * p
                a(f"v_pk_add_f32 v[{x}:{x+1}], v[{x}:{x+1}], v[{q}:{q+1}]")
            for p in range(4):
                a(f"v_cvt_pk_bf16_f32 v{4+p}, v{X+2*p}, v{X+2*p+1}")
        a("""ds_write_b64 v45, v[4:5]
             ds_write_b64 v45, v[6:7] offset:512""")
        a.label(lw)
        a("""s_waitcnt lgkmcnt(0)
             s_barrier""")
        self.stamp(7)
        lg = self.lab('mg')
        a(f"""s_cmp_lt_u32 {sWAVE}, 4
              s_cbranch_scc0 {lg}""")
        self.gemv16(4, F, 'v38', 144)
        a("""v_cvt_pk_bf16_f32 v8, v4, v5
             v_cvt_pk_bf16_f32 v9, v6, v7
             s_mov_b32 exec_lo, 0x000f000f
             s_mov_b32 exec_hi, 0x000f000f
             ds_write_b64 v46, v[8:9]
             s_mov_b64 exec, -1""")
        a.label(lg)
        a("""s_waitcnt lgkmcnt(0)
             s_barrier
             ds_read_b128 v[4:7], v39
             ds_read_b128 v[8:11], v39 offset:384
             s_waitcnt lgkmcnt(0)""")
        for k in range(4):
            self.unpack(f'v{20+2*k}', f'v{21+2*k}', f'v{4+k}')
        for k in range(4):
            self.unpack(f'v{144+2*k}', f'v{145+2*k}', f'v{8+k}')
        for k in range(8):
            a(f"v_max_f32 v{20+k}, 0, v{20+k}")
        for k in range(4):
            a(f"v_pk_mul_f32 v[{20+2*k}:{21+2*k}], v[{20+2*k}:{21+2*k}], v[{144+2*k}:{145+2*k}]")
        for k in range(4):
            a(f"v_cvt_pk_bf16_f32 v{16+k}, v{20+2*k}, v{21+2*k}")
        D = [4, 8, 12, 20]
        for t in range(4):
            a(f"v_mfma_f32_16x16x32_bf16 v[{D[t]}:{D[t]+3}], v[{128+4*t}:{131+4*t}], v[16:19], 0")
        self.select_tiles(D)
        self.steal(4, 48)
        self.gstore(4, 'v47', 's63')
        self.stamp(8)
        self.stamps_out(16)
        a("s_endpgm")

        a.label("L_ROLE_GA")
        S = 131072
        self.srd(48, sC, 4096)
        self.dma_off_p128('v32', 6144, 'v1', 'v2')
        a(f"""s_lshl_b32 s59, {sWAVE}, 6
              s_mul_i32 s59, s59, 6144
              s_lshl_b32 s61, {sG}, 7
              s_add_u32 s59, s59, s61
              s_add_u32 s59, s59, 2048
              s_lshl_b32 s61, {sWAVE}, 13
              s_add_u32 s61, s61, {GATE}
              s_mov_b32 m0, s61
              s_barrier""")
        lc = self.lab('gc')
        a(f"""s_cmp_lt_u32 {sWAVE}, 4
              s_cbranch_scc0 {lc}
              s_lshl_b32 s61, {sWAVE}, 10
              v_lshlrev_b32 v1, 3, v0
              buffer_load_dwordx2 v[24:25], v1, {R2}, s61 offen
              buffer_load_dwordx2 v[26:27], v1, {R2}, s61 offen offset:512""")
        a.label(lc)
        self.dma_loop('v32', R1, 's59', 8 * 6144, 8)
        lc2 = self.lab('gc2')
        a(f"""s_cmp_lt_u32 {sWAVE}, 4
              s_cbranch_scc0 {lc2}
              s_waitcnt vmcnt(8)""")
        self.perm_pos_bytes('v5', 'v0', 'v6')
        a(f"""s_mul_i32 s61, {sWAVE}, 1056
              s_add_u32 s61, s61, {S}
              v_add_u32 v5, s61, v5""")
        for hf in range(2):
            self.unpack('v8', 'v9', f'v{24+2*hf}')
            self.unpack('v10', 'v11', f'v{25+2*hf}')
            self.silu4(8, 12)
            a(f"""v_cvt_pk_bf16_f32 v8, v8, v9
                  v_cvt_pk_bf16_f32 v9, v10, v11
                  ds_write_b64 v5, v[8:9] offset:{512*hf}""")
        a.label(lc2)
        a(f"s_lshl_b32 s61, {sWAVE}, 5")
        self.tr_addr_p128('v33', 's61', GATE, 'v1', 'v2')
        self.act_addr('v35', S, 1056, 'v1')
        a(f"""v_lshrrev_b32 v1, 5, v0
              v_lshlrev_b32 v36, 10, v1
              v_bfe_u32 v1, v0, 2, 1
              v_lshl_add_u32 v36, v1, 7, v36
              v_and_b32 v1, 3, v0
              v_lshl_add_u32 v36, v1, 5, v36
              v_bfe_u32 v1, v0, 4, 1
              v_lshl_add_u32 v36, v1, 4, v36
              s_lshl_b32 s59, {sG}, 13
              s_lshl_b32 s61, {sWAVE}, 11
              s_add_u32 s59, s59, s61
              s_add_u32 s59, s59, {WS_ML}""")
        self.sel_consts()
        self.tagbytes(28)
        a("""s_waitcnt vmcnt(0) lgkmcnt(0)
             s_barrier""")
        le = self.lab('ge')
        a(f"""s_cmp_lt_u32 {sWAVE}, 4
              s_cbranch_scc0 {le}""")
        for s in range(16):
            for h in range(2):
                q = F + 4 * s + 2 * h
                a(f"ds_read_b64_tr_b16 v[{q}:{q+1}], v33 offset:{4096*s+2048*h}")
            if s in (6, 13):
                a("s_waitcnt lgkmcnt(0)")
        a("s_waitcnt lgkmcnt(0)")
        self.gemv16(4, F, 'v35', 144)
        a("""s_mov_b32 exec_lo, 0x00f000f0
             s_mov_b32 exec_hi, 0x00f000f0""")
        for r in range(4):
            a(f"v_mov_b32 v{4+r}, 0")
        a("""s_mov_b32 exec_lo, 0x00ff00ff
             s_mov_b32 exec_hi, 0x00ff00ff""")
        self.steal(4, 28)
        self.gstore(4, 'v36', 's59')
        a("s_mov_b64 exec, -1")
        a.label(le)
        self.stamp(5)
        self.stamps_out(16)
        a("s_endpgm")

    def ent_w(self):
        a = self.a
        o = self.o
        a.label("L_ENT_W")
        self.role = 'W'
        a(f"s_sub_u32 s56, {sJ}, 8")
        if o.get('ISWZ'):
            a(f"s_xor_b32 s56, s56, {o['ISWZ']}")
        self.dma_off_p128('v32', 8192, 'v1', 'v2')
        a(f"""s_lshl_b32 s59, {sWAVE}, 19
              s_lshl_b32 s61, {sG}, 10
              s_add_u32 s59, s59, s61
              s_lshl_b32 s61, s56, 7
              s_add_u32 s59, s59, s61
              s_lshl_b32 s61, {sWAVE}, 13
              s_mov_b32 m0, s61""")
        self.kwait(ws=False)
        self.srd(44, sWQ, 512 * 8192)
        if o['WWAIT']:
            a("s_waitcnt lgkmcnt(0)")
        if o['WSLEEP']:
            a(f"s_sleep {o['WSLEEP']}")
        self.stamp(15)
        self.only_exit('W', pre=True)
        self.dma_loop('v32', R1, 's59', 8 * 8192, 8, win=o['WWIN'])
        a("s_branch L_ROLE_W")

    def role_w(self):
        a = self.a
        o = self.o
        WQ, WO, H, O = 0, 65536, 131072, 135296
        F = 64
        a.label("L_ROLE_W")
        self.role = 'W'
        self.srd(40, sWS, WS_SIZE)
        self.only_exit('W')
        self.w_setup1(H, O, WQ, WO)
        if o['IOX']:
            a(f"s_xor_b32 s56, s56, {o['IOX']}")
        self.srd(52, sX, 4096)
        a(f"""v_bfe_u32 v1, v0, 1, 2
              v_lshlrev_b32 v1, 10, v1
              v_and_b32 v2, 1, v0
              v_lshl_add_u32 v1, v2, 3, v1
              v_lshrrev_b32 v2, 4, v0
              v_lshl_add_u32 v1, v2, 1, v1
              s_lshl_b32 s61, s56, 7
              s_lshl_b32 s62, {sWAVE}, 4
              s_add_u32 s61, s61, s62
              buffer_load_ushort v60, v1, {R3}, s61 offen""")
        self.srd(44, sWO, 4096 * 1024)
        self.dma_off_p128('v32', 1024, 'v1', 'v2')
        a(f"""s_lshl_b32 s59, {sG}, 9
              s_lshl_b32 s61, {sWAVE}, 6
              s_add_u32 s59, s59, s61
              s_lshl_b32 s59, s59, 10
              s_lshl_b32 s61, s56, 7
              s_add_u32 s59, s59, s61
              s_lshl_b32 s67, {sWAVE}, 13
              s_add_u32 s67, s67, {WO}""")
        if o['WO1']:
            a("s_mov_b32 m0, s67")
            self.dma_loop('v32', R1, 's59', 8 * 1024, o['WO1'])
            a(f"s_add_u32 s67, s67, {1024 * o['WO1']}")
        a("s_mov_b32 s89, 8")
        if o['WO3']:
            l3 = self.lab('wo3')
            a(f"""s_cmp_eq_u32 s56, 3
                  s_cbranch_scc0 {l3}
                  s_mov_b32 m0, s67""")
            self.dma_loop('v32', R1, 's59', 8 * 1024, o['WO3'])
            a(f"""s_add_u32 s67, s67, {1024 * o['WO3']}
                  s_mov_b32 s89, {8 - o['WO3']}""")
            a.label(l3)
        self.tag_ready()
        self.x_publish(False)
        self.stamp(1)
        lw1 = self.lab('w1')

        def first():
            self.stamp(2)
            self.x_load()
            a("s_barrier")
            a(f"""s_cmp_lt_u32 {sWAVE}, 4
                  s_cbranch_scc0 {lw1}""")
            for s in range(16):
                for h in range(2):
                    q = F + 4 * s + 2 * h
                    a(f"ds_read_b64_tr_b16 v[{q}:{q+1}], v36 offset:{4096*s+2048*h}")
                if s in (6, 10):
                    a("s_waitcnt lgkmcnt(6)")
            a.label(lw1)
        if o['PIPE_A2']:
            okA = self.lab('a2first')
            a(self.gload(4, 'v33', 's58'))
            a("s_waitcnt vmcnt(0)")
            first()
            self.check_tags(['v6'], okA)
            NS = o['PIPE_A2']

            def takeA(k):
                a(f"""v_mov_b32 v4, v{192+4*k}
                      v_mov_b32 v5, v{193+4*k}""")
            self.poll_pipe('A2', NS, lambda k: [self.gload(192 + 4 * k, 'v33', 's58')],
                           lambda k, ok: self.check_tags([f'v{194+4*k}'], ok), takeA, o['SLP_A2'])
            a.label(okA)
        else:
            self.poll('A2', [self.gload(4, 'v33', 's58')],
                      lambda ok: self.check_tags(['v6'], ok), first_extra=first)
        a("""ds_write_b64 v34, v[4:5]
             s_waitcnt lgkmcnt(0)
             s_barrier""")
        self.stamp(3)
        lq = self.lab('wqskip')
        a(f"""s_mov_b32 m0, s67
              s_cmp_lt_u32 {sWAVE}, 4
              s_cbranch_scc0 {lq}""")
        self.gemv16(4, F, 'v38', 128)
        a(f"""v_cvt_pk_bf16_f32 v8, v4, v5
              v_cvt_pk_bf16_f32 v9, v6, v7
              v_mov_b32 v10, {sTAG}
              v_mov_b32 v11, 0
              s_mov_b32 exec_lo, 0x000f000f
              s_mov_b32 exec_hi, 0x000f000f""")
        self.st_local(8, 'v40', 's57')
        a("s_mov_b64 exec, -1")
        a.label(lq)
        a("s_barrier")
        if o['XFLAG']:
            a("s_waitcnt vmcnt(1)")
            self.x_flag()
        self.stamp(4)
        lq3 = self.lab('wq3')
        a(f"""s_cmp_lt_u32 {sWAVE}, 4
              s_cbranch_scc0 {lq3}
              s_mov_b32 exec_lo, 0x000f000f
              s_mov_b32 exec_hi, 0x000f000f""")
        self.st_global(8, 'v40', 's57', flag=True)
        a("s_mov_b64 exec, -1")
        a.label(lq3)
        if o['WO3']:
            self.dma_loop('v32', R1, 's59', 8 * 1024, 's89')
        elif o['WO1'] < 8:
            self.dma_loop('v32', R1, 's59', 8 * 1024, 8 - o['WO1'])
        a(f"""s_lshl_b32 s58, {sG}, 13
              s_add_u32 s58, s58, {WS_C}
              v_lshrrev_b32 v1, 5, v0
              v_lshlrev_b32 v41, 10, v1
              v_and_b32 v1, 3, v0
              v_lshl_add_u32 v41, v1, 5, v41
              v_bfe_u32 v1, v0, 4, 1
              v_lshl_add_u32 v41, v1, 4, v41
              s_lshl_b32 s57, s56, 13
              s_lshl_b32 s61, {sWAVE}, 11
              s_add_u32 s57, s57, s61
              s_lshl_b32 s61, {sG}, 7
              s_add_u32 s57, s57, s61
              s_add_u32 s57, s57, {WS_C2}
              v_lshlrev_b32 v42, 4, v0
              s_lshl_b32 s62, s56, 3
              s_add_u32 s62, s62, {sWAVE}
              s_lshl_b32 s62, s62, 10
              s_add_u32 s63, s62, {WS_ML}
              s_add_u32 s62, s62, {WS_C2}
              ; D publish: ((g*4 + b)*2 + u)*2048 + Q*16, Q = 16i + 2w + q
              v_bfe_u32 v1, v0, 1, 2
              v_lshlrev_b32 v43, 12, v1
              v_and_b32 v1, 1, v0
              v_lshl_add_u32 v43, v1, 4, v43
              s_lshl_b32 s66, {sG}, 14
              s_lshl_b32 s61, s56, 8
              s_add_u32 s66, s66, s61
              s_lshl_b32 s61, {sWAVE}, 5
              s_add_u32 s66, s66, s61
              s_add_u32 s66, s66, {WS_D}
              v_bfe_u32 v1, v0, 1, 2
              v_lshlrev_b32 v61, 10, v1
              v_and_b32 v2, 1, v0
              v_lshl_add_u32 v61, v2, 3, v61
              v_lshrrev_b32 v2, 4, v0
              v_lshl_add_u32 v61, v2, 1, v61
              s_lshl_b32 s68, s56, 7
              s_lshl_b32 s61, {sG}, 4
              s_add_u32 s68, s68, s61
              s_lshl_b32 s69, s56, 3
              s_add_u32 s69, s69, {sG}
              s_mul_i32 s69, s69, {56*128}
              s_add_u32 s69, s69, {WS_E}""")
        if o['TOUCH']:
            a(self.gload(4, 'v42', 's62'))
            a(self.gload(8, 'v42', 's63'))
            lt1 = self.lab('wt1')
            a(f"""s_cmp_eq_u32 {sWAVE}, {sG}
                  s_cbranch_scc0 {lt1}
                  s_add_u32 s61, s69, 4096""")
            for m in range(7):
                a(self.gload(64 + 4 * m, 'v42', 's69' if m < 4 else 's61', 1024 * (m & 3)))
            a.label(lt1)
        self.srd(48, sOUT, 4096)
        self.sel_consts()
        self.tagbytes(48)
        a("v_lshlrev_b32 v60, 16, v60")
        lw2 = self.lab('w2')

        def first2():
            self.stamp(5)
            a("s_barrier")
            a(f"""s_cmp_lt_u32 {sWAVE}, 4
                  s_cbranch_scc0 {lw2}""")
            for s in range(16):
                for h in range(2):
                    q = F + 4 * s + 2 * h
                    a(f"ds_read_b64_tr_b16 v[{q}:{q+1}], v37 offset:{4096*s+2048*h}")
                if s in (6, 10):
                    a("s_waitcnt lgkmcnt(6)")
            a.label(lw2)
        self.poll('C', [self.gload(4, 'v33', 's58')], lambda ok: self.check_tags(['v6'], ok), first_extra=first2, local=['s58'])
        a("""ds_write_b64 v35, v[4:5]
             s_waitcnt lgkmcnt(0)
             s_barrier""")
        self.stamp(6)
        lo = self.lab('wo')
        a(f"""s_cmp_lt_u32 {sWAVE}, 4
              s_cbranch_scc0 {lo}""")
        self.gemv16(4, F, 'v39', 128)
        self.steal(4, 48)
        a("""s_mov_b32 exec_lo, 0x000f000f
             s_mov_b32 exec_hi, 0x000f000f""")
        self.gstore(4, 'v41', 's57')
        a("s_mov_b64 exec, -1")
        a.label(lo)
        self.stamp(7)

        def stolen_check(q):
            def chk(ok):
                self.stolen_tag(q, 'v12', 'v13')
                self.check_tags(['v12'], ok)
            return chk
        self.poll('ML', [self.gload(4, 'v42', 's63')] + ([self.gload(28, 'v42', 's62')] if o['MLTOUCH'] else []), stolen_check(4))
        if o['C2EARLY']:
            a(self.gload(24, 'v42', 's62'))
        for r in range(4):
            a(f"v_and_b32 v{4+r}, 0xffffff00, v{4+r}")
        for r in range(4):
            a(f"v_add_f32_dpp v{4+r}, v{4+r}, v{4+r} row_ror:8 row_mask:0xf bank_mask:0xf")
        self.pk_rnd(4, 'v12')
        self.pk_rnd(6, 'v13')
        a("""s_mov_b32 exec_lo, 0
             s_mov_b32 exec_hi, 0x0000ffff""")
        for r in range(4):
            a(f"v_add_f32 v{4+r}, 1.0, v{4+r}")
        self.pk_rnd(4, 'v12')
        self.pk_rnd(6, 'v13')
        a("s_mov_b64 exec, -1")
        a("""v_cvt_pk_bf16_f32 v8, v4, v5
             v_cvt_pk_bf16_f32 v9, v6, v7
             v_mov_b32 v16, 0
             v_mov_b32 v17, 0
             v_mov_b32 v18, 0
             v_mov_b32 v19, 0
             v_mov_b32 v10, v8
             v_mov_b32 v11, v9
             v_mov_b32 v14, v8
             v_mov_b32 v15, v9
             v_permlane32_swap_b32 v10, v16
             v_permlane32_swap_b32 v11, v17
             v_permlane16_swap_b32 v14, v18
             v_permlane16_swap_b32 v15, v19""")
        a(f"""v_mov_b32 v58, v16
              v_mov_b32 v20, v17
              v_mov_b32 v21, v18
              v_mov_b32 v22, v19
              v_mov_b32 v23, {sTAG}
              s_mov_b64 exec, 0xff""")
        self.st_local(20, 'v43', 's66', 2048)
        self.st_global(20, 'v43', 's66', 2048, flag=True)
        a("s_mov_b64 exec, -1")
        a("""v_permlane16_swap_b32 v4, v5
             v_permlane16_swap_b32 v6, v7
             v_permlane32_swap_b32 v4, v6
             v_permlane32_swap_b32 v5, v7
             v_mov_b32 v56, v4
             v_mov_b32 v57, v7""")
        self.stamp(8)
        okc = self.lab('c2first')
        lc2 = self.lab('c2got')
        if o['C2EARLY']:
            a(f"s_waitcnt vmcnt({2 if (o['LOCAL'] and not o.get('NOGLOBAL')) else 1})")
            self.stolen_tag(24, 'v12', 'v13')
            self.check_tags(['v12'], okc)
        self.poll('C2', [self.gload(4, 'v42', 's62')], stolen_check(4))
        a(f"s_branch {lc2}")
        a.label(okc)
        for r in range(4):
            a(f"v_mov_b32 v{4+r}, v{24+r}")
        a.label(lc2)
        self.stamp(9)
        for r in range(4):
            a(f"v_and_b32 v{4+r}, 0xffffff00, v{4+r}")
        self.red_rows(4)
        self.rnd('v4', 'v4')
        a("v_mul_f32 v4, v56, v4")
        self.rnd('v4', 'v4')
        a("v_add_f32 v4, v60, v4")
        self.rnd('v59', 'v4')
        a(f"""v_mov_b32 v10, v58
              v_mov_b32 v11, {sTAG}""")
        self.rows_to_quad('v8', 'v9', 'v59', 'v12')
        a("s_mov_b64 exec, 0xff")
        self.st_local(8, 'v43', 's66')
        self.stamp(10)
        a("s_barrier")
        self.st_global(8, 'v43', 's66', flag=True)
        a("s_mov_b64 exec, -1")
        end = self.lab('wend')
        a(f"""s_cmp_eq_u32 {sWAVE}, {sG}
              s_cbranch_scc0 {end}
              s_add_u32 s61, s69, 4096""")
        loads = []
        for m in range(7):
            if m < 4:
                loads.append(self.gload(64 + 4 * m, 'v42', 's69', 1024 * m))
            else:
                loads.append(self.gload(64 + 4 * m, 'v42', 's61', 1024 * (m - 4)))

        def echk(ok):
            for m in range(7):
                self.stolen_tag(64 + 4 * m, f'v{12+m}', 'v20')
            self.check_tags([f'v{12+m}' for m in range(7)], ok)
        if o['PIPE_E']:
            def loadE(k):
                b = 64 + 28 * k
                return [self.gload(b + 4 * m, 'v42', 's69' if m < 4 else 's61', 1024 * (m & 3)) for m in range(7)]

            def chkE(k, ok):
                b = 64 + 28 * k
                for m in range(7):
                    self.stolen_tag(b + 4 * m, f'v{12+m}', 'v20')
                self.check_tags([f'v{12+m}' for m in range(7)], ok)

            def takeE(k):
                for r in range(28):
                    a(f"v_and_b32 v{160+r}, 0xffffff00, v{64+28*k+r}")
            self.poll_pipe('E', o['PIPE_E'], loadE, chkE, takeE, o['SLP_E'])
            EB = 160
        else:
            self.poll('E', loads, echk)
            EB = 64
            for m in range(7):
                for r in range(4):
                    a(f"v_and_b32 v{64+4*m+r}, 0xffffff00, v{64+4*m+r}")
        self.stamp(11)
        def pk(d, s_):
            a(f"v_pk_add_f32 v[{d}:{d+1}], v[{d}:{d+1}], v[{s_}:{s_+1}]")
        for d, s_ in ((0, 4), (8, 12), (16, 20), (0, 8), (16, 24), (0, 16)):
            pk(EB + d, EB + s_)
            pk(EB + d + 2, EB + s_ + 2)
        self.red_rows(EB)
        e = f"v{EB}"
        self.rnd(e, e)
        a(f"v_mul_f32 {e}, v57, {e}")
        self.rnd(e, e)
        a(f"""v_add_f32 {e}, v59, {e}
              v_cvt_pk_bf16_f32 {e}, {e}, {e}
              s_mov_b32 exec_lo, 0x00ff00ff
              s_mov_b32 exec_hi, 0x00ff00ff
              buffer_store_short {e}, v61, {R2}, s68 offen
              s_mov_b64 exec, -1""")
        noep = self.lab('noep')
        a(f"""s_cmp_eq_u32 s2, 64
              s_cbranch_scc0 {noep}
              v_mov_b32 v1, 0
              v_mov_b32 v2, {sTAG}
              s_mov_b64 exec, 1
              buffer_store_dword v2, v1, {WSR}, 0 offen offset:{WS_EPOCH}
              s_mov_b64 exec, -1""")
        a.label(noep)
        self.stamp(12)
        a.label(end)
        self.stamps_out(16)
        a("s_endpgm")

    def w_setup1(self, H, O, WQ, WO):
        a = self.a
        a(f"""s_lshl_b32 s61, {sWAVE}, 6
              v_add_u32 v1, s61, v0
              v_lshlrev_b32 v33, 4, v1
              v_lshrrev_b32 v2, 3, v1
              v_lshlrev_b32 v2, 1, v2
              v_and_b32 v3, 1, v1
              v_add_u32 v2, v2, v3""")
        self.perm_pos_bytes('v34', 'v2', 'v3')
        a(f"""v_bfe_u32 v3, v1, 1, 2
              v_mul_u32_u24 v3, 1056, v3
              v_add_u32 v34, v34, v3
              v_add_u32 v34, {H}, v34""")
        a(f"""v_bfe_u32 v2, v1, 4, 2
              v_lshlrev_b32 v2, 5, v2
              v_bfe_u32 v3, v1, 6, 1
              v_lshl_add_u32 v2, v3, 4, v2
              v_and_b32 v3, 15, v1
              v_add_u32 v2, v2, v3""")
        self.perm_pos_bytes('v35', 'v2', 'v3')
        a(f"""v_lshrrev_b32 v3, 7, v1
              v_mul_u32_u24 v3, 1056, v3
              v_add_u32 v35, v35, v3
              v_add_u32 v35, {O}, v35""")
        a(f"""s_and_b32 s61, {sWAVE}, 3
              s_lshl_b32 s61, s61, 5""")
        self.tr_addr_p128('v36', 's61', WQ, 'v1', 'v2')
        a(f"v_add_u32 v37, {WO-WQ}, v36")
        self.act_addr('v38', H, 1056, 'v1')
        a(f"v_add_u32 v39, {O-H}, v38")
        a(f"""v_and_b32 v1, 3, v0
              v_lshlrev_b32 v40, 6, v1
              v_lshrrev_b32 v1, 4, v0
              v_lshl_add_u32 v40, v1, 4, v40
              s_lshl_b32 s57, {sG}, 3
              s_add_u32 s57, s57, s56
              s_lshl_b32 s57, s57, 2
              s_add_u32 s57, s57, {sWAVE}
              s_lshl_b32 s57, s57, 8
              s_add_u32 s57, s57, {WS_B}
              s_mov_b32 s58, {WS_A2}""")

    def build(self):
        self.prologue()
        self.role_m()
        self.role_w()
        self.role_k()
        self.role_v()
        self.a.label("L_END")
        self.a("s_endpgm")
        body = self.a.finalize()
        vg = 256 if self.o['PROF'] else 216
        hdr = HEADER.format(lds=LDS_BYTES)
        return hdr + f""".amdgcn_target "amdgcn-amd-amdhsa--gfx950"
.text
.globl {NAME}
.p2align 8
.type {NAME},@function
{NAME}:
{body}.section .rodata,"a"
.p2align 6
.amdhsa_kernel {NAME}
  .amdhsa_next_free_vgpr {vg}
  .amdhsa_next_free_sgpr 102
  .amdhsa_accum_offset {vg}
  .amdhsa_group_segment_fixed_size 0
  .amdhsa_kernarg_size 112
  .amdhsa_user_sgpr_count 2
  .amdhsa_user_sgpr_kernarg_segment_ptr 1
  .amdhsa_system_sgpr_workgroup_id_x 1
.end_amdhsa_kernel
"""


if __name__ == '__main__':
    opt = {}
    out = None
    for arg in sys.argv[1:]:
        if '=' in arg:
            k, v = arg.split('=', 1)
            opt[k] = int(v) if v.lstrip('-').isdigit() else v
        else:
            out = arg
    g = Gen6(opt)
    txt = g.build()
    if out:
        open(out, 'w').write(txt)
    else:
        sys.stdout.write(txt)
    sys.stderr.write(f"instructions: {g.a.count()}\n")
```

```python
import sys, os
sys.path.insert(0, os.path.dirname(os.path.abspath(__file__)))
from asmlib import Asm

NAME = "adaLN_cond__sliding_block_cached__glu_gated_reglu__decode_kernel"

OPT = dict(
    NT=1,
    PROF=0,
    LIMIT=20000,
    ST="sc0 sc1",
    LD="sc1",
    PF=0,
    LOCAL=1,
    KLOC=200,
    MTRIG=1,
    KWAIT=0,
    VWAIT=0,
    ONLY="",
)

WS_EPOCH = 0
WS_A1 = 0x1000
WS_A2 = 0x41000
WS_B = 0x43000
WS_S = 0x53000
WS_C = 0xD3000
WS_C2 = 0xE3000
WS_ML = 0xF3000
WS_D = 0x103000
WS_E = 0x123000
WS_PROF = 0x1A0000
WS_LOC = 0x200000
WS_SIZE = 0x400000
TAGC = 0x9E3779B9

LDS_BYTES = 140288

sX, sK, sV, sWQ, sWO, sWG, sWU, sWD, sC, sWM, sOUT, sWS = 4, 6, 8, 10, 12, 16, 18, 20, 22, 24, 26, 30
sG, sJ, sWAVE, sTAG, sE, sCNT = 's32', 's33', 's34', 's35', 's36', 's37'
WSR = 's[40:43]'
R1 = 's[44:47]'
R2 = 's[48:51]'
R3 = 's[52:55]'


class Gen:
    def __init__(self, opt):
        self.o = dict(OPT)
        self.o.update(opt)
        self.a = Asm()
        self.uid = 0
        self.nstamp = 0

    def lab(self, p):
        self.uid += 1
        return f"L{p}_{self.uid}"

    def nt(self):
        return "nt " if self.o['NT'] else ""

    def srd(self, base, ptr, size):
        a = self.a
        a(f"""s_mov_b32 s{base}, s{ptr}
              s_mov_b32 s{base+1}, s{ptr+1}
              s_mov_b32 s{base+2}, {size}
              s_mov_b32 s{base+3}, 0x20000""")

    def stamp(self, k):
        if self.o['PROF'] == 2 and k != 12:
            return
        if self.o['PROF']:
            l = self.lab('stp')
            allw = str(k) in str(self.o.get('STAMPALL', '')).split(',')
            self.a(f"""s_cmp_eq_u32 s99, {'s99' if allw else 1}
                       s_cbranch_scc0 {l}
                       s_memrealtime s[96:97]
                       s_waitcnt lgkmcnt(0)
                       s_mov_b32 s{70+k}, s96""")
            self.a.label(l)

    def stamps_out(self, n):
        if not self.o['PROF']:
            return
        a = self.a
        a(f"""s_lshl_b32 s98, s2, 3
              s_add_u32 s98, s98, {sWAVE}
              s_lshl_b32 s98, s98, 6
              s_add_u32 s98, s98, {WS_PROF}
              s_mov_b64 exec, 1
              v_mov_b32 v250, 0""")
        for k in range(n):
            a(f"""v_mov_b32 v251, s{70+k}
                  buffer_store_dword v251, v250, {WSR}, s98 offen offset:{4*k}""")
        a("s_mov_b64 exec, -1")

    def only_exit(self, role, pre=False):
        o = self.o['ONLY']
        if not o:
            return
        if pre:
            if role not in o:
                self.stamps_out(16)
                self.a("s_endpgm")
            return
        if role in o:
            self.stamp(1)
            self.a("s_waitcnt vmcnt(0)")
            self.stamp(2)
            self.stamps_out(16)
            self.a("s_endpgm")

    def tag_ready(self):
        self.a(f"""s_waitcnt lgkmcnt(0)
                   s_add_u32 {sTAG}, {sE}, {TAGC}""")

    def check_tags(self, tagregs, ok):
        a = self.a
        a(f"v_cmp_ne_u32 vcc, {sTAG}, {tagregs[0]}")
        if len(tagregs) == 1:
            a(f"s_cbranch_vccz {ok}")
            return
        for r in tagregs[1:]:
            a(f"""v_cmp_ne_u32 s[64:65], {sTAG}, {r}
                  s_or_b64 vcc, vcc, s[64:65]""")
        a(f"s_cbranch_scc0 {ok}")

    def stolen_tag(self, q, t0, t1):
        self.a(f"""v_perm_b32 {t0}, v{q+1}, v{q}, s92
                   v_perm_b32 {t1}, v{q+3}, v{q+2}, s93
                   v_or_b32 {t0}, {t0}, {t1}""")

    def sel_consts(self):
        self.a("""s_mov_b32 s92, 0x0c0c0400
                  s_mov_b32 s93, 0x04000c0c
                  s_movk_i32 s91, 0xff""")

    def tagbytes(self, base):
        a = self.a
        a(f"v_mov_b32 v{base}, {sTAG}")
        for r in range(1, 4):
            a(f"v_lshrrev_b32 v{base+r}, {8*r}, v{base}")

    def steal(self, q, tb):
        for r in range(4):
            self.a(f"v_bfi_b32 v{q+r}, s91, v{tb+r}, v{q+r}")

    def poll(self, name, loads, check, first_extra=None, local=None):
        a = self.a
        ok = self.lab(name + 'ok')
        lp = self.lab(name)
        local = local if self.o['LOCAL'] else None
        if local:
            for r in local:
                a(f"s_or_b32 {r}, {r}, {WS_LOC}")
        if first_extra is not None:
            for l in loads:
                a(l)
            a("s_waitcnt vmcnt(0)")
            first_extra()
            check(ok)
        a(f"s_mov_b32 {sCNT}, {self.o['LIMIT']}")
        a.label(lp)
        for l in loads:
            a(l)
        a("s_waitcnt vmcnt(0)")
        check(ok)
        if local:
            a(f"""s_cmp_lt_u32 {sCNT}, {self.o['LIMIT'] - self.o['KLOC']}
                  s_cselect_b32 s39, {WS_LOC}, 0""")
            for r in local:
                a(f"s_xor_b32 {r}, {r}, s39")
        slp = self.o.get('PSLP_' + name, self.o.get('PSLP', 0))
        if slp:
            a(f"s_sleep {slp}")
        a(f"""s_sub_u32 {sCNT}, {sCNT}, 1
              s_cbranch_scc0 {lp}""")
        a.label(ok)

    def gload(self, q, voff, soff, imm=0):
        i = f" offset:{imm}" if imm else ""
        return f"buffer_load_dwordx4 v[{q}:{q+3}], {voff}, {WSR}, {soff} offen{i} {self.o['LD']}"

    def gstore(self, q, voff, soff, imm=0, local=False):
        i = f" offset:{imm}" if imm else ""
        if local and self.o['LOCAL']:
            self.a(f"""s_or_b32 s39, {soff}, {WS_LOC}
                       buffer_store_dwordx4 v[{q}:{q+3}], {voff}, {WSR}, s39 offen{i}""")
            if self.o.get('NOGLOBAL'):
                return
        self.a(f"buffer_store_dwordx4 v[{q}:{q+3}], {voff}, {WSR}, {soff} offen{i} {self.o['ST']}")

    def dma_loop(self, voff, srd, soff, sstep, n, m0step=1024, win=0, nt=None):
        a = self.a
        l = self.lab('dma')
        a(f"s_mov_b32 s38, {n}")
        a.label(l)
        if win:
            a(f"s_waitcnt vmcnt({win-1})")
        ntf = self.nt() if nt is None else ("nt " if nt else "")
        a(f"""buffer_load_dwordx4 {voff}, {srd}, {soff} offen {ntf}lds
              s_add_u32 {soff}, {soff}, {sstep}
              s_add_u32 m0, m0, {m0step}
              s_sub_u32 s38, s38, 1
              s_cmp_lg_u32 s38, 0
              s_cbranch_scc1 {l}""")

    def rnd(self, d, s):
        self.a(f"""v_cvt_pk_bf16_f32 {d}, {s}, {s}
                   v_and_b32 {d}, 0xffff0000, {d}""")

    def unpack(self, lo, hi, src):
        self.a(f"""v_lshlrev_b32 {lo}, 16, {src}
                   v_and_b32 {hi}, 0xffff0000, {src}""")

    def wave_sum(self, v, t):
        a = self.a
        for pat in ("quad_perm:[1,0,3,2]", "quad_perm:[2,3,0,1]", "row_half_mirror", "row_mirror"):
            a(f"v_add_f32_dpp {v}, {v}, {v} {pat} row_mask:0xf bank_mask:0xf")
        a(f"""v_mov_b32 {t}, {v}
              v_permlane16_swap_b32 {v}, {t}
              v_add_f32 {v}, {v}, {t}
              v_mov_b32 {t}, {v}
              v_permlane32_swap_b32 {v}, {t}
              v_add_f32 {v}, {v}, {t}""")

    def ln_stats(self, x, vm, vsd, vrc, t):
        a = self.a
        t0, t1, t2, t3 = [f"v{t+i}" for i in range(4)]
        a(f"""v_add_f32 {t0}, v{x}, v{x+1}
              v_add_f32 {t1}, v{x+2}, v{x+3}
              v_add_f32 {t2}, v{x+4}, v{x+5}
              v_add_f32 {t3}, v{x+6}, v{x+7}
              v_add_f32 {t0}, {t0}, {t1}
              v_add_f32 {t2}, {t2}, {t3}
              v_add_f32 {t0}, {t0}, {t2}""")
        self.wave_sum(t0, t1)
        a(f"v_mul_f32 {t0}, 0x3b000000, {t0}")
        a(f"v_sub_f32 {t1}, v{x}, {t0}")
        a(f"v_mul_f32 {t2}, {t1}, {t1}")
        for k in range(1, 8):
            tt = t1 if k % 2 == 0 else t3
            a(f"""v_sub_f32 {tt}, v{x+k}, {t0}
                  v_fmac_f32 {t2}, {tt}, {tt}""")
        self.wave_sum(t2, t1)
        a(f"v_mul_f32 {t2}, 0x3b000000, {t2}")
        self.rnd(t2, t2)
        a(f"v_add_f32 {t2}, 0x3727c5ac, {t2}")
        self.rnd(t2, t2)
        a(f"v_sqrt_f32 {t2}, {t2}")
        self.rnd(vsd, t2)
        self.rnd(vm, t0)
        a(f"v_rcp_f32 {vrc}, {vsd}")

    def ln_elem(self, d, x, vm, vsd, vrc, t0, t1):
        a = self.a
        a(f"v_sub_f32 {t0}, {x}, {vm}")
        self.rnd(t0, t0)
        a(f"""v_mul_f32 {d}, {t0}, {vrc}
              v_fma_f32 {t1}, -{d}, {vsd}, {t0}
              v_fma_f32 {d}, {t1}, {vrc}, {d}""")
        self.rnd(d, d)

    def silu4(self, x, t):
        a = self.a
        a("""s_mov_b32 s94, 0xbfb8aa3b
             s_mov_b32 s95, 0xb2a57060""")
        for k in range(4):
            xv = f"v{x+k}"
            e, r = f"v{t+k}", f"v{t+4+k}"
            a(f"""v_mul_f32 {e}, 0xbfb8aa3b, {xv}
                  v_fma_f32 {r}, {xv}, s94, -{e}
                  v_fma_f32 {r}, {xv}, s95, {r}
                  v_exp_f32 {e}, {e}
                  v_mul_f32 {r}, 0x3f317218, {r}
                  v_add_f32 {r}, 1.0, {r}
                  v_mul_f32 {e}, {e}, {r}
                  v_add_f32 {e}, 1.0, {e}
                  v_rcp_f32 {r}, {e}
                  v_cmp_eq_f32 vcc, 0x7f800000, {e}
                  v_mul_f32 v{t+8}, {xv}, {r}
                  v_fma_f32 v{t+9}, -v{t+8}, {e}, {xv}
                  v_fma_f32 v{t+9}, v{t+9}, {r}, v{t+8}
                  v_cndmask_b32 {xv}, v{t+9}, v{t+8}, vcc""")

    def perm_pos_bytes(self, d, kq, t):
        self.a(f"""v_lshrrev_b32 {d}, 3, {kq}
                   v_lshlrev_b32 {d}, 6, {d}
                   v_and_b32 {t}, 3, {kq}
                   v_lshl_add_u32 {d}, {t}, 4, {d}
                   v_bfe_u32 {t}, {kq}, 2, 1
                   v_lshl_add_u32 {d}, {t}, 3, {d}""")

    def select_tiles(self, D):
        a = self.a
        for t in range(1, 4):
            m = 0x000F000F << (4 * t)
            a(f"""s_mov_b32 exec_lo, {m:#x}
                  s_mov_b32 exec_hi, {m:#x}""")
            for r in range(4):
                a(f"v_mov_b32 v{D[0]+r}, v{D[t]+r}")
        a("s_mov_b64 exec, -1")

    def red_rows(self, x):
        a = self.a
        for r in range(4):
            a(f"v_add_f32_dpp v{x+r}, v{x+r}, v{x+r} row_ror:8 row_mask:0xf bank_mask:0xf")
        a(f"""v_permlane16_swap_b32 v{x}, v{x+1}
              v_permlane16_swap_b32 v{x+2}, v{x+3}
              v_add_f32 v{x}, v{x}, v{x+1}
              v_add_f32 v{x+2}, v{x+2}, v{x+3}
              v_permlane32_swap_b32 v{x}, v{x+2}
              v_add_f32 v{x}, v{x}, v{x+2}""")

    def rows_to_quad(self, c, d, h, t):
        a = self.a
        a(f"""v_mov_b32 {c}, {h}
              v_mov_b32 {t}, {h}
              v_permlane16_swap_b32 {c}, {t}
              v_cvt_pk_bf16_f32 {c}, {c}, {t}
              v_mov_b32 {d}, {c}
              v_permlane32_swap_b32 {c}, {d}""")

    def tr_addr_p128(self, d, tile_t, base_s, t0, t1):
        a = self.a
        a(f"""v_lshrrev_b32 {t0}, 4, v0
              v_lshlrev_b32 {d}, 9, {t0}
              v_and_b32 {t0}, 1, {t0}
              v_lshlrev_b32 {t0}, 6, {t0}
              v_bfe_u32 {t1}, v0, 2, 2
              v_lshl_add_u32 {d}, {t1}, 7, {d}
              v_lshrrev_b32 {t1}, 1, {t1}
              v_lshl_or_b32 {t0}, {t1}, 5, {t0}
              v_xor_b32 {t0}, {tile_t}, {t0}
              v_add_u32 {d}, {d}, {t0}
              v_and_b32 {t1}, 3, v0
              v_lshl_add_u32 {d}, {t1}, 3, {d}
              v_add_u32 {d}, {base_s}, {d}""")

    def dma_off_p128(self, d, pitch, t0, t1):
        a = self.a
        a(f"""v_lshrrev_b32 {t0}, 4, v0
              v_lshlrev_b32 {t0}, 1, {t0}
              v_and_b32 {t1}, 7, v0
              v_xor_b32 {t0}, {t0}, {t1}
              v_lshlrev_b32 {t0}, 4, {t0}
              v_lshrrev_b32 {t1}, 3, v0
              v_mul_u32_u24 {t1}, {pitch}, {t1}
              v_add_u32 {d}, {t0}, {t1}""")

    def act_addr(self, d, base, pitch, t0):
        a = self.a
        a(f"""v_and_b32 {t0}, 3, v0
              v_mul_u32_u24 {d}, {pitch}, {t0}
              v_lshrrev_b32 {t0}, 4, v0
              v_lshl_add_u32 {d}, {t0}, 4, {d}
              v_add_u32 {d}, {base}, {d}""")

    def frags(self, F, vaddr, nsteps, step_off, half_off, off0=0):
        a = self.a
        for s in range(nsteps):
            for h in range(2):
                o = off0 + s * step_off + h * half_off
                a(f"ds_read_b64_tr_b16 v[{F+4*s+2*h}:{F+4*s+2*h+1}], {vaddr} offset:{o}")

    def gemv16(self, D, F, vact, A):
        a = self.a
        for s in range(8):
            a(f"ds_read_b128 v[{A+4*s}:{A+4*s+3}], {vact} offset:{64*s}")
        for s in range(16):
            if s < 8:
                a(f"ds_read_b128 v[{A+4*(s+8)}:{A+4*(s+8)+3}], {vact} offset:{64*(s+8)}")
                a("s_waitcnt lgkmcnt(8)")
            else:
                a(f"s_waitcnt lgkmcnt({15-s})")
            c = "0" if s == 0 else f"v[{D}:{D+3}]"
            a(f"v_mfma_f32_16x16x32_bf16 v[{D}:{D+3}], v[{F+4*s}:{F+4*s+3}], v[{A+4*s}:{A+4*s+3}], {c}")

    def prologue(self):
        a = self.a
        a(f"""s_cmp_ge_u32 s2, 256
              s_cbranch_scc1 L_END
              s_load_dwordx16 s[4:19], s[0:1], 0
              s_load_dwordx8 s[20:27], s[0:1], 64
              s_load_dwordx4 s[28:31], s[0:1], 96""")
        if self.o['PROF']:
            a("s_memrealtime s[96:97]")
        a(f"""v_lshrrev_b32 v1, 6, v0
              v_and_b32 v0, 63, v0
              v_readfirstlane_b32 {sWAVE}, v1
              s_and_b32 {sG}, s2, 7
              s_lshr_b32 {sJ}, s2, 3
              s_waitcnt lgkmcnt(0)""")
        if self.o['PROF']:
            a("s_mov_b32 s70, s96")
            for k in range(1, 16):
                a(f"s_mov_b32 s{70+k}, 0")
            self.stamp(14)
        if self.o['PF']:
            l = self.lab('pf')
            a(f"""s_cmp_eq_u32 {sWAVE}, 7
                  s_cbranch_scc0 {l}
                  s_getpc_b64 s[56:57]""")
            a.label('L_PC')
            a(f"""s_lshl_b32 s58, {sJ}, 10
                  v_lshl_add_u32 v1, v0, 4, s58
                  v_min_u32 v1, (L_END-L_PC-16)&0xfffffff0, v1
                  v_mov_b32 v3, s57
                  v_add_co_u32 v2, vcc, s56, v1
                  v_addc_co_u32 v3, vcc, 0, v3, vcc
                  global_load_dwordx4 v[200:203], v[2:3], off""")
            a.label(l)
        self.srd(40, sWS, WS_SIZE)
        a(f"""s_load_dword {sE}, s[{sWS}:{sWS+1}], {WS_EPOCH}
              s_cmp_lt_u32 {sJ}, 8
              s_cbranch_scc1 L_ROLE_M
              s_cmp_lt_u32 {sJ}, 16
              s_cbranch_scc1 L_ROLE_W
              s_cmp_lt_u32 {sJ}, 24
              s_cbranch_scc1 L_ROLE_K
              s_branch L_ROLE_V""")

    def role_v(self):
        a = self.a
        RED, ST = 131072, 139776
        F = 64
        a.label("L_ROLE_V")
        a(f"""s_sub_u32 s56, {sJ}, 24
              s_lshr_b32 s57, s56, 1
              s_and_b32 s58, s56, 1
              s_lshl_b32 s60, s57, 3
              s_add_u32 s60, s60, {sG}
              s_lshl_b32 s59, s60, 20
              s_add_u32 s59, s59, {3072*256}
              s_lshl_b32 s61, s58, 7
              s_add_u32 s59, s59, s61
              s_lshl_b32 s61, {sWAVE}, 15
              s_add_u32 s59, s59, s61
              s_lshl_b32 s62, {sWAVE}, 14
              s_mov_b32 m0, s62""")
        self.srd(44, sV, 0x2000000)
        self.dma_off_p128('v32', 256, 'v1', 'v2')
        if self.o['VWAIT']:
            a("s_waitcnt lgkmcnt(0)")
        self.stamp(15)
        self.only_exit('V', pre=True)
        self.dma_loop('v32', R1, 's59', 2048, 16)
        self.only_exit('V')
        a(f"""v_bfe_u32 v1, v0, 2, 2
              v_lshlrev_b32 v33, 9, v1
              v_lshrrev_b32 v2, 4, v0
              v_lshl_add_u32 v33, v2, 6, v33
              v_and_b32 v3, 3, v0
              v_lshl_add_u32 v33, v3, 4, v33
              s_lshl_b32 s59, s60, 14
              s_add_u32 s59, s59, {WS_S}
              s_lshl_b32 s61, {sWAVE}, 11
              s_add_u32 s59, s59, s61""")
        a(f"""v_mul_u32_u24 v38, 272, v3
              v_lshl_add_u32 v38, v1, 6, v38
              v_lshl_add_u32 v38, v2, 4, v38
              s_mul_i32 s61, {sWAVE}, 1088
              s_add_u32 s61, s61, {RED}
              v_add_u32 v38, s61, v38
              v_lshlrev_b32 v39, 6, v3
              v_add_u32 v40, {ST}, v39
              s_lshl_b32 s61, {sWAVE}, 3
              v_add_u32 v39, s61, v40""")
        for t in range(4):
            self.tr_addr_p128(f'v{34+t}', 32 * t, 's62', 'v1', 'v2')
        self.tag_ready()
        self.stamp(1)

        def first():
            self.stamp(2)
            for s in range(4):
                for t in range(4):
                    for h in range(2):
                        q = F + 16 * s + 4 * t + 2 * h
                        a(f"ds_read_b64_tr_b16 v[{q}:{q+1}], v{34+t} offset:{4096*s+2048*h}")
                if s < 3:
                    a("s_waitcnt lgkmcnt(6)")
        self.poll('S', [self.gload(4, 'v33', 's59'), self.gload(8, 'v33', 's59', 256)],
                  lambda ok: self.check_tags(['v6', 'v10'], ok), first_extra=first, local=['s59'])
        self.stamp(3)
        self.unpack('v12', 'v13', 'v4')
        self.unpack('v14', 'v15', 'v5')
        self.unpack('v16', 'v17', 'v8')
        self.unpack('v18', 'v19', 'v9')
        a("""v_max3_f32 v20, v12, v13, v14
             v_max3_f32 v21, v15, v16, v17
             v_max3_f32 v20, v20, v18, v19
             v_max_f32 v20, v20, v21
             v_max_f32_dpp v20, v20, v20 row_ror:4 row_mask:0xf bank_mask:0xf
             v_max_f32_dpp v20, v20, v20 row_ror:8 row_mask:0xf bank_mask:0xf
             v_mov_b32 v21, v20
             v_permlane16_swap_b32 v20, v21
             v_max_f32 v20, v20, v21
             v_mov_b32 v21, v20
             v_permlane32_swap_b32 v20, v21
             v_max_f32 v20, v20, v21""")
        for k in range(8):
            a(f"v_sub_f32 v{12+k}, v{12+k}, v20")
        for k in range(8):
            a(f"v_mul_f32 v{12+k}, 0x3fb8aa3b, v{12+k}")
        for k in range(8):
            a(f"v_exp_f32 v{12+k}, v{12+k}")
        a("""v_add_f32 v22, v12, v13
             v_add_f32 v23, v14, v15
             v_add_f32 v24, v16, v17
             v_add_f32 v25, v18, v19
             v_add_f32 v22, v22, v23
             v_add_f32 v24, v24, v25
             v_add_f32 v21, v22, v24
             v_add_f32_dpp v21, v21, v21 row_ror:4 row_mask:0xf bank_mask:0xf
             v_add_f32_dpp v21, v21, v21 row_ror:8 row_mask:0xf bank_mask:0xf
             v_mov_b32 v22, v21
             v_permlane16_swap_b32 v21, v22
             v_add_f32 v21, v21, v22
             v_mov_b32 v22, v21
             v_permlane32_swap_b32 v21, v22
             v_add_f32 v21, v21, v22
             s_mov_b64 exec, 0xf
             ds_write_b64 v39, v[20:21]
             s_mov_b64 exec, -1
             s_waitcnt lgkmcnt(0)
             s_barrier
             ds_read_b128 v[44:47], v40
             ds_read_b128 v[48:51], v40 offset:16
             ds_read_b128 v[52:55], v40 offset:32
             ds_read_b128 v[56:59], v40 offset:48
             s_waitcnt lgkmcnt(0)
             v_max3_f32 v22, v44, v46, v48
             v_max3_f32 v23, v50, v52, v54
             v_max3_f32 v22, v22, v56, v58
             v_max_f32 v22, v22, v23""")
        for k in range(8):
            a(f"v_sub_f32 v{44+2*k}, v{44+2*k}, v22")
        a("v_sub_f32 v20, v20, v22")
        for k in range(8):
            a(f"v_mul_f32 v{44+2*k}, 0x3fb8aa3b, v{44+2*k}")
        a("v_mul_f32 v20, 0x3fb8aa3b, v20")
        for k in range(8):
            a(f"v_exp_f32 v{44+2*k}, v{44+2*k}")
        a("""v_exp_f32 v20, v20
             v_mul_f32 v23, v44, v45""")
        for k in range(1, 8):
            a(f"v_fmac_f32 v23, v{44+2*k}, v{45+2*k}")
        a("""v_rcp_f32 v23, v23
             v_mul_f32 v20, v20, v23""")
        for k in range(8):
            a(f"v_mul_f32 v{12+k}, v{12+k}, v20")
        for k in range(4):
            a(f"v_cvt_pk_bf16_f32 v{44+k}, v{12+2*k}, v{13+2*k}")
        for rho, n in ((1, 12), (2, 8), (3, 4)):
            for k in range(4):
                a(f"v_mov_b32_dpp v{44+4*rho+k}, v{44+k} row_ror:{n} row_mask:0xf bank_mask:0xf")
        D = [4, 8, 12, 16]
        for s in range(4):
            for t in range(4):
                rho = (s - t) & 3
                q = F + 16 * s + 4 * t
                c = "0" if s == 0 else f"v[{D[t]}:{D[t]+3}]"
                a(f"v_mfma_f32_16x16x32_bf16 v[{D[t]}:{D[t]+3}], v[{q}:{q+3}], v[{44+4*rho}:{47+4*rho}], {c}")
        self.select_tiles(D)
        a("""ds_write_b128 v38, v[4:7]
             s_waitcnt lgkmcnt(0)
             s_barrier""")
        self.stamp(4)
        done = self.lab('vdone')
        a(f"""s_cmp_eq_u32 {sWAVE}, 0
              s_cbranch_scc0 {done}
              v_lshrrev_b32 v1, 4, v0
              v_mul_u32_u24 v1, 272, v1
              v_and_b32 v2, 15, v0
              v_lshl_add_u32 v1, v2, 4, v1
              v_add_u32 v1, {RED}, v1""")
        for w in range(8):
            a(f"ds_read_b128 v[{64+4*w}:{67+4*w}], v1 offset:{1088*w}")
        a(f"""s_lshl_b32 s59, {sG}, 2
              s_add_u32 s59, s59, s57
              s_lshl_b32 s59, s59, 1
              s_add_u32 s59, s59, s58
              s_lshl_b32 s59, s59, 10
              s_add_u32 s59, s59, {WS_C}
              v_lshlrev_b32 v2, 4, v0""")
        for w in range(1, 8):
            a(f"s_waitcnt lgkmcnt({7-w})")
            for r in range(4):
                a(f"v_add_f32 v{64+r}, v{64+r}, v{64+4*w+r}")
        a(f"""v_cvt_pk_bf16_f32 v4, v64, v65
              v_cvt_pk_bf16_f32 v5, v66, v67
              v_mov_b32 v6, {sTAG}
              v_mov_b32 v7, 0""")
        self.gstore(4, 'v2', 's59', local=True)
        self.stamp(5)
        a.label(done)
        self.stamps_out(16)
        a("s_endpgm")

    def role_k(self):
        a = self.a
        QL, SC2 = 131072, 132224
        F = 64
        a.label("L_ROLE_K")
        a(f"""s_sub_u32 s56, {sJ}, 16
              s_lshr_b32 s57, s56, 1
              s_and_b32 s58, s56, 1
              s_lshl_b32 s66, {sG}, 3
              s_add_u32 s66, s66, s56
              s_and_b32 s67, s66, 1""")
        self.srd(48, sC, 4096)
        skipc = self.lab('kc')
        a(f"""s_cmp_lt_u32 {sWAVE}, 4
              s_cbranch_scc0 {skipc}
              s_lshl_b32 s61, {sWAVE}, 10
              s_lshl_b32 s68, s67, 9
              s_add_u32 s61, s61, s68
              v_lshlrev_b32 v1, 3, v0
              buffer_load_dwordx2 v[24:25], v1, {R2}, s61 offen""")
        a.label(skipc)
        a(f"""s_lshl_b32 s60, s57, 3
              s_add_u32 s60, s60, {sG}
              s_lshl_b32 s59, s60, 20
              s_add_u32 s59, s59, {3072*256}
              s_lshl_b32 s61, s58, 17
              s_add_u32 s59, s59, s61
              s_lshl_b32 s61, {sWAVE}, 14
              s_add_u32 s59, s59, s61
              s_mov_b32 m0, s61
              s_mov_b32 s62, s61""")
        self.srd(44, sK, 0x2000000)
        a("""v_lshrrev_b32 v1, 4, v0
             v_and_b32 v2, 15, v0""")
        for v in range(4):
            a(f"""v_add_u32 v3, {4*v}, v1
                  v_xor_b32 v3, v3, v2
                  v_lshlrev_b32 v3, 4, v3
                  v_lshl_add_u32 v{32+v}, v1, 8, v3""")
        l = self.lab('kdma')
        if self.o['KWAIT']:
            a("s_waitcnt lgkmcnt(0)")
        self.stamp(15)
        self.only_exit('K', pre=True)
        a("s_mov_b32 s38, 4")
        a.label(l)
        for v in range(4):
            i = f" offset:{1024*v}" if v else ""
            a(f"buffer_load_dwordx4 v{32+v}, {R1}, s59 offen{i} {self.nt()}lds")
        a(f"""s_add_u32 s59, s59, 4096
              s_add_u32 m0, m0, 4096
              s_sub_u32 s38, s38, 1
              s_cmp_lg_u32 s38, 0
              s_cbranch_scc1 {l}""")
        self.only_exit('K')
        for t in range(4):
            a(f"""v_and_b32 v3, 12, v2
                  v_xor_b32 v3, {4*t}, v3
                  v_and_b32 v4, 3, v2
                  v_xor_b32 v4, v4, v1
                  v_add_u32 v3, v3, v4
                  v_lshlrev_b32 v3, 4, v3
                  v_lshl_add_u32 v3, v2, 8, v3
                  v_add_u32 v{36+t}, s62, v3""")
        skips = self.lab('ks')
        a(f"""s_cmp_lt_u32 {sWAVE}, 4
              s_cbranch_scc0 {skips}
              s_waitcnt vmcnt(16)""")
        self.unpack('v8', 'v9', 'v24')
        self.unpack('v10', 'v11', 'v25')
        self.silu4(8, 12)
        a("""v_cvt_pk_bf16_f32 v8, v8, v9
             v_cvt_pk_bf16_f32 v9, v10, v11""")
        self.perm_pos_bytes('v5', 'v0', 'v6')
        a(f"""s_mul_i32 s61, {sWAVE}, 544
              s_add_u32 s61, s61, {SC2}
              v_add_u32 v5, s61, v5
              ds_write_b64 v5, v[8:9]""")
        a.label(skips)
        a(f"""s_lshl_b32 s61, {sWAVE}, 6
              v_add_u32 v5, s61, v0
              v_lshrrev_b32 v6, 2, v5
              v_lshlrev_b32 v6, 8, v6
              v_and_b32 v7, 3, v5
              v_lshl_add_u32 v40, v7, 4, v6
              v_lshrrev_b32 v6, 5, v5
              v_mul_u32_u24 v6, 288, v6
              v_and_b32 v7, 31, v5
              v_lshl_add_u32 v6, v7, 3, v6
              v_add_u32 v41, {QL}, v6
              s_lshl_b32 s59, {sG}, 13
              s_lshl_b32 s61, s57, 6
              s_add_u32 s59, s59, s61
              s_add_u32 s59, s59, {WS_B}""")
        self.act_addr('v42', QL, 288, 'v5')
        a(f"""v_bfe_u32 v5, v0, 2, 2
              v_lshl_add_u32 v5, v5, 2, v1
              v_lshlrev_b32 v5, 6, v5
              v_and_b32 v6, 3, v0
              v_lshl_add_u32 v43, v6, 4, v5
              s_lshl_b32 s63, s60, 14
              s_add_u32 s63, s63, {WS_S}
              s_lshl_b32 s61, s58, 13
              s_add_u32 s63, s63, s61
              s_lshl_b32 s61, {sWAVE}, 10
              s_add_u32 s63, s63, s61""")
        self.tag_ready()
        self.stamp(1)

        def kfrags():
            for T in range(4):
                for t in range(4):
                    q = F + 16 * T + 4 * t
                    a(f"ds_read_b128 v[{q}:{q+3}], v{36+t} offset:{4096*T}")
                if T == 2:
                    a("s_waitcnt lgkmcnt(6)")
        nopoll = self.lab('knp')
        join = self.lab('kj')
        a(f"""s_cmp_lt_u32 {sWAVE}, 2
              s_cbranch_scc0 {nopoll}""")

        def first():
            self.stamp(2)
            kfrags()
        self.poll('B', [self.gload(4, 'v40', 's59')], lambda ok: self.check_tags(['v6'], ok), first_extra=first, local=['s59'])
        a(f"""ds_write_b64 v41, v[4:5]
              s_branch {join}""")
        a.label(nopoll)
        a("s_waitcnt vmcnt(0)")
        kfrags()
        a.label(join)
        a("""s_waitcnt lgkmcnt(0)
             s_barrier""")
        self.stamp(3)
        for t in range(4):
            a(f"ds_read_b128 v[{44+4*t}:{47+4*t}], v42 offset:{64*t}")
        D = [4, 8, 12, 16]
        for t in range(4):
            a(f"s_waitcnt lgkmcnt({3-t})")
            for T in range(4):
                q = F + 16 * T + 4 * t
                c = "0" if t == 0 else f"v[{D[T]}:{D[T]+3}]"
                a(f"v_mfma_f32_16x16x32_bf16 v[{D[T]}:{D[T]+3}], v[{q}:{q+3}], v[{44+4*t}:{47+4*t}], {c}")
        self.select_tiles(D)
        a("""v_cvt_pk_bf16_f32 v8, v4, v5
             v_cvt_pk_bf16_f32 v9, v6, v7""")
        self.unpack('v4', 'v5', 'v8')
        self.unpack('v6', 'v7', 'v9')
        for r in range(4):
            a(f"v_mul_f32 v{4+r}, 0x3db504f3, v{4+r}")
        a(f"""v_cvt_pk_bf16_f32 v8, v4, v5
              v_cvt_pk_bf16_f32 v9, v6, v7
              v_mov_b32 v10, {sTAG}
              v_mov_b32 v11, 0""")
        self.gstore(8, 'v43', 's63', local=True)
        self.stamp(4)
        end = self.lab('kend')
        a(f"""s_cmp_lt_u32 s66, 48
              s_cbranch_scc0 {end}
              s_lshr_b32 s68, s66, 4
              s_add_u32 s68, s68, 1
              s_lshr_b32 s69, s66, 1
              s_and_b32 s69, s69, 7""")
        self.srd(48, sWM, 512 * 6144)
        self.dma_off_p128('v32', 6144, 'v1', 'v2')
        a(f"""s_lshl_b32 s59, s67, 8
              s_lshl_b32 s61, {sWAVE}, 5
              s_add_u32 s59, s59, s61
              s_mul_i32 s59, s59, 6144
              s_lshl_b32 s61, s68, 10
              s_add_u32 s59, s59, s61
              s_lshl_b32 s61, s69, 7
              s_add_u32 s59, s59, s61
              s_add_u32 s59, s59, 2048
              s_mov_b32 m0, s62""")
        self.dma_loop('v32', R2, 's59', 8 * 6144, 4)
        a(f"s_lshl_b32 s61, {sWAVE}, 5")
        self.tr_addr_p128('v33', 's61', '0', 'v1', 'v2')
        a("v_add_u32 v34, 65536, v33")
        self.act_addr('v35', SC2, 544, 'v1')
        a(f"""v_lshrrev_b32 v1, 5, v0
              v_lshlrev_b32 v36, 10, v1
              v_and_b32 v1, 3, v0
              v_lshl_add_u32 v36, v1, 5, v36
              v_bfe_u32 v1, v0, 4, 1
              v_lshl_add_u32 v36, v1, 4, v36
              s_lshl_b32 s59, s69, 13
              s_lshl_b32 s61, {sWAVE}, 11
              s_add_u32 s59, s59, s61
              s_lshl_b32 s61, s68, 8
              s_add_u32 s59, s59, s61
              s_lshl_b32 s61, s67, 7
              s_add_u32 s59, s59, s61
              s_add_u32 s59, s59, {WS_ML}""")
        self.sel_consts()
        self.tagbytes(28)
        a("""s_waitcnt vmcnt(0)
             s_barrier""")
        a(f"""s_cmp_lt_u32 {sWAVE}, 4
              s_cbranch_scc0 {end}""")
        for s in range(8):
            va = 'v33' if s < 4 else 'v34'
            for h in range(2):
                q = F + 4 * s + 2 * h
                a(f"ds_read_b64_tr_b16 v[{q}:{q+1}], {va} offset:{16384*(s&3)+2048*h}")
            if s == 3:
                a("s_waitcnt lgkmcnt(0)")
        a("s_waitcnt lgkmcnt(0)")
        for s in range(8):
            a(f"ds_read_b128 v[{96+4*s}:{99+4*s}], v35 offset:{64*s}")
        for s in range(8):
            a(f"s_waitcnt lgkmcnt({7-s})")
            c = "0" if s == 0 else "v[4:7]"
            a(f"v_mfma_f32_16x16x32_bf16 v[4:7], v[{F+4*s}:{F+4*s+3}], v[{96+4*s}:{99+4*s}], {c}")
        self.steal(4, 28)
        a("s_mov_b32 exec_lo, 0x000f000f")
        a("s_mov_b32 exec_hi, 0x000f000f")
        self.gstore(4, 'v36', 's59')
        a("s_mov_b64 exec, -1")
        self.stamp(5)
        a.label(end)
        self.stamps_out(16)
        a("s_endpgm")

    def role_m(self):
        a = self.a
        M1W, SC, STAT = 0, 16384, 17024
        GATE, UP, DOWN, H2, GU = 32768, 65536, 98304, 131072, 135296
        F = 64
        a.label("L_ROLE_M")
        self.srd(48, sC, 4096)
        self.srd(52, sX, 4096)
        l4 = self.lab('m4')
        lx = self.lab('mx')
        a(f"""s_cmp_lt_u32 {sWAVE}, 4
              s_cbranch_scc0 {l4}
              s_lshl_b32 s61, {sWAVE}, 10
              v_lshlrev_b32 v1, 4, v0
              buffer_load_dwordx4 v[24:27], v1, {R3}, s61 offen
              v_bfe_u32 v1, v0, 1, 2
              v_lshlrev_b32 v1, 10, v1
              v_and_b32 v2, 1, v0
              v_lshl_add_u32 v1, v2, 3, v1
              v_lshrrev_b32 v2, 4, v0
              v_lshl_add_u32 v1, v2, 1, v1
              s_lshl_b32 s61, {sG}, 7
              s_lshl_b32 s56, {sJ}, 4
              s_add_u32 s61, s61, s56
              buffer_load_ushort v28, v1, {R3}, s61 offen
              s_branch {lx}""")
        a.label(l4)
        a(f"""s_cmp_eq_u32 {sWAVE}, 4
              s_cbranch_scc0 {lx}
              v_lshrrev_b32 v1, 4, v0
              v_lshlrev_b32 v1, 10, v1
              v_and_b32 v2, 15, v0
              v_lshl_add_u32 v1, v2, 3, v1
              s_lshl_b32 s61, {sJ}, 7
              buffer_load_dwordx2 v[24:25], v1, {R2}, s61 offen""")
        a.label(lx)
        self.srd(44, sWM, 512 * 6144)
        for e in range(2):
            a(f"""v_lshrrev_b32 v1, 4, v0
                  v_add_u32 v2, {4*e}, v1
                  v_lshlrev_b32 v2, 1, v2
                  v_and_b32 v3, 15, v0
                  v_xor_b32 v2, v2, v3
                  v_and_b32 v3, 7, v2
                  v_lshlrev_b32 v3, 4, v3
                  v_lshrrev_b32 v2, 3, v2
                  v_lshl_add_u32 v3, v2, 10, v3
                  v_mul_u32_u24 v1, 6144, v1
                  v_add_u32 v{32+e}, v1, v3""")
        a(f"""s_lshl_b32 s59, {sJ}, 6
              s_lshl_b32 s61, {sWAVE}, 3
              s_add_u32 s59, s59, s61
              s_mul_i32 s59, s59, 6144
              s_lshl_b32 s61, {sG}, 7
              s_add_u32 s59, s59, s61
              s_lshl_b32 s61, {sWAVE}, 11
              s_mov_b32 m0, s61""")
        self.stamp(15)
        self.only_exit('M', pre=True)
        a(f"""s_nop 0
              buffer_load_dwordx4 v32, {R1}, s59 offen {self.nt()}lds
              s_add_u32 s59, s59, {4*6144}
              s_add_u32 m0, m0, 1024
              s_nop 0
              buffer_load_dwordx4 v33, {R1}, s59 offen {self.nt()}lds""")
        self.only_exit('M')
        a(f"""v_lshrrev_b32 v1, 4, v0
              v_bfe_u32 v2, v0, 2, 2
              v_lshl_add_u32 v3, v1, 2, v2
              v_lshlrev_b32 v34, 8, v3
              v_and_b32 v3, 1, v1
              v_lshlrev_b32 v3, 3, v3
              v_lshl_add_u32 v3, v2, 1, v3
              s_lshl_b32 s61, {sWAVE}, 1
              v_xor_b32 v3, s61, v3
              v_lshl_add_u32 v34, v3, 4, v34
              v_and_b32 v3, 3, v0
              v_lshl_add_u32 v34, v3, 3, v34""")
        self.act_addr('v35', SC, 160, 'v1')
        a(f"""v_lshrrev_b32 v1, 5, v0
              v_lshlrev_b32 v36, 12, v1
              v_bfe_u32 v1, v0, 2, 1
              v_lshl_add_u32 v36, v1, 10, v36
              v_and_b32 v1, 3, v0
              v_lshl_add_u32 v36, v1, 5, v36
              v_bfe_u32 v1, v0, 4, 1
              v_lshl_add_u32 v36, v1, 4, v36
              s_lshl_b32 s60, {sG}, 15
              s_and_b32 s61, {sWAVE}, 3
              s_lshl_b32 s61, s61, 13
              s_add_u32 s60, s60, s61
              s_lshr_b32 s61, {sWAVE}, 2
              s_lshl_b32 s61, s61, 11
              s_add_u32 s60, s60, s61
              s_lshl_b32 s61, {sJ}, 7
              s_add_u32 s60, s60, s61
              s_add_u32 s60, s60, {WS_A1}""")
        ls = self.lab('ms')
        lb = self.lab('mb')
        a(f"""s_cmp_lt_u32 {sWAVE}, 4
              s_cbranch_scc0 {ls}
              s_waitcnt vmcnt(3)""")
        for k in range(4):
            self.unpack(f'v{8+2*k}', f'v{9+2*k}', f'v{24+k}')
        self.ln_stats(8, 'v20', 'v21', 'v22', 16)
        a(f"""s_lshl_b32 s61, {sWAVE}, 3
              s_add_u32 s61, s61, {STAT}
              v_mov_b32 v1, s61
              s_mov_b64 exec, 1
              ds_write_b64 v1, v[20:21]
              s_mov_b64 exec, -1
              s_branch {lb}""")
        a.label(ls)
        a(f"""s_cmp_eq_u32 {sWAVE}, 4
              s_cbranch_scc0 {lb}
              s_waitcnt vmcnt(2)""")
        self.unpack('v8', 'v9', 'v24')
        self.unpack('v10', 'v11', 'v25')
        self.silu4(8, 12)
        a("""v_cvt_pk_bf16_f32 v8, v8, v9
             v_cvt_pk_bf16_f32 v9, v10, v11
             v_and_b32 v4, 15, v0""")
        self.perm_pos_bytes('v5', 'v4', 'v6')
        a(f"""v_lshrrev_b32 v6, 4, v0
              v_mul_u32_u24 v6, 160, v6
              v_add_u32 v5, v5, v6
              v_add_u32 v5, {SC}, v5
              ds_write_b64 v5, v[8:9]""")
        a.label(lb)
        a("""s_waitcnt vmcnt(0) lgkmcnt(0)
             s_barrier""")
        self.stamp(1)
        self.frags(F, 'v34', 2, 8192, 4096)
        a("""ds_read_b128 v[72:75], v35
             ds_read_b128 v[76:79], v35 offset:64
             s_waitcnt lgkmcnt(0)
             v_mfma_f32_16x16x32_bf16 v[4:7], v[64:67], v[72:75], 0
             v_mfma_f32_16x16x32_bf16 v[4:7], v[68:71], v[76:79], v[4:7]""")
        self.tag_ready()
        a(f"""s_mov_b32 exec_lo, 0x00f000f0
              s_mov_b32 exec_hi, 0x00f000f0
              v_mov_b32 v4, v6
              v_mov_b32 v5, v7
              s_mov_b32 exec_lo, 0x00ff00ff
              s_mov_b32 exec_hi, 0x00ff00ff
              v_mov_b32 v6, {sTAG}
              v_mov_b32 v7, 0""")
        self.gstore(4, 'v36', 's60', local=True)
        a("s_mov_b64 exec, -1")
        self.stamp(2)
        lh = self.lab('mh')
        a(f"""s_cmp_eq_u32 {sWAVE}, 0
              s_cbranch_scc0 {lh}
              v_bfe_u32 v1, v0, 1, 2
              v_lshlrev_b32 v1, 3, v1
              v_add_u32 v1, {STAT}, v1
              ds_read_b64 v[20:21], v1
              v_lshlrev_b32 v28, 16, v28
              s_lshl_b32 s59, {sG}, 3
              s_add_u32 s59, s59, {sJ}
              s_lshl_b32 s59, s59, 12
              s_add_u32 s59, s59, {WS_A1}
              v_lshlrev_b32 v2, 4, v0
              s_waitcnt lgkmcnt(0)
              v_rcp_f32 v22, v21""")
        self.ln_elem('v29', 'v28', 'v20', 'v21', 'v22', 'v23', 'v30')
        self.poll('A1', [self.gload(4 + 4 * m, 'v2', 's59', 1024 * m) for m in range(4)],
                  lambda ok: self.check_tags(['v6', 'v10', 'v14', 'v18'], ok), local=['s59'])
        self.stamp(3)
        a("""v_mov_b32 v6, v8
             v_mov_b32 v7, v9
             v_mov_b32 v14, v16
             v_mov_b32 v15, v17""")
        self.red_rows(4)
        self.red_rows(12)
        self.rnd('v4', 'v4')
        self.rnd('v12', 'v12')
        a("v_add_f32 v12, 1.0, v12")
        self.rnd('v12', 'v12')
        a("v_mul_f32 v12, v29, v12")
        self.rnd('v12', 'v12')
        a("v_add_f32 v12, v12, v4")
        self.rows_to_quad('v4', 'v5', 'v12', 'v8')
        a(f"""v_mov_b32 v6, {sTAG}
              v_mov_b32 v7, 0
              s_lshl_b32 s59, {sG}, 3
              s_add_u32 s59, s59, {sJ}
              s_lshl_b32 s59, s59, 7
              s_add_u32 s59, s59, {WS_A2}
              s_mov_b64 exec, 0xff""")
        self.gstore(4, 'v2', 's59')
        a("s_mov_b64 exec, -1")
        self.stamp(4)
        if self.o['MTRIG']:
            a(f"""v_lshlrev_b32 v2, 10, v0
                  s_lshl_b32 s59, {sG}, 13
                  s_add_u32 s59, s59, {WS_B}
                  s_mov_b64 exec, 0xff""")
            self.poll('T', [self.gload(4, 'v2', 's59')], lambda ok: self.check_tags(['v6'], ok), local=['s59'])
            a("s_mov_b64 exec, -1")
        a.label(lh)
        a("s_barrier")
        a(f"""s_cmp_eq_u32 {sJ}, 7
              s_cbranch_scc1 L_ROLE_GA""")
        a(f"""s_mul_i32 s66, {sG}, 7
              s_add_u32 s66, s66, {sJ}""")
        self.srd(44, sWG, 512 * 3584)
        self.srd(48, sWU, 512 * 3584)
        self.srd(52, sWD, 1792 * 1024)
        a(f"""v_lshrrev_b32 v1, 2, v0
              v_mul_u32_u24 v1, 3584, v1
              v_bfe_u32 v2, v0, 4, 1
              v_lshlrev_b32 v2, 1, v2
              v_and_b32 v3, 3, v0
              v_xor_b32 v2, v2, v3
              v_lshl_add_u32 v32, v2, 4, v1
              s_lshl_b32 s59, {sWAVE}, 6
              s_mul_i32 s59, s59, 3584
              s_lshl_b32 s61, s66, 6
              s_add_u32 s59, s59, s61
              s_mov_b32 s60, s59
              s_lshl_b32 s61, {sWAVE}, 12
              s_add_u32 s61, s61, {GATE}
              s_mov_b32 m0, s61""")
        self.dma_loop('v32', R1, 's59', 16 * 3584, 4)
        a(f"""s_add_u32 s61, s61, {UP-GATE}
              s_mov_b32 m0, s61""")
        self.dma_loop('v32', R2, 's60', 16 * 3584, 4)
        a(f"""s_lshl_b32 s59, s66, 5
              s_lshl_b32 s61, {sWAVE}, 2
              s_add_u32 s59, s59, s61
              s_lshl_b32 s59, s59, 10
              s_lshl_b32 s61, {sWAVE}, 12
              s_add_u32 s61, s61, {DOWN}
              s_mov_b32 m0, s61
              s_and_b32 s62, {sWAVE}, 1
              s_lshl_b32 s62, s62, 3""")
        for n in range(4):
            a(f"""s_add_u32 s63, s62, {2*n}
                  v_xor_b32 v1, s63, v0
                  v_lshlrev_b32 v{40+n}, 4, v1""")
        for n in range(4):
            a(f"""buffer_load_dwordx4 v{40+n}, {R3}, s59 offen {self.nt()}lds
                  s_add_u32 s59, s59, 1024
                  s_add_u32 m0, m0, 1024
                  s_nop 0""")
        a(f"""v_lshrrev_b32 v1, 4, v0
              v_bfe_u32 v2, v0, 2, 2
              v_lshl_add_u32 v3, v1, 2, v2
              v_lshlrev_b32 v33, 6, v3
              v_and_b32 v3, 1, v1
              s_and_b32 s61, {sWAVE}, 1
              v_xor_b32 v3, s61, v3
              v_lshl_add_u32 v33, v3, 5, v33
              v_and_b32 v3, 3, v0
              v_lshl_add_u32 v33, v3, 3, v33
              s_bfe_u32 s61, {sWAVE}, 0x10001
              s_lshl_b32 s61, s61, 15
              s_add_u32 s61, s61, {GATE}
              v_add_u32 v33, s61, v33""")
        for t in range(4):
            a(f"""v_lshl_add_u32 v3, v1, 2, v2
                  v_lshlrev_b32 v4, 10, v3
                  v_and_b32 v3, 7, v3
                  v_lshlrev_b32 v3, 1, v3
                  s_lshl_b32 s61, {sWAVE}, 3
                  s_add_u32 s61, s61, {2*t}
                  v_xor_b32 v3, s61, v3
                  v_lshl_add_u32 v4, v3, 4, v4
                  v_and_b32 v3, 3, v0
                  v_lshl_add_u32 v4, v3, 3, v4
                  v_add_u32 v{34+t}, {DOWN}, v4""")
        self.act_addr('v38', H2, 1056, 'v1')
        self.act_addr('v39', GU, 96, 'v1')
        a(f"""v_lshlrev_b32 v44, 4, v0
              s_lshl_b32 s59, {sG}, 2
              s_add_u32 s59, s59, {sWAVE}
              s_lshl_b32 s59, s59, 12
              s_add_u32 s59, s59, {WS_D}""")
        self.perm_pos_bytes('v45', 'v0', 'v1')
        a(f"""s_mul_i32 s61, {sWAVE}, 1056
              s_add_u32 s61, s61, {H2}
              v_add_u32 v45, s61, v45""")
        a(f"""v_and_b32 v1, 3, v0
              v_mul_u32_u24 v46, 96, v1
              v_lshrrev_b32 v1, 4, v0
              v_lshl_add_u32 v46, v1, 4, v46
              s_and_b32 s61, {sWAVE}, 1
              s_lshl_b32 s61, s61, 3
              s_bfe_u32 s62, {sWAVE}, 0x10001
              s_mul_i32 s62, s62, 384
              s_add_u32 s61, s61, s62
              s_add_u32 s61, s61, {GU}
              v_add_u32 v46, s61, v46""")
        a(f"""v_bfe_u32 v1, v0, 2, 2
              v_lshlrev_b32 v1, 1, v1
              v_lshrrev_b32 v2, 5, v0
              v_add_u32 v1, v1, v2
              v_mul_u32_u24 v47, {56*128}, v1
              v_and_b32 v1, 3, v0
              v_lshl_add_u32 v47, v1, 5, v47
              v_bfe_u32 v1, v0, 4, 1
              v_lshl_add_u32 v47, v1, 4, v47
              s_mul_i32 s63, {sWAVE}, {8*56*128}
              s_lshl_b32 s61, s66, 7
              s_add_u32 s63, s63, s61
              s_add_u32 s63, s63, {WS_E}""")
        self.sel_consts()
        self.tagbytes(48)
        a("""s_waitcnt vmcnt(0)
             s_barrier""")
        self.stamp(5)
        for t in range(4):
            for h in range(2):
                q = 128 + 4 * t + 2 * h
                a(f"ds_read_b64_tr_b16 v[{q}:{q+1}], v{34+t} offset:{16384*h}")
        lw = self.lab('mw')
        a(f"""s_cmp_lt_u32 {sWAVE}, 4
              s_cbranch_scc0 {lw}
              s_waitcnt lgkmcnt(0)""")
        for s in range(16):
            for h in range(2):
                q = F + 4 * s + 2 * h
                a(f"ds_read_b64_tr_b16 v[{q}:{q+1}], v33 offset:{2048*s+1024*h}")
            if s == 6:
                a("s_waitcnt lgkmcnt(0)")
            if s == 13:
                a("s_waitcnt lgkmcnt(0)")
        self.poll('D', [self.gload(4, 'v44', 's59'), self.gload(8, 'v44', 's59', 2048),
                        self.gload(12, 'v44', 's59', 1024), self.gload(16, 'v44', 's59', 3072)],
                  lambda ok: self.check_tags(['v7', 'v11', 'v15', 'v19'], ok), local=['s59'])
        self.stamp(6)
        X = 20
        self.unpack(f'v{X}', f'v{X+1}', 'v4')
        self.unpack(f'v{X+2}', f'v{X+3}', 'v5')
        self.unpack(f'v{X+4}', f'v{X+5}', 'v12')
        self.unpack(f'v{X+6}', f'v{X+7}', 'v13')
        self.ln_stats(X, 'v52', 'v53', 'v54', 28)
        csrc = ['v6', 'v6', 'v8', 'v8', 'v14', 'v14', 'v16', 'v16']
        ssrc = ['v9', 'v9', 'v10', 'v10', 'v17', 'v17', 'v18', 'v18']
        for k in range(8):
            x = f'v{X+k}'
            self.ln_elem(x, x, 'v52', 'v53', 'v54', 'v28', 'v29')
            ext = (lambda d, s: f"v_lshlrev_b32 {d}, 16, {s}") if k % 2 == 0 else (lambda d, s: f"v_and_b32 {d}, 0xffff0000, {s}")
            a(ext('v28', csrc[k]))
            a(ext('v29', ssrc[k]))
            a(f"v_mul_f32 {x}, {x}, v28")
            self.rnd(x, x)
            a(f"v_add_f32 {x}, {x}, v29")
        a(f"""v_cvt_pk_bf16_f32 v4, v{X}, v{X+1}
              v_cvt_pk_bf16_f32 v5, v{X+2}, v{X+3}
              v_cvt_pk_bf16_f32 v6, v{X+4}, v{X+5}
              v_cvt_pk_bf16_f32 v7, v{X+6}, v{X+7}
              ds_write_b64 v45, v[4:5]
              ds_write_b64 v45, v[6:7] offset:512""")
        a.label(lw)
        a("""s_waitcnt lgkmcnt(0)
             s_barrier""")
        self.stamp(7)
        lg = self.lab('mg')
        a(f"""s_cmp_lt_u32 {sWAVE}, 4
              s_cbranch_scc0 {lg}""")
        self.gemv16(4, F, 'v38', 144)
        a("""v_cvt_pk_bf16_f32 v8, v4, v5
             v_cvt_pk_bf16_f32 v9, v6, v7
             s_mov_b32 exec_lo, 0x000f000f
             s_mov_b32 exec_hi, 0x000f000f
             ds_write_b64 v46, v[8:9]
             s_mov_b64 exec, -1""")
        a.label(lg)
        a("""s_waitcnt lgkmcnt(0)
             s_barrier
             ds_read_b128 v[4:7], v39
             ds_read_b128 v[8:11], v39 offset:384
             s_waitcnt lgkmcnt(0)""")
        for k in range(4):
            self.unpack('v12', 'v13', f'v{4+k}')
            self.unpack('v14', 'v15', f'v{8+k}')
            a(f"""v_max_f32 v12, 0, v12
                  v_max_f32 v13, 0, v13
                  v_mul_f32 v12, v12, v14
                  v_mul_f32 v13, v13, v15
                  v_cvt_pk_bf16_f32 v{16+k}, v12, v13""")
        D = [4, 8, 12, 20]
        for t in range(4):
            a(f"v_mfma_f32_16x16x32_bf16 v[{D[t]}:{D[t]+3}], v[{128+4*t}:{131+4*t}], v[16:19], 0")
        self.select_tiles(D)
        self.steal(4, 48)
        self.gstore(4, 'v47', 's63')
        self.stamp(8)
        self.stamps_out(16)
        a("s_endpgm")

        a.label("L_ROLE_GA")
        S = 131072
        self.srd(48, sC, 4096)
        lc = self.lab('gc')
        a(f"""s_cmp_lt_u32 {sWAVE}, 4
              s_cbranch_scc0 {lc}
              s_lshl_b32 s61, {sWAVE}, 10
              v_lshlrev_b32 v1, 3, v0
              buffer_load_dwordx2 v[24:25], v1, {R2}, s61 offen
              buffer_load_dwordx2 v[26:27], v1, {R2}, s61 offen offset:512""")
        a.label(lc)
        self.dma_off_p128('v32', 6144, 'v1', 'v2')
        a(f"""s_lshl_b32 s59, {sWAVE}, 6
              s_mul_i32 s59, s59, 6144
              s_lshl_b32 s61, {sG}, 7
              s_add_u32 s59, s59, s61
              s_add_u32 s59, s59, 2048
              s_lshl_b32 s61, {sWAVE}, 13
              s_add_u32 s61, s61, {GATE}
              s_mov_b32 m0, s61""")
        self.dma_loop('v32', R1, 's59', 8 * 6144, 8)
        lc2 = self.lab('gc2')
        a(f"""s_cmp_lt_u32 {sWAVE}, 4
              s_cbranch_scc0 {lc2}
              s_waitcnt vmcnt(8)""")
        self.perm_pos_bytes('v5', 'v0', 'v6')
        a(f"""s_mul_i32 s61, {sWAVE}, 1056
              s_add_u32 s61, s61, {S}
              v_add_u32 v5, s61, v5""")
        for hf in range(2):
            self.unpack('v8', 'v9', f'v{24+2*hf}')
            self.unpack('v10', 'v11', f'v{25+2*hf}')
            self.silu4(8, 12)
            a(f"""v_cvt_pk_bf16_f32 v8, v8, v9
                  v_cvt_pk_bf16_f32 v9, v10, v11
                  ds_write_b64 v5, v[8:9] offset:{512*hf}""")
        a.label(lc2)
        a(f"s_lshl_b32 s61, {sWAVE}, 5")
        self.tr_addr_p128('v33', 's61', GATE, 'v1', 'v2')
        self.act_addr('v35', S, 1056, 'v1')
        a(f"""v_lshrrev_b32 v1, 5, v0
              v_lshlrev_b32 v36, 10, v1
              v_bfe_u32 v1, v0, 2, 1
              v_lshl_add_u32 v36, v1, 7, v36
              v_and_b32 v1, 3, v0
              v_lshl_add_u32 v36, v1, 5, v36
              v_bfe_u32 v1, v0, 4, 1
              v_lshl_add_u32 v36, v1, 4, v36
              s_lshl_b32 s59, {sG}, 13
              s_lshl_b32 s61, {sWAVE}, 11
              s_add_u32 s59, s59, s61
              s_add_u32 s59, s59, {WS_ML}""")
        self.sel_consts()
        self.tagbytes(28)
        a("""s_waitcnt vmcnt(0) lgkmcnt(0)
             s_barrier""")
        le = self.lab('ge')
        a(f"""s_cmp_lt_u32 {sWAVE}, 4
              s_cbranch_scc0 {le}""")
        for s in range(16):
            for h in range(2):
                q = F + 4 * s + 2 * h
                a(f"ds_read_b64_tr_b16 v[{q}:{q+1}], v33 offset:{4096*s+2048*h}")
            if s in (6, 13):
                a("s_waitcnt lgkmcnt(0)")
        a("s_waitcnt lgkmcnt(0)")
        self.gemv16(4, F, 'v35', 144)
        a("""s_mov_b32 exec_lo, 0x00f000f0
             s_mov_b32 exec_hi, 0x00f000f0""")
        for r in range(4):
            a(f"v_mov_b32 v{4+r}, 0")
        a("""s_mov_b32 exec_lo, 0x00ff00ff
             s_mov_b32 exec_hi, 0x00ff00ff""")
        self.steal(4, 28)
        self.gstore(4, 'v36', 's59')
        a("s_mov_b64 exec, -1")
        a.label(le)
        self.stamp(5)
        self.stamps_out(16)
        a("s_endpgm")

    def role_w(self):
        a = self.a
        WQ, WO, H, O = 0, 65536, 131072, 135296
        F = 64
        a.label("L_ROLE_W")
        a(f"s_sub_u32 s56, {sJ}, 8")
        self.srd(44, sWQ, 512 * 8192)
        self.dma_off_p128('v32', 8192, 'v1', 'v2')
        a(f"""s_lshl_b32 s59, {sWAVE}, 19
              s_lshl_b32 s61, {sG}, 10
              s_add_u32 s59, s59, s61
              s_lshl_b32 s61, s56, 7
              s_add_u32 s59, s59, s61
              s_lshl_b32 s61, {sWAVE}, 13
              s_mov_b32 m0, s61""")
        self.stamp(15)
        self.only_exit('W', pre=True)
        self.dma_loop('v32', R1, 's59', 8 * 8192, 8)
        self.only_exit('W')
        self.srd(52, sX, 4096)
        a(f"""v_bfe_u32 v1, v0, 1, 2
              v_lshlrev_b32 v1, 10, v1
              v_and_b32 v2, 1, v0
              v_lshl_add_u32 v1, v2, 3, v1
              v_lshrrev_b32 v2, 4, v0
              v_lshl_add_u32 v1, v2, 1, v1
              s_lshl_b32 s61, s56, 7
              s_lshl_b32 s62, {sWAVE}, 4
              s_add_u32 s61, s61, s62
              buffer_load_ushort v60, v1, {R3}, s61 offen""")
        a(f"""s_lshl_b32 s61, {sWAVE}, 6
              v_add_u32 v1, s61, v0
              v_lshlrev_b32 v33, 4, v1
              v_lshrrev_b32 v2, 3, v1
              v_lshlrev_b32 v2, 1, v2
              v_and_b32 v3, 1, v1
              v_add_u32 v2, v2, v3""")
        self.perm_pos_bytes('v34', 'v2', 'v3')
        a(f"""v_bfe_u32 v3, v1, 1, 2
              v_mul_u32_u24 v3, 1056, v3
              v_add_u32 v34, v34, v3
              v_add_u32 v34, {H}, v34""")
        a(f"""v_bfe_u32 v2, v1, 4, 2
              v_lshlrev_b32 v2, 5, v2
              v_bfe_u32 v3, v1, 6, 1
              v_lshl_add_u32 v2, v3, 4, v2
              v_and_b32 v3, 15, v1
              v_add_u32 v2, v2, v3""")
        self.perm_pos_bytes('v35', 'v2', 'v3')
        a(f"""v_lshrrev_b32 v3, 7, v1
              v_mul_u32_u24 v3, 1056, v3
              v_add_u32 v35, v35, v3
              v_add_u32 v35, {O}, v35""")
        a(f"""s_and_b32 s61, {sWAVE}, 3
              s_lshl_b32 s61, s61, 5""")
        self.tr_addr_p128('v36', 's61', WQ, 'v1', 'v2')
        a(f"v_add_u32 v37, {WO-WQ}, v36")
        self.act_addr('v38', H, 1056, 'v1')
        a(f"v_add_u32 v39, {O-H}, v38")
        a(f"""v_and_b32 v1, 3, v0
              v_lshlrev_b32 v40, 6, v1
              v_lshrrev_b32 v1, 4, v0
              v_lshl_add_u32 v40, v1, 4, v40
              s_lshl_b32 s57, {sG}, 3
              s_add_u32 s57, s57, s56
              s_lshl_b32 s57, s57, 2
              s_add_u32 s57, s57, {sWAVE}
              s_lshl_b32 s57, s57, 8
              s_add_u32 s57, s57, {WS_B}
              s_mov_b32 s58, {WS_A2}""")
        self.tag_ready()
        self.stamp(1)
        lw1 = self.lab('w1')

        def first():
            self.stamp(2)
            a("s_barrier")
            a(f"""s_cmp_lt_u32 {sWAVE}, 4
                  s_cbranch_scc0 {lw1}""")
            for s in range(16):
                for h in range(2):
                    q = F + 4 * s + 2 * h
                    a(f"ds_read_b64_tr_b16 v[{q}:{q+1}], v36 offset:{4096*s+2048*h}")
                if s in (6, 13):
                    a("s_waitcnt lgkmcnt(0)")
            a.label(lw1)
        self.poll('A2', [self.gload(4, 'v33', 's58')],
                  lambda ok: self.check_tags(['v6'], ok), first_extra=first)
        a("""ds_write_b64 v34, v[4:5]
             s_waitcnt lgkmcnt(0)
             s_barrier""")
        self.stamp(3)
        self.srd(44, sWO, 4096 * 1024)
        self.dma_off_p128('v32', 1024, 'v1', 'v2')
        a(f"""s_lshl_b32 s59, {sG}, 9
              s_lshl_b32 s61, {sWAVE}, 6
              s_add_u32 s59, s59, s61
              s_lshl_b32 s59, s59, 10
              s_lshl_b32 s61, s56, 7
              s_add_u32 s59, s59, s61
              s_lshl_b32 s61, {sWAVE}, 13
              s_add_u32 s61, s61, {WO}
              s_mov_b32 m0, s61""")
        lq = self.lab('wqskip')
        lq2 = self.lab('wq2')
        a(f"""s_cmp_lt_u32 {sWAVE}, 4
              s_cbranch_scc0 {lq}""")
        self.gemv16(4, F, 'v38', 128)
        a(f"""v_cvt_pk_bf16_f32 v8, v4, v5
              v_cvt_pk_bf16_f32 v9, v6, v7
              v_mov_b32 v10, {sTAG}
              v_mov_b32 v11, 0
              s_mov_b32 exec_lo, 0x000f000f
              s_mov_b32 exec_hi, 0x000f000f""")
        self.gstore(8, 'v40', 's57', local=True)
        a("s_mov_b64 exec, -1")
        a.label(lq)
        self.stamp(4)
        self.dma_loop('v32', R1, 's59', 8 * 1024, 8)
        a(f"""s_lshl_b32 s58, {sG}, 13
              s_add_u32 s58, s58, {WS_C}
              v_lshrrev_b32 v1, 5, v0
              v_lshlrev_b32 v41, 10, v1
              v_and_b32 v1, 3, v0
              v_lshl_add_u32 v41, v1, 5, v41
              v_bfe_u32 v1, v0, 4, 1
              v_lshl_add_u32 v41, v1, 4, v41
              s_lshl_b32 s57, s56, 13
              s_lshl_b32 s61, {sWAVE}, 11
              s_add_u32 s57, s57, s61
              s_lshl_b32 s61, {sG}, 7
              s_add_u32 s57, s57, s61
              s_add_u32 s57, s57, {WS_C2}
              v_lshlrev_b32 v42, 4, v0
              s_lshl_b32 s62, s56, 3
              s_add_u32 s62, s62, {sWAVE}
              s_lshl_b32 s62, s62, 10
              s_add_u32 s63, s62, {WS_ML}
              s_add_u32 s62, s62, {WS_C2}
              ; D publish: ((g*4 + b)*2 + u)*2048 + Q*16, Q = 16i + 2w + q
              v_bfe_u32 v1, v0, 1, 2
              v_lshlrev_b32 v43, 12, v1
              v_and_b32 v1, 1, v0
              v_lshl_add_u32 v43, v1, 4, v43
              s_lshl_b32 s66, {sG}, 14
              s_lshl_b32 s61, s56, 8
              s_add_u32 s66, s66, s61
              s_lshl_b32 s61, {sWAVE}, 5
              s_add_u32 s66, s66, s61
              s_add_u32 s66, s66, {WS_D}""")
        self.sel_consts()
        self.tagbytes(48)
        lw2 = self.lab('w2')

        def first2():
            self.stamp(5)
            a("s_barrier")
            a(f"""s_cmp_lt_u32 {sWAVE}, 4
                  s_cbranch_scc0 {lw2}""")
            for s in range(16):
                for h in range(2):
                    q = F + 4 * s + 2 * h
                    a(f"ds_read_b64_tr_b16 v[{q}:{q+1}], v37 offset:{4096*s+2048*h}")
                if s in (6, 13):
                    a("s_waitcnt lgkmcnt(0)")
            a.label(lw2)
        self.poll('C', [self.gload(4, 'v33', 's58')], lambda ok: self.check_tags(['v6'], ok), first_extra=first2, local=['s58'])
        a("""ds_write_b64 v35, v[4:5]
             s_waitcnt lgkmcnt(0)
             s_barrier""")
        self.stamp(6)
        lo = self.lab('wo')
        a(f"""s_cmp_lt_u32 {sWAVE}, 4
              s_cbranch_scc0 {lo}""")
        self.gemv16(4, F, 'v39', 128)
        self.steal(4, 48)
        a("""s_mov_b32 exec_lo, 0x000f000f
             s_mov_b32 exec_hi, 0x000f000f""")
        self.gstore(4, 'v41', 's57')
        a("s_mov_b64 exec, -1")
        a.label(lo)
        self.stamp(7)

        def stolen_check(q):
            def chk(ok):
                self.stolen_tag(q, 'v12', 'v13')
                self.check_tags(['v12'], ok)
            return chk
        self.poll('ML', [self.gload(4, 'v42', 's63')], stolen_check(4))
        for r in range(4):
            a(f"v_and_b32 v{4+r}, 0xffffff00, v{4+r}")
        for r in range(4):
            a(f"v_add_f32_dpp v{4+r}, v{4+r}, v{4+r} row_ror:8 row_mask:0xf bank_mask:0xf")
        for r in range(4):
            self.rnd(f'v{4+r}', f'v{4+r}')
        a("""s_mov_b32 exec_lo, 0
             s_mov_b32 exec_hi, 0x0000ffff""")
        for r in range(4):
            a(f"v_add_f32 v{4+r}, 1.0, v{4+r}")
        for r in range(4):
            self.rnd(f'v{4+r}', f'v{4+r}')
        a("s_mov_b64 exec, -1")
        a("""v_cvt_pk_bf16_f32 v8, v4, v5
             v_cvt_pk_bf16_f32 v9, v6, v7""")
        a("""v_permlane16_swap_b32 v4, v5
             v_permlane16_swap_b32 v6, v7
             v_permlane32_swap_b32 v4, v6
             v_permlane32_swap_b32 v5, v7
             v_mov_b32 v56, v4
             v_mov_b32 v57, v7""")
        a("""v_mov_b32 v10, v8
             v_mov_b32 v11, v9
             v_mov_b32 v14, v8
             v_mov_b32 v15, v9
             v_mov_b32 v16, 0
             v_mov_b32 v17, 0
             v_mov_b32 v18, 0
             v_mov_b32 v19, 0
             v_permlane32_swap_b32 v10, v16
             v_permlane32_swap_b32 v11, v17
             v_permlane16_swap_b32 v14, v18
             v_permlane16_swap_b32 v15, v19""")
        a(f"""v_mov_b32 v58, v16
              v_mov_b32 v20, v17
              v_mov_b32 v21, v18
              v_mov_b32 v22, v19
              v_mov_b32 v23, {sTAG}
              s_mov_b64 exec, 0xff""")
        self.gstore(20, 'v43', 's66', 2048, local=True)
        a("s_mov_b64 exec, -1")
        a("v_lshlrev_b32 v60, 16, v60")
        self.stamp(8)
        self.poll('C2', [self.gload(4, 'v42', 's62')], stolen_check(4))
        self.stamp(9)
        for r in range(4):
            a(f"v_and_b32 v{4+r}, 0xffffff00, v{4+r}")
        self.red_rows(4)
        self.rnd('v4', 'v4')
        a("v_mul_f32 v4, v56, v4")
        self.rnd('v4', 'v4')
        a("v_add_f32 v4, v60, v4")
        self.rnd('v59', 'v4')
        self.rows_to_quad('v8', 'v9', 'v59', 'v12')
        a(f"""v_mov_b32 v10, v58
              v_mov_b32 v11, {sTAG}
              s_mov_b64 exec, 0xff""")
        self.gstore(8, 'v43', 's66', local=True)
        a("s_mov_b64 exec, -1")
        self.stamp(10)
        end = self.lab('wend')
        a(f"""s_cmp_eq_u32 {sWAVE}, {sG}
              s_cbranch_scc0 {end}
              s_lshl_b32 s59, s56, 3
              s_add_u32 s59, s59, {sG}
              s_mul_i32 s59, s59, {56*128}
              s_add_u32 s59, s59, {WS_E}
              s_add_u32 s61, s59, 4096""")
        loads = []
        for m in range(7):
            if m < 4:
                loads.append(self.gload(64 + 4 * m, 'v42', 's59', 1024 * m))
            else:
                loads.append(self.gload(64 + 4 * m, 'v42', 's61', 1024 * (m - 4)))

        def echk(ok):
            for m in range(7):
                self.stolen_tag(64 + 4 * m, f'v{12+m}', 'v20')
            self.check_tags([f'v{12+m}' for m in range(7)], ok)
        self.poll('E', loads, echk)
        self.stamp(11)
        for m in range(7):
            for r in range(4):
                a(f"v_and_b32 v{64+4*m+r}, 0xffffff00, v{64+4*m+r}")
        for m in range(1, 7):
            for r in range(4):
                a(f"v_add_f32 v{64+r}, v{64+r}, v{64+4*m+r}")
        self.red_rows(64)
        self.rnd('v64', 'v64')
        a("v_mul_f32 v64, v57, v64")
        self.rnd('v64', 'v64')
        a("""v_add_f32 v64, v59, v64
             v_cvt_pk_bf16_f32 v64, v64, v64""")
        self.srd(44, sOUT, 4096)
        a(f"""v_bfe_u32 v1, v0, 1, 2
              v_lshlrev_b32 v1, 10, v1
              v_and_b32 v2, 1, v0
              v_lshl_add_u32 v1, v2, 3, v1
              v_lshrrev_b32 v2, 4, v0
              v_lshl_add_u32 v1, v2, 1, v1
              s_lshl_b32 s61, s56, 7
              s_lshl_b32 s59, {sG}, 4
              s_add_u32 s61, s61, s59
              s_mov_b32 exec_lo, 0x00ff00ff
              s_mov_b32 exec_hi, 0x00ff00ff
              buffer_store_short v64, v1, {R1}, s61 offen
              s_mov_b64 exec, -1""")
        noep = self.lab('noep')
        a(f"""s_cmp_eq_u32 s2, 64
              s_cbranch_scc0 {noep}
              v_mov_b32 v1, 0
              v_mov_b32 v2, {sTAG}
              s_mov_b64 exec, 1
              buffer_store_dword v2, v1, {WSR}, 0 offen offset:{WS_EPOCH}
              s_mov_b64 exec, -1""")
        a.label(noep)
        self.stamp(12)
        a.label(end)
        self.stamps_out(16)
        a("s_endpgm")

    def build(self):
        self.prologue()
        self.role_m()
        self.role_w()
        self.role_k()
        self.role_v()
        self.a.label("L_END")
        self.a("s_endpgm")
        body = self.a.finalize()
        vg = 256 if self.o['PROF'] else 208
        hdr = HEADER.format(lds=LDS_BYTES)
        return hdr + f""".amdgcn_target "amdgcn-amd-amdhsa--gfx950"
.text
.globl {NAME}
.p2align 8
.type {NAME},@function
{NAME}:
{body}.section .rodata,"a"
.p2align 6
.amdhsa_kernel {NAME}
  .amdhsa_next_free_vgpr {vg}
  .amdhsa_next_free_sgpr 102
  .amdhsa_accum_offset {vg}
  .amdhsa_group_segment_fixed_size 0
  .amdhsa_kernarg_size 112
  .amdhsa_user_sgpr_count 2
  .amdhsa_user_sgpr_kernarg_segment_ptr 1
  .amdhsa_system_sgpr_workgroup_id_x 1
.end_amdhsa_kernel
"""


HEADER = """; adaLN + sliding-window (last 1024 keys) GQA decode attention + adaLN + ReGLU MLP in ONE persistent launch.
;
; @launch grid=(256,1,1) block=(512,1,1) lds={lds}
"""

if __name__ == '__main__':
    opt = {}
    out = None
    for arg in sys.argv[1:]:
        if '=' in arg:
            k, v = arg.split('=', 1)
            opt[k] = int(v) if v.lstrip('-').isdigit() else v
        else:
            out = arg
    g = Gen(opt)
    txt = g.build()
    if out:
        open(out, 'w').write(txt)
    else:
        sys.stdout.write(txt)
    sys.stderr.write(f"instructions: {g.a.count()}\n")
```

```python
import sys, os
sys.path.insert(0, os.path.dirname(os.path.abspath(__file__)))
import gen as G1
from gen import *
WS_X = 0x800
WS_C2B = 0x1C0000

OPT2 = dict(WWAIT=0, KWAIT=1, VWAIT=1, MTRIG=1, GTRIG=0, PF=1, KSLEEP=0, VSLEEP=0, WSLEEP=0, TOUCH=1, KWIN=4, VWIN=1, WWIN=0, BARDMA=1, VN1=3, WO1=0, MG1=0, IOX=4, WO3=2, VN1ODD=2, PIPE_A2=0, SLP_A2=4, PIPE_C2=0, SLP_C2=2, PIPE_E=3, SLP_E=1, MLTOUCH=0, C2EARLY=1, FASTV=1, FASTLN=1, MEARLY=1, MWIN=0, MSLEEP=0, XFLAG=1, GUMIX=1, HELPQ=0, DPPSEL=1, HELPV=0, KWIN0=0, VWIN2=0, FASTX=0, WOSPLIT=0, LIMIT=100000)


class Gen6(Gen):
    def __init__(self, opt):
        o = dict(OPT2)
        o.update(opt)
        super().__init__(o)

    def kwait(self, ws=True):
        a = self.a
        a("s_waitcnt lgkmcnt(0)")
        if self.o['PROF']:
            a("s_mov_b32 s70, s96")
            for k in range(1, 16):
                a(f"s_mov_b32 s{70+k}, 0")
            a(f"""s_cmp_eq_u32 {sWAVE}, 0
                  s_cselect_b32 s99, 1, 0
                  s_cmp_eq_u32 {sWAVE}, 7
                  s_cselect_b32 s99, 1, s99""")
            if self.role == 'M':
                a(f"""s_cmp_eq_u32 {sWAVE}, 4
                      s_cselect_b32 s99, 1, s99""")
            if self.role == 'W':
                a(f"""s_cmp_eq_u32 {sWAVE}, {sG}
                      s_cselect_b32 s99, 1, s99""")
            self.stamp(14)
        a(f"s_load_dword {sE}, s[{sWS}:{sWS+1}], {WS_EPOCH}")
        if ws:
            self.srd(40, sWS, WS_SIZE)

    def code_prefetch(self):
        if not self.o['PF']:
            return
        a = self.a
        l = self.lab('pf')
        lp = self.lab('pc')
        a(f"""s_cmp_eq_u32 {sWAVE}, 7
              s_cbranch_scc0 {l}
              s_getpc_b64 s[86:87]""")
        a.label(lp)
        a(f"""s_lshl_b32 s88, {sJ}, 10
              s_sub_u32 s86, s86, {lp}-L_START
              s_subb_u32 s87, s87, 0
              v_lshl_add_u32 v204, v0, 4, s88
              v_min_u32 v204, (L_END-L_START-16)&0xfffffff0, v204
              v_mov_b32 v207, s87
              v_add_co_u32 v206, vcc, s86, v204
              v_addc_co_u32 v207, vcc, 0, v207, vcc
              global_load_dwordx4 v[200:203], v[206:207], off""")
        a.label(l)

    def st_local(self, q, voff, soff, imm=0):
        i = f" offset:{imm}" if imm else ""
        if self.o['LOCAL']:
            self.a(f"""s_or_b32 s39, {soff}, {WS_LOC}
                       buffer_store_dwordx4 v[{q}:{q+3}], {voff}, {WSR}, s39 offen{i}""")
        else:
            self.a(f"buffer_store_dwordx4 v[{q}:{q+3}], {voff}, {WSR}, {soff} offen{i} {self.o['ST']}")

    def st_global(self, q, voff, soff, imm=0, flag=False):
        i = f" offset:{imm}" if imm else ""
        if self.o['LOCAL'] and not self.o.get('NOGLOBAL'):
            l = None
            if flag and self.o['XFLAG']:
                l = self.lab('sg')
                self.a(f"""s_cmp_eq_u32 s90, 1
                           s_cbranch_scc1 {l}""")
            self.a(f"buffer_store_dwordx4 v[{q}:{q+3}], {voff}, {WSR}, {soff} offen{i} {self.o['ST']}")
            if l:
                self.a.label(l)

    def x_publish(self, build_ws):
        if not (self.o['XFLAG'] and self.o['LOCAL']):
            return
        a = self.a
        l = self.lab('xp')
        a(f"""s_cmp_eq_u32 {sWAVE}, 0
              s_cbranch_scc0 {l}""")
        if build_ws:
            self.srd(40, sWS, WS_SIZE)
        a(f"""s_getreg_b32 s39, hwreg(HW_REG_XCC_ID, 0, 4)
              s_add_u32 s39, s39, {sE}
              s_add_u32 s39, s39, {TAGC}
              v_mov_b32 v209, s39
              s_lshl_b32 s39, {sG}, 5
              s_add_u32 s39, s39, {sJ}
              s_lshl_b32 s39, s39, 2
              v_mov_b32 v208, s39
              s_mov_b64 exec, 1
              buffer_store_dword v209, v208, {WSR}, 0 offen offset:{WS_X} {self.o['ST']}
              s_mov_b64 exec, -1""")
        a.label(l)

    def select_tiles(self, D):
        if not self.o['DPPSEL']:
            return Gen.select_tiles(self, D)
        for t in range(1, 4):
            for r in range(4):
                self.a(f"v_mov_b32_dpp v{D[0]+r}, v{D[t]+r} quad_perm:[0,1,2,3] row_mask:0xf bank_mask:{1 << t:#x}")

    def x_load(self):
        if not (self.o['XFLAG'] and self.o['LOCAL']):
            return
        self.a(f"""v_and_b32 v211, 31, v0
                   v_lshlrev_b32 v211, 2, v211
                   s_lshl_b32 s90, {sG}, 7
                   buffer_load_dword v210, v211, {WSR}, s90 offen offset:{WS_X} sc1""")

    def x_flag(self):
        if not (self.o['XFLAG'] and self.o['LOCAL']):
            return
        self.a(f"""s_getreg_b32 s39, hwreg(HW_REG_XCC_ID, 0, 4)
                   s_add_u32 s39, s39, {sTAG}
                   v_cmp_ne_u32 vcc, s39, v210
                   s_cmp_eq_u64 vcc, 0
                   s_cselect_b32 s90, 1, 0""")

    def poll_pipe(self, name, nsets, load, check, take, sleep):
        a = self.a
        per = len(load(0))
        oks = [self.lab(name + f'ok{k}_') for k in range(nsets)]
        done = self.lab(name + 'done')
        lp = self.lab(name)
        for k in range(nsets - 1):
            for l in load(k):
                a(l)
            if sleep:
                a(f"s_sleep {sleep}")
        a(f"s_mov_b32 {sCNT}, {self.o['LIMIT'] // nsets}")
        a.label(lp)
        for k in range(nsets):
            kn = (k + nsets - 1) % nsets
            for l in load(kn):
                a(l)
            a(f"s_waitcnt vmcnt({per * (nsets - 1)})")
            check(k, oks[k])
            if sleep:
                a(f"s_sleep {sleep}")
        a(f"""s_sub_u32 {sCNT}, {sCNT}, 1
              s_cbranch_scc0 {lp}
              s_branch {oks[0]}""")
        for k in range(nsets - 1, -1, -1):
            a.label(oks[k])
            take(k)
            if k:
                a(f"s_branch {done}")
        a.label(done)

    def silu1(self, x, t):
        a = self.a
        e, r, q, u = [f"v{t+i}" for i in range(4)]
        a(f"""s_mov_b32 s94, 0xbfb8aa3b
              s_mov_b32 s95, 0xb2a57060
              v_mul_f32 {e}, 0xbfb8aa3b, {x}
              v_fma_f32 {r}, {x}, s94, -{e}
              v_fma_f32 {r}, {x}, s95, {r}
              v_exp_f32 {e}, {e}
              v_mul_f32 {r}, 0x3f317218, {r}
              v_add_f32 {r}, 1.0, {r}
              v_mul_f32 {e}, {e}, {r}
              v_add_f32 {e}, 1.0, {e}
              v_rcp_f32 {r}, {e}
              v_cmp_eq_f32 vcc, 0x7f800000, {e}
              v_mul_f32 {q}, {x}, {r}
              v_fma_f32 {u}, -{q}, {e}, {x}
              v_fma_f32 {u}, {u}, {r}, {q}
              v_cndmask_b32 {x}, {u}, {q}, vcc""")

    def wave_sum2(self, v, w, t, u):
        a = self.a
        for pat in ("quad_perm:[1,0,3,2]", "quad_perm:[2,3,0,1]", "row_half_mirror", "row_mirror"):
            a(f"v_add_f32_dpp {v}, {v}, {v} {pat} row_mask:0xf bank_mask:0xf")
            a(f"v_add_f32_dpp {w}, {w}, {w} {pat} row_mask:0xf bank_mask:0xf")
        a(f"""v_mov_b32 {t}, {v}
              v_mov_b32 {u}, {w}
              v_permlane16_swap_b32 {v}, {t}
              v_permlane16_swap_b32 {w}, {u}
              v_add_f32 {v}, {v}, {t}
              v_add_f32 {w}, {w}, {u}
              v_mov_b32 {t}, {v}
              v_mov_b32 {u}, {w}
              v_permlane32_swap_b32 {v}, {t}
              v_permlane32_swap_b32 {w}, {u}
              v_add_f32 {v}, {v}, {t}
              v_add_f32 {w}, {w}, {u}""")

    def ln_stats_pivot(self, x, M2, SD2, RC2, t):
        a = self.a
        t0, t1, t2, t3 = [f"v{t+i}" for i in range(4)]
        a(f"v_readfirstlane_b32 s39, v{x}")
        D = t + 4
        for k in range(8):
            a(f"v_subrev_f32 v{D+k}, s39, v{x+k}")
        a(f"""v_add_f32 {t0}, v{D}, v{D+1}
              v_mul_f32 {t1}, v{D}, v{D}
              v_add_f32 {t2}, v{D+2}, v{D+3}
              v_mul_f32 {t3}, v{D+1}, v{D+1}
              v_add_f32 {t0}, {t0}, {t2}
              v_fmac_f32 {t1}, v{D+2}, v{D+2}
              v_add_f32 {t2}, v{D+4}, v{D+5}
              v_fmac_f32 {t3}, v{D+3}, v{D+3}
              v_add_f32 {t0}, {t0}, {t2}
              v_fmac_f32 {t1}, v{D+4}, v{D+4}
              v_add_f32 {t2}, v{D+6}, v{D+7}
              v_fmac_f32 {t3}, v{D+5}, v{D+5}
              v_add_f32 {t0}, {t0}, {t2}
              v_fmac_f32 {t1}, v{D+6}, v{D+6}
              v_fmac_f32 {t3}, v{D+7}, v{D+7}
              v_add_f32 {t1}, {t1}, {t3}""")
        self.wave_sum2(t0, t1, t2, t3)
        a(f"""v_mul_f32 {t0}, 0x3b000000, {t0}
              v_mul_f32 {t1}, 0x3b000000, {t1}
              v_fma_f32 {t1}, -{t0}, {t0}, {t1}
              v_add_f32 {t0}, s39, {t0}
              v_max_f32 {t1}, 0, {t1}
              v_cvt_pk_bf16_f32 {t1}, {t0}, {t1}
              v_lshlrev_b32 v{M2}, 16, {t1}
              v_and_b32 {t1}, 0xffff0000, {t1}
              v_add_f32 {t1}, 0x3727c5ac, {t1}
              v_mov_b32 v{M2+1}, v{M2}""")
        self.rnd(t1, t1)
        a(f"v_sqrt_f32 {t1}, {t1}")
        self.rnd(f"v{SD2}", t1)
        a(f"""v_rcp_f32 v{RC2}, v{SD2}
              v_mov_b32 v{SD2+1}, v{SD2}
              v_mov_b32 v{RC2+1}, v{RC2}""")

    def ln2_fast(self, X):
        a = self.a
        t = 144
        t0, t1, t2, t3 = [f"v{t+i}" for i in range(4)]
        D = t + 4
        a(f"v_readfirstlane_b32 s39, v{X}")
        csrc = ['v6', 'v8', 'v14', 'v16']
        ssrc = ['v9', 'v10', 'v17', 'v18']
        C, S = 156, 164
        for p in range(4):
            self.unpack(f'v{C+2*p}', f'v{C+2*p+1}', csrc[p])
        for k in range(8):
            a(f"v_subrev_f32 v{D+k}, s39, v{X+k}")
        a(f"""v_add_f32 {t0}, v{D}, v{D+1}
              v_mul_f32 {t1}, v{D}, v{D}
              v_add_f32 {t2}, v{D+2}, v{D+3}
              v_mul_f32 {t3}, v{D+1}, v{D+1}
              v_add_f32 {t0}, {t0}, {t2}
              v_fmac_f32 {t1}, v{D+2}, v{D+2}
              v_add_f32 {t2}, v{D+4}, v{D+5}
              v_fmac_f32 {t3}, v{D+3}, v{D+3}
              v_add_f32 {t0}, {t0}, {t2}
              v_fmac_f32 {t1}, v{D+4}, v{D+4}
              v_add_f32 {t2}, v{D+6}, v{D+7}
              v_fmac_f32 {t3}, v{D+5}, v{D+5}
              v_add_f32 {t0}, {t0}, {t2}
              v_fmac_f32 {t1}, v{D+6}, v{D+6}
              v_fmac_f32 {t3}, v{D+7}, v{D+7}
              v_add_f32 {t1}, {t1}, {t3}""")
        fill = []
        for p in range(4):
            fill += [f"v_lshlrev_b32 v{S+2*p}, 16, {ssrc[p]}", f"v_and_b32 v{S+2*p+1}, 0xffff0000, {ssrc[p]}"]
        for pat in ("quad_perm:[1,0,3,2]", "quad_perm:[2,3,0,1]", "row_half_mirror", "row_mirror"):
            a(f"v_add_f32_dpp {t0}, {t0}, {t0} {pat} row_mask:0xf bank_mask:0xf")
            a(f"v_add_f32_dpp {t1}, {t1}, {t1} {pat} row_mask:0xf bank_mask:0xf")
            a(fill.pop(0))
        a(f"""v_mov_b32 {t2}, {t0}
              v_mov_b32 {t3}, {t1}""")
        a(fill.pop(0))
        a(f"""v_permlane16_swap_b32 {t0}, {t2}
              v_permlane16_swap_b32 {t1}, {t3}
              v_add_f32 {t0}, {t0}, {t2}
              v_add_f32 {t1}, {t1}, {t3}
              v_mov_b32 {t2}, {t0}
              v_mov_b32 {t3}, {t1}""")
        a(fill.pop(0))
        a(f"""v_permlane32_swap_b32 {t0}, {t2}
              v_permlane32_swap_b32 {t1}, {t3}
              v_add_f32 {t0}, {t0}, {t2}
              v_add_f32 {t1}, {t1}, {t3}""")
        while fill:
            a(fill.pop(0))
        a(f"""v_mul_f32 v52, 0x3b000000, {t0}
              v_mul_f32 {t1}, 0x3b000000, {t1}
              v_fma_f32 {t1}, -v52, v52, {t1}
              v_mov_b32 v53, v52
              v_max_f32 {t1}, 0, {t1}
              v_add_f32 {t1}, 0x3727c5ac, {t1}
              v_rsq_f32 v54, {t1}""")
        for p in range(4):
            d = D + 2 * p
            a(f"v_pk_add_f32 v[{d}:{d+1}], v[{d}:{d+1}], v[52:53] neg_lo:[0,1] neg_hi:[0,1]")
        a("v_mov_b32 v55, v54")
        for p in range(4):
            c = C + 2 * p
            a(f"v_pk_mul_f32 v[{c}:{c+1}], v[{c}:{c+1}], v[54:55]")
        for p in range(4):
            d, c, q = D + 2 * p, C + 2 * p, S + 2 * p
            a(f"v_pk_fma_f32 v[{d}:{d+1}], v[{d}:{d+1}], v[{c}:{c+1}], v[{q}:{q+1}]")
        for p in range(4):
            a(f"v_cvt_pk_bf16_f32 v{4+p}, v{D+2*p}, v{D+2*p+1}")

    def pk_rnd(self, p, t):
        self.a(f"""v_cvt_pk_bf16_f32 {t}, v{p}, v{p+1}
                   v_lshlrev_b32 v{p}, 16, {t}
                   v_and_b32 v{p+1}, 0xffff0000, {t}""")

    def prologue(self):
        a = self.a
        a.label("L_START")
        a(f"""s_cmp_ge_u32 s2, 256
              s_cbranch_scc1 L_END""")
        if self.o.get('RENUM'):
            a("""s_lshr_b32 s3, s2, 3
                 s_and_b32 s3, s3, 7
                 s_xor_b32 s2, s2, s3""")
        a(f"""              s_load_dwordx16 s[4:19], s[0:1], 0
              s_load_dwordx8 s[20:27], s[0:1], 64
              s_load_dwordx4 s[28:31], s[0:1], 96""")
        if self.o['PROF']:
            a("s_memrealtime s[96:97]")
        a(f"""v_lshrrev_b32 v1, 6, v0
              v_and_b32 v0, 63, v0
              s_and_b32 {sG}, s2, 7
              s_lshr_b32 {sJ}, s2, 3
              v_readfirstlane_b32 {sWAVE}, v1""")
        self.code_prefetch()
        a(f"""s_cmp_ge_u32 {sJ}, 24
              s_cbranch_scc1 L_ENT_V
              s_cmp_ge_u32 {sJ}, 16
              s_cbranch_scc1 L_ENT_K
              s_cmp_ge_u32 {sJ}, 8
              s_cbranch_scc1 L_ENT_W""")

    def ent_v(self):
        a = self.a
        o = self.o
        a.label("L_ENT_V")
        self.role = 'V'
        a(f"""s_sub_u32 s56, {sJ}, 24
              s_lshr_b32 s57, s56, 1
              s_and_b32 s58, s56, 1
              s_lshl_b32 s60, s57, 3
              s_add_u32 s60, s60, {sG}
              s_lshl_b32 s59, s60, 20
              s_add_u32 s59, s59, {3072*256}
              s_lshl_b32 s61, s58, 7
              s_add_u32 s59, s59, s61
              s_lshl_b32 s61, {sWAVE}, 15
              s_add_u32 s59, s59, s61
              s_lshl_b32 s62, {sWAVE}, 14
              s_mov_b32 m0, s62""")
        self.dma_off_p128('v32', 256, 'v1', 'v2')
        self.kwait(ws=False)
        if o['HELPQ']:
            lh = self.lab('hq')
            a(f"""s_cmp_eq_u32 {sWAVE}, {o['HELPQ'] - 1}
                  s_cbranch_scc0 {lh}""")
            self.srd(48, sWQ, 512 * 8192)
            a(f"""v_lshlrev_b32 v212, 13, v0
                  s_lshl_b32 s61, s56, 19
                  s_lshl_b32 s63, {sG}, 10
                  s_add_u32 s61, s61, s63
                  buffer_load_dword v213, v212, {R2}, s61 offen offset:384""")
            a.label(lh)
        self.srd(44, sV, 0x2000000)
        vlate = o['XFLAG'] and not o['VWAIT']
        if not vlate:
            if o['VWAIT'] or o['XFLAG']:
                a("s_waitcnt lgkmcnt(0)")
            self.x_publish(True)
        if o['VSLEEP']:
            a(f"s_sleep {o['VSLEEP']}")
        self.stamp(15)
        self.only_exit('V', pre=True)
        if vlate:
            a(f"""buffer_load_dwordx4 v32, {R1}, s59 offen {self.nt()}lds
                  s_add_u32 s59, s59, 2048
                  s_add_u32 m0, m0, 1024
                  s_waitcnt lgkmcnt(0)""")
            self.x_publish(True)
            assert o['VN1'] >= 2 and o['VN1ODD'] >= 2 or o['VN1'] == o['VN1ODD']
            o = dict(o)
            o['VN1'] -= 1
            o['VN1ODD'] -= 1
            rest = 15
        else:
            rest = 16
        if o['VN1'] and o['VN1ODD'] != o['VN1']:
            a(f"""s_cmp_eq_u32 s58, 1
                  s_cselect_b32 s63, {o['VN1ODD']}, {o['VN1']}
                  s_sub_u32 s66, {rest}, s63""")
            self.dma_loop('v32', R1, 's59', 2048, 's63', win=o['VWIN'])
            self.dma_loop('v32', R1, 's59', 2048, 's66', win=o['VWIN2'])
        elif o['VN1']:
            self.dma_loop('v32', R1, 's59', 2048, o['VN1'], win=o['VWIN'])
            self.dma_loop('v32', R1, 's59', 2048, rest - o['VN1'], win=o['VWIN2'])
        else:
            self.dma_loop('v32', R1, 's59', 2048, rest, win=o['VWIN'])
        a("s_branch L_ROLE_V")

    def role_v(self):
        a = self.a
        o = self.o
        RED, ST = 131072, 139776
        F = 64
        a.label("L_ROLE_V")
        self.role = 'V'
        self.srd(40, sWS, WS_SIZE)
        self.only_exit('V')
        a(f"""v_bfe_u32 v1, v0, 2, 2
              v_lshlrev_b32 v33, 9, v1
              v_lshrrev_b32 v2, 4, v0
              v_lshl_add_u32 v33, v2, 6, v33
              v_and_b32 v3, 3, v0
              v_lshl_add_u32 v33, v3, 4, v33
              s_lshl_b32 s63, s60, 14
              s_add_u32 s63, s63, {WS_S}
              s_lshl_b32 s61, {sWAVE}, 11
              s_add_u32 s63, s63, s61""")
        a(f"""v_mul_u32_u24 v38, 272, v3
              v_lshl_add_u32 v38, v1, 6, v38
              v_lshl_add_u32 v38, v2, 4, v38
              s_mul_i32 s61, {sWAVE}, 1088
              s_add_u32 s61, s61, {RED}
              v_add_u32 v38, s61, v38""")
        a(f"""v_lshlrev_b32 v39, 6, v3
              v_add_u32 v40, {ST}, v39
              s_lshl_b32 s61, {sWAVE}, 3
              v_add_u32 v39, s61, v40
              v_lshl_add_u32 v40, v1, 3, v40
              v_and_b32 v2, 1, v2
              v_lshl_add_u32 v40, v2, 5, v40""")
        for t in range(4):
            self.tr_addr_p128(f'v{34+t}', 32 * t, 's62', 'v1', 'v2')
        a(f"""v_lshrrev_b32 v1, 4, v0
              v_mul_u32_u24 v1, 272, v1
              v_and_b32 v2, 15, v0
              v_lshl_add_u32 v1, v2, 4, v1
              v_add_u32 v41, {RED}, v1
              v_lshrrev_b32 v1, 4, v0
              v_lshlrev_b32 v1, 6, v1
              v_add_u32 v43, {ST}, v1
              v_lshlrev_b32 v42, 4, v0
              s_lshl_b32 s66, {sG}, 2
              s_add_u32 s66, s66, s57
              s_lshl_b32 s66, s66, 1
              s_add_u32 s66, s66, s58
              s_lshl_b32 s66, s66, 10
              s_add_u32 s66, s66, {WS_C}""")
        self.tag_ready()
        self.x_load()
        self.stamp(1)

        def first():
            self.stamp(2)
            self.x_flag()
            for s in range(4):
                for t in range(4):
                    for h in range(2):
                        q = F + 16 * s + 4 * t + 2 * h
                        a(f"ds_read_b64_tr_b16 v[{q}:{q+1}], v{34+t} offset:{4096*s+2048*h}")
                if s < 3:
                    a("s_waitcnt lgkmcnt(6)")
        self.poll('S', [self.gload(4, 'v33', 's63'), self.gload(8, 'v33', 's63', 256)],
                  lambda ok: self.check_tags(['v6', 'v10'], ok), first_extra=first, local=['s63'])
        self.stamp(3)
        self.unpack('v12', 'v13', 'v4')
        self.unpack('v14', 'v15', 'v5')
        self.unpack('v16', 'v17', 'v8')
        self.unpack('v18', 'v19', 'v9')
        a("""s_mov_b32 s94, 0x3fb8aa3b
             v_max3_f32 v20, v12, v13, v14
             v_max3_f32 v21, v15, v16, v17
             v_max3_f32 v20, v20, v18, v19
             v_max_f32 v20, v20, v21
             v_max_f32_dpp v20, v20, v20 row_ror:4 row_mask:0xf bank_mask:0xf
             v_max_f32_dpp v20, v20, v20 row_ror:8 row_mask:0xf bank_mask:0xf
             v_mov_b32 v21, v20
             v_permlane16_swap_b32 v20, v21
             v_max_f32 v20, v20, v21
             v_mov_b32 v21, v20
             v_permlane32_swap_b32 v20, v21
             v_max_f32 v20, v20, v21""")
        if o['FASTV']:
            self.v_fast(F)
        else:
            self.v_exact(F)
        self.stamp(5)
        self.stamps_out(16)
        a("s_endpgm")

    def v_fast(self, F):
        a = self.a
        ST = 139776
        a("v_mul_f32 v21, s94, v20")
        for k in range(8):
            a(f"v_fma_f32 v{12+k}, v{12+k}, s94, -v21")
        for k in range(8):
            a(f"v_exp_f32 v{12+k}, v{12+k}")
        for k in range(4):
            a(f"v_cvt_pk_bf16_f32 v{44+k}, v{12+2*k}, v{13+2*k}")
        D = [4, 8, 24, 28]
        done = set()

        def mf(s, t):
            rho = (s - t) & 3
            q = F + 16 * s + 4 * t
            c = f"v[{D[t]}:{D[t]+3}]" if t in done else "0"
            done.add(t)
            a(f"v_mfma_f32_16x16x32_bf16 v[{D[t]}:{D[t]+3}], v[{q}:{q+3}], v[{44+4*rho}:{47+4*rho}], {c}")

        def rot(rho, n):
            for k in range(4):
                a(f"v_mov_b32_dpp v{44+4*rho+k}, v{44+k} row_ror:{n} row_mask:0xf bank_mask:0xf")
        a("s_waitcnt lgkmcnt(0)")
        rot(2, 8)
        for t in range(4):
            mf(t, t)
        rot(1, 12)
        for t in range(4):
            mf((t + 2) & 3, t)
        rot(3, 4)
        for t in range(4):
            mf((t + 1) & 3, t)
        a("""v_add_f32 v22, v12, v13
             v_add_f32 v23, v14, v15
             v_add_f32 v12, v16, v17
             v_add_f32 v13, v18, v19""")
        mf(3, 0)
        a("""v_add_f32 v22, v22, v23
             v_add_f32 v12, v12, v13""")
        mf(0, 1)
        a("v_add_f32 v21, v22, v12")
        mf(1, 2)
        a("v_add_f32_dpp v21, v21, v21 row_ror:4 row_mask:0xf bank_mask:0xf")
        mf(2, 3)
        a("""v_add_f32_dpp v21, v21, v21 row_ror:8 row_mask:0xf bank_mask:0xf
             v_mov_b32 v22, v21
             v_permlane16_swap_b32 v21, v22
             v_add_f32 v21, v21, v22
             v_mov_b32 v22, v21
             v_permlane32_swap_b32 v21, v22
             v_add_f32 v21, v21, v22
             s_mov_b64 exec, 0xf
             ds_write_b64 v39, v[20:21]
             s_mov_b64 exec, -1""")
        self.select_tiles(D)
        a("""ds_write_b128 v38, v[4:7]
             s_waitcnt lgkmcnt(0)
             s_barrier""")
        self.stamp(4)
        done_l = self.lab('vdone')
        a(f"""s_cmp_eq_u32 {sWAVE}, 0
              s_cbranch_scc0 {done_l}""")
        for k in range(4):
            a(f"ds_read_b128 v[{44+4*k}:{47+4*k}], v43 offset:{16*k}")
        for w in range(8):
            a(f"ds_read_b128 v[{64+4*w}:{67+4*w}], v41 offset:{1088*w}")
        a(f"""v_mov_b32 v6, {sTAG}
              v_mov_b32 v7, 0
              s_waitcnt lgkmcnt(8)
              v_max3_f32 v22, v44, v46, v48
              v_max3_f32 v23, v50, v52, v54
              v_max3_f32 v22, v22, v56, v58
              v_max_f32 v22, v22, v23""")
        for k in range(8):
            a(f"v_sub_f32 v{44+2*k}, v{44+2*k}, v22")
        for k in range(8):
            a(f"v_mul_f32 v{44+2*k}, s94, v{44+2*k}")
        for k in range(8):
            a(f"v_exp_f32 v{44+2*k}, v{44+2*k}")
        a("v_mul_f32 v23, v44, v45")
        for k in range(1, 8):
            a(f"v_fmac_f32 v23, v{44+2*k}, v{45+2*k}")
        for k in range(8):
            a(f"v_mov_b32 v{45+2*k}, v{44+2*k}")
        a("v_rcp_f32 v22, v23")
        a("s_waitcnt lgkmcnt(0)")
        a("""v_pk_mul_f32 v[96:97], v[64:65], v[44:45]
             v_pk_mul_f32 v[98:99], v[66:67], v[44:45]
             v_pk_mul_f32 v[100:101], v[68:69], v[46:47]
             v_pk_mul_f32 v[102:103], v[70:71], v[46:47]""")
        for w in range(2, 8):
            d = 96 + 4 * (w & 1)
            a(f"""v_pk_fma_f32 v[{d}:{d+1}], v[{64+4*w}:{65+4*w}], v[{44+2*w}:{45+2*w}], v[{d}:{d+1}]
                  v_pk_fma_f32 v[{d+2}:{d+3}], v[{66+4*w}:{67+4*w}], v[{44+2*w}:{45+2*w}], v[{d+2}:{d+3}]""")
        a("""v_mov_b32 v23, v22
             v_pk_add_f32 v[96:97], v[96:97], v[100:101]
             v_pk_add_f32 v[98:99], v[98:99], v[102:103]
             v_pk_mul_f32 v[96:97], v[96:97], v[22:23]
             v_pk_mul_f32 v[98:99], v[98:99], v[22:23]
             v_cvt_pk_bf16_f32 v4, v96, v97
             v_cvt_pk_bf16_f32 v5, v98, v99""")
        self.st_local(4, 'v42', 's66')
        self.st_global(4, 'v42', 's66', flag=True)
        a.label(done_l)

    def v_exact(self, F):
        a = self.a
        for k in range(8):
            a(f"v_sub_f32 v{12+k}, v{12+k}, v20")
        for k in range(8):
            a(f"v_mul_f32 v{12+k}, s94, v{12+k}")
        for k in range(8):
            a(f"v_exp_f32 v{12+k}, v{12+k}")
        a("""v_add_f32 v22, v12, v13
             v_add_f32 v23, v14, v15
             v_add_f32 v24, v16, v17
             v_add_f32 v25, v18, v19
             v_add_f32 v22, v22, v23
             v_add_f32 v24, v24, v25
             v_add_f32 v21, v22, v24
             v_add_f32_dpp v21, v21, v21 row_ror:4 row_mask:0xf bank_mask:0xf
             v_add_f32_dpp v21, v21, v21 row_ror:8 row_mask:0xf bank_mask:0xf
             v_mov_b32 v22, v21
             v_permlane16_swap_b32 v21, v22
             v_add_f32 v21, v21, v22
             v_mov_b32 v22, v21
             v_permlane32_swap_b32 v21, v22
             v_add_f32 v21, v21, v22
             s_mov_b64 exec, 0xf
             ds_write_b64 v39, v[20:21]
             s_mov_b64 exec, -1
             s_waitcnt lgkmcnt(0)
             s_barrier
             ds_read_b64 v[22:23], v40
             s_waitcnt lgkmcnt(0)
             v_mov_b32 v24, v22
             v_max_f32_dpp v24, v24, v24 row_ror:4 row_mask:0xf bank_mask:0xf
             v_max_f32_dpp v24, v24, v24 row_ror:8 row_mask:0xf bank_mask:0xf
             v_mov_b32 v25, v24
             v_permlane16_swap_b32 v24, v25
             v_max_f32 v24, v24, v25
             v_sub_f32 v22, v22, v24
             v_sub_f32 v20, v20, v24
             v_mul_f32 v22, s94, v22
             v_mul_f32 v20, s94, v20
             v_exp_f32 v22, v22
             v_exp_f32 v20, v20
             v_mul_f32 v22, v22, v23
             v_add_f32_dpp v22, v22, v22 row_ror:4 row_mask:0xf bank_mask:0xf
             v_add_f32_dpp v22, v22, v22 row_ror:8 row_mask:0xf bank_mask:0xf
             v_mov_b32 v23, v22
             v_permlane16_swap_b32 v22, v23
             v_add_f32 v22, v22, v23
             v_rcp_f32 v22, v22
             v_mul_f32 v20, v20, v22""")
        for k in range(8):
            a(f"v_mul_f32 v{12+k}, v{12+k}, v20")
        for k in range(4):
            a(f"v_cvt_pk_bf16_f32 v{44+k}, v{12+2*k}, v{13+2*k}")
        D = [4, 8, 12, 16]
        rot = ((2, 8), (1, 12), (3, 4))
        done = set()

        def mf(s, t):
            rho = (s - t) & 3
            q = F + 16 * s + 4 * t
            c = f"v[{D[t]}:{D[t]+3}]" if t in done else "0"
            done.add(t)
            a(f"v_mfma_f32_16x16x32_bf16 v[{D[t]}:{D[t]+3}], v[{q}:{q+3}], v[{44+4*rho}:{47+4*rho}], {c}")
        for rho, n in rot:
            for k in range(4):
                a(f"v_mov_b32_dpp v{44+4*rho+k}, v{44+k} row_ror:{n} row_mask:0xf bank_mask:0xf")
        for rho in (0, 2, 1, 3):
            for t in range(4):
                mf((t + rho) & 3, t)
        self.select_tiles(D)
        a("""ds_write_b128 v38, v[4:7]
             s_waitcnt lgkmcnt(0)
             s_barrier""")
        self.stamp(4)
        done = self.lab('vdone')
        a(f"""s_cmp_eq_u32 {sWAVE}, 0
              s_cbranch_scc0 {done}""")
        for w in range(8):
            a(f"ds_read_b128 v[{64+4*w}:{67+4*w}], v41 offset:{1088*w}")
        a(f"""v_mov_b32 v6, {sTAG}
              v_mov_b32 v7, 0""")

        def pk(d, s_):
            a(f"v_pk_add_f32 v[{d}:{d+1}], v[{d}:{d+1}], v[{s_}:{s_+1}]")
        for n, (d, s_) in enumerate(((64, 68), (72, 76), (80, 84), (88, 92))):
            a(f"s_waitcnt lgkmcnt({6-2*n})")
            pk(d, s_)
            pk(d + 2, s_ + 2)
        for d, s_ in ((64, 72), (80, 88), (64, 80)):
            pk(d, s_)
            pk(d + 2, s_ + 2)
        a("""v_cvt_pk_bf16_f32 v4, v64, v65
             v_cvt_pk_bf16_f32 v5, v66, v67""")
        self.st_local(4, 'v42', 's66')
        self.st_global(4, 'v42', 's66', flag=True)
        a.label(done)

    def ent_k(self):
        a = self.a
        o = self.o
        a.label("L_ENT_K")
        self.role = 'K'
        a(f"""s_sub_u32 s56, {sJ}, 16
              s_lshr_b32 s57, s56, 1
              s_and_b32 s58, s56, 1
              s_lshl_b32 s60, s57, 3
              s_add_u32 s60, s60, {sG}
              s_lshl_b32 s59, s60, 20
              s_add_u32 s59, s59, {3072*256}
              s_lshl_b32 s61, s58, 17
              s_add_u32 s59, s59, s61
              s_lshl_b32 s62, {sWAVE}, 14
              s_add_u32 s59, s59, s62
              s_mov_b32 m0, s62
              v_lshrrev_b32 v1, 4, v0
              v_and_b32 v2, 15, v0
              v_xor_b32 v3, v1, v2
              v_lshlrev_b32 v3, 4, v3""")
        for v in range(4):
            if v:
                a(f"v_xor_b32 v4, {64*v}, v3")
            a(f"v_lshl_add_u32 v{32+v}, v1, 8, {'v4' if v else 'v3'}")
        self.kwait(ws=False)
        self.srd(44, sK, 0x2000000)
        late = o['XFLAG'] and not o['KWAIT']
        if not late:
            if o['KWAIT'] or o['XFLAG']:
                a("s_waitcnt lgkmcnt(0)")
            self.x_publish(True)
        if o['KSLEEP']:
            a(f"s_sleep {o['KSLEEP']}")
        self.stamp(15)
        self.only_exit('K', pre=True)
        l = self.lab('kdma')
        nit = 4
        if o['KWIN0'] or late:
            for v in range(4):
                i = f" offset:{1024*v}" if v else ""
                if o['KWIN0']:
                    a(f"s_waitcnt vmcnt({o['KWIN0']-1})")
                a(f"buffer_load_dwordx4 v{32+v}, {R1}, s59 offen{i} {self.nt()}lds")
            a("""s_add_u32 s59, s59, 4096
                 s_add_u32 m0, m0, 4096""")
            nit = 3
        if late:
            a("s_waitcnt lgkmcnt(0)")
            self.x_publish(True)
        a(f"s_mov_b32 s38, {nit}")
        a.label(l)
        for v in range(4):
            i = f" offset:{1024*v}" if v else ""
            if o['KWIN']:
                a(f"s_waitcnt vmcnt({o['KWIN']-1})")
            a(f"buffer_load_dwordx4 v{32+v}, {R1}, s59 offen{i} {self.nt()}lds")
        a(f"""s_add_u32 s59, s59, 4096
              s_add_u32 m0, m0, 4096
              s_sub_u32 s38, s38, 1
              s_cmp_lg_u32 s38, 0
              s_cbranch_scc1 {l}
              s_branch L_ROLE_K""")

    def role_k(self):
        a = self.a
        o = self.o
        QL, SC2 = 131072, 132224
        F = 64
        a.label("L_ROLE_K")
        self.role = 'K'
        self.srd(40, sWS, WS_SIZE)
        self.only_exit('K')
        a(f"""s_lshl_b32 s66, {sG}, 3
              s_add_u32 s66, s66, s56
              s_and_b32 s67, s66, 1
              v_lshrrev_b32 v1, 4, v0
              v_and_b32 v2, 15, v0""")
        a("""v_and_b32 v4, 3, v2
             v_xor_b32 v4, v4, v1
             v_and_b32 v5, 12, v2
             v_lshlrev_b32 v6, 8, v2
             v_add_u32 v6, s62, v6""")
        for t in range(4):
            a(f"""v_xor_b32 v3, {4*t}, v5
                  v_add_u32 v3, v3, v4
                  v_lshl_add_u32 v{36+t}, v3, 4, v6""")
        a(f"""s_lshl_b32 s61, {sWAVE}, 6
              v_add_u32 v5, s61, v0
              v_lshrrev_b32 v6, 2, v5
              v_lshlrev_b32 v6, 8, v6
              v_and_b32 v7, 3, v5
              v_lshl_add_u32 v40, v7, 4, v6
              v_lshrrev_b32 v6, 5, v5
              v_mul_u32_u24 v6, 288, v6
              v_and_b32 v7, 31, v5
              v_lshl_add_u32 v6, v7, 3, v6
              v_add_u32 v41, {QL}, v6
              s_lshl_b32 s69, {sG}, 13
              s_lshl_b32 s61, s57, 6
              s_add_u32 s69, s69, s61
              s_add_u32 s69, s69, {WS_B}""")
        self.act_addr('v42', QL, 288, 'v5')
        a(f"""v_bfe_u32 v5, v0, 2, 2
              v_lshl_add_u32 v5, v5, 2, v1
              v_lshlrev_b32 v5, 6, v5
              v_and_b32 v6, 3, v0
              v_lshl_add_u32 v43, v6, 4, v5
              s_lshl_b32 s63, s60, 14
              s_add_u32 s63, s63, {WS_S}
              s_lshl_b32 s61, s58, 13
              s_add_u32 s63, s63, s61
              s_lshl_b32 s61, {sWAVE}, 10
              s_add_u32 s63, s63, s61""")
        a(f"""s_lshr_b32 s68, s66, 4
              s_add_u32 s68, s68, 1
              s_lshr_b32 s56, s66, 1
              s_and_b32 s56, s56, 7""")
        self.srd(48, sWM, 512 * 6144)
        self.dma_off_p128('v32', 6144, 'v1', 'v2')
        a(f"""s_lshl_b32 s59, s67, 8
              s_lshl_b32 s61, {sWAVE}, 5
              s_add_u32 s59, s59, s61
              s_mul_i32 s59, s59, 6144
              s_lshl_b32 s61, s68, 10
              s_add_u32 s59, s59, s61
              s_lshl_b32 s61, s56, 7
              s_add_u32 s59, s59, s61
              s_add_u32 s59, s59, 2048""")
        self.tag_ready()
        self.x_load()
        self.stamp(1)

        def kfrags():
            self.x_flag()
            for T in range(4):
                for t in range(4):
                    q = F + 16 * T + 4 * t
                    a(f"ds_read_b128 v[{q}:{q+3}], v{36+t} offset:{4096*T}")
                if T == 2:
                    a("s_waitcnt lgkmcnt(6)")
        nopoll = self.lab('knp')
        join = self.lab('kj')
        a(f"""s_cmp_lt_u32 {sWAVE}, 2
              s_cbranch_scc0 {nopoll}""")

        def first():
            self.stamp(2)
            kfrags()
        self.poll('B', [self.gload(4, 'v40', 's69')], lambda ok: self.check_tags(['v6'], ok), first_extra=first, local=['s69'])
        a(f"""ds_write_b64 v41, v[4:5]
              s_branch {join}""")
        a.label(nopoll)
        a("s_waitcnt vmcnt(0)")
        self.stamp(2)
        kfrags()
        a.label(join)
        a("""s_waitcnt lgkmcnt(0)
             s_barrier""")
        self.stamp(3)
        for t in range(4):
            a(f"ds_read_b128 v[{44+4*t}:{47+4*t}], v42 offset:{64*t}")
        D = [4, 8, 12, 16]
        for t in range(4):
            a(f"s_waitcnt lgkmcnt({3-t})")
            for T in range(4):
                q = F + 16 * T + 4 * t
                c = "0" if t == 0 else f"v[{D[T]}:{D[T]+3}]"
                a(f"v_mfma_f32_16x16x32_bf16 v[{D[T]}:{D[T]+3}], v[{q}:{q+3}], v[{44+4*t}:{47+4*t}], {c}")
        self.select_tiles(D)
        a("""v_cvt_pk_bf16_f32 v8, v4, v5
             v_cvt_pk_bf16_f32 v9, v6, v7""")
        self.unpack('v4', 'v5', 'v8')
        self.unpack('v6', 'v7', 'v9')
        for r in range(4):
            a(f"v_mul_f32 v{4+r}, 0x3db504f3, v{4+r}")
        a(f"""v_cvt_pk_bf16_f32 v8, v4, v5
              v_cvt_pk_bf16_f32 v9, v6, v7
              v_mov_b32 v10, {sTAG}
              v_mov_b32 v11, 0""")
        self.st_local(8, 'v43', 's63')
        self.stamp(4)
        end = self.lab('kend')
        a("s_barrier")
        self.st_global(8, 'v43', 's63', flag=True)
        a(f"""s_cmp_lt_u32 s66, 48
              s_cbranch_scc0 {end}
              s_mov_b32 m0, s62""")
        self.srd(52, sC, 4096)
        skipc = self.lab('kc')
        a(f"""s_cmp_lt_u32 {sWAVE}, 4
              s_cbranch_scc0 {skipc}
              s_lshl_b32 s61, {sWAVE}, 10
              s_lshl_b32 s69, s67, 9
              s_add_u32 s69, s69, s61
              v_lshlrev_b32 v7, 3, v0
              buffer_load_dwordx2 v[24:25], v7, {R3}, s69 offen""")
        a.label(skipc)
        self.dma_loop('v32', R2, 's59', 8 * 6144, 4)
        skips = self.lab('ks')
        a(f"""s_cmp_lt_u32 {sWAVE}, 4
              s_cbranch_scc0 {skips}
              s_waitcnt vmcnt(4)""")
        self.unpack('v8', 'v9', 'v24')
        self.unpack('v10', 'v11', 'v25')
        self.silu4(8, 12)
        a("""v_cvt_pk_bf16_f32 v8, v8, v9
             v_cvt_pk_bf16_f32 v9, v10, v11""")
        self.perm_pos_bytes('v5', 'v0', 'v6')
        a(f"""s_mul_i32 s61, {sWAVE}, 544
              s_add_u32 s61, s61, {SC2}
              v_add_u32 v5, s61, v5
              ds_write_b64 v5, v[8:9]""")
        a.label(skips)
        a(f"s_lshl_b32 s61, {sWAVE}, 5")
        self.tr_addr_p128('v33', 's61', '0', 'v1', 'v2')
        a("v_add_u32 v34, 65536, v33")
        self.act_addr('v35', SC2, 544, 'v1')
        a(f"""v_lshrrev_b32 v1, 5, v0
              v_lshlrev_b32 v36, 10, v1
              v_and_b32 v1, 3, v0
              v_lshl_add_u32 v36, v1, 5, v36
              v_bfe_u32 v1, v0, 4, 1
              v_lshl_add_u32 v36, v1, 4, v36
              s_lshl_b32 s59, s56, 13
              s_lshl_b32 s61, {sWAVE}, 11
              s_add_u32 s59, s59, s61
              s_lshl_b32 s61, s68, 8
              s_add_u32 s59, s59, s61
              s_lshl_b32 s61, s67, 7
              s_add_u32 s59, s59, s61
              s_add_u32 s59, s59, {WS_ML}""")
        self.sel_consts()
        self.tagbytes(28)
        a("""s_waitcnt vmcnt(0) lgkmcnt(0)
             s_barrier""")
        a(f"""s_cmp_lt_u32 {sWAVE}, 4
              s_cbranch_scc0 {end}""")
        for s in range(8):
            a(f"ds_read_b128 v[{96+4*s}:{99+4*s}], v35 offset:{64*s}")
        a("s_waitcnt lgkmcnt(2)")
        for s in range(8):
            va = 'v33' if s < 4 else 'v34'
            for h in range(2):
                q = F + 4 * s + 2 * h
                a(f"ds_read_b64_tr_b16 v[{q}:{q+1}], {va} offset:{16384*(s&3)+2048*h}")
            if s == 5:
                a("s_waitcnt lgkmcnt(6)")
        for s in range(8):
            a(f"s_waitcnt lgkmcnt({max(0, 14-2*s) if s >= 4 else 6})" if s >= 4 else "s_waitcnt lgkmcnt(8)" if s == 0 else "s_nop 0")
            c = "0" if s == 0 else "v[4:7]"
            a(f"v_mfma_f32_16x16x32_bf16 v[4:7], v[{F+4*s}:{F+4*s+3}], v[{96+4*s}:{99+4*s}], {c}")
        self.steal(4, 28)
        a("s_mov_b32 exec_lo, 0x000f000f")
        a("s_mov_b32 exec_hi, 0x000f000f")
        self.gstore(4, 'v36', 's59')
        a("s_mov_b64 exec, -1")
        self.stamp(5)
        a.label(end)
        self.stamps_out(16)
        a("s_endpgm")

    def role_m(self):
        a = self.a
        o = self.o
        M1W, SC, STAT = 0, 16384, 17024
        GATE, UP, DOWN, H2, GU = 32768, 65536, 98304, 131072, 135296
        F = 64
        a.label("L_ENT_M")
        self.role = 'M'
        a(f"""v_lshrrev_b32 v1, 4, v0
              v_and_b32 v3, 15, v0
              v_lshlrev_b32 v2, 1, v1
              v_xor_b32 v2, v2, v3
              v_and_b32 v4, 7, v2
              v_lshlrev_b32 v4, 4, v4
              v_lshrrev_b32 v2, 3, v2
              v_lshl_add_u32 v4, v2, 10, v4
              v_xor_b32 v5, 1024, v4
              v_mul_u32_u24 v1, 6144, v1
              v_add_u32 v32, v1, v4
              v_add_u32 v33, v1, v5
              s_lshl_b32 s59, {sJ}, 6
              s_lshl_b32 s61, {sWAVE}, 3
              s_add_u32 s59, s59, s61
              s_mul_i32 s59, s59, 6144
              s_lshl_b32 s61, {sG}, 7
              s_add_u32 s59, s59, s61
              s_lshl_b32 s61, {sWAVE}, 11
              s_mov_b32 m0, s61
              s_and_b32 s62, {sWAVE}, 3
              s_lshl_b32 s62, s62, 10
              v_lshlrev_b32 v6, 4, v0
              v_lshlrev_b32 v7, 1, v0
              s_lshl_b32 s63, {sJ}, 7
              s_add_u32 s63, s63, s62""")
        self.kwait(ws=False)
        self.srd(44, sWM, 512 * 6144)
        self.srd(48, sC, 4096)
        self.srd(52, sX, 4096)
        l4 = self.lab('m4')
        lx = self.lab('mx')
        a(f"""s_cmp_lt_u32 {sWAVE}, 4
              s_cbranch_scc0 {l4}
              buffer_load_dwordx4 v[24:27], v6, {R3}, s62 offen
              s_branch {lx}""")
        a.label(l4)
        a(f"buffer_load_ushort v24, v7, {R2}, s63 offen")
        a.label(lx)
        self.stamp(15)
        self.only_exit('M', pre=True)
        a(f"""buffer_load_dwordx4 v32, {R1}, s59 offen {self.nt()}lds
              s_add_u32 s59, s59, {4*6144}
              s_add_u32 m0, m0, 1024
              s_nop 0
              buffer_load_dwordx4 v33, {R1}, s59 offen {self.nt()}lds
              s_branch L_ROLE_M""")
        self.ent_w()
        self.ent_k()
        self.ent_v()
        a.label("L_ROLE_M")
        self.role = 'M'
        self.srd(40, sWS, WS_SIZE)
        self.only_exit('M')
        if o['XFLAG']:
            a("s_waitcnt lgkmcnt(0)")
            self.x_publish(False)
        a(f"""v_bfe_u32 v1, v0, 1, 2
              v_lshlrev_b32 v1, 10, v1
              v_and_b32 v2, 1, v0
              v_lshl_add_u32 v1, v2, 3, v1
              v_lshrrev_b32 v2, 4, v0
              v_lshl_add_u32 v1, v2, 1, v1
              s_lshl_b32 s61, {sG}, 7
              s_lshl_b32 s56, {sJ}, 4
              s_add_u32 s61, s61, s56
              buffer_load_ushort v28, v1, {R3}, s61 offen""")
        if o['TOUCH']:
            lt0 = self.lab('mt0')
            a(f"""s_cmp_eq_u32 {sWAVE}, 4
                  s_cbranch_scc0 {lt0}
                  s_lshl_b32 s61, {sG}, 3
                  s_add_u32 s61, s61, {sJ}
                  s_lshl_b32 s61, s61, 12
                  s_add_u32 s61, s61, {WS_A1 + WS_LOC}
                  v_lshlrev_b32 v2, 4, v0""")
            for m in range(4):
                a(self.gload(64 + 4 * m, 'v2', 's61', 1024 * m))
            a.label(lt0)
        a(f"""v_lshrrev_b32 v1, 4, v0
              v_bfe_u32 v2, v0, 2, 2
              v_lshl_add_u32 v3, v1, 2, v2
              v_lshlrev_b32 v34, 8, v3
              v_and_b32 v3, 1, v1
              v_lshlrev_b32 v3, 3, v3
              v_lshl_add_u32 v3, v2, 1, v3
              s_lshl_b32 s61, {sWAVE}, 1
              v_xor_b32 v3, s61, v3
              v_lshl_add_u32 v34, v3, 4, v34
              v_and_b32 v3, 3, v0
              v_lshl_add_u32 v34, v3, 3, v34""")
        self.act_addr('v35', SC, 160, 'v1')
        a(f"""v_lshrrev_b32 v1, 5, v0
              v_lshlrev_b32 v36, 12, v1
              v_bfe_u32 v1, v0, 2, 1
              v_lshl_add_u32 v36, v1, 10, v36
              v_and_b32 v1, 3, v0
              v_lshl_add_u32 v36, v1, 5, v36
              v_bfe_u32 v1, v0, 4, 1
              v_lshl_add_u32 v36, v1, 4, v36
              s_lshl_b32 s60, {sG}, 15
              s_and_b32 s61, {sWAVE}, 3
              s_lshl_b32 s61, s61, 13
              s_add_u32 s60, s60, s61
              s_lshr_b32 s61, {sWAVE}, 2
              s_lshl_b32 s61, s61, 11
              s_add_u32 s60, s60, s61
              s_lshl_b32 s61, {sJ}, 7
              s_add_u32 s60, s60, s61
              s_add_u32 s60, s60, {WS_A1}""")
        lb = self.lab('mb')
        npf = 1 if o['PF'] else 0
        a(f"""s_cmp_ge_u32 {sWAVE}, 4
              s_cbranch_scc0 {lb}""")
        a("v_lshrrev_b32 v4, 2, v0")
        self.perm_pos_bytes('v5', 'v4', 'v6')
        a(f"""v_and_b32 v6, 3, v0
              v_lshl_add_u32 v5, v6, 1, v5
              s_and_b32 s61, {sWAVE}, 3
              s_mul_i32 s61, s61, 160
              s_add_u32 s61, s61, {SC}
              v_add_u32 v5, s61, v5""")
        if o['TOUCH']:
            lc3 = self.lab('mc3')
            lc7 = self.lab('mc7')
            a(f"""s_cmp_eq_u32 {sWAVE}, 4
                  s_cbranch_scc1 {lc7}
                  s_waitcnt vmcnt(3)""")
            a.label(lc7)
            a("s_waitcnt vmcnt(7)")
        else:
            a("s_waitcnt vmcnt(3)")
        a("v_lshlrev_b32 v8, 16, v24")
        self.silu1('v8', 12)
        a("""v_cvt_pk_bf16_f32 v8, v8, v8
             ds_write_b16 v5, v8""")
        a.label(lb)
        a("""s_waitcnt vmcnt(0) lgkmcnt(0)
             s_barrier""")
        self.stamp(1)
        self.frags(F, 'v34', 2, 8192, 4096)
        a(f"""ds_read_b128 v[72:75], v35
              ds_read_b128 v[76:79], v35 offset:64
              s_add_u32 {sTAG}, {sE}, {TAGC}
              s_waitcnt lgkmcnt(0)
              v_mfma_f32_16x16x32_bf16 v[4:7], v[64:67], v[72:75], 0
              v_mfma_f32_16x16x32_bf16 v[4:7], v[68:71], v[76:79], v[4:7]""")
        a(f"""s_mov_b32 exec_lo, 0x00f000f0
              s_mov_b32 exec_hi, 0x00f000f0
              v_mov_b32 v4, v6
              v_mov_b32 v5, v7
              s_mov_b32 exec_lo, 0x00ff00ff
              s_mov_b32 exec_hi, 0x00ff00ff
              v_mov_b32 v6, {sTAG}
              v_mov_b32 v7, 0""")
        self.st_local(4, 'v36', 's60')
        a("s_mov_b64 exec, -1")
        self.stamp(2)
        ls = self.lab('ms')
        lh4 = self.lab('mh4')
        lh = self.lab('mh')
        a(f"""s_cmp_eq_u32 {sWAVE}, 4
              s_cbranch_scc1 {lh4}
              s_cmp_lt_u32 {sWAVE}, 4
              s_cbranch_scc0 {ls}""")
        for k in range(4):
            self.unpack(f'v{8+2*k}', f'v{9+2*k}', f'v{24+k}')
        self.ln_stats(8, 'v20', 'v21', 'v22', 16)
        a(f"""s_lshl_b32 s61, {sWAVE}, 3
              s_add_u32 s61, s61, {STAT}
              v_mov_b32 v1, s61
              s_mov_b64 exec, 1
              ds_write_b64 v1, v[20:21]
              s_mov_b64 exec, -1
              s_waitcnt lgkmcnt(0)""")
        a.label(ls)
        a("""s_mov_b32 exec_lo, 0x00ff00ff
             s_mov_b32 exec_hi, 0x00ff00ff""")
        self.st_global(4, 'v36', 's60')
        a(f"""s_mov_b64 exec, -1
              s_barrier
              s_branch {lh}""")
        a.label(lh4)
        a("""s_mov_b32 exec_lo, 0x00ff00ff
             s_mov_b32 exec_hi, 0x00ff00ff""")
        self.st_global(4, 'v36', 's60')
        a(f"""s_mov_b64 exec, -1
              v_bfe_u32 v1, v0, 1, 2
              v_lshlrev_b32 v1, 3, v1
              v_add_u32 v1, {STAT}, v1
              v_lshlrev_b32 v28, 16, v28
              s_lshl_b32 s59, {sG}, 3
              s_add_u32 s59, s59, {sJ}
              s_lshl_b32 s57, s59, 7
              s_add_u32 s57, s57, {WS_A2}
              s_lshl_b32 s59, s59, 12
              s_add_u32 s59, s59, {WS_A1}
              v_lshlrev_b32 v2, 4, v0""")
        self.poll('A1', [self.gload(4 + 4 * m, 'v2', 's59', 1024 * m) for m in range(4)],
                  lambda ok: self.check_tags(['v6', 'v10', 'v14', 'v18'], ok), local=['s59'])
        self.stamp(3)
        a("""s_barrier
             ds_read_b64 v[20:21], v1
             v_mov_b32 v6, v8
             v_mov_b32 v7, v9
             v_mov_b32 v14, v16
             v_mov_b32 v15, v17""")
        for r in range(4):
            a(f"v_add_f32_dpp v{4+r}, v{4+r}, v{4+r} row_ror:8 row_mask:0xf bank_mask:0xf")
        for r in range(4):
            a(f"v_add_f32_dpp v{12+r}, v{12+r}, v{12+r} row_ror:8 row_mask:0xf bank_mask:0xf")
        a("""v_permlane16_swap_b32 v4, v5
             v_permlane16_swap_b32 v6, v7
             v_permlane16_swap_b32 v12, v13
             v_permlane16_swap_b32 v14, v15
             v_add_f32 v4, v4, v5
             v_add_f32 v6, v6, v7
             v_add_f32 v12, v12, v13
             v_add_f32 v14, v14, v15
             v_permlane32_swap_b32 v4, v6
             v_permlane32_swap_b32 v12, v14
             v_add_f32 v4, v4, v6
             v_add_f32 v12, v12, v14
             s_waitcnt lgkmcnt(0)
             v_rcp_f32 v22, v21
             v_cvt_pk_bf16_f32 v4, v4, v12
             v_and_b32 v12, 0xffff0000, v4
             v_lshlrev_b32 v4, 16, v4
             v_add_f32 v12, 1.0, v12""")
        self.ln_elem('v29', 'v28', 'v20', 'v21', 'v22', 'v23', 'v30')
        a(f"""v_mov_b32 v22, {sTAG}
              v_mov_b32 v23, 0""")
        self.rnd('v12', 'v12')
        a("v_mul_f32 v12, v29, v12")
        self.rnd('v12', 'v12')
        a("v_add_f32 v12, v12, v4")
        self.rows_to_quad('v20', 'v21', 'v12', 'v8')
        a("s_mov_b64 exec, 0xff")
        self.gstore(20, 'v2', 's57')
        a("s_mov_b64 exec, -1")
        self.stamp(4)
        a.label(lh)
        a(f"""s_cmp_eq_u32 {sJ}, 7
              s_cbranch_scc1 L_ROLE_GA""")
        a(f"""s_mul_i32 s66, {sG}, 7
              s_add_u32 s66, s66, {sJ}""")
        self.srd(44, sWG, 512 * 3584)
        self.srd(48, sWU, 512 * 3584)
        self.srd(52, sWD, 1792 * 1024)
        a(f"""v_lshrrev_b32 v1, 2, v0
              v_mul_u32_u24 v1, 3584, v1
              v_bfe_u32 v2, v0, 4, 1
              v_lshlrev_b32 v2, 1, v2
              v_and_b32 v3, 3, v0
              v_xor_b32 v2, v2, v3
              v_lshl_add_u32 v32, v2, 4, v1
              v_xor_b32 v2, {1 if o['GUMIX'] else 0}, v2
              v_lshl_add_u32 v31, v2, 4, v1
              s_lshl_b32 s59, {sWAVE}, 6
              s_mul_i32 s59, s59, 3584
              s_lshl_b32 s61, s66, 6
              s_add_u32 s59, s59, s61
              s_mov_b32 s60, s59
              s_lshl_b32 s67, s66, 5
              s_lshl_b32 s61, {sWAVE}, 2
              s_add_u32 s67, s67, s61
              s_lshl_b32 s67, s67, 10
              s_and_b32 s62, {sWAVE}, 1
              s_lshl_b32 s62, s62, 3""")
        for n in range(4):
            a(f"""s_add_u32 s63, s62, {2*n}
                  v_xor_b32 v1, s63, v0
                  v_lshlrev_b32 v{40+n}, 4, v1""")
        if o['GUMIX']:
            a(f"""v_lshrrev_b32 v1, 4, v0
                  v_bfe_u32 v2, v0, 2, 2
                  v_lshl_add_u32 v3, v1, 2, v2
                  v_lshlrev_b32 v33, 6, v3
                  v_and_b32 v3, 1, v1
                  v_lshlrev_b32 v3, 1, v3
                  s_and_b32 s61, {sWAVE}, 3
                  v_xor_b32 v3, s61, v3
                  v_bfe_u32 v4, v0, 1, 1
                  v_xor_b32 v3, v3, v4
                  v_lshl_add_u32 v33, v3, 4, v33
                  v_lshl_add_u32 v33, v4, 15, v33
                  v_and_b32 v3, 1, v0
                  v_lshl_add_u32 v33, v3, 3, v33
                  v_add_u32 v33, {GATE}, v33""")
        else:
            a(f"""v_lshrrev_b32 v1, 4, v0
                  v_bfe_u32 v2, v0, 2, 2
                  v_lshl_add_u32 v3, v1, 2, v2
                  v_lshlrev_b32 v33, 6, v3
                  v_and_b32 v3, 1, v1
                  s_and_b32 s61, {sWAVE}, 1
                  v_xor_b32 v3, s61, v3
                  v_lshl_add_u32 v33, v3, 5, v33
                  v_and_b32 v3, 3, v0
                  v_lshl_add_u32 v33, v3, 3, v33
                  s_bfe_u32 s61, {sWAVE}, 0x10001
                  s_lshl_b32 s61, s61, 15
                  s_add_u32 s61, s61, {GATE}
                  v_add_u32 v33, s61, v33""")
        a(f"""v_lshl_add_u32 v3, v1, 2, v2
              v_lshlrev_b32 v4, 10, v3
              v_and_b32 v5, 3, v0
              v_lshl_add_u32 v4, v5, 3, v4
              v_add_u32 v4, {DOWN}, v4
              v_and_b32 v3, 7, v3
              v_lshlrev_b32 v3, 1, v3
              s_lshl_b32 s61, {sWAVE}, 3
              v_xor_b32 v3, s61, v3""")
        for t in range(4):
            a(f"""v_xor_b32 v5, {2*t}, v3
                  v_lshl_add_u32 v{34+t}, v5, 4, v4""")
        self.act_addr('v38', H2, 1056, 'v1')
        self.act_addr('v39', GU, 96, 'v1')
        a(f"""v_lshlrev_b32 v44, 4, v0
              s_lshl_b32 s68, {sG}, 2
              s_add_u32 s68, s68, {sWAVE}
              s_lshl_b32 s68, s68, 12
              s_add_u32 s68, s68, {WS_D}""")
        self.perm_pos_bytes('v45', 'v0', 'v1')
        a(f"""s_mul_i32 s61, {sWAVE}, 1056
              s_add_u32 s61, s61, {H2}
              v_add_u32 v45, s61, v45""")
        if o['GUMIX']:
            a(f"""v_and_b32 v1, 3, v0
                  v_mul_u32_u24 v46, 96, v1
                  v_lshrrev_b32 v1, 4, v0
                  s_lshl_b32 s61, {sWAVE}, 1
                  v_add_u32 v1, s61, v1
                  v_and_b32 v2, 3, v1
                  v_lshl_add_u32 v46, v2, 4, v46
                  v_bfe_u32 v2, v1, 2, 1
                  v_lshl_add_u32 v46, v2, 3, v46
                  v_add_u32 v46, {GU}, v46""")
        else:
            a(f"""v_and_b32 v1, 3, v0
                  v_mul_u32_u24 v46, 96, v1
                  v_lshrrev_b32 v1, 4, v0
                  v_lshl_add_u32 v46, v1, 4, v46
                  s_and_b32 s61, {sWAVE}, 1
                  s_lshl_b32 s61, s61, 3
                  s_bfe_u32 s62, {sWAVE}, 0x10001
                  s_mul_i32 s62, s62, 384
                  s_add_u32 s61, s61, s62
                  s_add_u32 s61, s61, {GU}
                  v_add_u32 v46, s61, v46""")
        a(f"""v_bfe_u32 v1, v0, 2, 2
              v_lshlrev_b32 v1, 1, v1
              v_lshrrev_b32 v2, 5, v0
              v_add_u32 v1, v1, v2
              v_mul_u32_u24 v47, {56*128}, v1
              v_and_b32 v1, 3, v0
              v_lshl_add_u32 v47, v1, 5, v47
              v_bfe_u32 v1, v0, 4, 1
              v_lshl_add_u32 v47, v1, 4, v47
              s_mul_i32 s63, {sWAVE}, {8*56*128}
              s_lshl_b32 s61, s66, 7
              s_add_u32 s63, s63, s61
              s_add_u32 s63, s63, {WS_E}""")
        self.sel_consts()
        self.tagbytes(48)
        if o['MG1']:
            a(f"""s_barrier
                  s_lshl_b32 s61, {sWAVE}, 12
                  s_add_u32 s61, s61, {GATE}
                  s_mov_b32 m0, s61""")
            self.dma_loop('v32', R1, 's59', 16 * 3584, o['MG1'])
        if o['HELPV']:
            lhv = self.lab('hv')
            a(f"""s_barrier
                  s_cmp_lt_u32 {sJ}, 4
                  s_cbranch_scc0 {lhv}
                  s_mov_b32 s92, s8
                  s_mov_b32 s93, s9
                  s_mov_b32 s94, 0x2000000
                  s_mov_b32 s95, 0x20000
                  s_lshl_b32 s61, {sJ}, 3
                  s_add_u32 s61, s61, {sG}
                  s_lshl_b32 s61, s61, 20
                  s_lshl_b32 s62, {sWAVE}, 15
                  s_add_u32 s61, s61, s62
                  s_add_u32 s61, s61, {(3072 + 128 - 32) * 256}
                  v_lshlrev_b32 v212, 7, v0""")
            for n in range(o['HELPV']):
                a(f"""buffer_load_dword v213, v212, s[92:95], s61 offen
                      s_sub_u32 s61, s61, {32*256}""")
            a.label(lhv)
            self.sel_consts()
        if o['MTRIG']:
            lt = self.lab('mt')
            if o['MEARLY']:
                a(f"""s_lshr_b32 s61, s66, 1
                      s_and_b32 s61, s61, 3
                      s_cmp_eq_u32 s61, 3
                      s_cbranch_scc1 {lt}""")
            a(f"""s_cmp_eq_u32 {sWAVE}, 0
                  s_cbranch_scc0 {lt}
                  v_lshlrev_b32 v2, 10, v0
                  s_lshl_b32 s61, {sG}, 13
                  s_add_u32 s61, s61, {WS_B}""")
            if o['MTRIG'] == 2:
                a(f"""v_lshrrev_b32 v2, 1, v0
                      v_lshlrev_b32 v2, 17, v2
                      v_and_b32 v3, 1, v0
                      v_lshl_add_u32 v2, v3, 13, v2
                      s_lshl_b32 s61, {sG}, 14
                      s_add_u32 s61, s61, {WS_S}""")
            a("s_mov_b64 exec, 0xff")
            self.poll('T', [self.gload(4, 'v2', 's61')], lambda ok: self.check_tags(['v6'], ok), local=['s61'])
            a("s_mov_b64 exec, -1")
            a.label(lt)
        a("s_barrier")
        if o['MSLEEP']:
            lms = self.lab('msl')
            a(f"""s_lshr_b32 s61, s66, 1
                  s_and_b32 s61, s61, 3
                  s_cmp_eq_u32 s61, 3
                  s_cbranch_scc1 {lms}
                  s_sleep {o['MSLEEP']}""")
            a.label(lms)
        a(f"""s_lshl_b32 s61, {sWAVE}, 12
              s_add_u32 s61, s61, {GATE + 1024 * o['MG1']}
              s_mov_b32 m0, s61""")
        if o['MG1'] < 4:
            self.dma_loop('v32', R1, 's59', 16 * 3584, 4 - o['MG1'], win=o['MWIN'])
        a(f"""s_sub_u32 s61, s61, {1024 * o['MG1']}
              s_add_u32 s61, s61, {UP-GATE}
              s_mov_b32 m0, s61""")
        self.dma_loop('v31', R2, 's60', 16 * 3584, 4)
        a(f"""s_add_u32 s61, s61, {DOWN-UP}
              s_mov_b32 m0, s61
              s_nop 0""")
        for n in range(4):
            a(f"""buffer_load_dwordx4 v{40+n}, {R3}, s67 offen {self.nt()}lds
                  s_add_u32 s67, s67, 1024
                  s_add_u32 m0, m0, 1024
                  s_nop 0""")
        a("""s_waitcnt vmcnt(0)
             s_barrier""")
        self.stamp(5)
        for t in range(4):
            for h in range(2):
                q = 128 + 4 * t + 2 * h
                a(f"ds_read_b64_tr_b16 v[{q}:{q+1}], v{34+t} offset:{16384*h}")
        lw = self.lab('mw')
        a(f"""s_cmp_lt_u32 {sWAVE}, 4
              s_cbranch_scc0 {lw}
              s_waitcnt lgkmcnt(0)""")
        for s in range(16):
            for h in range(2):
                q = F + 4 * s + 2 * h
                a(f"ds_read_b64_tr_b16 v[{q}:{q+1}], v33 offset:{2048*s+1024*h}")
            if s in (6, 10):
                a("s_waitcnt lgkmcnt(6)")
        self.poll('D', [self.gload(4, 'v44', 's68'), self.gload(8, 'v44', 's68', 2048),
                        self.gload(12, 'v44', 's68', 1024), self.gload(16, 'v44', 's68', 3072)],
                  lambda ok: self.check_tags(['v7', 'v11', 'v15', 'v19'], ok), local=['s68'])
        self.stamp(6)
        X = 20
        self.unpack(f'v{X}', f'v{X+1}', 'v4')
        self.unpack(f'v{X+2}', f'v{X+3}', 'v5')
        self.unpack(f'v{X+4}', f'v{X+5}', 'v12')
        self.unpack(f'v{X+6}', f'v{X+7}', 'v13')
        if o['FASTLN']:
            self.ln2_fast(X)
        else:
            M2, SD2, RC2 = 52, 54, 56
            self.ln_stats_pivot(X, M2, SD2, RC2, 144)
            csrc = ['v6', 'v8', 'v14', 'v16']
            ssrc = ['v9', 'v10', 'v17', 'v18']
            for p in range(4):
                x = X + 2 * p
                a(f"v_pk_add_f32 v[{x}:{x+1}], v[{x}:{x+1}], v[{M2}:{M2+1}] neg_lo:[0,1] neg_hi:[0,1]")
            for p in range(4):
                self.pk_rnd(X + 2 * p, f'v{144+p}')
            for p in range(4):
                x, q = X + 2 * p, 148 + 2 * p
                a(f"v_pk_mul_f32 v[{q}:{q+1}], v[{x}:{x+1}], v[{RC2}:{RC2+1}]")
            for p in range(4):
                x, q = X + 2 * p, 148 + 2 * p
                a(f"v_pk_fma_f32 v[{x}:{x+1}], v[{q}:{q+1}], v[{SD2}:{SD2+1}], v[{x}:{x+1}] neg_lo:[1,0,0] neg_hi:[1,0,0]")
            for p in range(4):
                x, q = X + 2 * p, 148 + 2 * p
                a(f"v_pk_fma_f32 v[{x}:{x+1}], v[{x}:{x+1}], v[{RC2}:{RC2+1}], v[{q}:{q+1}]")
            for p in range(4):
                self.pk_rnd(X + 2 * p, f'v{144+p}')
            for p in range(4):
                q = 148 + 2 * p
                self.unpack(f'v{q}', f'v{q+1}', csrc[p])
            for p in range(4):
                x, q = X + 2 * p, 148 + 2 * p
                a(f"v_pk_mul_f32 v[{x}:{x+1}], v[{x}:{x+1}], v[{q}:{q+1}]")
            for p in range(4):
                q = 148 + 2 * p
                self.unpack(f'v{q}', f'v{q+1}', ssrc[p])
            for p in range(4):
                self.pk_rnd(X + 2 * p, f'v{144+p}')
            for p in range(4):
                x, q = X + 2 * p, 148 + 2 * p
                a(f"v_pk_add_f32 v[{x}:{x+1}], v[{x}:{x+1}], v[{q}:{q+1}]")
            for p in range(4):
                a(f"v_cvt_pk_bf16_f32 v{4+p}, v{X+2*p}, v{X+2*p+1}")
        a("""ds_write_b64 v45, v[4:5]
             ds_write_b64 v45, v[6:7] offset:512""")
        a.label(lw)
        a("""s_waitcnt lgkmcnt(0)
             s_barrier""")
        self.stamp(7)
        lg = self.lab('mg')
        a(f"""s_cmp_lt_u32 {sWAVE}, 4
              s_cbranch_scc0 {lg}""")
        self.gemv16(4, F, 'v38', 144)
        if o['GUMIX']:
            self.pk_rnd(4, 'v12')
            self.pk_rnd(6, 'v13')
            for r in range(4):
                a(f"v_mov_b32 v{8+r}, v{4+r}")
            for r in range(4):
                a(f"v_permlane32_swap_b32 v{4+r}, v{8+r}")
            for r in range(4):
                a(f"v_max_f32 v{4+r}, 0, v{4+r}")
            a("""v_pk_mul_f32 v[4:5], v[4:5], v[8:9]
                 v_pk_mul_f32 v[6:7], v[6:7], v[10:11]
                 v_cvt_pk_bf16_f32 v8, v4, v5
                 v_cvt_pk_bf16_f32 v9, v6, v7
                 s_mov_b32 exec_lo, 0x000f000f
                 s_mov_b32 exec_hi, 0
                 ds_write_b64 v46, v[8:9]
                 s_mov_b64 exec, -1""")
            a.label(lg)
            a("""s_waitcnt lgkmcnt(0)
                 s_barrier
                 ds_read_b128 v[16:19], v39
                 s_waitcnt lgkmcnt(0)""")
        else:
            a("""v_cvt_pk_bf16_f32 v8, v4, v5
                 v_cvt_pk_bf16_f32 v9, v6, v7
                 s_mov_b32 exec_lo, 0x000f000f
                 s_mov_b32 exec_hi, 0x000f000f
                 ds_write_b64 v46, v[8:9]
                 s_mov_b64 exec, -1""")
            a.label(lg)
            a("""s_waitcnt lgkmcnt(0)
                 s_barrier
                 ds_read_b128 v[4:7], v39
                 ds_read_b128 v[8:11], v39 offset:384
                 s_waitcnt lgkmcnt(0)""")
            for k in range(4):
                self.unpack(f'v{20+2*k}', f'v{21+2*k}', f'v{4+k}')
            for k in range(4):
                self.unpack(f'v{144+2*k}', f'v{145+2*k}', f'v{8+k}')
            for k in range(8):
                a(f"v_max_f32 v{20+k}, 0, v{20+k}")
            for k in range(4):
                a(f"v_pk_mul_f32 v[{20+2*k}:{21+2*k}], v[{20+2*k}:{21+2*k}], v[{144+2*k}:{145+2*k}]")
            for k in range(4):
                a(f"v_cvt_pk_bf16_f32 v{16+k}, v{20+2*k}, v{21+2*k}")
        D = [4, 8, 12, 20]
        for t in range(4):
            a(f"v_mfma_f32_16x16x32_bf16 v[{D[t]}:{D[t]+3}], v[{128+4*t}:{131+4*t}], v[16:19], 0")
        self.select_tiles(D)
        self.steal(4, 48)
        self.gstore(4, 'v47', 's63')
        self.stamp(8)
        self.stamps_out(16)
        a("s_endpgm")

        a.label("L_ROLE_GA")
        S = 131072
        self.srd(48, sC, 4096)
        self.dma_off_p128('v32', 6144, 'v1', 'v2')
        a(f"""s_lshl_b32 s59, {sWAVE}, 6
              s_mul_i32 s59, s59, 6144
              s_lshl_b32 s61, {sG}, 7
              s_add_u32 s59, s59, s61
              s_add_u32 s59, s59, 2048
              s_lshl_b32 s61, {sWAVE}, 13
              s_add_u32 s61, s61, {GATE}
              s_mov_b32 m0, s61
              s_barrier""")
        lc = self.lab('gc')
        a(f"""s_cmp_lt_u32 {sWAVE}, 4
              s_cbranch_scc0 {lc}
              s_lshl_b32 s61, {sWAVE}, 10
              v_lshlrev_b32 v1, 3, v0
              buffer_load_dwordx2 v[24:25], v1, {R2}, s61 offen
              buffer_load_dwordx2 v[26:27], v1, {R2}, s61 offen offset:512""")
        a.label(lc)
        self.dma_loop('v32', R1, 's59', 8 * 6144, 8)
        lc2 = self.lab('gc2')
        a(f"""s_cmp_lt_u32 {sWAVE}, 4
              s_cbranch_scc0 {lc2}
              s_waitcnt vmcnt(8)""")
        self.perm_pos_bytes('v5', 'v0', 'v6')
        a(f"""s_mul_i32 s61, {sWAVE}, 1056
              s_add_u32 s61, s61, {S}
              v_add_u32 v5, s61, v5""")
        for hf in range(2):
            self.unpack('v8', 'v9', f'v{24+2*hf}')
            self.unpack('v10', 'v11', f'v{25+2*hf}')
            self.silu4(8, 12)
            a(f"""v_cvt_pk_bf16_f32 v8, v8, v9
                  v_cvt_pk_bf16_f32 v9, v10, v11
                  ds_write_b64 v5, v[8:9] offset:{512*hf}""")
        a.label(lc2)
        a(f"s_lshl_b32 s61, {sWAVE}, 5")
        self.tr_addr_p128('v33', 's61', GATE, 'v1', 'v2')
        self.act_addr('v35', S, 1056, 'v1')
        a(f"""v_lshrrev_b32 v1, 5, v0
              v_lshlrev_b32 v36, 10, v1
              v_bfe_u32 v1, v0, 2, 1
              v_lshl_add_u32 v36, v1, 7, v36
              v_and_b32 v1, 3, v0
              v_lshl_add_u32 v36, v1, 5, v36
              v_bfe_u32 v1, v0, 4, 1
              v_lshl_add_u32 v36, v1, 4, v36
              s_lshl_b32 s59, {sG}, 13
              s_lshl_b32 s61, {sWAVE}, 11
              s_add_u32 s59, s59, s61
              s_add_u32 s59, s59, {WS_ML}""")
        self.sel_consts()
        self.tagbytes(28)
        a("""s_waitcnt vmcnt(0) lgkmcnt(0)
             s_barrier""")
        le = self.lab('ge')
        a(f"""s_cmp_lt_u32 {sWAVE}, 4
              s_cbranch_scc0 {le}""")
        for s in range(16):
            for h in range(2):
                q = F + 4 * s + 2 * h
                a(f"ds_read_b64_tr_b16 v[{q}:{q+1}], v33 offset:{4096*s+2048*h}")
            if s in (6, 13):
                a("s_waitcnt lgkmcnt(0)")
        a("s_waitcnt lgkmcnt(0)")
        self.gemv16(4, F, 'v35', 144)
        a("""s_mov_b32 exec_lo, 0x00f000f0
             s_mov_b32 exec_hi, 0x00f000f0""")
        for r in range(4):
            a(f"v_mov_b32 v{4+r}, 0")
        a("""s_mov_b32 exec_lo, 0x00ff00ff
             s_mov_b32 exec_hi, 0x00ff00ff""")
        self.steal(4, 28)
        self.gstore(4, 'v36', 's59')
        a("s_mov_b64 exec, -1")
        a.label(le)
        self.stamp(5)
        self.stamps_out(16)
        a("s_endpgm")

    def ent_w(self):
        a = self.a
        o = self.o
        a.label("L_ENT_W")
        self.role = 'W'
        a(f"s_sub_u32 s56, {sJ}, 8")
        if o.get('ISWZ'):
            a(f"s_xor_b32 s56, s56, {o['ISWZ']}")
        self.dma_off_p128('v32', 8192, 'v1', 'v2')
        a(f"""s_lshl_b32 s59, {sWAVE}, 19
              s_lshl_b32 s61, {sG}, 10
              s_add_u32 s59, s59, s61
              s_lshl_b32 s61, s56, 7
              s_add_u32 s59, s59, s61
              s_lshl_b32 s61, {sWAVE}, 13
              s_mov_b32 m0, s61""")
        self.kwait(ws=False)
        self.srd(44, sWQ, 512 * 8192)
        if o['WWAIT'] == 1:
            a("s_waitcnt lgkmcnt(0)")
        if o['WWAIT'] == 2:
            lw = self.lab('ww')
            a(f"""s_cmp_eq_u32 s56, 3
                  s_cbranch_scc1 {lw}
                  s_waitcnt lgkmcnt(0)""")
            a.label(lw)
        if o['WSLEEP']:
            a(f"s_sleep {o['WSLEEP']}")
        self.stamp(15)
        self.only_exit('W', pre=True)
        self.dma_loop('v32', R1, 's59', 8 * 8192, 8, win=o['WWIN'])
        a("s_branch L_ROLE_W")

    def role_w(self):
        a = self.a
        o = self.o
        WQ, WO, H, O = 0, 65536, 131072, 135296
        F = 64
        a.label("L_ROLE_W")
        self.role = 'W'
        self.srd(40, sWS, WS_SIZE)
        self.only_exit('W')
        self.w_setup1(H, O, WQ, WO)
        if o['IOX']:
            a(f"s_xor_b32 s56, s56, {o['IOX']}")
        self.srd(52, sX, 4096)
        a(f"""v_bfe_u32 v1, v0, 1, 2
              v_lshlrev_b32 v1, 10, v1
              v_and_b32 v2, 1, v0
              v_lshl_add_u32 v1, v2, 3, v1
              v_lshrrev_b32 v2, 4, v0
              v_lshl_add_u32 v1, v2, 1, v1
              s_lshl_b32 s61, s56, 7
              s_lshl_b32 s62, {sWAVE}, 4
              s_add_u32 s61, s61, s62
              buffer_load_ushort v60, v1, {R3}, s61 offen""")
        self.srd(44, sWO, 4096 * 1024)
        self.dma_off_p128('v32', 1024, 'v1', 'v2')
        a(f"""s_lshl_b32 s59, {sG}, 9
              s_lshl_b32 s61, {sWAVE}, 6
              s_add_u32 s59, s59, s61
              s_lshl_b32 s59, s59, 10
              s_lshl_b32 s61, s56, 7
              s_add_u32 s59, s59, s61
              s_lshl_b32 s67, {sWAVE}, 13
              s_add_u32 s67, s67, {WO}""")
        if o['WO1']:
            a("s_mov_b32 m0, s67")
            self.dma_loop('v32', R1, 's59', 8 * 1024, o['WO1'])
            a(f"s_add_u32 s67, s67, {1024 * o['WO1']}")
        a("s_mov_b32 s89, 8")
        if o['WO3']:
            l3 = self.lab('wo3')
            a(f"""s_cmp_eq_u32 s56, 3
                  s_cbranch_scc0 {l3}
                  s_mov_b32 m0, s67""")
            self.dma_loop('v32', R1, 's59', 8 * 1024, o['WO3'])
            a(f"""s_add_u32 s67, s67, {1024 * o['WO3']}
                  s_mov_b32 s89, {8 - o['WO3']}""")
            a.label(l3)
        self.tag_ready()
        self.x_publish(False)
        self.stamp(1)
        lw1 = self.lab('w1')

        def first():
            self.stamp(2)
            self.x_load()
            a("s_barrier")
            a(f"""s_cmp_lt_u32 {sWAVE}, 4
                  s_cbranch_scc0 {lw1}""")
            for s in range(16):
                for h in range(2):
                    q = F + 4 * s + 2 * h
                    a(f"ds_read_b64_tr_b16 v[{q}:{q+1}], v36 offset:{4096*s+2048*h}")
                if s in (6, 10):
                    a("s_waitcnt lgkmcnt(6)")
            a.label(lw1)
        if o['PIPE_A2']:
            okA = self.lab('a2first')
            a(self.gload(4, 'v33', 's58'))
            a("s_waitcnt vmcnt(0)")
            first()
            self.check_tags(['v6'], okA)
            NS = o['PIPE_A2']

            def takeA(k):
                a(f"""v_mov_b32 v4, v{192+4*k}
                      v_mov_b32 v5, v{193+4*k}""")
            self.poll_pipe('A2', NS, lambda k: [self.gload(192 + 4 * k, 'v33', 's58')],
                           lambda k, ok: self.check_tags([f'v{194+4*k}'], ok), takeA, o['SLP_A2'])
            a.label(okA)
        else:
            self.poll('A2', [self.gload(4, 'v33', 's58')],
                      lambda ok: self.check_tags(['v6'], ok), first_extra=first)
        a("""ds_write_b64 v34, v[4:5]
             s_waitcnt lgkmcnt(0)
             s_barrier""")
        self.stamp(3)
        lq = self.lab('wqskip')
        a(f"""s_mov_b32 m0, s67
              s_cmp_lt_u32 {sWAVE}, 4
              s_cbranch_scc0 {lq}""")
        self.gemv16(4, F, 'v38', 128)
        a(f"""v_cvt_pk_bf16_f32 v8, v4, v5
              v_cvt_pk_bf16_f32 v9, v6, v7
              v_mov_b32 v10, {sTAG}
              v_mov_b32 v11, 0
              s_mov_b32 exec_lo, 0x000f000f
              s_mov_b32 exec_hi, 0x000f000f""")
        self.st_local(8, 'v40', 's57')
        a("s_mov_b64 exec, -1")
        a.label(lq)
        a("s_barrier")
        if o['XFLAG']:
            a("s_waitcnt vmcnt(1)")
            self.x_flag()
        self.stamp(4)
        lq3 = self.lab('wq3')
        a(f"""s_cmp_lt_u32 {sWAVE}, 4
              s_cbranch_scc0 {lq3}
              s_mov_b32 exec_lo, 0x000f000f
              s_mov_b32 exec_hi, 0x000f000f""")
        self.st_global(8, 'v40', 's57', flag=True)
        a("s_mov_b64 exec, -1")
        a.label(lq3)
        if o['WO3']:
            self.dma_loop('v32', R1, 's59', 8 * 1024, 's89')
        elif o['WO1'] < 8:
            self.dma_loop('v32', R1, 's59', 8 * 1024, 8 - o['WO1'])
        a(f"""s_lshl_b32 s58, {sG}, 13
              s_add_u32 s58, s58, {WS_C}
              v_lshrrev_b32 v1, 5, v0
              v_lshlrev_b32 v41, {11 if o['WOSPLIT'] else 10}, v1
              v_and_b32 v1, 3, v0
              v_lshl_add_u32 v41, v1, 5, v41
              v_bfe_u32 v1, v0, 4, 1
              v_lshl_add_u32 v41, v1, 4, v41
              s_lshl_b32 s57, s56, {14 if o['WOSPLIT'] else 13}
              s_and_b32 s61, {sWAVE}, 3
              s_lshl_b32 s61, s61, {12 if o['WOSPLIT'] else 11}
              s_add_u32 s57, s57, s61
              s_lshr_b32 s61, {sWAVE}, 2
              s_lshl_b32 s61, s61, 10
              s_add_u32 s57, s57, s61
              s_lshl_b32 s61, {sG}, 7
              s_add_u32 s57, s57, s61
              s_add_u32 s57, s57, {WS_C2B if o['WOSPLIT'] else WS_C2}
              v_lshlrev_b32 v42, 4, v0
              s_lshl_b32 s62, s56, 3
              s_add_u32 s62, s62, {sWAVE}
              s_lshl_b32 s63, s62, 10
              s_add_u32 s63, s63, {WS_ML}
              s_lshl_b32 s62, s62, {11 if o['WOSPLIT'] else 10}
              s_add_u32 s62, s62, {WS_C2B if o['WOSPLIT'] else WS_C2}
              ; D publish: ((g*4 + b)*2 + u)*2048 + Q*16, Q = 16i + 2w + q
              v_bfe_u32 v1, v0, 1, 2
              v_lshlrev_b32 v43, 12, v1
              v_and_b32 v1, 1, v0
              v_lshl_add_u32 v43, v1, 4, v43
              s_lshl_b32 s66, {sG}, 14
              s_lshl_b32 s61, s56, 8
              s_add_u32 s66, s66, s61
              s_lshl_b32 s61, {sWAVE}, 5
              s_add_u32 s66, s66, s61
              s_add_u32 s66, s66, {WS_D}
              v_bfe_u32 v1, v0, 1, 2
              v_lshlrev_b32 v61, 10, v1
              v_and_b32 v2, 1, v0
              v_lshl_add_u32 v61, v2, 3, v61
              v_lshrrev_b32 v2, 4, v0
              v_lshl_add_u32 v61, v2, 1, v61
              s_lshl_b32 s68, s56, 7
              s_lshl_b32 s61, {sG}, 4
              s_add_u32 s68, s68, s61
              s_lshl_b32 s69, s56, 3
              s_add_u32 s69, s69, {sG}
              s_mul_i32 s69, s69, {56*128}
              s_add_u32 s69, s69, {WS_E}""")
        if o['TOUCH']:
            a(self.gload(4, 'v42', 's62'))
            a(self.gload(8, 'v42', 's63'))
            lt1 = self.lab('wt1')
            a(f"""s_cmp_eq_u32 {sWAVE}, {sG}
                  s_cbranch_scc0 {lt1}
                  s_add_u32 s61, s69, 4096""")
            for m in range(7):
                a(self.gload(64 + 4 * m, 'v42', 's69' if m < 4 else 's61', 1024 * (m & 3)))
            a.label(lt1)
        self.srd(48, sOUT, 4096)
        self.sel_consts()
        self.tagbytes(48)
        a("v_lshlrev_b32 v60, 16, v60")
        lw2 = self.lab('w2')

        def first2():
            self.stamp(5)
            a("s_barrier")
            if o['WOSPLIT']:
                for s in range(8):
                    for h in range(2):
                        q = F + 4 * s + 2 * h
                        a(f"ds_read_b64_tr_b16 v[{q}:{q+1}], v37 offset:{4096*s+2048*h}")
                    if s == 6:
                        a("s_waitcnt lgkmcnt(6)")
                return
            a(f"""s_cmp_lt_u32 {sWAVE}, 4
                  s_cbranch_scc0 {lw2}""")
            for s in range(16):
                for h in range(2):
                    q = F + 4 * s + 2 * h
                    a(f"ds_read_b64_tr_b16 v[{q}:{q+1}], v37 offset:{4096*s+2048*h}")
                if s in (6, 10):
                    a("s_waitcnt lgkmcnt(6)")
            a.label(lw2)
        if o['WOSPLIT']:
            a(f"""s_lshr_b32 s61, {sWAVE}, 2
                  s_lshl_b32 s39, s61, 15
                  v_add_u32 v37, s39, v37
                  s_lshl_b32 s39, s61, 9
                  v_add_u32 v39, s39, v39""")
        self.poll('C', [self.gload(4, 'v33', 's58')], lambda ok: self.check_tags(['v6'], ok), first_extra=first2, local=['s58'])
        a("""ds_write_b64 v35, v[4:5]
             s_waitcnt lgkmcnt(0)
             s_barrier""")
        self.stamp(6)
        lo = self.lab('wo')
        if o['WOSPLIT']:
            for s_ in range(8):
                a(f"ds_read_b128 v[{128+4*s_}:{131+4*s_}], v39 offset:{64*s_}")
            for s_ in range(8):
                a(f"s_waitcnt lgkmcnt({7-s_})")
                c = "0" if s_ == 0 else "v[4:7]"
                a(f"v_mfma_f32_16x16x32_bf16 v[4:7], v[{F+4*s_}:{F+4*s_+3}], v[{128+4*s_}:{131+4*s_}], {c}")
        else:
            a(f"""s_cmp_lt_u32 {sWAVE}, 4
                  s_cbranch_scc0 {lo}""")
            self.gemv16(4, F, 'v39', 128)
        self.steal(4, 48)
        a("""s_mov_b32 exec_lo, 0x000f000f
             s_mov_b32 exec_hi, 0x000f000f""")
        self.gstore(4, 'v41', 's57')
        a("s_mov_b64 exec, -1")
        a.label(lo)
        self.stamp(7)

        def stolen_check(q):
            def chk(ok):
                self.stolen_tag(q, 'v12', 'v13')
                self.check_tags(['v12'], ok)
            return chk
        self.poll('ML', [self.gload(4, 'v42', 's63')] + ([self.gload(28, 'v42', 's62')] if o['MLTOUCH'] else []), stolen_check(4))
        if o['C2EARLY']:
            a(self.gload(24, 'v42', 's62'))
            if o['WOSPLIT']:
                a(self.gload(28, 'v42', 's62', 1024))
        for r in range(4):
            a(f"v_and_b32 v{4+r}, 0xffffff00, v{4+r}")
        for r in range(4):
            a(f"v_add_f32_dpp v{4+r}, v{4+r}, v{4+r} row_ror:8 row_mask:0xf bank_mask:0xf")
        self.pk_rnd(4, 'v12')
        self.pk_rnd(6, 'v13')
        a("""s_mov_b32 exec_lo, 0
             s_mov_b32 exec_hi, 0x0000ffff""")
        for r in range(4):
            a(f"v_add_f32 v{4+r}, 1.0, v{4+r}")
        self.pk_rnd(4, 'v12')
        self.pk_rnd(6, 'v13')
        a("s_mov_b64 exec, -1")
        a("""v_cvt_pk_bf16_f32 v8, v4, v5
             v_cvt_pk_bf16_f32 v9, v6, v7
             v_mov_b32 v16, 0
             v_mov_b32 v17, 0
             v_mov_b32 v18, 0
             v_mov_b32 v19, 0
             v_mov_b32 v10, v8
             v_mov_b32 v11, v9
             v_mov_b32 v14, v8
             v_mov_b32 v15, v9
             v_permlane32_swap_b32 v10, v16
             v_permlane32_swap_b32 v11, v17
             v_permlane16_swap_b32 v14, v18
             v_permlane16_swap_b32 v15, v19""")
        a(f"""v_mov_b32 v58, v16
              v_mov_b32 v20, v17
              v_mov_b32 v21, v18
              v_mov_b32 v22, v19
              v_mov_b32 v23, {sTAG}
              s_mov_b64 exec, 0xff""")
        self.st_local(20, 'v43', 's66', 2048)
        self.st_global(20, 'v43', 's66', 2048, flag=True)
        a("s_mov_b64 exec, -1")
        a("""v_permlane16_swap_b32 v4, v5
             v_permlane16_swap_b32 v6, v7
             v_permlane32_swap_b32 v4, v6
             v_permlane32_swap_b32 v5, v7
             v_mov_b32 v56, v4
             v_mov_b32 v57, v7""")
        self.stamp(8)
        okc = self.lab('c2first')
        lc2 = self.lab('c2got')
        nst = 2 if (o['LOCAL'] and not o.get('NOGLOBAL') and not o['XFLAG']) else 1
        if o['WOSPLIT']:
            def chk2(q0, q1):
                def chk(ok):
                    self.stolen_tag(q0, 'v12', 'v13')
                    self.stolen_tag(q1, 'v14', 'v13')
                    self.check_tags(['v12', 'v14'], ok)
                return chk
            if o['C2EARLY']:
                a(f"s_waitcnt vmcnt({nst})")
                chk2(24, 28)(okc)
            self.poll('C2', [self.gload(4, 'v42', 's62'), self.gload(8, 'v42', 's62', 1024)], chk2(4, 8))
            a(f"s_branch {lc2}")
            a.label(okc)
            for r in range(8):
                a(f"v_mov_b32 v{4+r}, v{24+r}")
            a.label(lc2)
            for r in range(8):
                a(f"v_and_b32 v{4+r}, 0xffffff00, v{4+r}")
            a("""v_pk_add_f32 v[4:5], v[4:5], v[8:9]
                 v_pk_add_f32 v[6:7], v[6:7], v[10:11]""")
        else:
            if o['C2EARLY']:
                a(f"s_waitcnt vmcnt({nst})")
                self.stolen_tag(24, 'v12', 'v13')
                self.check_tags(['v12'], okc)
            self.poll('C2', [self.gload(4, 'v42', 's62')], stolen_check(4))
            a(f"s_branch {lc2}")
            a.label(okc)
            for r in range(4):
                a(f"v_mov_b32 v{4+r}, v{24+r}")
            a.label(lc2)
            for r in range(4):
                a(f"v_and_b32 v{4+r}, 0xffffff00, v{4+r}")
        self.stamp(9)
        self.red_rows(4)
        if o['FASTX']:
            a("v_fma_f32 v4, v56, v4, v60")
        else:
            self.rnd('v4', 'v4')
            a("v_mul_f32 v4, v56, v4")
            self.rnd('v4', 'v4')
            a("v_add_f32 v4, v60, v4")
        self.rnd('v59', 'v4')
        a(f"""v_mov_b32 v10, v58
              v_mov_b32 v11, {sTAG}""")
        self.rows_to_quad('v8', 'v9', 'v59', 'v12')
        a("s_mov_b64 exec, 0xff")
        self.st_local(8, 'v43', 's66')
        self.stamp(10)
        a("s_barrier")
        self.st_global(8, 'v43', 's66', flag=True)
        a("s_mov_b64 exec, -1")
        end = self.lab('wend')
        a(f"""s_cmp_eq_u32 {sWAVE}, {sG}
              s_cbranch_scc0 {end}
              s_add_u32 s61, s69, 4096""")
        loads = []
        for m in range(7):
            if m < 4:
                loads.append(self.gload(64 + 4 * m, 'v42', 's69', 1024 * m))
            else:
                loads.append(self.gload(64 + 4 * m, 'v42', 's61', 1024 * (m - 4)))

        def echk(ok):
            for m in range(7):
                self.stolen_tag(64 + 4 * m, f'v{12+m}', 'v20')
            self.check_tags([f'v{12+m}' for m in range(7)], ok)
        if o['PIPE_E']:
            def loadE(k):
                b = 64 + 28 * k
                return [self.gload(b + 4 * m, 'v42', 's69' if m < 4 else 's61', 1024 * (m & 3)) for m in range(7)]

            def chkE(k, ok):
                b = 64 + 28 * k
                for m in range(7):
                    self.stolen_tag(b + 4 * m, f'v{12+m}', 'v20')
                self.check_tags([f'v{12+m}' for m in range(7)], ok)

            def takeE(k):
                for r in range(28):
                    a(f"v_and_b32 v{160+r}, 0xffffff00, v{64+28*k+r}")
            self.poll_pipe('E', o['PIPE_E'], loadE, chkE, takeE, o['SLP_E'])
            EB = 160
        else:
            self.poll('E', loads, echk)
            EB = 64
            for m in range(7):
                for r in range(4):
                    a(f"v_and_b32 v{64+4*m+r}, 0xffffff00, v{64+4*m+r}")
        self.stamp(11)
        def pk(d, s_):
            a(f"v_pk_add_f32 v[{d}:{d+1}], v[{d}:{d+1}], v[{s_}:{s_+1}]")
        for d, s_ in ((0, 4), (8, 12), (16, 20), (0, 8), (16, 24), (0, 16)):
            pk(EB + d, EB + s_)
            pk(EB + d + 2, EB + s_ + 2)
        self.red_rows(EB)
        e = f"v{EB}"
        if o['FASTX']:
            a(f"v_fma_f32 {e}, v57, {e}, v59")
        else:
            self.rnd(e, e)
            a(f"v_mul_f32 {e}, v57, {e}")
            self.rnd(e, e)
            a(f"v_add_f32 {e}, v59, {e}")
        a(f"""v_cvt_pk_bf16_f32 {e}, {e}, {e}
              s_mov_b32 exec_lo, 0x00ff00ff
              s_mov_b32 exec_hi, 0x00ff00ff
              buffer_store_short {e}, v61, {R2}, s68 offen{' sc0 sc1' if o.get('OUTSC') else ''}
              s_mov_b64 exec, -1""")
        noep = self.lab('noep')
        a(f"""s_cmp_eq_u32 s2, 64
              s_cbranch_scc0 {noep}
              v_mov_b32 v1, 0
              v_mov_b32 v2, {sTAG}
              s_mov_b64 exec, 1
              buffer_store_dword v2, v1, {WSR}, 0 offen offset:{WS_EPOCH}
              s_mov_b64 exec, -1""")
        a.label(noep)
        self.stamp(12)
        a.label(end)
        self.stamps_out(16)
        a("s_endpgm")

    def w_setup1(self, H, O, WQ, WO):
        a = self.a
        a(f"""s_lshl_b32 s61, {sWAVE}, 6
              v_add_u32 v1, s61, v0
              v_lshlrev_b32 v33, 4, v1
              v_lshrrev_b32 v2, 3, v1
              v_lshlrev_b32 v2, 1, v2
              v_and_b32 v3, 1, v1
              v_add_u32 v2, v2, v3""")
        self.perm_pos_bytes('v34', 'v2', 'v3')
        a(f"""v_bfe_u32 v3, v1, 1, 2
              v_mul_u32_u24 v3, 1056, v3
              v_add_u32 v34, v34, v3
              v_add_u32 v34, {H}, v34""")
        a(f"""v_bfe_u32 v2, v1, 4, 2
              v_lshlrev_b32 v2, 5, v2
              v_bfe_u32 v3, v1, 6, 1
              v_lshl_add_u32 v2, v3, 4, v2
              v_and_b32 v3, 15, v1
              v_add_u32 v2, v2, v3""")
        self.perm_pos_bytes('v35', 'v2', 'v3')
        a(f"""v_lshrrev_b32 v3, 7, v1
              v_mul_u32_u24 v3, 1056, v3
              v_add_u32 v35, v35, v3
              v_add_u32 v35, {O}, v35""")
        a(f"""s_and_b32 s61, {sWAVE}, 3
              s_lshl_b32 s61, s61, 5""")
        self.tr_addr_p128('v36', 's61', WQ, 'v1', 'v2')
        a(f"v_add_u32 v37, {WO-WQ}, v36")
        self.act_addr('v38', H, 1056, 'v1')
        a(f"v_add_u32 v39, {O-H}, v38")
        a(f"""v_and_b32 v1, 3, v0
              v_lshlrev_b32 v40, 6, v1
              v_lshrrev_b32 v1, 4, v0
              v_lshl_add_u32 v40, v1, 4, v40
              s_lshl_b32 s57, {sG}, 3
              s_add_u32 s57, s57, s56
              s_lshl_b32 s57, s57, 2
              s_add_u32 s57, s57, {sWAVE}
              s_lshl_b32 s57, s57, 8
              s_add_u32 s57, s57, {WS_B}
              s_mov_b32 s58, {WS_A2}""")

    def build(self):
        self.prologue()
        self.role_m()
        self.role_w()
        self.role_k()
        self.role_v()
        self.a.label("L_END")
        self.a("s_endpgm")
        body = self.a.finalize()
        vg = 256 if self.o['PROF'] else 216
        hdr = HEADER.format(lds=LDS_BYTES)
        return hdr + f""".amdgcn_target "amdgcn-amd-amdhsa--gfx950"
.text
.globl {NAME}
.p2align 8
.type {NAME},@function
{NAME}:
{body}.section .rodata,"a"
.p2align 6
.amdhsa_kernel {NAME}
  .amdhsa_next_free_vgpr {vg}
  .amdhsa_next_free_sgpr 102
  .amdhsa_accum_offset {vg}
  .amdhsa_group_segment_fixed_size 0
  .amdhsa_kernarg_size 112
  .amdhsa_user_sgpr_count 2
  .amdhsa_user_sgpr_kernarg_segment_ptr 1
  .amdhsa_system_sgpr_workgroup_id_x 1
.end_amdhsa_kernel
"""


if __name__ == '__main__':
    opt = {}
    out = None
    for arg in sys.argv[1:]:
        if '=' in arg:
            k, v = arg.split('=', 1)
            opt[k] = int(v) if v.lstrip('-').isdigit() else v
        else:
            out = arg
    g = Gen6(opt)
    txt = g.build()
    if out:
        open(out, 'w').write(txt)
    else:
        sys.stdout.write(txt)
    sys.stderr.write(f"instructions: {g.a.count()}\n")
```

```python
import sys, os
sys.path.insert(0, os.path.dirname(os.path.abspath(__file__)))
import gen as G1
from gen import *
WS_X = 0x800
WS_C2B = 0x1C0000

OPT2 = dict(WWAIT=0, KWAIT=1, VWAIT=1, MTRIG=1, GTRIG=0, PF=1, KSLEEP=0, VSLEEP=0, WSLEEP=0, TOUCH=1, KWIN=4, VWIN=1, WWIN=0, BARDMA=1, VN1=3, WO1=0, MG1=0, IOX=4, WO3=2, VN1ODD=2, PIPE_A2=0, SLP_A2=4, PIPE_C2=0, SLP_C2=2, PIPE_E=3, SLP_E=1, MLTOUCH=0, C2EARLY=1, FASTV=1, FASTLN=1, MEARLY=1, MWIN=0, MSLEEP=0, XFLAG=1, GUMIX=1, HELPQ=0, DPPSEL=1, HELPV=0, KWIN0=0, VWIN2=0, FASTX=0, WOSPLIT=0, LIMIT=100000)


class Gen6(Gen):
    def __init__(self, opt):
        o = dict(OPT2)
        o.update(opt)
        super().__init__(o)

    def kwait(self, ws=True):
        a = self.a
        a("s_waitcnt lgkmcnt(0)")
        if self.o['PROF']:
            a("s_mov_b32 s70, s96")
            for k in range(1, 16):
                a(f"s_mov_b32 s{70+k}, 0")
            a(f"""s_cmp_eq_u32 {sWAVE}, 0
                  s_cselect_b32 s99, 1, 0
                  s_cmp_eq_u32 {sWAVE}, 7
                  s_cselect_b32 s99, 1, s99""")
            if self.role == 'M':
                a(f"""s_cmp_eq_u32 {sWAVE}, 4
                      s_cselect_b32 s99, 1, s99""")
            if self.role == 'W':
                a(f"""s_cmp_eq_u32 {sWAVE}, {sG}
                      s_cselect_b32 s99, 1, s99""")
            self.stamp(14)
        a(f"s_load_dword {sE}, s[{sWS}:{sWS+1}], {WS_EPOCH}")
        if ws:
            self.srd(40, sWS, WS_SIZE)

    def code_prefetch(self):
        if not self.o['PF']:
            return
        a = self.a
        l = self.lab('pf')
        lp = self.lab('pc')
        a(f"""s_cmp_eq_u32 {sWAVE}, 7
              s_cbranch_scc0 {l}
              s_getpc_b64 s[86:87]""")
        a.label(lp)
        a(f"""s_lshl_b32 s88, {sJ}, 10
              s_sub_u32 s86, s86, {lp}-L_START
              s_subb_u32 s87, s87, 0
              v_lshl_add_u32 v204, v0, 4, s88
              v_min_u32 v204, (L_END-L_START-16)&0xfffffff0, v204
              v_mov_b32 v207, s87
              v_add_co_u32 v206, vcc, s86, v204
              v_addc_co_u32 v207, vcc, 0, v207, vcc
              global_load_dwordx4 v[200:203], v[206:207], off""")
        a.label(l)

    def st_local(self, q, voff, soff, imm=0):
        i = f" offset:{imm}" if imm else ""
        if self.o['LOCAL']:
            self.a(f"""s_or_b32 s39, {soff}, {WS_LOC}
                       buffer_store_dwordx4 v[{q}:{q+3}], {voff}, {WSR}, s39 offen{i}""")
        else:
            self.a(f"buffer_store_dwordx4 v[{q}:{q+3}], {voff}, {WSR}, {soff} offen{i} {self.o['ST']}")

    def st_global(self, q, voff, soff, imm=0, flag=False):
        i = f" offset:{imm}" if imm else ""
        if self.o['LOCAL'] and not self.o.get('NOGLOBAL'):
            l = None
            if flag and self.o['XFLAG']:
                l = self.lab('sg')
                self.a(f"""s_cmp_eq_u32 s90, 1
                           s_cbranch_scc1 {l}""")
            self.a(f"buffer_store_dwordx4 v[{q}:{q+3}], {voff}, {WSR}, {soff} offen{i} {self.o['ST']}")
            if l:
                self.a.label(l)

    def x_publish(self, build_ws):
        if not (self.o['XFLAG'] and self.o['LOCAL']):
            return
        a = self.a
        l = self.lab('xp')
        a(f"""s_cmp_eq_u32 {sWAVE}, 0
              s_cbranch_scc0 {l}""")
        if build_ws:
            self.srd(40, sWS, WS_SIZE)
        a(f"""s_getreg_b32 s39, hwreg(HW_REG_XCC_ID, 0, 4)
              s_add_u32 s39, s39, {sE}
              s_add_u32 s39, s39, {TAGC}
              v_mov_b32 v209, s39
              s_lshl_b32 s39, {sG}, 5
              s_add_u32 s39, s39, {sJ}
              s_lshl_b32 s39, s39, 2
              v_mov_b32 v208, s39
              s_mov_b64 exec, 1
              buffer_store_dword v209, v208, {WSR}, 0 offen offset:{WS_X} {self.o['ST']}
              s_mov_b64 exec, -1""")
        a.label(l)

    def select_tiles(self, D):
        if not self.o['DPPSEL']:
            return Gen.select_tiles(self, D)
        for t in range(1, 4):
            for r in range(4):
                self.a(f"v_mov_b32_dpp v{D[0]+r}, v{D[t]+r} quad_perm:[0,1,2,3] row_mask:0xf bank_mask:{1 << t:#x}")

    def x_load(self):
        if not (self.o['XFLAG'] and self.o['LOCAL']):
            return
        self.a(f"""v_and_b32 v211, 31, v0
                   v_lshlrev_b32 v211, 2, v211
                   s_lshl_b32 s90, {sG}, 7
                   buffer_load_dword v210, v211, {WSR}, s90 offen offset:{WS_X} sc1""")

    def x_flag(self):
        if not (self.o['XFLAG'] and self.o['LOCAL']):
            return
        self.a(f"""s_getreg_b32 s39, hwreg(HW_REG_XCC_ID, 0, 4)
                   s_add_u32 s39, s39, {sTAG}
                   v_cmp_ne_u32 vcc, s39, v210
                   s_cmp_eq_u64 vcc, 0
                   s_cselect_b32 s90, 1, 0""")

    def poll_pipe(self, name, nsets, load, check, take, sleep):
        a = self.a
        per = len(load(0))
        oks = [self.lab(name + f'ok{k}_') for k in range(nsets)]
        done = self.lab(name + 'done')
        lp = self.lab(name)
        for k in range(nsets - 1):
            for l in load(k):
                a(l)
            if sleep:
                a(f"s_sleep {sleep}")
        a(f"s_mov_b32 {sCNT}, {self.o['LIMIT'] // nsets}")
        a.label(lp)
        for k in range(nsets):
            kn = (k + nsets - 1) % nsets
            for l in load(kn):
                a(l)
            a(f"s_waitcnt vmcnt({per * (nsets - 1)})")
            check(k, oks[k])
            if sleep:
                a(f"s_sleep {sleep}")
        a(f"""s_sub_u32 {sCNT}, {sCNT}, 1
              s_cbranch_scc0 {lp}
              s_branch {oks[0]}""")
        for k in range(nsets - 1, -1, -1):
            a.label(oks[k])
            take(k)
            if k:
                a(f"s_branch {done}")
        a.label(done)

    def silu1(self, x, t):
        a = self.a
        e, r, q, u = [f"v{t+i}" for i in range(4)]
        a(f"""s_mov_b32 s94, 0xbfb8aa3b
              s_mov_b32 s95, 0xb2a57060
              v_mul_f32 {e}, 0xbfb8aa3b, {x}
              v_fma_f32 {r}, {x}, s94, -{e}
              v_fma_f32 {r}, {x}, s95, {r}
              v_exp_f32 {e}, {e}
              v_mul_f32 {r}, 0x3f317218, {r}
              v_add_f32 {r}, 1.0, {r}
              v_mul_f32 {e}, {e}, {r}
              v_add_f32 {e}, 1.0, {e}
              v_rcp_f32 {r}, {e}
              v_cmp_eq_f32 vcc, 0x7f800000, {e}
              v_mul_f32 {q}, {x}, {r}
              v_fma_f32 {u}, -{q}, {e}, {x}
              v_fma_f32 {u}, {u}, {r}, {q}
              v_cndmask_b32 {x}, {u}, {q}, vcc""")

    def wave_sum2(self, v, w, t, u):
        a = self.a
        for pat in ("quad_perm:[1,0,3,2]", "quad_perm:[2,3,0,1]", "row_half_mirror", "row_mirror"):
            a(f"v_add_f32_dpp {v}, {v}, {v} {pat} row_mask:0xf bank_mask:0xf")
            a(f"v_add_f32_dpp {w}, {w}, {w} {pat} row_mask:0xf bank_mask:0xf")
        a(f"""v_mov_b32 {t}, {v}
              v_mov_b32 {u}, {w}
              v_permlane16_swap_b32 {v}, {t}
              v_permlane16_swap_b32 {w}, {u}
              v_add_f32 {v}, {v}, {t}
              v_add_f32 {w}, {w}, {u}
              v_mov_b32 {t}, {v}
              v_mov_b32 {u}, {w}
              v_permlane32_swap_b32 {v}, {t}
              v_permlane32_swap_b32 {w}, {u}
              v_add_f32 {v}, {v}, {t}
              v_add_f32 {w}, {w}, {u}""")

    def ln_stats_pivot(self, x, M2, SD2, RC2, t):
        a = self.a
        t0, t1, t2, t3 = [f"v{t+i}" for i in range(4)]
        a(f"v_readfirstlane_b32 s39, v{x}")
        D = t + 4
        for k in range(8):
            a(f"v_subrev_f32 v{D+k}, s39, v{x+k}")
        a(f"""v_add_f32 {t0}, v{D}, v{D+1}
              v_mul_f32 {t1}, v{D}, v{D}
              v_add_f32 {t2}, v{D+2}, v{D+3}
              v_mul_f32 {t3}, v{D+1}, v{D+1}
              v_add_f32 {t0}, {t0}, {t2}
              v_fmac_f32 {t1}, v{D+2}, v{D+2}
              v_add_f32 {t2}, v{D+4}, v{D+5}
              v_fmac_f32 {t3}, v{D+3}, v{D+3}
              v_add_f32 {t0}, {t0}, {t2}
              v_fmac_f32 {t1}, v{D+4}, v{D+4}
              v_add_f32 {t2}, v{D+6}, v{D+7}
              v_fmac_f32 {t3}, v{D+5}, v{D+5}
              v_add_f32 {t0}, {t0}, {t2}
              v_fmac_f32 {t1}, v{D+6}, v{D+6}
              v_fmac_f32 {t3}, v{D+7}, v{D+7}
              v_add_f32 {t1}, {t1}, {t3}""")
        self.wave_sum2(t0, t1, t2, t3)
        a(f"""v_mul_f32 {t0}, 0x3b000000, {t0}
              v_mul_f32 {t1}, 0x3b000000, {t1}
              v_fma_f32 {t1}, -{t0}, {t0}, {t1}
              v_add_f32 {t0}, s39, {t0}
              v_max_f32 {t1}, 0, {t1}
              v_cvt_pk_bf16_f32 {t1}, {t0}, {t1}
              v_lshlrev_b32 v{M2}, 16, {t1}
              v_and_b32 {t1}, 0xffff0000, {t1}
              v_add_f32 {t1}, 0x3727c5ac, {t1}
              v_mov_b32 v{M2+1}, v{M2}""")
        self.rnd(t1, t1)
        a(f"v_sqrt_f32 {t1}, {t1}")
        self.rnd(f"v{SD2}", t1)
        a(f"""v_rcp_f32 v{RC2}, v{SD2}
              v_mov_b32 v{SD2+1}, v{SD2}
              v_mov_b32 v{RC2+1}, v{RC2}""")

    def ln2_fast(self, X):
        a = self.a
        t = 144
        t0, t1, t2, t3 = [f"v{t+i}" for i in range(4)]
        D = t + 4
        a(f"v_readfirstlane_b32 s39, v{X}")
        csrc = ['v6', 'v8', 'v14', 'v16']
        ssrc = ['v9', 'v10', 'v17', 'v18']
        C, S = 156, 164
        for p in range(4):
            self.unpack(f'v{C+2*p}', f'v{C+2*p+1}', csrc[p])
        for k in range(8):
            a(f"v_subrev_f32 v{D+k}, s39, v{X+k}")
        a(f"""v_add_f32 {t0}, v{D}, v{D+1}
              v_mul_f32 {t1}, v{D}, v{D}
              v_add_f32 {t2}, v{D+2}, v{D+3}
              v_mul_f32 {t3}, v{D+1}, v{D+1}
              v_add_f32 {t0}, {t0}, {t2}
              v_fmac_f32 {t1}, v{D+2}, v{D+2}
              v_add_f32 {t2}, v{D+4}, v{D+5}
              v_fmac_f32 {t3}, v{D+3}, v{D+3}
              v_add_f32 {t0}, {t0}, {t2}
              v_fmac_f32 {t1}, v{D+4}, v{D+4}
              v_add_f32 {t2}, v{D+6}, v{D+7}
              v_fmac_f32 {t3}, v{D+5}, v{D+5}
              v_add_f32 {t0}, {t0}, {t2}
              v_fmac_f32 {t1}, v{D+6}, v{D+6}
              v_fmac_f32 {t3}, v{D+7}, v{D+7}
              v_add_f32 {t1}, {t1}, {t3}""")
        fill = []
        for p in range(4):
            fill += [f"v_lshlrev_b32 v{S+2*p}, 16, {ssrc[p]}", f"v_and_b32 v{S+2*p+1}, 0xffff0000, {ssrc[p]}"]
        for pat in ("quad_perm:[1,0,3,2]", "quad_perm:[2,3,0,1]", "row_half_mirror", "row_mirror"):
            a(f"v_add_f32_dpp {t0}, {t0}, {t0} {pat} row_mask:0xf bank_mask:0xf")
            a(f"v_add_f32_dpp {t1}, {t1}, {t1} {pat} row_mask:0xf bank_mask:0xf")
            a(fill.pop(0))
        a(f"""v_mov_b32 {t2}, {t0}
              v_mov_b32 {t3}, {t1}""")
        a(fill.pop(0))
        a(f"""v_permlane16_swap_b32 {t0}, {t2}
              v_permlane16_swap_b32 {t1}, {t3}
              v_add_f32 {t0}, {t0}, {t2}
              v_add_f32 {t1}, {t1}, {t3}
              v_mov_b32 {t2}, {t0}
              v_mov_b32 {t3}, {t1}""")
        a(fill.pop(0))
        a(f"""v_permlane32_swap_b32 {t0}, {t2}
              v_permlane32_swap_b32 {t1}, {t3}
              v_add_f32 {t0}, {t0}, {t2}
              v_add_f32 {t1}, {t1}, {t3}""")
        while fill:
            a(fill.pop(0))
        a(f"""v_mul_f32 v52, 0x3b000000, {t0}
              v_mul_f32 {t1}, 0x3b000000, {t1}
              v_fma_f32 {t1}, -v52, v52, {t1}
              v_mov_b32 v53, v52
              v_max_f32 {t1}, 0, {t1}
              v_add_f32 {t1}, 0x3727c5ac, {t1}
              v_rsq_f32 v54, {t1}""")
        for p in range(4):
            d = D + 2 * p
            a(f"v_pk_add_f32 v[{d}:{d+1}], v[{d}:{d+1}], v[52:53] neg_lo:[0,1] neg_hi:[0,1]")
        a("v_mov_b32 v55, v54")
        for p in range(4):
            c = C + 2 * p
            a(f"v_pk_mul_f32 v[{c}:{c+1}], v[{c}:{c+1}], v[54:55]")
        for p in range(4):
            d, c, q = D + 2 * p, C + 2 * p, S + 2 * p
            a(f"v_pk_fma_f32 v[{d}:{d+1}], v[{d}:{d+1}], v[{c}:{c+1}], v[{q}:{q+1}]")
        for p in range(4):
            a(f"v_cvt_pk_bf16_f32 v{4+p}, v{D+2*p}, v{D+2*p+1}")

    def pk_rnd(self, p, t):
        self.a(f"""v_cvt_pk_bf16_f32 {t}, v{p}, v{p+1}
                   v_lshlrev_b32 v{p}, 16, {t}
                   v_and_b32 v{p+1}, 0xffff0000, {t}""")

    def prologue(self):
        a = self.a
        a.label("L_START")
        a(f"""s_cmp_ge_u32 s2, 256
              s_cbranch_scc1 L_END""")
        if self.o.get('RENUM'):
            a("""s_lshr_b32 s3, s2, 3
                 s_and_b32 s3, s3, 7
                 s_xor_b32 s2, s2, s3""")
        a(f"""              s_load_dwordx16 s[4:19], s[0:1], 0
              s_load_dwordx8 s[20:27], s[0:1], 64
              s_load_dwordx4 s[28:31], s[0:1], 96""")
        if self.o['PROF']:
            a("s_memrealtime s[96:97]")
        a(f"""v_lshrrev_b32 v1, 6, v0
              v_and_b32 v0, 63, v0
              s_and_b32 {sG}, s2, 7
              s_lshr_b32 {sJ}, s2, 3
              v_readfirstlane_b32 {sWAVE}, v1""")
        self.code_prefetch()
        a(f"""s_cmp_ge_u32 {sJ}, 24
              s_cbranch_scc1 L_ENT_V
              s_cmp_ge_u32 {sJ}, 16
              s_cbranch_scc1 L_ENT_K
              s_cmp_ge_u32 {sJ}, 8
              s_cbranch_scc1 L_ENT_W""")

    def ent_v(self):
        a = self.a
        o = self.o
        a.label("L_ENT_V")
        self.role = 'V'
        a(f"""s_sub_u32 s56, {sJ}, 24
              s_lshr_b32 s57, s56, 1
              s_and_b32 s58, s56, 1
              s_lshl_b32 s60, s57, 3
              s_add_u32 s60, s60, {sG}
              s_lshl_b32 s59, s60, 20
              s_add_u32 s59, s59, {3072*256}
              s_lshl_b32 s61, s58, 7
              s_add_u32 s59, s59, s61
              s_lshl_b32 s61, {sWAVE}, 15
              s_add_u32 s59, s59, s61
              s_lshl_b32 s62, {sWAVE}, 14
              s_mov_b32 m0, s62""")
        self.dma_off_p128('v32', 256, 'v1', 'v2')
        self.kwait(ws=False)
        if o['HELPQ']:
            lh = self.lab('hq')
            a(f"""s_cmp_eq_u32 {sWAVE}, {o['HELPQ'] - 1}
                  s_cbranch_scc0 {lh}""")
            self.srd(48, sWQ, 512 * 8192)
            a(f"""v_lshlrev_b32 v212, 13, v0
                  s_lshl_b32 s61, s56, 19
                  s_lshl_b32 s63, {sG}, 10
                  s_add_u32 s61, s61, s63
                  buffer_load_dword v213, v212, {R2}, s61 offen offset:384""")
            a.label(lh)
        self.srd(44, sV, 0x2000000)
        vlate = o['XFLAG'] and not o['VWAIT']
        if not vlate:
            if o['VWAIT'] or o['XFLAG']:
                a("s_waitcnt lgkmcnt(0)")
            self.x_publish(True)
        if o['VSLEEP']:
            a(f"s_sleep {o['VSLEEP']}")
        self.stamp(15)
        self.only_exit('V', pre=True)
        if vlate:
            a(f"""buffer_load_dwordx4 v32, {R1}, s59 offen {self.nt()}lds
                  s_add_u32 s59, s59, 2048
                  s_add_u32 m0, m0, 1024
                  s_waitcnt lgkmcnt(0)""")
            self.x_publish(True)
            assert o['VN1'] >= 2 and o['VN1ODD'] >= 2 or o['VN1'] == o['VN1ODD']
            o = dict(o)
            o['VN1'] -= 1
            o['VN1ODD'] -= 1
            rest = 15
        else:
            rest = 16
        if o['VN1'] and o['VN1ODD'] != o['VN1']:
            a(f"""s_cmp_eq_u32 s58, 1
                  s_cselect_b32 s63, {o['VN1ODD']}, {o['VN1']}
                  s_sub_u32 s66, {rest}, s63""")
            self.dma_loop('v32', R1, 's59', 2048, 's63', win=o['VWIN'])
            self.dma_loop('v32', R1, 's59', 2048, 's66', win=o['VWIN2'])
        elif o['VN1']:
            self.dma_loop('v32', R1, 's59', 2048, o['VN1'], win=o['VWIN'])
            self.dma_loop('v32', R1, 's59', 2048, rest - o['VN1'], win=o['VWIN2'])
        else:
            self.dma_loop('v32', R1, 's59', 2048, rest, win=o['VWIN'])
        a("s_branch L_ROLE_V")

    def role_v(self):
        a = self.a
        o = self.o
        RED, ST = 131072, 139776
        F = 64
        a.label("L_ROLE_V")
        self.role = 'V'
        self.srd(40, sWS, WS_SIZE)
        self.only_exit('V')
        a(f"""v_bfe_u32 v1, v0, 2, 2
              v_lshlrev_b32 v33, 9, v1
              v_lshrrev_b32 v2, 4, v0
              v_lshl_add_u32 v33, v2, 6, v33
              v_and_b32 v3, 3, v0
              v_lshl_add_u32 v33, v3, 4, v33
              s_lshl_b32 s63, s60, 14
              s_add_u32 s63, s63, {WS_S}
              s_lshl_b32 s61, {sWAVE}, 11
              s_add_u32 s63, s63, s61""")
        a(f"""v_mul_u32_u24 v38, 272, v3
              v_lshl_add_u32 v38, v1, 6, v38
              v_lshl_add_u32 v38, v2, 4, v38
              s_mul_i32 s61, {sWAVE}, 1088
              s_add_u32 s61, s61, {RED}
              v_add_u32 v38, s61, v38""")
        a(f"""v_lshlrev_b32 v39, 6, v3
              v_add_u32 v40, {ST}, v39
              s_lshl_b32 s61, {sWAVE}, 3
              v_add_u32 v39, s61, v40
              v_lshl_add_u32 v40, v1, 3, v40
              v_and_b32 v2, 1, v2
              v_lshl_add_u32 v40, v2, 5, v40""")
        for t in range(4):
            self.tr_addr_p128(f'v{34+t}', 32 * t, 's62', 'v1', 'v2')
        a(f"""v_lshrrev_b32 v1, 4, v0
              v_mul_u32_u24 v1, 272, v1
              v_and_b32 v2, 15, v0
              v_lshl_add_u32 v1, v2, 4, v1
              v_add_u32 v41, {RED}, v1
              v_lshrrev_b32 v1, 4, v0
              v_lshlrev_b32 v1, 6, v1
              v_add_u32 v43, {ST}, v1
              v_lshlrev_b32 v42, 4, v0
              s_lshl_b32 s66, {sG}, 2
              s_add_u32 s66, s66, s57
              s_lshl_b32 s66, s66, 1
              s_add_u32 s66, s66, s58
              s_lshl_b32 s66, s66, 10
              s_add_u32 s66, s66, {WS_C}""")
        self.tag_ready()
        self.x_load()
        self.stamp(1)

        def first():
            self.stamp(2)
            self.x_flag()
            for s in range(4):
                for t in range(4):
                    for h in range(2):
                        q = F + 16 * s + 4 * t + 2 * h
                        a(f"ds_read_b64_tr_b16 v[{q}:{q+1}], v{34+t} offset:{4096*s+2048*h}")
                if s < 3:
                    a("s_waitcnt lgkmcnt(6)")
        self.poll('S', [self.gload(4, 'v33', 's63'), self.gload(8, 'v33', 's63', 256)],
                  lambda ok: self.check_tags(['v6', 'v10'], ok), first_extra=first, local=['s63'])
        self.stamp(3)
        self.unpack('v12', 'v13', 'v4')
        self.unpack('v14', 'v15', 'v5')
        self.unpack('v16', 'v17', 'v8')
        self.unpack('v18', 'v19', 'v9')
        a("""s_mov_b32 s94, 0x3fb8aa3b
             v_max3_f32 v20, v12, v13, v14
             v_max3_f32 v21, v15, v16, v17
             v_max3_f32 v20, v20, v18, v19
             v_max_f32 v20, v20, v21
             v_max_f32_dpp v20, v20, v20 row_ror:4 row_mask:0xf bank_mask:0xf
             v_max_f32_dpp v20, v20, v20 row_ror:8 row_mask:0xf bank_mask:0xf
             v_mov_b32 v21, v20
             v_permlane16_swap_b32 v20, v21
             v_max_f32 v20, v20, v21
             v_mov_b32 v21, v20
             v_permlane32_swap_b32 v20, v21
             v_max_f32 v20, v20, v21""")
        if o['FASTV']:
            self.v_fast(F)
        else:
            self.v_exact(F)
        self.stamp(5)
        self.stamps_out(16)
        a("s_endpgm")

    def v_fast(self, F):
        a = self.a
        ST = 139776
        a("v_mul_f32 v21, s94, v20")
        for k in range(8):
            a(f"v_fma_f32 v{12+k}, v{12+k}, s94, -v21")
        for k in range(8):
            a(f"v_exp_f32 v{12+k}, v{12+k}")
        for k in range(4):
            a(f"v_cvt_pk_bf16_f32 v{44+k}, v{12+2*k}, v{13+2*k}")
        D = [4, 8, 24, 28]
        done = set()

        def mf(s, t):
            rho = (s - t) & 3
            q = F + 16 * s + 4 * t
            c = f"v[{D[t]}:{D[t]+3}]" if t in done else "0"
            done.add(t)
            a(f"v_mfma_f32_16x16x32_bf16 v[{D[t]}:{D[t]+3}], v[{q}:{q+3}], v[{44+4*rho}:{47+4*rho}], {c}")

        def rot(rho, n):
            for k in range(4):
                a(f"v_mov_b32_dpp v{44+4*rho+k}, v{44+k} row_ror:{n} row_mask:0xf bank_mask:0xf")
        a("s_waitcnt lgkmcnt(0)")
        rot(2, 8)
        for t in range(4):
            mf(t, t)
        rot(1, 12)
        for t in range(4):
            mf((t + 2) & 3, t)
        rot(3, 4)
        for t in range(4):
            mf((t + 1) & 3, t)
        a("""v_add_f32 v22, v12, v13
             v_add_f32 v23, v14, v15
             v_add_f32 v12, v16, v17
             v_add_f32 v13, v18, v19""")
        mf(3, 0)
        a("""v_add_f32 v22, v22, v23
             v_add_f32 v12, v12, v13""")
        mf(0, 1)
        a("v_add_f32 v21, v22, v12")
        mf(1, 2)
        a("v_add_f32_dpp v21, v21, v21 row_ror:4 row_mask:0xf bank_mask:0xf")
        mf(2, 3)
        a("""v_add_f32_dpp v21, v21, v21 row_ror:8 row_mask:0xf bank_mask:0xf
             v_mov_b32 v22, v21
             v_permlane16_swap_b32 v21, v22
             v_add_f32 v21, v21, v22
             v_mov_b32 v22, v21
             v_permlane32_swap_b32 v21, v22
             v_add_f32 v21, v21, v22
             s_mov_b64 exec, 0xf
             ds_write_b64 v39, v[20:21]
             s_mov_b64 exec, -1""")
        self.select_tiles(D)
        a("""ds_write_b128 v38, v[4:7]
             s_waitcnt lgkmcnt(0)
             s_barrier""")
        self.stamp(4)
        done_l = self.lab('vdone')
        a(f"""s_cmp_eq_u32 {sWAVE}, 0
              s_cbranch_scc0 {done_l}""")
        for k in range(4):
            a(f"ds_read_b128 v[{44+4*k}:{47+4*k}], v43 offset:{16*k}")
        for w in range(8):
            a(f"ds_read_b128 v[{64+4*w}:{67+4*w}], v41 offset:{1088*w}")
        a(f"""v_mov_b32 v6, {sTAG}
              v_mov_b32 v7, 0
              s_waitcnt lgkmcnt(8)
              v_max3_f32 v22, v44, v46, v48
              v_max3_f32 v23, v50, v52, v54
              v_max3_f32 v22, v22, v56, v58
              v_max_f32 v22, v22, v23""")
        for k in range(8):
            a(f"v_sub_f32 v{44+2*k}, v{44+2*k}, v22")
        for k in range(8):
            a(f"v_mul_f32 v{44+2*k}, s94, v{44+2*k}")
        for k in range(8):
            a(f"v_exp_f32 v{44+2*k}, v{44+2*k}")
        a("v_mul_f32 v23, v44, v45")
        for k in range(1, 8):
            a(f"v_fmac_f32 v23, v{44+2*k}, v{45+2*k}")
        for k in range(8):
            a(f"v_mov_b32 v{45+2*k}, v{44+2*k}")
        a("v_rcp_f32 v22, v23")
        a("s_waitcnt lgkmcnt(0)")
        a("""v_pk_mul_f32 v[96:97], v[64:65], v[44:45]
             v_pk_mul_f32 v[98:99], v[66:67], v[44:45]
             v_pk_mul_f32 v[100:101], v[68:69], v[46:47]
             v_pk_mul_f32 v[102:103], v[70:71], v[46:47]""")
        for w in range(2, 8):
            d = 96 + 4 * (w & 1)
            a(f"""v_pk_fma_f32 v[{d}:{d+1}], v[{64+4*w}:{65+4*w}], v[{44+2*w}:{45+2*w}], v[{d}:{d+1}]
                  v_pk_fma_f32 v[{d+2}:{d+3}], v[{66+4*w}:{67+4*w}], v[{44+2*w}:{45+2*w}], v[{d+2}:{d+3}]""")
        a("""v_mov_b32 v23, v22
             v_pk_add_f32 v[96:97], v[96:97], v[100:101]
             v_pk_add_f32 v[98:99], v[98:99], v[102:103]
             v_pk_mul_f32 v[96:97], v[96:97], v[22:23]
             v_pk_mul_f32 v[98:99], v[98:99], v[22:23]
             v_cvt_pk_bf16_f32 v4, v96, v97
             v_cvt_pk_bf16_f32 v5, v98, v99""")
        self.st_local(4, 'v42', 's66')
        self.st_global(4, 'v42', 's66', flag=True)
        a.label(done_l)

    def v_exact(self, F):
        a = self.a
        for k in range(8):
            a(f"v_sub_f32 v{12+k}, v{12+k}, v20")
        for k in range(8):
            a(f"v_mul_f32 v{12+k}, s94, v{12+k}")
        for k in range(8):
            a(f"v_exp_f32 v{12+k}, v{12+k}")
        a("""v_add_f32 v22, v12, v13
             v_add_f32 v23, v14, v15
             v_add_f32 v24, v16, v17
             v_add_f32 v25, v18, v19
             v_add_f32 v22, v22, v23
             v_add_f32 v24, v24, v25
             v_add_f32 v21, v22, v24
             v_add_f32_dpp v21, v21, v21 row_ror:4 row_mask:0xf bank_mask:0xf
             v_add_f32_dpp v21, v21, v21 row_ror:8 row_mask:0xf bank_mask:0xf
             v_mov_b32 v22, v21
             v_permlane16_swap_b32 v21, v22
             v_add_f32 v21, v21, v22
             v_mov_b32 v22, v21
             v_permlane32_swap_b32 v21, v22
             v_add_f32 v21, v21, v22
             s_mov_b64 exec, 0xf
             ds_write_b64 v39, v[20:21]
             s_mov_b64 exec, -1
             s_waitcnt lgkmcnt(0)
             s_barrier
             ds_read_b64 v[22:23], v40
             s_waitcnt lgkmcnt(0)
             v_mov_b32 v24, v22
             v_max_f32_dpp v24, v24, v24 row_ror:4 row_mask:0xf bank_mask:0xf
             v_max_f32_dpp v24, v24, v24 row_ror:8 row_mask:0xf bank_mask:0xf
             v_mov_b32 v25, v24
             v_permlane16_swap_b32 v24, v25
             v_max_f32 v24, v24, v25
             v_sub_f32 v22, v22, v24
             v_sub_f32 v20, v20, v24
             v_mul_f32 v22, s94, v22
             v_mul_f32 v20, s94, v20
             v_exp_f32 v22, v22
             v_exp_f32 v20, v20
             v_mul_f32 v22, v22, v23
             v_add_f32_dpp v22, v22, v22 row_ror:4 row_mask:0xf bank_mask:0xf
             v_add_f32_dpp v22, v22, v22 row_ror:8 row_mask:0xf bank_mask:0xf
             v_mov_b32 v23, v22
             v_permlane16_swap_b32 v22, v23
             v_add_f32 v22, v22, v23
             v_rcp_f32 v22, v22
             v_mul_f32 v20, v20, v22""")
        for k in range(8):
            a(f"v_mul_f32 v{12+k}, v{12+k}, v20")
        for k in range(4):
            a(f"v_cvt_pk_bf16_f32 v{44+k}, v{12+2*k}, v{13+2*k}")
        D = [4, 8, 12, 16]
        rot = ((2, 8), (1, 12), (3, 4))
        done = set()

        def mf(s, t):
            rho = (s - t) & 3
            q = F + 16 * s + 4 * t
            c = f"v[{D[t]}:{D[t]+3}]" if t in done else "0"
            done.add(t)
            a(f"v_mfma_f32_16x16x32_bf16 v[{D[t]}:{D[t]+3}], v[{q}:{q+3}], v[{44+4*rho}:{47+4*rho}], {c}")
        for rho, n in rot:
            for k in range(4):
                a(f"v_mov_b32_dpp v{44+4*rho+k}, v{44+k} row_ror:{n} row_mask:0xf bank_mask:0xf")
        for rho in (0, 2, 1, 3):
            for t in range(4):
                mf((t + rho) & 3, t)
        self.select_tiles(D)
        a("""ds_write_b128 v38, v[4:7]
             s_waitcnt lgkmcnt(0)
             s_barrier""")
        self.stamp(4)
        done = self.lab('vdone')
        a(f"""s_cmp_eq_u32 {sWAVE}, 0
              s_cbranch_scc0 {done}""")
        for w in range(8):
            a(f"ds_read_b128 v[{64+4*w}:{67+4*w}], v41 offset:{1088*w}")
        a(f"""v_mov_b32 v6, {sTAG}
              v_mov_b32 v7, 0""")

        def pk(d, s_):
            a(f"v_pk_add_f32 v[{d}:{d+1}], v[{d}:{d+1}], v[{s_}:{s_+1}]")
        for n, (d, s_) in enumerate(((64, 68), (72, 76), (80, 84), (88, 92))):
            a(f"s_waitcnt lgkmcnt({6-2*n})")
            pk(d, s_)
            pk(d + 2, s_ + 2)
        for d, s_ in ((64, 72), (80, 88), (64, 80)):
            pk(d, s_)
            pk(d + 2, s_ + 2)
        a("""v_cvt_pk_bf16_f32 v4, v64, v65
             v_cvt_pk_bf16_f32 v5, v66, v67""")
        self.st_local(4, 'v42', 's66')
        self.st_global(4, 'v42', 's66', flag=True)
        a.label(done)

    def ent_k(self):
        a = self.a
        o = self.o
        a.label("L_ENT_K")
        self.role = 'K'
        a(f"""s_sub_u32 s56, {sJ}, 16
              s_lshr_b32 s57, s56, 1
              s_and_b32 s58, s56, 1
              s_lshl_b32 s60, s57, 3
              s_add_u32 s60, s60, {sG}
              s_lshl_b32 s59, s60, 20
              s_add_u32 s59, s59, {3072*256}
              s_lshl_b32 s61, s58, 17
              s_add_u32 s59, s59, s61
              s_lshl_b32 s62, {sWAVE}, 14
              s_add_u32 s59, s59, s62
              s_mov_b32 m0, s62
              v_lshrrev_b32 v1, 4, v0
              v_and_b32 v2, 15, v0
              v_xor_b32 v3, v1, v2
              v_lshlrev_b32 v3, 4, v3""")
        for v in range(4):
            if v:
                a(f"v_xor_b32 v4, {64*v}, v3")
            a(f"v_lshl_add_u32 v{32+v}, v1, 8, {'v4' if v else 'v3'}")
        self.kwait(ws=False)
        self.srd(44, sK, 0x2000000)
        late = o['XFLAG'] and not o['KWAIT']
        if not late:
            if o['KWAIT'] or o['XFLAG']:
                a("s_waitcnt lgkmcnt(0)")
            self.x_publish(True)
        if o['KSLEEP']:
            a(f"s_sleep {o['KSLEEP']}")
        self.stamp(15)
        self.only_exit('K', pre=True)
        l = self.lab('kdma')
        nit = 4
        if o['KWIN0'] or late:
            for v in range(4):
                i = f" offset:{1024*v}" if v else ""
                if o['KWIN0']:
                    a(f"s_waitcnt vmcnt({o['KWIN0']-1})")
                a(f"buffer_load_dwordx4 v{32+v}, {R1}, s59 offen{i} {self.nt()}lds")
            a("""s_add_u32 s59, s59, 4096
                 s_add_u32 m0, m0, 4096""")
            nit = 3
        if late:
            a("s_waitcnt lgkmcnt(0)")
            self.x_publish(True)
        a(f"s_mov_b32 s38, {nit}")
        a.label(l)
        for v in range(4):
            i = f" offset:{1024*v}" if v else ""
            if o['KWIN']:
                a(f"s_waitcnt vmcnt({o['KWIN']-1})")
            a(f"buffer_load_dwordx4 v{32+v}, {R1}, s59 offen{i} {self.nt()}lds")
        a(f"""s_add_u32 s59, s59, 4096
              s_add_u32 m0, m0, 4096
              s_sub_u32 s38, s38, 1
              s_cmp_lg_u32 s38, 0
              s_cbranch_scc1 {l}
              s_branch L_ROLE_K""")

    def role_k(self):
        a = self.a
        o = self.o
        QL, SC2 = 131072, 132224
        F = 64
        a.label("L_ROLE_K")
        self.role = 'K'
        self.srd(40, sWS, WS_SIZE)
        self.only_exit('K')
        a(f"""s_lshl_b32 s66, {sG}, 3
              s_add_u32 s66, s66, s56
              s_and_b32 s67, s66, 1
              v_lshrrev_b32 v1, 4, v0
              v_and_b32 v2, 15, v0""")
        a("""v_and_b32 v4, 3, v2
             v_xor_b32 v4, v4, v1
             v_and_b32 v5, 12, v2
             v_lshlrev_b32 v6, 8, v2
             v_add_u32 v6, s62, v6""")
        for t in range(4):
            a(f"""v_xor_b32 v3, {4*t}, v5
                  v_add_u32 v3, v3, v4
                  v_lshl_add_u32 v{36+t}, v3, 4, v6""")
        a(f"""s_lshl_b32 s61, {sWAVE}, 6
              v_add_u32 v5, s61, v0
              v_lshrrev_b32 v6, 2, v5
              v_lshlrev_b32 v6, 8, v6
              v_and_b32 v7, 3, v5
              v_lshl_add_u32 v40, v7, 4, v6
              v_lshrrev_b32 v6, 5, v5
              v_mul_u32_u24 v6, 288, v6
              v_and_b32 v7, 31, v5
              v_lshl_add_u32 v6, v7, 3, v6
              v_add_u32 v41, {QL}, v6
              s_lshl_b32 s69, {sG}, 13
              s_lshl_b32 s61, s57, 6
              s_add_u32 s69, s69, s61
              s_add_u32 s69, s69, {WS_B}""")
        self.act_addr('v42', QL, 288, 'v5')
        a(f"""v_bfe_u32 v5, v0, 2, 2
              v_lshl_add_u32 v5, v5, 2, v1
              v_lshlrev_b32 v5, 6, v5
              v_and_b32 v6, 3, v0
              v_lshl_add_u32 v43, v6, 4, v5
              s_lshl_b32 s63, s60, 14
              s_add_u32 s63, s63, {WS_S}
              s_lshl_b32 s61, s58, 13
              s_add_u32 s63, s63, s61
              s_lshl_b32 s61, {sWAVE}, 10
              s_add_u32 s63, s63, s61""")
        a(f"""s_lshr_b32 s68, s66, 4
              s_add_u32 s68, s68, 1
              s_lshr_b32 s56, s66, 1
              s_and_b32 s56, s56, 7""")
        self.srd(48, sWM, 512 * 6144)
        self.dma_off_p128('v32', 6144, 'v1', 'v2')
        a(f"""s_lshl_b32 s59, s67, 8
              s_lshl_b32 s61, {sWAVE}, 5
              s_add_u32 s59, s59, s61
              s_mul_i32 s59, s59, 6144
              s_lshl_b32 s61, s68, 10
              s_add_u32 s59, s59, s61
              s_lshl_b32 s61, s56, 7
              s_add_u32 s59, s59, s61
              s_add_u32 s59, s59, 2048""")
        self.tag_ready()
        self.x_load()
        self.stamp(1)

        def kfrags():
            self.x_flag()
            for T in range(4):
                for t in range(4):
                    q = F + 16 * T + 4 * t
                    a(f"ds_read_b128 v[{q}:{q+3}], v{36+t} offset:{4096*T}")
                if T == 2:
                    a("s_waitcnt lgkmcnt(6)")
        nopoll = self.lab('knp')
        join = self.lab('kj')
        a(f"""s_cmp_lt_u32 {sWAVE}, 2
              s_cbranch_scc0 {nopoll}""")

        def first():
            self.stamp(2)
            kfrags()
        self.poll('B', [self.gload(4, 'v40', 's69')], lambda ok: self.check_tags(['v6'], ok), first_extra=first, local=['s69'])
        a(f"""ds_write_b64 v41, v[4:5]
              s_branch {join}""")
        a.label(nopoll)
        a("s_waitcnt vmcnt(0)")
        self.stamp(2)
        kfrags()
        a.label(join)
        a("""s_waitcnt lgkmcnt(0)
             s_barrier""")
        self.stamp(3)
        for t in range(4):
            a(f"ds_read_b128 v[{44+4*t}:{47+4*t}], v42 offset:{64*t}")
        D = [4, 8, 12, 16]
        for t in range(4):
            a(f"s_waitcnt lgkmcnt({3-t})")
            for T in range(4):
                q = F + 16 * T + 4 * t
                c = "0" if t == 0 else f"v[{D[T]}:{D[T]+3}]"
                a(f"v_mfma_f32_16x16x32_bf16 v[{D[T]}:{D[T]+3}], v[{q}:{q+3}], v[{44+4*t}:{47+4*t}], {c}")
        self.select_tiles(D)
        a("""v_cvt_pk_bf16_f32 v8, v4, v5
             v_cvt_pk_bf16_f32 v9, v6, v7""")
        self.unpack('v4', 'v5', 'v8')
        self.unpack('v6', 'v7', 'v9')
        for r in range(4):
            a(f"v_mul_f32 v{4+r}, 0x3db504f3, v{4+r}")
        a(f"""v_cvt_pk_bf16_f32 v8, v4, v5
              v_cvt_pk_bf16_f32 v9, v6, v7
              v_mov_b32 v10, {sTAG}
              v_mov_b32 v11, 0""")
        self.st_local(8, 'v43', 's63')
        self.stamp(4)
        end = self.lab('kend')
        a("s_barrier")
        self.st_global(8, 'v43', 's63', flag=True)
        a(f"""s_cmp_lt_u32 s66, 48
              s_cbranch_scc0 {end}
              s_mov_b32 m0, s62""")
        self.srd(52, sC, 4096)
        skipc = self.lab('kc')
        a(f"""s_cmp_lt_u32 {sWAVE}, 4
              s_cbranch_scc0 {skipc}
              s_lshl_b32 s61, {sWAVE}, 10
              s_lshl_b32 s69, s67, 9
              s_add_u32 s69, s69, s61
              v_lshlrev_b32 v7, 3, v0
              buffer_load_dwordx2 v[24:25], v7, {R3}, s69 offen""")
        a.label(skipc)
        self.dma_loop('v32', R2, 's59', 8 * 6144, 4)
        skips = self.lab('ks')
        a(f"""s_cmp_lt_u32 {sWAVE}, 4
              s_cbranch_scc0 {skips}
              s_waitcnt vmcnt(4)""")
        self.unpack('v8', 'v9', 'v24')
        self.unpack('v10', 'v11', 'v25')
        self.silu4(8, 12)
        a("""v_cvt_pk_bf16_f32 v8, v8, v9
             v_cvt_pk_bf16_f32 v9, v10, v11""")
        self.perm_pos_bytes('v5', 'v0', 'v6')
        a(f"""s_mul_i32 s61, {sWAVE}, 544
              s_add_u32 s61, s61, {SC2}
              v_add_u32 v5, s61, v5
              ds_write_b64 v5, v[8:9]""")
        a.label(skips)
        a(f"s_lshl_b32 s61, {sWAVE}, 5")
        self.tr_addr_p128('v33', 's61', '0', 'v1', 'v2')
        a("v_add_u32 v34, 65536, v33")
        self.act_addr('v35', SC2, 544, 'v1')
        a(f"""v_lshrrev_b32 v1, 5, v0
              v_lshlrev_b32 v36, 10, v1
              v_and_b32 v1, 3, v0
              v_lshl_add_u32 v36, v1, 5, v36
              v_bfe_u32 v1, v0, 4, 1
              v_lshl_add_u32 v36, v1, 4, v36
              s_lshl_b32 s59, s56, 13
              s_lshl_b32 s61, {sWAVE}, 11
              s_add_u32 s59, s59, s61
              s_lshl_b32 s61, s68, 8
              s_add_u32 s59, s59, s61
              s_lshl_b32 s61, s67, 7
              s_add_u32 s59, s59, s61
              s_add_u32 s59, s59, {WS_ML}""")
        self.sel_consts()
        self.tagbytes(28)
        a("""s_waitcnt vmcnt(0) lgkmcnt(0)
             s_barrier""")
        a(f"""s_cmp_lt_u32 {sWAVE}, 4
              s_cbranch_scc0 {end}""")
        for s in range(8):
            a(f"ds_read_b128 v[{96+4*s}:{99+4*s}], v35 offset:{64*s}")
        a("s_waitcnt lgkmcnt(2)")
        for s in range(8):
            va = 'v33' if s < 4 else 'v34'
            for h in range(2):
                q = F + 4 * s + 2 * h
                a(f"ds_read_b64_tr_b16 v[{q}:{q+1}], {va} offset:{16384*(s&3)+2048*h}")
            if s == 5:
                a("s_waitcnt lgkmcnt(6)")
        for s in range(8):
            a(f"s_waitcnt lgkmcnt({max(0, 14-2*s) if s >= 4 else 6})" if s >= 4 else "s_waitcnt lgkmcnt(8)" if s == 0 else "s_nop 0")
            c = "0" if s == 0 else "v[4:7]"
            a(f"v_mfma_f32_16x16x32_bf16 v[4:7], v[{F+4*s}:{F+4*s+3}], v[{96+4*s}:{99+4*s}], {c}")
        self.steal(4, 28)
        a("s_mov_b32 exec_lo, 0x000f000f")
        a("s_mov_b32 exec_hi, 0x000f000f")
        self.gstore(4, 'v36', 's59')
        a("s_mov_b64 exec, -1")
        self.stamp(5)
        a.label(end)
        self.stamps_out(16)
        a("s_endpgm")

    def role_m(self):
        a = self.a
        o = self.o
        M1W, SC, STAT = 0, 16384, 17024
        GATE, UP, DOWN, H2, GU = 32768, 65536, 98304, 131072, 135296
        F = 64
        a.label("L_ENT_M")
        self.role = 'M'
        a(f"""v_lshrrev_b32 v1, 4, v0
              v_and_b32 v3, 15, v0
              v_lshlrev_b32 v2, 1, v1
              v_xor_b32 v2, v2, v3
              v_and_b32 v4, 7, v2
              v_lshlrev_b32 v4, 4, v4
              v_lshrrev_b32 v2, 3, v2
              v_lshl_add_u32 v4, v2, 10, v4
              v_xor_b32 v5, 1024, v4
              v_mul_u32_u24 v1, 6144, v1
              v_add_u32 v32, v1, v4
              v_add_u32 v33, v1, v5
              s_lshl_b32 s59, {sJ}, 6
              s_lshl_b32 s61, {sWAVE}, 3
              s_add_u32 s59, s59, s61
              s_mul_i32 s59, s59, 6144
              s_lshl_b32 s61, {sG}, 7
              s_add_u32 s59, s59, s61
              s_lshl_b32 s61, {sWAVE}, 11
              s_mov_b32 m0, s61
              s_and_b32 s62, {sWAVE}, 3
              s_lshl_b32 s62, s62, 10
              v_lshlrev_b32 v6, 4, v0
              v_lshlrev_b32 v7, 1, v0
              s_lshl_b32 s63, {sJ}, 7
              s_add_u32 s63, s63, s62""")
        self.kwait(ws=False)
        self.srd(44, sWM, 512 * 6144)
        self.srd(48, sC, 4096)
        self.srd(52, sX, 4096)
        l4 = self.lab('m4')
        lx = self.lab('mx')
        a(f"""s_cmp_lt_u32 {sWAVE}, 4
              s_cbranch_scc0 {l4}
              buffer_load_dwordx4 v[24:27], v6, {R3}, s62 offen
              s_branch {lx}""")
        a.label(l4)
        a(f"buffer_load_ushort v24, v7, {R2}, s63 offen")
        a.label(lx)
        self.stamp(15)
        self.only_exit('M', pre=True)
        a(f"""buffer_load_dwordx4 v32, {R1}, s59 offen {self.nt()}lds
              s_add_u32 s59, s59, {4*6144}
              s_add_u32 m0, m0, 1024
              s_nop 0
              buffer_load_dwordx4 v33, {R1}, s59 offen {self.nt()}lds
              s_branch L_ROLE_M""")
        self.ent_w()
        self.ent_k()
        self.ent_v()
        a.label("L_ROLE_M")
        self.role = 'M'
        self.srd(40, sWS, WS_SIZE)
        self.only_exit('M')
        if o['XFLAG']:
            a("s_waitcnt lgkmcnt(0)")
            self.x_publish(False)
        a(f"""v_bfe_u32 v1, v0, 1, 2
              v_lshlrev_b32 v1, 10, v1
              v_and_b32 v2, 1, v0
              v_lshl_add_u32 v1, v2, 3, v1
              v_lshrrev_b32 v2, 4, v0
              v_lshl_add_u32 v1, v2, 1, v1
              s_lshl_b32 s61, {sG}, 7
              s_lshl_b32 s56, {sJ}, 4
              s_add_u32 s61, s61, s56
              buffer_load_ushort v28, v1, {R3}, s61 offen""")
        if o['TOUCH']:
            lt0 = self.lab('mt0')
            a(f"""s_cmp_eq_u32 {sWAVE}, 4
                  s_cbranch_scc0 {lt0}
                  s_lshl_b32 s61, {sG}, 3
                  s_add_u32 s61, s61, {sJ}
                  s_lshl_b32 s61, s61, 12
                  s_add_u32 s61, s61, {WS_A1 + WS_LOC}
                  v_lshlrev_b32 v2, 4, v0""")
            for m in range(4):
                a(self.gload(64 + 4 * m, 'v2', 's61', 1024 * m))
            a.label(lt0)
        a(f"""v_lshrrev_b32 v1, 4, v0
              v_bfe_u32 v2, v0, 2, 2
              v_lshl_add_u32 v3, v1, 2, v2
              v_lshlrev_b32 v34, 8, v3
              v_and_b32 v3, 1, v1
              v_lshlrev_b32 v3, 3, v3
              v_lshl_add_u32 v3, v2, 1, v3
              s_lshl_b32 s61, {sWAVE}, 1
              v_xor_b32 v3, s61, v3
              v_lshl_add_u32 v34, v3, 4, v34
              v_and_b32 v3, 3, v0
              v_lshl_add_u32 v34, v3, 3, v34""")
        self.act_addr('v35', SC, 160, 'v1')
        a(f"""v_lshrrev_b32 v1, 5, v0
              v_lshlrev_b32 v36, 12, v1
              v_bfe_u32 v1, v0, 2, 1
              v_lshl_add_u32 v36, v1, 10, v36
              v_and_b32 v1, 3, v0
              v_lshl_add_u32 v36, v1, 5, v36
              v_bfe_u32 v1, v0, 4, 1
              v_lshl_add_u32 v36, v1, 4, v36
              s_lshl_b32 s60, {sG}, 15
              s_and_b32 s61, {sWAVE}, 3
              s_lshl_b32 s61, s61, 13
              s_add_u32 s60, s60, s61
              s_lshr_b32 s61, {sWAVE}, 2
              s_lshl_b32 s61, s61, 11
              s_add_u32 s60, s60, s61
              s_lshl_b32 s61, {sJ}, 7
              s_add_u32 s60, s60, s61
              s_add_u32 s60, s60, {WS_A1}""")
        lb = self.lab('mb')
        npf = 1 if o['PF'] else 0
        a(f"""s_cmp_ge_u32 {sWAVE}, 4
              s_cbranch_scc0 {lb}""")
        a("v_lshrrev_b32 v4, 2, v0")
        self.perm_pos_bytes('v5', 'v4', 'v6')
        a(f"""v_and_b32 v6, 3, v0
              v_lshl_add_u32 v5, v6, 1, v5
              s_and_b32 s61, {sWAVE}, 3
              s_mul_i32 s61, s61, 160
              s_add_u32 s61, s61, {SC}
              v_add_u32 v5, s61, v5""")
        if o['TOUCH']:
            lc3 = self.lab('mc3')
            lc7 = self.lab('mc7')
            a(f"""s_cmp_eq_u32 {sWAVE}, 4
                  s_cbranch_scc1 {lc7}
                  s_waitcnt vmcnt(3)""")
            a.label(lc7)
            a("s_waitcnt vmcnt(7)")
        else:
            a("s_waitcnt vmcnt(3)")
        a("v_lshlrev_b32 v8, 16, v24")
        self.silu1('v8', 12)
        a("""v_cvt_pk_bf16_f32 v8, v8, v8
             ds_write_b16 v5, v8""")
        a.label(lb)
        a("""s_waitcnt vmcnt(0) lgkmcnt(0)
             s_barrier""")
        self.stamp(1)
        self.frags(F, 'v34', 2, 8192, 4096)
        a(f"""ds_read_b128 v[72:75], v35
              ds_read_b128 v[76:79], v35 offset:64
              s_add_u32 {sTAG}, {sE}, {TAGC}
              s_waitcnt lgkmcnt(0)
              v_mfma_f32_16x16x32_bf16 v[4:7], v[64:67], v[72:75], 0
              v_mfma_f32_16x16x32_bf16 v[4:7], v[68:71], v[76:79], v[4:7]""")
        a(f"""s_mov_b32 exec_lo, 0x00f000f0
              s_mov_b32 exec_hi, 0x00f000f0
              v_mov_b32 v4, v6
              v_mov_b32 v5, v7
              s_mov_b32 exec_lo, 0x00ff00ff
              s_mov_b32 exec_hi, 0x00ff00ff
              v_mov_b32 v6, {sTAG}
              v_mov_b32 v7, 0""")
        self.st_local(4, 'v36', 's60')
        a("s_mov_b64 exec, -1")
        self.stamp(2)
        ls = self.lab('ms')
        lh4 = self.lab('mh4')
        lh = self.lab('mh')
        a(f"""s_cmp_eq_u32 {sWAVE}, 4
              s_cbranch_scc1 {lh4}
              s_cmp_lt_u32 {sWAVE}, 4
              s_cbranch_scc0 {ls}""")
        for k in range(4):
            self.unpack(f'v{8+2*k}', f'v{9+2*k}', f'v{24+k}')
        self.ln_stats(8, 'v20', 'v21', 'v22', 16)
        a(f"""s_lshl_b32 s61, {sWAVE}, 3
              s_add_u32 s61, s61, {STAT}
              v_mov_b32 v1, s61
              s_mov_b64 exec, 1
              ds_write_b64 v1, v[20:21]
              s_mov_b64 exec, -1
              s_waitcnt lgkmcnt(0)""")
        a.label(ls)
        a("""s_mov_b32 exec_lo, 0x00ff00ff
             s_mov_b32 exec_hi, 0x00ff00ff""")
        self.st_global(4, 'v36', 's60')
        a(f"""s_mov_b64 exec, -1
              s_barrier
              s_branch {lh}""")
        a.label(lh4)
        a("""s_mov_b32 exec_lo, 0x00ff00ff
             s_mov_b32 exec_hi, 0x00ff00ff""")
        self.st_global(4, 'v36', 's60')
        a(f"""s_mov_b64 exec, -1
              v_bfe_u32 v1, v0, 1, 2
              v_lshlrev_b32 v1, 3, v1
              v_add_u32 v1, {STAT}, v1
              v_lshlrev_b32 v28, 16, v28
              s_lshl_b32 s59, {sG}, 3
              s_add_u32 s59, s59, {sJ}
              s_lshl_b32 s57, s59, 7
              s_add_u32 s57, s57, {WS_A2}
              s_lshl_b32 s59, s59, 12
              s_add_u32 s59, s59, {WS_A1}
              v_lshlrev_b32 v2, 4, v0""")
        self.poll('A1', [self.gload(4 + 4 * m, 'v2', 's59', 1024 * m) for m in range(4)],
                  lambda ok: self.check_tags(['v6', 'v10', 'v14', 'v18'], ok), local=['s59'])
        self.stamp(3)
        a("""s_barrier
             ds_read_b64 v[20:21], v1
             v_mov_b32 v6, v8
             v_mov_b32 v7, v9
             v_mov_b32 v14, v16
             v_mov_b32 v15, v17""")
        for r in range(4):
            a(f"v_add_f32_dpp v{4+r}, v{4+r}, v{4+r} row_ror:8 row_mask:0xf bank_mask:0xf")
        for r in range(4):
            a(f"v_add_f32_dpp v{12+r}, v{12+r}, v{12+r} row_ror:8 row_mask:0xf bank_mask:0xf")
        a("""v_permlane16_swap_b32 v4, v5
             v_permlane16_swap_b32 v6, v7
             v_permlane16_swap_b32 v12, v13
             v_permlane16_swap_b32 v14, v15
             v_add_f32 v4, v4, v5
             v_add_f32 v6, v6, v7
             v_add_f32 v12, v12, v13
             v_add_f32 v14, v14, v15
             v_permlane32_swap_b32 v4, v6
             v_permlane32_swap_b32 v12, v14
             v_add_f32 v4, v4, v6
             v_add_f32 v12, v12, v14
             s_waitcnt lgkmcnt(0)
             v_rcp_f32 v22, v21
             v_cvt_pk_bf16_f32 v4, v4, v12
             v_and_b32 v12, 0xffff0000, v4
             v_lshlrev_b32 v4, 16, v4
             v_add_f32 v12, 1.0, v12""")
        self.ln_elem('v29', 'v28', 'v20', 'v21', 'v22', 'v23', 'v30')
        a(f"""v_mov_b32 v22, {sTAG}
              v_mov_b32 v23, 0""")
        self.rnd('v12', 'v12')
        a("v_mul_f32 v12, v29, v12")
        self.rnd('v12', 'v12')
        a("v_add_f32 v12, v12, v4")
        self.rows_to_quad('v20', 'v21', 'v12', 'v8')
        a("s_mov_b64 exec, 0xff")
        self.gstore(20, 'v2', 's57')
        a("s_mov_b64 exec, -1")
        self.stamp(4)
        a.label(lh)
        a(f"""s_cmp_eq_u32 {sJ}, 7
              s_cbranch_scc1 L_ROLE_GA""")
        a(f"""s_mul_i32 s66, {sG}, 7
              s_add_u32 s66, s66, {sJ}""")
        self.srd(44, sWG, 512 * 3584)
        self.srd(48, sWU, 512 * 3584)
        self.srd(52, sWD, 1792 * 1024)
        a(f"""v_lshrrev_b32 v1, 2, v0
              v_mul_u32_u24 v1, 3584, v1
              v_bfe_u32 v2, v0, 4, 1
              v_lshlrev_b32 v2, 1, v2
              v_and_b32 v3, 3, v0
              v_xor_b32 v2, v2, v3
              v_lshl_add_u32 v32, v2, 4, v1
              v_xor_b32 v2, {1 if o['GUMIX'] else 0}, v2
              v_lshl_add_u32 v31, v2, 4, v1
              s_lshl_b32 s59, {sWAVE}, 6
              s_mul_i32 s59, s59, 3584
              s_lshl_b32 s61, s66, 6
              s_add_u32 s59, s59, s61
              s_mov_b32 s60, s59
              s_lshl_b32 s67, s66, 5
              s_lshl_b32 s61, {sWAVE}, 2
              s_add_u32 s67, s67, s61
              s_lshl_b32 s67, s67, 10
              s_and_b32 s62, {sWAVE}, 1
              s_lshl_b32 s62, s62, 3""")
        for n in range(4):
            a(f"""s_add_u32 s63, s62, {2*n}
                  v_xor_b32 v1, s63, v0
                  v_lshlrev_b32 v{40+n}, 4, v1""")
        if o['GUMIX']:
            a(f"""v_lshrrev_b32 v1, 4, v0
                  v_bfe_u32 v2, v0, 2, 2
                  v_lshl_add_u32 v3, v1, 2, v2
                  v_lshlrev_b32 v33, 6, v3
                  v_and_b32 v3, 1, v1
                  v_lshlrev_b32 v3, 1, v3
                  s_and_b32 s61, {sWAVE}, 3
                  v_xor_b32 v3, s61, v3
                  v_bfe_u32 v4, v0, 1, 1
                  v_xor_b32 v3, v3, v4
                  v_lshl_add_u32 v33, v3, 4, v33
                  v_lshl_add_u32 v33, v4, 15, v33
                  v_and_b32 v3, 1, v0
                  v_lshl_add_u32 v33, v3, 3, v33
                  v_add_u32 v33, {GATE}, v33""")
        else:
            a(f"""v_lshrrev_b32 v1, 4, v0
                  v_bfe_u32 v2, v0, 2, 2
                  v_lshl_add_u32 v3, v1, 2, v2
                  v_lshlrev_b32 v33, 6, v3
                  v_and_b32 v3, 1, v1
                  s_and_b32 s61, {sWAVE}, 1
                  v_xor_b32 v3, s61, v3
                  v_lshl_add_u32 v33, v3, 5, v33
                  v_and_b32 v3, 3, v0
                  v_lshl_add_u32 v33, v3, 3, v33
                  s_bfe_u32 s61, {sWAVE}, 0x10001
                  s_lshl_b32 s61, s61, 15
                  s_add_u32 s61, s61, {GATE}
                  v_add_u32 v33, s61, v33""")
        a(f"""v_lshl_add_u32 v3, v1, 2, v2
              v_lshlrev_b32 v4, 10, v3
              v_and_b32 v5, 3, v0
              v_lshl_add_u32 v4, v5, 3, v4
              v_add_u32 v4, {DOWN}, v4
              v_and_b32 v3, 7, v3
              v_lshlrev_b32 v3, 1, v3
              s_lshl_b32 s61, {sWAVE}, 3
              v_xor_b32 v3, s61, v3""")
        for t in range(4):
            a(f"""v_xor_b32 v5, {2*t}, v3
                  v_lshl_add_u32 v{34+t}, v5, 4, v4""")
        self.act_addr('v38', H2, 1056, 'v1')
        self.act_addr('v39', GU, 96, 'v1')
        a(f"""v_lshlrev_b32 v44, 4, v0
              s_lshl_b32 s68, {sG}, 2
              s_add_u32 s68, s68, {sWAVE}
              s_lshl_b32 s68, s68, 12
              s_add_u32 s68, s68, {WS_D}""")
        self.perm_pos_bytes('v45', 'v0', 'v1')
        a(f"""s_mul_i32 s61, {sWAVE}, 1056
              s_add_u32 s61, s61, {H2}
              v_add_u32 v45, s61, v45""")
        if o['GUMIX']:
            a(f"""v_and_b32 v1, 3, v0
                  v_mul_u32_u24 v46, 96, v1
                  v_lshrrev_b32 v1, 4, v0
                  s_lshl_b32 s61, {sWAVE}, 1
                  v_add_u32 v1, s61, v1
                  v_and_b32 v2, 3, v1
                  v_lshl_add_u32 v46, v2, 4, v46
                  v_bfe_u32 v2, v1, 2, 1
                  v_lshl_add_u32 v46, v2, 3, v46
                  v_add_u32 v46, {GU}, v46""")
        else:
            a(f"""v_and_b32 v1, 3, v0
                  v_mul_u32_u24 v46, 96, v1
                  v_lshrrev_b32 v1, 4, v0
                  v_lshl_add_u32 v46, v1, 4, v46
                  s_and_b32 s61, {sWAVE}, 1
                  s_lshl_b32 s61, s61, 3
                  s_bfe_u32 s62, {sWAVE}, 0x10001
                  s_mul_i32 s62, s62, 384
                  s_add_u32 s61, s61, s62
                  s_add_u32 s61, s61, {GU}
                  v_add_u32 v46, s61, v46""")
        a(f"""v_bfe_u32 v1, v0, 2, 2
              v_lshlrev_b32 v1, 1, v1
              v_lshrrev_b32 v2, 5, v0
              v_add_u32 v1, v1, v2
              v_mul_u32_u24 v47, {56*128}, v1
              v_and_b32 v1, 3, v0
              v_lshl_add_u32 v47, v1, 5, v47
              v_bfe_u32 v1, v0, 4, 1
              v_lshl_add_u32 v47, v1, 4, v47
              s_mul_i32 s63, {sWAVE}, {8*56*128}
              s_lshl_b32 s61, s66, 7
              s_add_u32 s63, s63, s61
              s_add_u32 s63, s63, {WS_E}""")
        self.sel_consts()
        self.tagbytes(48)
        if o['MG1']:
            a(f"""s_barrier
                  s_lshl_b32 s61, {sWAVE}, 12
                  s_add_u32 s61, s61, {GATE}
                  s_mov_b32 m0, s61""")
            self.dma_loop('v32', R1, 's59', 16 * 3584, o['MG1'])
        if o['HELPV']:
            lhv = self.lab('hv')
            a(f"""s_barrier
                  s_cmp_lt_u32 {sJ}, 4
                  s_cbranch_scc0 {lhv}
                  s_mov_b32 s92, s8
                  s_mov_b32 s93, s9
                  s_mov_b32 s94, 0x2000000
                  s_mov_b32 s95, 0x20000
                  s_lshl_b32 s61, {sJ}, 3
                  s_add_u32 s61, s61, {sG}
                  s_lshl_b32 s61, s61, 20
                  s_lshl_b32 s62, {sWAVE}, 15
                  s_add_u32 s61, s61, s62
                  s_add_u32 s61, s61, {(3072 + 128 - 32) * 256}
                  v_lshlrev_b32 v212, 7, v0""")
            for n in range(o['HELPV']):
                a(f"""buffer_load_dword v213, v212, s[92:95], s61 offen
                      s_sub_u32 s61, s61, {32*256}""")
            a.label(lhv)
            self.sel_consts()
        if o['MTRIG']:
            lt = self.lab('mt')
            if o['MEARLY']:
                a(f"""s_lshr_b32 s61, s66, 1
                      s_and_b32 s61, s61, 3
                      s_cmp_eq_u32 s61, 3
                      s_cbranch_scc1 {lt}""")
            a(f"""s_cmp_eq_u32 {sWAVE}, 0
                  s_cbranch_scc0 {lt}
                  v_lshlrev_b32 v2, 10, v0
                  s_lshl_b32 s61, {sG}, 13
                  s_add_u32 s61, s61, {WS_B}""")
            if o['MTRIG'] == 2:
                a(f"""v_lshrrev_b32 v2, 1, v0
                      v_lshlrev_b32 v2, 17, v2
                      v_and_b32 v3, 1, v0
                      v_lshl_add_u32 v2, v3, 13, v2
                      s_lshl_b32 s61, {sG}, 14
                      s_add_u32 s61, s61, {WS_S}""")
            a("s_mov_b64 exec, 0xff")
            self.poll('T', [self.gload(4, 'v2', 's61')], lambda ok: self.check_tags(['v6'], ok), local=['s61'])
            a("s_mov_b64 exec, -1")
            a.label(lt)
        a("s_barrier")
        if o['MSLEEP']:
            lms = self.lab('msl')
            a(f"""s_lshr_b32 s61, s66, 1
                  s_and_b32 s61, s61, 3
                  s_cmp_eq_u32 s61, 3
                  s_cbranch_scc1 {lms}
                  s_sleep {o['MSLEEP']}""")
            a.label(lms)
        a(f"""s_lshl_b32 s61, {sWAVE}, 12
              s_add_u32 s61, s61, {GATE + 1024 * o['MG1']}
              s_mov_b32 m0, s61""")
        if o['MG1'] < 4:
            self.dma_loop('v32', R1, 's59', 16 * 3584, 4 - o['MG1'], win=o['MWIN'], nt=o.get('GUNT', 1))
        a(f"""s_sub_u32 s61, s61, {1024 * o['MG1']}
              s_add_u32 s61, s61, {UP-GATE}
              s_mov_b32 m0, s61""")
        self.dma_loop('v31', R2, 's60', 16 * 3584, 4, nt=o.get('GUNT', 1))
        a(f"""s_add_u32 s61, s61, {DOWN-UP}
              s_mov_b32 m0, s61
              s_nop 0""")
        for n in range(4):
            a(f"""buffer_load_dwordx4 v{40+n}, {R3}, s67 offen {self.nt()}lds
                  s_add_u32 s67, s67, 1024
                  s_add_u32 m0, m0, 1024
                  s_nop 0""")
        a("""s_waitcnt vmcnt(0)
             s_barrier""")
        self.stamp(5)
        for t in range(4):
            for h in range(2):
                q = 128 + 4 * t + 2 * h
                a(f"ds_read_b64_tr_b16 v[{q}:{q+1}], v{34+t} offset:{16384*h}")
        lw = self.lab('mw')
        a(f"""s_cmp_lt_u32 {sWAVE}, 4
              s_cbranch_scc0 {lw}
              s_waitcnt lgkmcnt(0)""")
        for s in range(16):
            for h in range(2):
                q = F + 4 * s + 2 * h
                a(f"ds_read_b64_tr_b16 v[{q}:{q+1}], v33 offset:{2048*s+1024*h}")
            if s in (6, 10):
                a("s_waitcnt lgkmcnt(6)")
        self.poll('D', [self.gload(4, 'v44', 's68'), self.gload(8, 'v44', 's68', 2048),
                        self.gload(12, 'v44', 's68', 1024), self.gload(16, 'v44', 's68', 3072)],
                  lambda ok: self.check_tags(['v7', 'v11', 'v15', 'v19'], ok), local=['s68'])
        self.stamp(6)
        X = 20
        self.unpack(f'v{X}', f'v{X+1}', 'v4')
        self.unpack(f'v{X+2}', f'v{X+3}', 'v5')
        self.unpack(f'v{X+4}', f'v{X+5}', 'v12')
        self.unpack(f'v{X+6}', f'v{X+7}', 'v13')
        if o['FASTLN']:
            self.ln2_fast(X)
        else:
            M2, SD2, RC2 = 52, 54, 56
            self.ln_stats_pivot(X, M2, SD2, RC2, 144)
            csrc = ['v6', 'v8', 'v14', 'v16']
            ssrc = ['v9', 'v10', 'v17', 'v18']
            for p in range(4):
                x = X + 2 * p
                a(f"v_pk_add_f32 v[{x}:{x+1}], v[{x}:{x+1}], v[{M2}:{M2+1}] neg_lo:[0,1] neg_hi:[0,1]")
            for p in range(4):
                self.pk_rnd(X + 2 * p, f'v{144+p}')
            for p in range(4):
                x, q = X + 2 * p, 148 + 2 * p
                a(f"v_pk_mul_f32 v[{q}:{q+1}], v[{x}:{x+1}], v[{RC2}:{RC2+1}]")
            for p in range(4):
                x, q = X + 2 * p, 148 + 2 * p
                a(f"v_pk_fma_f32 v[{x}:{x+1}], v[{q}:{q+1}], v[{SD2}:{SD2+1}], v[{x}:{x+1}] neg_lo:[1,0,0] neg_hi:[1,0,0]")
            for p in range(4):
                x, q = X + 2 * p, 148 + 2 * p
                a(f"v_pk_fma_f32 v[{x}:{x+1}], v[{x}:{x+1}], v[{RC2}:{RC2+1}], v[{q}:{q+1}]")
            for p in range(4):
                self.pk_rnd(X + 2 * p, f'v{144+p}')
            for p in range(4):
                q = 148 + 2 * p
                self.unpack(f'v{q}', f'v{q+1}', csrc[p])
            for p in range(4):
                x, q = X + 2 * p, 148 + 2 * p
                a(f"v_pk_mul_f32 v[{x}:{x+1}], v[{x}:{x+1}], v[{q}:{q+1}]")
            for p in range(4):
                q = 148 + 2 * p
                self.unpack(f'v{q}', f'v{q+1}', ssrc[p])
            for p in range(4):
                self.pk_rnd(X + 2 * p, f'v{144+p}')
            for p in range(4):
                x, q = X + 2 * p, 148 + 2 * p
                a(f"v_pk_add_f32 v[{x}:{x+1}], v[{x}:{x+1}], v[{q}:{q+1}]")
            for p in range(4):
                a(f"v_cvt_pk_bf16_f32 v{4+p}, v{X+2*p}, v{X+2*p+1}")
        a("""ds_write_b64 v45, v[4:5]
             ds_write_b64 v45, v[6:7] offset:512""")
        a.label(lw)
        a("""s_waitcnt lgkmcnt(0)
             s_barrier""")
        self.stamp(7)
        lg = self.lab('mg')
        a(f"""s_cmp_lt_u32 {sWAVE}, 4
              s_cbranch_scc0 {lg}""")
        self.gemv16(4, F, 'v38', 144)
        if o['GUMIX']:
            self.pk_rnd(4, 'v12')
            self.pk_rnd(6, 'v13')
            for r in range(4):
                a(f"v_mov_b32 v{8+r}, v{4+r}")
            for r in range(4):
                a(f"v_permlane32_swap_b32 v{4+r}, v{8+r}")
            for r in range(4):
                a(f"v_max_f32 v{4+r}, 0, v{4+r}")
            a("""v_pk_mul_f32 v[4:5], v[4:5], v[8:9]
                 v_pk_mul_f32 v[6:7], v[6:7], v[10:11]
                 v_cvt_pk_bf16_f32 v8, v4, v5
                 v_cvt_pk_bf16_f32 v9, v6, v7
                 s_mov_b32 exec_lo, 0x000f000f
                 s_mov_b32 exec_hi, 0
                 ds_write_b64 v46, v[8:9]
                 s_mov_b64 exec, -1""")
            a.label(lg)
            a("""s_waitcnt lgkmcnt(0)
                 s_barrier
                 ds_read_b128 v[16:19], v39
                 s_waitcnt lgkmcnt(0)""")
        else:
            a("""v_cvt_pk_bf16_f32 v8, v4, v5
                 v_cvt_pk_bf16_f32 v9, v6, v7
                 s_mov_b32 exec_lo, 0x000f000f
                 s_mov_b32 exec_hi, 0x000f000f
                 ds_write_b64 v46, v[8:9]
                 s_mov_b64 exec, -1""")
            a.label(lg)
            a("""s_waitcnt lgkmcnt(0)
                 s_barrier
                 ds_read_b128 v[4:7], v39
                 ds_read_b128 v[8:11], v39 offset:384
                 s_waitcnt lgkmcnt(0)""")
            for k in range(4):
                self.unpack(f'v{20+2*k}', f'v{21+2*k}', f'v{4+k}')
            for k in range(4):
                self.unpack(f'v{144+2*k}', f'v{145+2*k}', f'v{8+k}')
            for k in range(8):
                a(f"v_max_f32 v{20+k}, 0, v{20+k}")
            for k in range(4):
                a(f"v_pk_mul_f32 v[{20+2*k}:{21+2*k}], v[{20+2*k}:{21+2*k}], v[{144+2*k}:{145+2*k}]")
            for k in range(4):
                a(f"v_cvt_pk_bf16_f32 v{16+k}, v{20+2*k}, v{21+2*k}")
        D = [4, 8, 12, 20]
        for t in range(4):
            a(f"v_mfma_f32_16x16x32_bf16 v[{D[t]}:{D[t]+3}], v[{128+4*t}:{131+4*t}], v[16:19], 0")
        self.select_tiles(D)
        self.steal(4, 48)
        self.gstore(4, 'v47', 's63')
        self.stamp(8)
        self.stamps_out(16)
        a("s_endpgm")

        a.label("L_ROLE_GA")
        S = 131072
        self.srd(48, sC, 4096)
        self.dma_off_p128('v32', 6144, 'v1', 'v2')
        a(f"""s_lshl_b32 s59, {sWAVE}, 6
              s_mul_i32 s59, s59, 6144
              s_lshl_b32 s61, {sG}, 7
              s_add_u32 s59, s59, s61
              s_add_u32 s59, s59, 2048
              s_lshl_b32 s61, {sWAVE}, 13
              s_add_u32 s61, s61, {GATE}
              s_mov_b32 m0, s61
              s_barrier""")
        lc = self.lab('gc')
        a(f"""s_cmp_lt_u32 {sWAVE}, 4
              s_cbranch_scc0 {lc}
              s_lshl_b32 s61, {sWAVE}, 10
              v_lshlrev_b32 v1, 3, v0
              buffer_load_dwordx2 v[24:25], v1, {R2}, s61 offen
              buffer_load_dwordx2 v[26:27], v1, {R2}, s61 offen offset:512""")
        a.label(lc)
        self.dma_loop('v32', R1, 's59', 8 * 6144, 8)
        lc2 = self.lab('gc2')
        a(f"""s_cmp_lt_u32 {sWAVE}, 4
              s_cbranch_scc0 {lc2}
              s_waitcnt vmcnt(8)""")
        self.perm_pos_bytes('v5', 'v0', 'v6')
        a(f"""s_mul_i32 s61, {sWAVE}, 1056
              s_add_u32 s61, s61, {S}
              v_add_u32 v5, s61, v5""")
        for hf in range(2):
            self.unpack('v8', 'v9', f'v{24+2*hf}')
            self.unpack('v10', 'v11', f'v{25+2*hf}')
            self.silu4(8, 12)
            a(f"""v_cvt_pk_bf16_f32 v8, v8, v9
                  v_cvt_pk_bf16_f32 v9, v10, v11
                  ds_write_b64 v5, v[8:9] offset:{512*hf}""")
        a.label(lc2)
        a(f"s_lshl_b32 s61, {sWAVE}, 5")
        self.tr_addr_p128('v33', 's61', GATE, 'v1', 'v2')
        self.act_addr('v35', S, 1056, 'v1')
        a(f"""v_lshrrev_b32 v1, 5, v0
              v_lshlrev_b32 v36, 10, v1
              v_bfe_u32 v1, v0, 2, 1
              v_lshl_add_u32 v36, v1, 7, v36
              v_and_b32 v1, 3, v0
              v_lshl_add_u32 v36, v1, 5, v36
              v_bfe_u32 v1, v0, 4, 1
              v_lshl_add_u32 v36, v1, 4, v36
              s_lshl_b32 s59, {sG}, 13
              s_lshl_b32 s61, {sWAVE}, 11
              s_add_u32 s59, s59, s61
              s_add_u32 s59, s59, {WS_ML}""")
        self.sel_consts()
        self.tagbytes(28)
        a("""s_waitcnt vmcnt(0) lgkmcnt(0)
             s_barrier""")
        le = self.lab('ge')
        a(f"""s_cmp_lt_u32 {sWAVE}, 4
              s_cbranch_scc0 {le}""")
        for s in range(16):
            for h in range(2):
                q = F + 4 * s + 2 * h
                a(f"ds_read_b64_tr_b16 v[{q}:{q+1}], v33 offset:{4096*s+2048*h}")
            if s in (6, 13):
                a("s_waitcnt lgkmcnt(0)")
        a("s_waitcnt lgkmcnt(0)")
        self.gemv16(4, F, 'v35', 144)
        a("""s_mov_b32 exec_lo, 0x00f000f0
             s_mov_b32 exec_hi, 0x00f000f0""")
        for r in range(4):
            a(f"v_mov_b32 v{4+r}, 0")
        a("""s_mov_b32 exec_lo, 0x00ff00ff
             s_mov_b32 exec_hi, 0x00ff00ff""")
        self.steal(4, 28)
        self.gstore(4, 'v36', 's59')
        a("s_mov_b64 exec, -1")
        a.label(le)
        self.stamp(5)
        self.stamps_out(16)
        a("s_endpgm")

    def ent_w(self):
        a = self.a
        o = self.o
        a.label("L_ENT_W")
        self.role = 'W'
        a(f"s_sub_u32 s56, {sJ}, 8")
        if o.get('ISWZ'):
            a(f"s_xor_b32 s56, s56, {o['ISWZ']}")
        self.dma_off_p128('v32', 8192, 'v1', 'v2')
        a(f"""s_lshl_b32 s59, {sWAVE}, 19
              s_lshl_b32 s61, {sG}, 10
              s_add_u32 s59, s59, s61
              s_lshl_b32 s61, s56, 7
              s_add_u32 s59, s59, s61
              s_lshl_b32 s61, {sWAVE}, 13
              s_mov_b32 m0, s61""")
        self.kwait(ws=False)
        self.srd(44, sWQ, 512 * 8192)
        if o['WWAIT'] == 1:
            a("s_waitcnt lgkmcnt(0)")
        if o['WWAIT'] == 2:
            lw = self.lab('ww')
            a(f"""s_cmp_eq_u32 s56, 3
                  s_cbranch_scc1 {lw}
                  s_waitcnt lgkmcnt(0)""")
            a.label(lw)
        if o['WSLEEP']:
            a(f"s_sleep {o['WSLEEP']}")
        self.stamp(15)
        self.only_exit('W', pre=True)
        self.dma_loop('v32', R1, 's59', 8 * 8192, 8, win=o['WWIN'])
        a("s_branch L_ROLE_W")

    def role_w(self):
        a = self.a
        o = self.o
        WQ, WO, H, O = 0, 65536, 131072, 135296
        F = 64
        a.label("L_ROLE_W")
        self.role = 'W'
        self.srd(40, sWS, WS_SIZE)
        self.only_exit('W')
        self.w_setup1(H, O, WQ, WO)
        if o['IOX']:
            a(f"s_xor_b32 s56, s56, {o['IOX']}")
        self.srd(52, sX, 4096)
        a(f"""v_bfe_u32 v1, v0, 1, 2
              v_lshlrev_b32 v1, 10, v1
              v_and_b32 v2, 1, v0
              v_lshl_add_u32 v1, v2, 3, v1
              v_lshrrev_b32 v2, 4, v0
              v_lshl_add_u32 v1, v2, 1, v1
              s_lshl_b32 s61, s56, 7
              s_lshl_b32 s62, {sWAVE}, 4
              s_add_u32 s61, s61, s62
              buffer_load_ushort v60, v1, {R3}, s61 offen""")
        self.srd(44, sWO, 4096 * 1024)
        self.dma_off_p128('v32', 1024, 'v1', 'v2')
        a(f"""s_lshl_b32 s59, {sG}, 9
              s_lshl_b32 s61, {sWAVE}, 6
              s_add_u32 s59, s59, s61
              s_lshl_b32 s59, s59, 10
              s_lshl_b32 s61, s56, 7
              s_add_u32 s59, s59, s61
              s_lshl_b32 s67, {sWAVE}, 13
              s_add_u32 s67, s67, {WO}""")
        if o['WO1']:
            a("s_mov_b32 m0, s67")
            self.dma_loop('v32', R1, 's59', 8 * 1024, o['WO1'])
            a(f"s_add_u32 s67, s67, {1024 * o['WO1']}")
        a("s_mov_b32 s89, 8")
        if o['WO3']:
            l3 = self.lab('wo3')
            a(f"""s_cmp_eq_u32 s56, 3
                  s_cbranch_scc0 {l3}
                  s_mov_b32 m0, s67""")
            self.dma_loop('v32', R1, 's59', 8 * 1024, o['WO3'])
            a(f"""s_add_u32 s67, s67, {1024 * o['WO3']}
                  s_mov_b32 s89, {8 - o['WO3']}""")
            a.label(l3)
        self.tag_ready()
        self.x_publish(False)
        self.stamp(1)
        lw1 = self.lab('w1')

        def first():
            self.stamp(2)
            self.x_load()
            a("s_barrier")
            a(f"""s_cmp_lt_u32 {sWAVE}, 4
                  s_cbranch_scc0 {lw1}""")
            for s in range(16):
                for h in range(2):
                    q = F + 4 * s + 2 * h
                    a(f"ds_read_b64_tr_b16 v[{q}:{q+1}], v36 offset:{4096*s+2048*h}")
                if s in (6, 10):
                    a("s_waitcnt lgkmcnt(6)")
            a.label(lw1)
        if o['PIPE_A2']:
            okA = self.lab('a2first')
            a(self.gload(4, 'v33', 's58'))
            a("s_waitcnt vmcnt(0)")
            first()
            self.check_tags(['v6'], okA)
            NS = o['PIPE_A2']

            def takeA(k):
                a(f"""v_mov_b32 v4, v{192+4*k}
                      v_mov_b32 v5, v{193+4*k}""")
            self.poll_pipe('A2', NS, lambda k: [self.gload(192 + 4 * k, 'v33', 's58')],
                           lambda k, ok: self.check_tags([f'v{194+4*k}'], ok), takeA, o['SLP_A2'])
            a.label(okA)
        else:
            self.poll('A2', [self.gload(4, 'v33', 's58')],
                      lambda ok: self.check_tags(['v6'], ok), first_extra=first)
        a("""ds_write_b64 v34, v[4:5]
             s_waitcnt lgkmcnt(0)
             s_barrier""")
        self.stamp(3)
        lq = self.lab('wqskip')
        a(f"""s_mov_b32 m0, s67
              s_cmp_lt_u32 {sWAVE}, 4
              s_cbranch_scc0 {lq}""")
        self.gemv16(4, F, 'v38', 128)
        a(f"""v_cvt_pk_bf16_f32 v8, v4, v5
              v_cvt_pk_bf16_f32 v9, v6, v7
              v_mov_b32 v10, {sTAG}
              v_mov_b32 v11, 0
              s_mov_b32 exec_lo, 0x000f000f
              s_mov_b32 exec_hi, 0x000f000f""")
        self.st_local(8, 'v40', 's57')
        a("s_mov_b64 exec, -1")
        a.label(lq)
        a("s_barrier")
        if o['XFLAG']:
            a("s_waitcnt vmcnt(1)")
            self.x_flag()
        self.stamp(4)
        lq3 = self.lab('wq3')
        a(f"""s_cmp_lt_u32 {sWAVE}, 4
              s_cbranch_scc0 {lq3}
              s_mov_b32 exec_lo, 0x000f000f
              s_mov_b32 exec_hi, 0x000f000f""")
        self.st_global(8, 'v40', 's57', flag=True)
        a("s_mov_b64 exec, -1")
        a.label(lq3)
        if o['WO3']:
            self.dma_loop('v32', R1, 's59', 8 * 1024, 's89')
        elif o['WO1'] < 8:
            self.dma_loop('v32', R1, 's59', 8 * 1024, 8 - o['WO1'])
        a(f"""s_lshl_b32 s58, {sG}, 13
              s_add_u32 s58, s58, {WS_C}
              v_lshrrev_b32 v1, 5, v0
              v_lshlrev_b32 v41, {11 if o['WOSPLIT'] else 10}, v1
              v_and_b32 v1, 3, v0
              v_lshl_add_u32 v41, v1, 5, v41
              v_bfe_u32 v1, v0, 4, 1
              v_lshl_add_u32 v41, v1, 4, v41
              s_lshl_b32 s57, s56, {14 if o['WOSPLIT'] else 13}
              s_and_b32 s61, {sWAVE}, 3
              s_lshl_b32 s61, s61, {12 if o['WOSPLIT'] else 11}
              s_add_u32 s57, s57, s61
              s_lshr_b32 s61, {sWAVE}, 2
              s_lshl_b32 s61, s61, 10
              s_add_u32 s57, s57, s61
              s_lshl_b32 s61, {sG}, 7
              s_add_u32 s57, s57, s61
              s_add_u32 s57, s57, {WS_C2B if o['WOSPLIT'] else WS_C2}
              v_lshlrev_b32 v42, 4, v0
              s_lshl_b32 s62, s56, 3
              s_add_u32 s62, s62, {sWAVE}
              s_lshl_b32 s63, s62, 10
              s_add_u32 s63, s63, {WS_ML}
              s_lshl_b32 s62, s62, {11 if o['WOSPLIT'] else 10}
              s_add_u32 s62, s62, {WS_C2B if o['WOSPLIT'] else WS_C2}
              ; D publish: ((g*4 + b)*2 + u)*2048 + Q*16, Q = 16i + 2w + q
              v_bfe_u32 v1, v0, 1, 2
              v_lshlrev_b32 v43, 12, v1
              v_and_b32 v1, 1, v0
              v_lshl_add_u32 v43, v1, 4, v43
              s_lshl_b32 s66, {sG}, 14
              s_lshl_b32 s61, s56, 8
              s_add_u32 s66, s66, s61
              s_lshl_b32 s61, {sWAVE}, 5
              s_add_u32 s66, s66, s61
              s_add_u32 s66, s66, {WS_D}
              v_bfe_u32 v1, v0, 1, 2
              v_lshlrev_b32 v61, 10, v1
              v_and_b32 v2, 1, v0
              v_lshl_add_u32 v61, v2, 3, v61
              v_lshrrev_b32 v2, 4, v0
              v_lshl_add_u32 v61, v2, 1, v61
              s_lshl_b32 s68, s56, 7
              s_lshl_b32 s61, {sG}, 4
              s_add_u32 s68, s68, s61
              s_lshl_b32 s69, s56, 3
              s_add_u32 s69, s69, {sG}
              s_mul_i32 s69, s69, {56*128}
              s_add_u32 s69, s69, {WS_E}""")
        if o['TOUCH']:
            a(self.gload(4, 'v42', 's62'))
            a(self.gload(8, 'v42', 's63'))
            lt1 = self.lab('wt1')
            a(f"""s_cmp_eq_u32 {sWAVE}, {sG}
                  s_cbranch_scc0 {lt1}
                  s_add_u32 s61, s69, 4096""")
            for m in range(0 if o.get('NOETOUCH') else 7):
                a(self.gload(64 + 4 * m, 'v42', 's69' if m < 4 else 's61', 1024 * (m & 3)))
            a.label(lt1)
        self.srd(48, sOUT, 4096)
        self.sel_consts()
        self.tagbytes(48)
        a("v_lshlrev_b32 v60, 16, v60")
        lw2 = self.lab('w2')

        def first2():
            self.stamp(5)
            a("s_barrier")
            if o['WOSPLIT']:
                for s in range(8):
                    for h in range(2):
                        q = F + 4 * s + 2 * h
                        a(f"ds_read_b64_tr_b16 v[{q}:{q+1}], v37 offset:{4096*s+2048*h}")
                    if s == 6:
                        a("s_waitcnt lgkmcnt(6)")
                return
            a(f"""s_cmp_lt_u32 {sWAVE}, 4
                  s_cbranch_scc0 {lw2}""")
            for s in range(16):
                for h in range(2):
                    q = F + 4 * s + 2 * h
                    a(f"ds_read_b64_tr_b16 v[{q}:{q+1}], v37 offset:{4096*s+2048*h}")
                if s in (6, 10):
                    a("s_waitcnt lgkmcnt(6)")
            a.label(lw2)
        if o['WOSPLIT']:
            a(f"""s_lshr_b32 s61, {sWAVE}, 2
                  s_lshl_b32 s39, s61, 15
                  v_add_u32 v37, s39, v37
                  s_lshl_b32 s39, s61, 9
                  v_add_u32 v39, s39, v39""")
        self.poll('C', [self.gload(4, 'v33', 's58')], lambda ok: self.check_tags(['v6'], ok), first_extra=first2, local=['s58'])
        a("""ds_write_b64 v35, v[4:5]
             s_waitcnt lgkmcnt(0)
             s_barrier""")
        self.stamp(6)
        lo = self.lab('wo')
        if o['WOSPLIT']:
            for s_ in range(8):
                a(f"ds_read_b128 v[{128+4*s_}:{131+4*s_}], v39 offset:{64*s_}")
            for s_ in range(8):
                a(f"s_waitcnt lgkmcnt({7-s_})")
                c = "0" if s_ == 0 else "v[4:7]"
                a(f"v_mfma_f32_16x16x32_bf16 v[4:7], v[{F+4*s_}:{F+4*s_+3}], v[{128+4*s_}:{131+4*s_}], {c}")
        else:
            a(f"""s_cmp_lt_u32 {sWAVE}, 4
                  s_cbranch_scc0 {lo}""")
            self.gemv16(4, F, 'v39', 128)
        self.steal(4, 48)
        a("""s_mov_b32 exec_lo, 0x000f000f
             s_mov_b32 exec_hi, 0x000f000f""")
        self.gstore(4, 'v41', 's57')
        a("s_mov_b64 exec, -1")
        a.label(lo)
        self.stamp(7)

        def stolen_check(q):
            def chk(ok):
                self.stolen_tag(q, 'v12', 'v13')
                self.check_tags(['v12'], ok)
            return chk
        self.poll('ML', [self.gload(4, 'v42', 's63')] + ([self.gload(28, 'v42', 's62')] if o['MLTOUCH'] else []), stolen_check(4))
        if o['C2EARLY']:
            a(self.gload(24, 'v42', 's62'))
            if o['WOSPLIT']:
                a(self.gload(28, 'v42', 's62', 1024))
        for r in range(4):
            a(f"v_and_b32 v{4+r}, 0xffffff00, v{4+r}")
        for r in range(4):
            a(f"v_add_f32_dpp v{4+r}, v{4+r}, v{4+r} row_ror:8 row_mask:0xf bank_mask:0xf")
        self.pk_rnd(4, 'v12')
        self.pk_rnd(6, 'v13')
        a("""s_mov_b32 exec_lo, 0
             s_mov_b32 exec_hi, 0x0000ffff""")
        for r in range(4):
            a(f"v_add_f32 v{4+r}, 1.0, v{4+r}")
        self.pk_rnd(4, 'v12')
        self.pk_rnd(6, 'v13')
        a("s_mov_b64 exec, -1")
        a("""v_cvt_pk_bf16_f32 v8, v4, v5
             v_cvt_pk_bf16_f32 v9, v6, v7
             v_mov_b32 v16, 0
             v_mov_b32 v17, 0
             v_mov_b32 v18, 0
             v_mov_b32 v19, 0
             v_mov_b32 v10, v8
             v_mov_b32 v11, v9
             v_mov_b32 v14, v8
             v_mov_b32 v15, v9
             v_permlane32_swap_b32 v10, v16
             v_permlane32_swap_b32 v11, v17
             v_permlane16_swap_b32 v14, v18
             v_permlane16_swap_b32 v15, v19""")
        a(f"""v_mov_b32 v58, v16
              v_mov_b32 v20, v17
              v_mov_b32 v21, v18
              v_mov_b32 v22, v19
              v_mov_b32 v23, {sTAG}
              s_mov_b64 exec, 0xff""")
        self.st_local(20, 'v43', 's66', 2048)
        self.st_global(20, 'v43', 's66', 2048, flag=True)
        a("s_mov_b64 exec, -1")
        a("""v_permlane16_swap_b32 v4, v5
             v_permlane16_swap_b32 v6, v7
             v_permlane32_swap_b32 v4, v6
             v_permlane32_swap_b32 v5, v7
             v_mov_b32 v56, v4
             v_mov_b32 v57, v7""")
        self.stamp(8)
        okc = self.lab('c2first')
        lc2 = self.lab('c2got')
        nst = 2 if (o['LOCAL'] and not o.get('NOGLOBAL') and not o['XFLAG']) else 1
        if o['WOSPLIT']:
            def chk2(q0, q1):
                def chk(ok):
                    self.stolen_tag(q0, 'v12', 'v13')
                    self.stolen_tag(q1, 'v14', 'v13')
                    self.check_tags(['v12', 'v14'], ok)
                return chk
            if o['C2EARLY']:
                a(f"s_waitcnt vmcnt({nst})")
                chk2(24, 28)(okc)
            self.poll('C2', [self.gload(4, 'v42', 's62'), self.gload(8, 'v42', 's62', 1024)], chk2(4, 8))
            a(f"s_branch {lc2}")
            a.label(okc)
            for r in range(8):
                a(f"v_mov_b32 v{4+r}, v{24+r}")
            a.label(lc2)
            for r in range(8):
                a(f"v_and_b32 v{4+r}, 0xffffff00, v{4+r}")
            a("""v_pk_add_f32 v[4:5], v[4:5], v[8:9]
                 v_pk_add_f32 v[6:7], v[6:7], v[10:11]""")
        else:
            if o['C2EARLY']:
                a(f"s_waitcnt vmcnt({nst})")
                self.stolen_tag(24, 'v12', 'v13')
                self.check_tags(['v12'], okc)
            self.poll('C2', [self.gload(4, 'v42', 's62')], stolen_check(4))
            a(f"s_branch {lc2}")
            a.label(okc)
            for r in range(4):
                a(f"v_mov_b32 v{4+r}, v{24+r}")
            a.label(lc2)
            for r in range(4):
                a(f"v_and_b32 v{4+r}, 0xffffff00, v{4+r}")
        self.stamp(9)
        self.red_rows(4)
        if o['FASTX']:
            a("v_fma_f32 v4, v56, v4, v60")
        else:
            self.rnd('v4', 'v4')
            a("v_mul_f32 v4, v56, v4")
            self.rnd('v4', 'v4')
            a("v_add_f32 v4, v60, v4")
        self.rnd('v59', 'v4')
        a(f"""v_mov_b32 v10, v58
              v_mov_b32 v11, {sTAG}""")
        self.rows_to_quad('v8', 'v9', 'v59', 'v12')
        a("s_mov_b64 exec, 0xff")
        self.st_local(8, 'v43', 's66')
        self.stamp(10)
        a("s_barrier")
        self.st_global(8, 'v43', 's66', flag=True)
        a("s_mov_b64 exec, -1")
        end = self.lab('wend')
        a(f"""s_cmp_eq_u32 {sWAVE}, {sG}
              s_cbranch_scc0 {end}
              s_add_u32 s61, s69, 4096""")
        if o.get('ESLEEP'):
            a(f"s_sleep {o['ESLEEP']}")
        loads = []
        for m in range(7):
            if m < 4:
                loads.append(self.gload(64 + 4 * m, 'v42', 's69', 1024 * m))
            else:
                loads.append(self.gload(64 + 4 * m, 'v42', 's61', 1024 * (m - 4)))

        def echk(ok):
            for m in range(7):
                self.stolen_tag(64 + 4 * m, f'v{12+m}', 'v20')
            self.check_tags([f'v{12+m}' for m in range(7)], ok)
        if o['PIPE_E']:
            def loadE(k):
                b = 64 + 28 * k
                return [self.gload(b + 4 * m, 'v42', 's69' if m < 4 else 's61', 1024 * (m & 3)) for m in range(7)]

            def chkE(k, ok):
                b = 64 + 28 * k
                for m in range(7):
                    self.stolen_tag(b + 4 * m, f'v{12+m}', 'v20')
                self.check_tags([f'v{12+m}' for m in range(7)], ok)

            def takeE(k):
                for r in range(28):
                    a(f"v_and_b32 v{160+r}, 0xffffff00, v{64+28*k+r}")
            self.poll_pipe('E', o['PIPE_E'], loadE, chkE, takeE, o['SLP_E'])
            EB = 160
        else:
            self.poll('E', loads, echk)
            EB = 64
            for m in range(7):
                for r in range(4):
                    a(f"v_and_b32 v{64+4*m+r}, 0xffffff00, v{64+4*m+r}")
        self.stamp(11)
        def pk(d, s_):
            a(f"v_pk_add_f32 v[{d}:{d+1}], v[{d}:{d+1}], v[{s_}:{s_+1}]")
        for d, s_ in ((0, 4), (8, 12), (16, 20), (0, 8), (16, 24), (0, 16)):
            pk(EB + d, EB + s_)
            pk(EB + d + 2, EB + s_ + 2)
        self.red_rows(EB)
        e = f"v{EB}"
        if o['FASTX']:
            a(f"v_fma_f32 {e}, v57, {e}, v59")
        else:
            self.rnd(e, e)
            a(f"v_mul_f32 {e}, v57, {e}")
            self.rnd(e, e)
            a(f"v_add_f32 {e}, v59, {e}")
        a(f"""v_cvt_pk_bf16_f32 {e}, {e}, {e}
              s_mov_b32 exec_lo, 0x00ff00ff
              s_mov_b32 exec_hi, 0x00ff00ff
              buffer_store_short {e}, v61, {R2}, s68 offen{' sc0 sc1' if o.get('OUTSC') else ''}
              s_mov_b64 exec, -1""")
        noep = self.lab('noep')
        a(f"""s_cmp_eq_u32 s2, 64
              s_cbranch_scc0 {noep}
              v_mov_b32 v1, 0
              v_mov_b32 v2, {sTAG}
              s_mov_b64 exec, 1
              buffer_store_dword v2, v1, {WSR}, 0 offen offset:{WS_EPOCH}
              s_mov_b64 exec, -1""")
        a.label(noep)
        self.stamp(12)
        a.label(end)
        self.stamps_out(16)
        a("s_endpgm")

    def w_setup1(self, H, O, WQ, WO):
        a = self.a
        a(f"""s_lshl_b32 s61, {sWAVE}, 6
              v_add_u32 v1, s61, v0
              v_lshlrev_b32 v33, 4, v1
              v_lshrrev_b32 v2, 3, v1
              v_lshlrev_b32 v2, 1, v2
              v_and_b32 v3, 1, v1
              v_add_u32 v2, v2, v3""")
        self.perm_pos_bytes('v34', 'v2', 'v3')
        a(f"""v_bfe_u32 v3, v1, 1, 2
              v_mul_u32_u24 v3, 1056, v3
              v_add_u32 v34, v34, v3
              v_add_u32 v34, {H}, v34""")
        a(f"""v_bfe_u32 v2, v1, 4, 2
              v_lshlrev_b32 v2, 5, v2
              v_bfe_u32 v3, v1, 6, 1
              v_lshl_add_u32 v2, v3, 4, v2
              v_and_b32 v3, 15, v1
              v_add_u32 v2, v2, v3""")
        self.perm_pos_bytes('v35', 'v2', 'v3')
        a(f"""v_lshrrev_b32 v3, 7, v1
              v_mul_u32_u24 v3, 1056, v3
              v_add_u32 v35, v35, v3
              v_add_u32 v35, {O}, v35""")
        a(f"""s_and_b32 s61, {sWAVE}, 3
              s_lshl_b32 s61, s61, 5""")
        self.tr_addr_p128('v36', 's61', WQ, 'v1', 'v2')
        a(f"v_add_u32 v37, {WO-WQ}, v36")
        self.act_addr('v38', H, 1056, 'v1')
        a(f"v_add_u32 v39, {O-H}, v38")
        a(f"""v_and_b32 v1, 3, v0
              v_lshlrev_b32 v40, 6, v1
              v_lshrrev_b32 v1, 4, v0
              v_lshl_add_u32 v40, v1, 4, v40
              s_lshl_b32 s57, {sG}, 3
              s_add_u32 s57, s57, s56
              s_lshl_b32 s57, s57, 2
              s_add_u32 s57, s57, {sWAVE}
              s_lshl_b32 s57, s57, 8
              s_add_u32 s57, s57, {WS_B}
              s_mov_b32 s58, {WS_A2}""")

    def build(self):
        self.prologue()
        self.role_m()
        self.role_w()
        self.role_k()
        self.role_v()
        self.a.label("L_END")
        self.a("s_endpgm")
        body = self.a.finalize()
        vg = 256 if self.o['PROF'] else 216
        hdr = HEADER.format(lds=LDS_BYTES)
        return hdr + f""".amdgcn_target "amdgcn-amd-amdhsa--gfx950"
.text
.globl {NAME}
.p2align 8
.type {NAME},@function
{NAME}:
{body}.section .rodata,"a"
.p2align 6
.amdhsa_kernel {NAME}
  .amdhsa_next_free_vgpr {vg}
  .amdhsa_next_free_sgpr 102
  .amdhsa_accum_offset {vg}
  .amdhsa_group_segment_fixed_size 0
  .amdhsa_kernarg_size 112
  .amdhsa_user_sgpr_count 2
  .amdhsa_user_sgpr_kernarg_segment_ptr 1
  .amdhsa_system_sgpr_workgroup_id_x 1
.end_amdhsa_kernel
"""


if __name__ == '__main__':
    opt = {}
    out = None
    for arg in sys.argv[1:]:
        if '=' in arg:
            k, v = arg.split('=', 1)
            opt[k] = int(v) if v.lstrip('-').isdigit() else v
        else:
            out = arg
    g = Gen6(opt)
    txt = g.build()
    if out:
        open(out, 'w').write(txt)
    else:
        sys.stdout.write(txt)
    sys.stderr.write(f"instructions: {g.a.count()}\n")
```

```python
import sys, os
sys.path.insert(0, os.path.dirname(os.path.abspath(__file__)))
import gen as G1
from gen import *
WS_X = 0x800
WS_C2B = 0x1C0000

OPT2 = dict(WWAIT=0, KWAIT=1, VWAIT=1, MTRIG=1, GTRIG=0, PF=1, KSLEEP=0, VSLEEP=0, WSLEEP=0, TOUCH=1, KWIN=4, VWIN=1, WWIN=0, BARDMA=1, VN1=3, WO1=0, MG1=0, IOX=4, WO3=2, VN1ODD=2, PIPE_A2=0, SLP_A2=4, PIPE_C2=0, SLP_C2=2, PIPE_E=3, SLP_E=1, MLTOUCH=0, C2EARLY=1, FASTV=1, FASTLN=1, MEARLY=1, MWIN=0, MSLEEP=0, XFLAG=1, GUMIX=1, HELPQ=0, DPPSEL=1, HELPV=0, KWIN0=0, VWIN2=0, FASTX=0, WOSPLIT=0, LIMIT=100000, GUNT=0, WNT=1, DNT=1, MNT=1)


class Gen6(Gen):
    def __init__(self, opt):
        o = dict(OPT2)
        o.update(opt)
        super().__init__(o)

    def kwait(self, ws=True):
        a = self.a
        a("s_waitcnt lgkmcnt(0)")
        if self.o['PROF']:
            a("s_mov_b32 s70, s96")
            for k in range(1, 16):
                a(f"s_mov_b32 s{70+k}, 0")
            a(f"""s_cmp_eq_u32 {sWAVE}, 0
                  s_cselect_b32 s99, 1, 0
                  s_cmp_eq_u32 {sWAVE}, 7
                  s_cselect_b32 s99, 1, s99""")
            if self.role == 'M':
                a(f"""s_cmp_eq_u32 {sWAVE}, 4
                      s_cselect_b32 s99, 1, s99""")
            if self.role == 'W':
                a(f"""s_cmp_eq_u32 {sWAVE}, {sG}
                      s_cselect_b32 s99, 1, s99""")
            self.stamp(14)
        a(f"s_load_dword {sE}, s[{sWS}:{sWS+1}], {WS_EPOCH}")
        if ws:
            self.srd(40, sWS, WS_SIZE)

    def code_prefetch(self):
        if not self.o['PF']:
            return
        a = self.a
        l = self.lab('pf')
        lp = self.lab('pc')
        a(f"""s_cmp_eq_u32 {sWAVE}, 7
              s_cbranch_scc0 {l}
              s_getpc_b64 s[86:87]""")
        a.label(lp)
        a(f"""s_lshl_b32 s88, {sJ}, 10
              s_sub_u32 s86, s86, {lp}-L_START
              s_subb_u32 s87, s87, 0
              v_lshl_add_u32 v204, v0, 4, s88
              v_min_u32 v204, (L_END-L_START-16)&0xfffffff0, v204
              v_mov_b32 v207, s87
              v_add_co_u32 v206, vcc, s86, v204
              v_addc_co_u32 v207, vcc, 0, v207, vcc
              global_load_dwordx4 v[200:203], v[206:207], off""")
        a.label(l)

    def st_local(self, q, voff, soff, imm=0):
        i = f" offset:{imm}" if imm else ""
        if self.o['LOCAL']:
            self.a(f"""s_or_b32 s39, {soff}, {WS_LOC}
                       buffer_store_dwordx4 v[{q}:{q+3}], {voff}, {WSR}, s39 offen{i}""")
        else:
            self.a(f"buffer_store_dwordx4 v[{q}:{q+3}], {voff}, {WSR}, {soff} offen{i} {self.o['ST']}")

    def st_global(self, q, voff, soff, imm=0, flag=False):
        i = f" offset:{imm}" if imm else ""
        if self.o['LOCAL'] and not self.o.get('NOGLOBAL'):
            l = None
            if flag and self.o['XFLAG']:
                l = self.lab('sg')
                self.a(f"""s_cmp_eq_u32 s90, 1
                           s_cbranch_scc1 {l}""")
            self.a(f"buffer_store_dwordx4 v[{q}:{q+3}], {voff}, {WSR}, {soff} offen{i} {self.o['ST']}")
            if l:
                self.a.label(l)

    def x_publish(self, build_ws):
        if not (self.o['XFLAG'] and self.o['LOCAL']):
            return
        a = self.a
        l = self.lab('xp')
        a(f"""s_cmp_eq_u32 {sWAVE}, 0
              s_cbranch_scc0 {l}""")
        if build_ws:
            self.srd(40, sWS, WS_SIZE)
        a(f"""s_getreg_b32 s39, hwreg(HW_REG_XCC_ID, 0, 4)
              s_add_u32 s39, s39, {sE}
              s_add_u32 s39, s39, {TAGC}
              v_mov_b32 v209, s39
              s_lshl_b32 s39, {sG}, 5
              s_add_u32 s39, s39, {sJ}
              s_lshl_b32 s39, s39, 2
              v_mov_b32 v208, s39
              s_mov_b64 exec, 1
              buffer_store_dword v209, v208, {WSR}, 0 offen offset:{WS_X} {self.o['ST']}
              s_mov_b64 exec, -1""")
        a.label(l)

    def select_tiles(self, D):
        if not self.o['DPPSEL']:
            return Gen.select_tiles(self, D)
        for t in range(1, 4):
            for r in range(4):
                self.a(f"v_mov_b32_dpp v{D[0]+r}, v{D[t]+r} quad_perm:[0,1,2,3] row_mask:0xf bank_mask:{1 << t:#x}")

    def x_load(self):
        if not (self.o['XFLAG'] and self.o['LOCAL']):
            return
        self.a(f"""v_and_b32 v211, 31, v0
                   v_lshlrev_b32 v211, 2, v211
                   s_lshl_b32 s90, {sG}, 7
                   buffer_load_dword v210, v211, {WSR}, s90 offen offset:{WS_X} sc1""")

    def x_flag(self):
        if not (self.o['XFLAG'] and self.o['LOCAL']):
            return
        self.a(f"""s_getreg_b32 s39, hwreg(HW_REG_XCC_ID, 0, 4)
                   s_add_u32 s39, s39, {sTAG}
                   v_cmp_ne_u32 vcc, s39, v210
                   s_cmp_eq_u64 vcc, 0
                   s_cselect_b32 s90, 1, 0""")

    def poll_pipe(self, name, nsets, load, check, take, sleep):
        a = self.a
        per = len(load(0))
        oks = [self.lab(name + f'ok{k}_') for k in range(nsets)]
        done = self.lab(name + 'done')
        lp = self.lab(name)
        for k in range(nsets - 1):
            for l in load(k):
                a(l)
            if sleep:
                a(f"s_sleep {sleep}")
        a(f"s_mov_b32 {sCNT}, {self.o['LIMIT'] // nsets}")
        a.label(lp)
        for k in range(nsets):
            kn = (k + nsets - 1) % nsets
            for l in load(kn):
                a(l)
            a(f"s_waitcnt vmcnt({per * (nsets - 1)})")
            check(k, oks[k])
            if sleep:
                a(f"s_sleep {sleep}")
        a(f"""s_sub_u32 {sCNT}, {sCNT}, 1
              s_cbranch_scc0 {lp}
              s_branch {oks[0]}""")
        for k in range(nsets - 1, -1, -1):
            a.label(oks[k])
            take(k)
            if k:
                a(f"s_branch {done}")
        a.label(done)

    def silu1(self, x, t):
        a = self.a
        e, r, q, u = [f"v{t+i}" for i in range(4)]
        a(f"""s_mov_b32 s94, 0xbfb8aa3b
              s_mov_b32 s95, 0xb2a57060
              v_mul_f32 {e}, 0xbfb8aa3b, {x}
              v_fma_f32 {r}, {x}, s94, -{e}
              v_fma_f32 {r}, {x}, s95, {r}
              v_exp_f32 {e}, {e}
              v_mul_f32 {r}, 0x3f317218, {r}
              v_add_f32 {r}, 1.0, {r}
              v_mul_f32 {e}, {e}, {r}
              v_add_f32 {e}, 1.0, {e}
              v_rcp_f32 {r}, {e}
              v_cmp_eq_f32 vcc, 0x7f800000, {e}
              v_mul_f32 {q}, {x}, {r}
              v_fma_f32 {u}, -{q}, {e}, {x}
              v_fma_f32 {u}, {u}, {r}, {q}
              v_cndmask_b32 {x}, {u}, {q}, vcc""")

    def wave_sum2(self, v, w, t, u):
        a = self.a
        for pat in ("quad_perm:[1,0,3,2]", "quad_perm:[2,3,0,1]", "row_half_mirror", "row_mirror"):
            a(f"v_add_f32_dpp {v}, {v}, {v} {pat} row_mask:0xf bank_mask:0xf")
            a(f"v_add_f32_dpp {w}, {w}, {w} {pat} row_mask:0xf bank_mask:0xf")
        a(f"""v_mov_b32 {t}, {v}
              v_mov_b32 {u}, {w}
              v_permlane16_swap_b32 {v}, {t}
              v_permlane16_swap_b32 {w}, {u}
              v_add_f32 {v}, {v}, {t}
              v_add_f32 {w}, {w}, {u}
              v_mov_b32 {t}, {v}
              v_mov_b32 {u}, {w}
              v_permlane32_swap_b32 {v}, {t}
              v_permlane32_swap_b32 {w}, {u}
              v_add_f32 {v}, {v}, {t}
              v_add_f32 {w}, {w}, {u}""")

    def ln_stats_pivot(self, x, M2, SD2, RC2, t):
        a = self.a
        t0, t1, t2, t3 = [f"v{t+i}" for i in range(4)]
        a(f"v_readfirstlane_b32 s39, v{x}")
        D = t + 4
        for k in range(8):
            a(f"v_subrev_f32 v{D+k}, s39, v{x+k}")
        a(f"""v_add_f32 {t0}, v{D}, v{D+1}
              v_mul_f32 {t1}, v{D}, v{D}
              v_add_f32 {t2}, v{D+2}, v{D+3}
              v_mul_f32 {t3}, v{D+1}, v{D+1}
              v_add_f32 {t0}, {t0}, {t2}
              v_fmac_f32 {t1}, v{D+2}, v{D+2}
              v_add_f32 {t2}, v{D+4}, v{D+5}
              v_fmac_f32 {t3}, v{D+3}, v{D+3}
              v_add_f32 {t0}, {t0}, {t2}
              v_fmac_f32 {t1}, v{D+4}, v{D+4}
              v_add_f32 {t2}, v{D+6}, v{D+7}
              v_fmac_f32 {t3}, v{D+5}, v{D+5}
              v_add_f32 {t0}, {t0}, {t2}
              v_fmac_f32 {t1}, v{D+6}, v{D+6}
              v_fmac_f32 {t3}, v{D+7}, v{D+7}
              v_add_f32 {t1}, {t1}, {t3}""")
        self.wave_sum2(t0, t1, t2, t3)
        a(f"""v_mul_f32 {t0}, 0x3b000000, {t0}
              v_mul_f32 {t1}, 0x3b000000, {t1}
              v_fma_f32 {t1}, -{t0}, {t0}, {t1}
              v_add_f32 {t0}, s39, {t0}
              v_max_f32 {t1}, 0, {t1}
              v_cvt_pk_bf16_f32 {t1}, {t0}, {t1}
              v_lshlrev_b32 v{M2}, 16, {t1}
              v_and_b32 {t1}, 0xffff0000, {t1}
              v_add_f32 {t1}, 0x3727c5ac, {t1}
              v_mov_b32 v{M2+1}, v{M2}""")
        self.rnd(t1, t1)
        a(f"v_sqrt_f32 {t1}, {t1}")
        self.rnd(f"v{SD2}", t1)
        a(f"""v_rcp_f32 v{RC2}, v{SD2}
              v_mov_b32 v{SD2+1}, v{SD2}
              v_mov_b32 v{RC2+1}, v{RC2}""")

    def ln2_fast(self, X):
        a = self.a
        t = 144
        t0, t1, t2, t3 = [f"v{t+i}" for i in range(4)]
        D = t + 4
        a(f"v_readfirstlane_b32 s39, v{X}")
        csrc = ['v6', 'v8', 'v14', 'v16']
        ssrc = ['v9', 'v10', 'v17', 'v18']
        C, S = 156, 164
        for p in range(4):
            self.unpack(f'v{C+2*p}', f'v{C+2*p+1}', csrc[p])
        for k in range(8):
            a(f"v_subrev_f32 v{D+k}, s39, v{X+k}")
        a(f"""v_add_f32 {t0}, v{D}, v{D+1}
              v_mul_f32 {t1}, v{D}, v{D}
              v_add_f32 {t2}, v{D+2}, v{D+3}
              v_mul_f32 {t3}, v{D+1}, v{D+1}
              v_add_f32 {t0}, {t0}, {t2}
              v_fmac_f32 {t1}, v{D+2}, v{D+2}
              v_add_f32 {t2}, v{D+4}, v{D+5}
              v_fmac_f32 {t3}, v{D+3}, v{D+3}
              v_add_f32 {t0}, {t0}, {t2}
              v_fmac_f32 {t1}, v{D+4}, v{D+4}
              v_add_f32 {t2}, v{D+6}, v{D+7}
              v_fmac_f32 {t3}, v{D+5}, v{D+5}
              v_add_f32 {t0}, {t0}, {t2}
              v_fmac_f32 {t1}, v{D+6}, v{D+6}
              v_fmac_f32 {t3}, v{D+7}, v{D+7}
              v_add_f32 {t1}, {t1}, {t3}""")
        fill = []
        for p in range(4):
            fill += [f"v_lshlrev_b32 v{S+2*p}, 16, {ssrc[p]}", f"v_and_b32 v{S+2*p+1}, 0xffff0000, {ssrc[p]}"]
        for pat in ("quad_perm:[1,0,3,2]", "quad_perm:[2,3,0,1]", "row_half_mirror", "row_mirror"):
            a(f"v_add_f32_dpp {t0}, {t0}, {t0} {pat} row_mask:0xf bank_mask:0xf")
            a(f"v_add_f32_dpp {t1}, {t1}, {t1} {pat} row_mask:0xf bank_mask:0xf")
            a(fill.pop(0))
        a(f"""v_mov_b32 {t2}, {t0}
              v_mov_b32 {t3}, {t1}""")
        a(fill.pop(0))
        a(f"""v_permlane16_swap_b32 {t0}, {t2}
              v_permlane16_swap_b32 {t1}, {t3}
              v_add_f32 {t0}, {t0}, {t2}
              v_add_f32 {t1}, {t1}, {t3}
              v_mov_b32 {t2}, {t0}
              v_mov_b32 {t3}, {t1}""")
        a(fill.pop(0))
        a(f"""v_permlane32_swap_b32 {t0}, {t2}
              v_permlane32_swap_b32 {t1}, {t3}
              v_add_f32 {t0}, {t0}, {t2}
              v_add_f32 {t1}, {t1}, {t3}""")
        while fill:
            a(fill.pop(0))
        a(f"""v_mul_f32 v52, 0x3b000000, {t0}
              v_mul_f32 {t1}, 0x3b000000, {t1}
              v_fma_f32 {t1}, -v52, v52, {t1}
              v_mov_b32 v53, v52
              v_max_f32 {t1}, 0, {t1}
              v_add_f32 {t1}, 0x3727c5ac, {t1}
              v_rsq_f32 v54, {t1}""")
        for p in range(4):
            d = D + 2 * p
            a(f"v_pk_add_f32 v[{d}:{d+1}], v[{d}:{d+1}], v[52:53] neg_lo:[0,1] neg_hi:[0,1]")
        a("v_mov_b32 v55, v54")
        for p in range(4):
            c = C + 2 * p
            a(f"v_pk_mul_f32 v[{c}:{c+1}], v[{c}:{c+1}], v[54:55]")
        for p in range(4):
            d, c, q = D + 2 * p, C + 2 * p, S + 2 * p
            a(f"v_pk_fma_f32 v[{d}:{d+1}], v[{d}:{d+1}], v[{c}:{c+1}], v[{q}:{q+1}]")
        for p in range(4):
            a(f"v_cvt_pk_bf16_f32 v{4+p}, v{D+2*p}, v{D+2*p+1}")

    def pk_rnd(self, p, t):
        self.a(f"""v_cvt_pk_bf16_f32 {t}, v{p}, v{p+1}
                   v_lshlrev_b32 v{p}, 16, {t}
                   v_and_b32 v{p+1}, 0xffff0000, {t}""")

    def prologue(self):
        a = self.a
        a.label("L_START")
        a(f"""s_cmp_ge_u32 s2, 256
              s_cbranch_scc1 L_END""")
        if self.o.get('RENUM'):
            a("""s_lshr_b32 s3, s2, 3
                 s_and_b32 s3, s3, 7
                 s_xor_b32 s2, s2, s3""")
        a(f"""              s_load_dwordx16 s[4:19], s[0:1], 0
              s_load_dwordx8 s[20:27], s[0:1], 64
              s_load_dwordx4 s[28:31], s[0:1], 96""")
        if self.o['PROF']:
            a("s_memrealtime s[96:97]")
        a(f"""v_lshrrev_b32 v1, 6, v0
              v_and_b32 v0, 63, v0
              s_and_b32 {sG}, s2, 7
              s_lshr_b32 {sJ}, s2, 3
              v_readfirstlane_b32 {sWAVE}, v1""")
        self.code_prefetch()
        a(f"""s_cmp_ge_u32 {sJ}, 24
              s_cbranch_scc1 L_ENT_V
              s_cmp_ge_u32 {sJ}, 16
              s_cbranch_scc1 L_ENT_K
              s_cmp_ge_u32 {sJ}, 8
              s_cbranch_scc1 L_ENT_W""")

    def ent_v(self):
        a = self.a
        o = self.o
        a.label("L_ENT_V")
        self.role = 'V'
        a(f"""s_sub_u32 s56, {sJ}, 24
              s_lshr_b32 s57, s56, 1
              s_and_b32 s58, s56, 1
              s_lshl_b32 s60, s57, 3
              s_add_u32 s60, s60, {sG}
              s_lshl_b32 s59, s60, 20
              s_add_u32 s59, s59, {3072*256}
              s_lshl_b32 s61, s58, 7
              s_add_u32 s59, s59, s61
              s_lshl_b32 s61, {sWAVE}, 15
              s_add_u32 s59, s59, s61
              s_lshl_b32 s62, {sWAVE}, 14
              s_mov_b32 m0, s62""")
        self.dma_off_p128('v32', 256, 'v1', 'v2')
        self.kwait(ws=False)
        if o['HELPQ']:
            lh = self.lab('hq')
            a(f"""s_cmp_eq_u32 {sWAVE}, {o['HELPQ'] - 1}
                  s_cbranch_scc0 {lh}""")
            self.srd(48, sWQ, 512 * 8192)
            a(f"""v_lshlrev_b32 v212, 13, v0
                  s_lshl_b32 s61, s56, 19
                  s_lshl_b32 s63, {sG}, 10
                  s_add_u32 s61, s61, s63
                  buffer_load_dword v213, v212, {R2}, s61 offen offset:384""")
            a.label(lh)
        self.srd(44, sV, 0x2000000)
        vlate = o['XFLAG'] and not o['VWAIT']
        if not vlate:
            if o['VWAIT'] or o['XFLAG']:
                a("s_waitcnt lgkmcnt(0)")
            self.x_publish(True)
        if o['VSLEEP']:
            a(f"s_sleep {o['VSLEEP']}")
        self.stamp(15)
        self.only_exit('V', pre=True)
        if vlate:
            a(f"""buffer_load_dwordx4 v32, {R1}, s59 offen {self.nt()}lds
                  s_add_u32 s59, s59, 2048
                  s_add_u32 m0, m0, 1024
                  s_waitcnt lgkmcnt(0)""")
            self.x_publish(True)
            assert o['VN1'] >= 2 and o['VN1ODD'] >= 2 or o['VN1'] == o['VN1ODD']
            o = dict(o)
            o['VN1'] -= 1
            o['VN1ODD'] -= 1
            rest = 15
        else:
            rest = 16
        if o['VN1'] and o['VN1ODD'] != o['VN1']:
            a(f"""s_cmp_eq_u32 s58, 1
                  s_cselect_b32 s63, {o['VN1ODD']}, {o['VN1']}
                  s_sub_u32 s66, {rest}, s63""")
            self.dma_loop('v32', R1, 's59', 2048, 's63', win=o['VWIN'])
            self.dma_loop('v32', R1, 's59', 2048, 's66', win=o['VWIN2'])
        elif o['VN1']:
            self.dma_loop('v32', R1, 's59', 2048, o['VN1'], win=o['VWIN'])
            self.dma_loop('v32', R1, 's59', 2048, rest - o['VN1'], win=o['VWIN2'])
        else:
            self.dma_loop('v32', R1, 's59', 2048, rest, win=o['VWIN'])
        a("s_branch L_ROLE_V")

    def role_v(self):
        a = self.a
        o = self.o
        RED, ST = 131072, 139776
        F = 64
        a.label("L_ROLE_V")
        self.role = 'V'
        self.srd(40, sWS, WS_SIZE)
        self.only_exit('V')
        a(f"""v_bfe_u32 v1, v0, 2, 2
              v_lshlrev_b32 v33, 9, v1
              v_lshrrev_b32 v2, 4, v0
              v_lshl_add_u32 v33, v2, 6, v33
              v_and_b32 v3, 3, v0
              v_lshl_add_u32 v33, v3, 4, v33
              s_lshl_b32 s63, s60, 14
              s_add_u32 s63, s63, {WS_S}
              s_lshl_b32 s61, {sWAVE}, 11
              s_add_u32 s63, s63, s61""")
        a(f"""v_mul_u32_u24 v38, 272, v3
              v_lshl_add_u32 v38, v1, 6, v38
              v_lshl_add_u32 v38, v2, 4, v38
              s_mul_i32 s61, {sWAVE}, 1088
              s_add_u32 s61, s61, {RED}
              v_add_u32 v38, s61, v38""")
        a(f"""v_lshlrev_b32 v39, 6, v3
              v_add_u32 v40, {ST}, v39
              s_lshl_b32 s61, {sWAVE}, 3
              v_add_u32 v39, s61, v40
              v_lshl_add_u32 v40, v1, 3, v40
              v_and_b32 v2, 1, v2
              v_lshl_add_u32 v40, v2, 5, v40""")
        for t in range(4):
            self.tr_addr_p128(f'v{34+t}', 32 * t, 's62', 'v1', 'v2')
        a(f"""v_lshrrev_b32 v1, 4, v0
              v_mul_u32_u24 v1, 272, v1
              v_and_b32 v2, 15, v0
              v_lshl_add_u32 v1, v2, 4, v1
              v_add_u32 v41, {RED}, v1
              v_lshrrev_b32 v1, 4, v0
              v_lshlrev_b32 v1, 6, v1
              v_add_u32 v43, {ST}, v1
              v_lshlrev_b32 v42, 4, v0
              s_lshl_b32 s66, {sG}, 2
              s_add_u32 s66, s66, s57
              s_lshl_b32 s66, s66, 1
              s_add_u32 s66, s66, s58
              s_lshl_b32 s66, s66, 10
              s_add_u32 s66, s66, {WS_C}""")
        self.tag_ready()
        self.x_load()
        self.stamp(1)

        def first():
            self.stamp(2)
            self.x_flag()
            for s in range(4):
                for t in range(4):
                    for h in range(2):
                        q = F + 16 * s + 4 * t + 2 * h
                        a(f"ds_read_b64_tr_b16 v[{q}:{q+1}], v{34+t} offset:{4096*s+2048*h}")
                if s < 3:
                    a("s_waitcnt lgkmcnt(6)")
        self.poll('S', [self.gload(4, 'v33', 's63'), self.gload(8, 'v33', 's63', 256)],
                  lambda ok: self.check_tags(['v6', 'v10'], ok), first_extra=first, local=['s63'])
        self.stamp(3)
        self.unpack('v12', 'v13', 'v4')
        self.unpack('v14', 'v15', 'v5')
        self.unpack('v16', 'v17', 'v8')
        self.unpack('v18', 'v19', 'v9')
        a("""s_mov_b32 s94, 0x3fb8aa3b
             v_max3_f32 v20, v12, v13, v14
             v_max3_f32 v21, v15, v16, v17
             v_max3_f32 v20, v20, v18, v19
             v_max_f32 v20, v20, v21
             v_max_f32_dpp v20, v20, v20 row_ror:4 row_mask:0xf bank_mask:0xf
             v_max_f32_dpp v20, v20, v20 row_ror:8 row_mask:0xf bank_mask:0xf
             v_mov_b32 v21, v20
             v_permlane16_swap_b32 v20, v21
             v_max_f32 v20, v20, v21
             v_mov_b32 v21, v20
             v_permlane32_swap_b32 v20, v21
             v_max_f32 v20, v20, v21""")
        if o['FASTV']:
            self.v_fast(F)
        else:
            self.v_exact(F)
        self.stamp(5)
        self.stamps_out(16)
        a("s_endpgm")

    def v_fast(self, F):
        a = self.a
        ST = 139776
        a("v_mul_f32 v21, s94, v20")
        for k in range(8):
            a(f"v_fma_f32 v{12+k}, v{12+k}, s94, -v21")
        for k in range(8):
            a(f"v_exp_f32 v{12+k}, v{12+k}")
        for k in range(4):
            a(f"v_cvt_pk_bf16_f32 v{44+k}, v{12+2*k}, v{13+2*k}")
        D = [4, 8, 24, 28]
        done = set()

        def mf(s, t):
            rho = (s - t) & 3
            q = F + 16 * s + 4 * t
            c = f"v[{D[t]}:{D[t]+3}]" if t in done else "0"
            done.add(t)
            a(f"v_mfma_f32_16x16x32_bf16 v[{D[t]}:{D[t]+3}], v[{q}:{q+3}], v[{44+4*rho}:{47+4*rho}], {c}")

        def rot(rho, n):
            for k in range(4):
                a(f"v_mov_b32_dpp v{44+4*rho+k}, v{44+k} row_ror:{n} row_mask:0xf bank_mask:0xf")
        a("s_waitcnt lgkmcnt(0)")
        rot(2, 8)
        for t in range(4):
            mf(t, t)
        rot(1, 12)
        for t in range(4):
            mf((t + 2) & 3, t)
        rot(3, 4)
        for t in range(4):
            mf((t + 1) & 3, t)
        a("""v_add_f32 v22, v12, v13
             v_add_f32 v23, v14, v15
             v_add_f32 v12, v16, v17
             v_add_f32 v13, v18, v19""")
        mf(3, 0)
        a("""v_add_f32 v22, v22, v23
             v_add_f32 v12, v12, v13""")
        mf(0, 1)
        a("v_add_f32 v21, v22, v12")
        mf(1, 2)
        a("v_add_f32_dpp v21, v21, v21 row_ror:4 row_mask:0xf bank_mask:0xf")
        mf(2, 3)
        a("""v_add_f32_dpp v21, v21, v21 row_ror:8 row_mask:0xf bank_mask:0xf
             v_mov_b32 v22, v21
             v_permlane16_swap_b32 v21, v22
             v_add_f32 v21, v21, v22
             v_mov_b32 v22, v21
             v_permlane32_swap_b32 v21, v22
             v_add_f32 v21, v21, v22
             s_mov_b64 exec, 0xf
             ds_write_b64 v39, v[20:21]
             s_mov_b64 exec, -1""")
        self.select_tiles(D)
        a("""ds_write_b128 v38, v[4:7]
             s_waitcnt lgkmcnt(0)
             s_barrier""")
        self.stamp(4)
        done_l = self.lab('vdone')
        a(f"""s_cmp_eq_u32 {sWAVE}, 0
              s_cbranch_scc0 {done_l}""")
        for k in range(4):
            a(f"ds_read_b128 v[{44+4*k}:{47+4*k}], v43 offset:{16*k}")
        for w in range(8):
            a(f"ds_read_b128 v[{64+4*w}:{67+4*w}], v41 offset:{1088*w}")
        a(f"""v_mov_b32 v6, {sTAG}
              v_mov_b32 v7, 0
              s_waitcnt lgkmcnt(8)
              v_max3_f32 v22, v44, v46, v48
              v_max3_f32 v23, v50, v52, v54
              v_max3_f32 v22, v22, v56, v58
              v_max_f32 v22, v22, v23""")
        for k in range(8):
            a(f"v_sub_f32 v{44+2*k}, v{44+2*k}, v22")
        for k in range(8):
            a(f"v_mul_f32 v{44+2*k}, s94, v{44+2*k}")
        for k in range(8):
            a(f"v_exp_f32 v{44+2*k}, v{44+2*k}")
        a("v_mul_f32 v23, v44, v45")
        for k in range(1, 8):
            a(f"v_fmac_f32 v23, v{44+2*k}, v{45+2*k}")
        for k in range(8):
            a(f"v_mov_b32 v{45+2*k}, v{44+2*k}")
        a("v_rcp_f32 v22, v23")
        a("s_waitcnt lgkmcnt(0)")
        a("""v_pk_mul_f32 v[96:97], v[64:65], v[44:45]
             v_pk_mul_f32 v[98:99], v[66:67], v[44:45]
             v_pk_mul_f32 v[100:101], v[68:69], v[46:47]
             v_pk_mul_f32 v[102:103], v[70:71], v[46:47]""")
        for w in range(2, 8):
            d = 96 + 4 * (w & 1)
            a(f"""v_pk_fma_f32 v[{d}:{d+1}], v[{64+4*w}:{65+4*w}], v[{44+2*w}:{45+2*w}], v[{d}:{d+1}]
                  v_pk_fma_f32 v[{d+2}:{d+3}], v[{66+4*w}:{67+4*w}], v[{44+2*w}:{45+2*w}], v[{d+2}:{d+3}]""")
        a("""v_mov_b32 v23, v22
             v_pk_add_f32 v[96:97], v[96:97], v[100:101]
             v_pk_add_f32 v[98:99], v[98:99], v[102:103]
             v_pk_mul_f32 v[96:97], v[96:97], v[22:23]
             v_pk_mul_f32 v[98:99], v[98:99], v[22:23]
             v_cvt_pk_bf16_f32 v4, v96, v97
             v_cvt_pk_bf16_f32 v5, v98, v99""")
        self.st_local(4, 'v42', 's66')
        self.st_global(4, 'v42', 's66', flag=True)
        a.label(done_l)

    def v_exact(self, F):
        a = self.a
        for k in range(8):
            a(f"v_sub_f32 v{12+k}, v{12+k}, v20")
        for k in range(8):
            a(f"v_mul_f32 v{12+k}, s94, v{12+k}")
        for k in range(8):
            a(f"v_exp_f32 v{12+k}, v{12+k}")
        a("""v_add_f32 v22, v12, v13
             v_add_f32 v23, v14, v15
             v_add_f32 v24, v16, v17
             v_add_f32 v25, v18, v19
             v_add_f32 v22, v22, v23
             v_add_f32 v24, v24, v25
             v_add_f32 v21, v22, v24
             v_add_f32_dpp v21, v21, v21 row_ror:4 row_mask:0xf bank_mask:0xf
             v_add_f32_dpp v21, v21, v21 row_ror:8 row_mask:0xf bank_mask:0xf
             v_mov_b32 v22, v21
             v_permlane16_swap_b32 v21, v22
             v_add_f32 v21, v21, v22
             v_mov_b32 v22, v21
             v_permlane32_swap_b32 v21, v22
             v_add_f32 v21, v21, v22
             s_mov_b64 exec, 0xf
             ds_write_b64 v39, v[20:21]
             s_mov_b64 exec, -1
             s_waitcnt lgkmcnt(0)
             s_barrier
             ds_read_b64 v[22:23], v40
             s_waitcnt lgkmcnt(0)
             v_mov_b32 v24, v22
             v_max_f32_dpp v24, v24, v24 row_ror:4 row_mask:0xf bank_mask:0xf
             v_max_f32_dpp v24, v24, v24 row_ror:8 row_mask:0xf bank_mask:0xf
             v_mov_b32 v25, v24
             v_permlane16_swap_b32 v24, v25
             v_max_f32 v24, v24, v25
             v_sub_f32 v22, v22, v24
             v_sub_f32 v20, v20, v24
             v_mul_f32 v22, s94, v22
             v_mul_f32 v20, s94, v20
             v_exp_f32 v22, v22
             v_exp_f32 v20, v20
             v_mul_f32 v22, v22, v23
             v_add_f32_dpp v22, v22, v22 row_ror:4 row_mask:0xf bank_mask:0xf
             v_add_f32_dpp v22, v22, v22 row_ror:8 row_mask:0xf bank_mask:0xf
             v_mov_b32 v23, v22
             v_permlane16_swap_b32 v22, v23
             v_add_f32 v22, v22, v23
             v_rcp_f32 v22, v22
             v_mul_f32 v20, v20, v22""")
        for k in range(8):
            a(f"v_mul_f32 v{12+k}, v{12+k}, v20")
        for k in range(4):
            a(f"v_cvt_pk_bf16_f32 v{44+k}, v{12+2*k}, v{13+2*k}")
        D = [4, 8, 12, 16]
        rot = ((2, 8), (1, 12), (3, 4))
        done = set()

        def mf(s, t):
            rho = (s - t) & 3
            q = F + 16 * s + 4 * t
            c = f"v[{D[t]}:{D[t]+3}]" if t in done else "0"
            done.add(t)
            a(f"v_mfma_f32_16x16x32_bf16 v[{D[t]}:{D[t]+3}], v[{q}:{q+3}], v[{44+4*rho}:{47+4*rho}], {c}")
        for rho, n in rot:
            for k in range(4):
                a(f"v_mov_b32_dpp v{44+4*rho+k}, v{44+k} row_ror:{n} row_mask:0xf bank_mask:0xf")
        for rho in (0, 2, 1, 3):
            for t in range(4):
                mf((t + rho) & 3, t)
        self.select_tiles(D)
        a("""ds_write_b128 v38, v[4:7]
             s_waitcnt lgkmcnt(0)
             s_barrier""")
        self.stamp(4)
        done = self.lab('vdone')
        a(f"""s_cmp_eq_u32 {sWAVE}, 0
              s_cbranch_scc0 {done}""")
        for w in range(8):
            a(f"ds_read_b128 v[{64+4*w}:{67+4*w}], v41 offset:{1088*w}")
        a(f"""v_mov_b32 v6, {sTAG}
              v_mov_b32 v7, 0""")

        def pk(d, s_):
            a(f"v_pk_add_f32 v[{d}:{d+1}], v[{d}:{d+1}], v[{s_}:{s_+1}]")
        for n, (d, s_) in enumerate(((64, 68), (72, 76), (80, 84), (88, 92))):
            a(f"s_waitcnt lgkmcnt({6-2*n})")
            pk(d, s_)
            pk(d + 2, s_ + 2)
        for d, s_ in ((64, 72), (80, 88), (64, 80)):
            pk(d, s_)
            pk(d + 2, s_ + 2)
        a("""v_cvt_pk_bf16_f32 v4, v64, v65
             v_cvt_pk_bf16_f32 v5, v66, v67""")
        self.st_local(4, 'v42', 's66')
        self.st_global(4, 'v42', 's66', flag=True)
        a.label(done)

    def ent_k(self):
        a = self.a
        o = self.o
        a.label("L_ENT_K")
        self.role = 'K'
        a(f"""s_sub_u32 s56, {sJ}, 16
              s_lshr_b32 s57, s56, 1
              s_and_b32 s58, s56, 1
              s_lshl_b32 s60, s57, 3
              s_add_u32 s60, s60, {sG}
              s_lshl_b32 s59, s60, 20
              s_add_u32 s59, s59, {3072*256}
              s_lshl_b32 s61, s58, 17
              s_add_u32 s59, s59, s61
              s_lshl_b32 s62, {sWAVE}, 14
              s_add_u32 s59, s59, s62
              s_mov_b32 m0, s62
              v_lshrrev_b32 v1, 4, v0
              v_and_b32 v2, 15, v0
              v_xor_b32 v3, v1, v2
              v_lshlrev_b32 v3, 4, v3""")
        for v in range(4):
            if v:
                a(f"v_xor_b32 v4, {64*v}, v3")
            a(f"v_lshl_add_u32 v{32+v}, v1, 8, {'v4' if v else 'v3'}")
        self.kwait(ws=False)
        self.srd(44, sK, 0x2000000)
        late = o['XFLAG'] and not o['KWAIT']
        if not late:
            if o['KWAIT'] or o['XFLAG']:
                a("s_waitcnt lgkmcnt(0)")
            self.x_publish(True)
        if o['KSLEEP']:
            a(f"s_sleep {o['KSLEEP']}")
        self.stamp(15)
        self.only_exit('K', pre=True)
        l = self.lab('kdma')
        nit = 4
        if o['KWIN0'] or late:
            for v in range(4):
                i = f" offset:{1024*v}" if v else ""
                if o['KWIN0']:
                    a(f"s_waitcnt vmcnt({o['KWIN0']-1})")
                a(f"buffer_load_dwordx4 v{32+v}, {R1}, s59 offen{i} {self.nt()}lds")
            a("""s_add_u32 s59, s59, 4096
                 s_add_u32 m0, m0, 4096""")
            nit = 3
        if late:
            a("s_waitcnt lgkmcnt(0)")
            self.x_publish(True)
        a(f"s_mov_b32 s38, {nit}")
        a.label(l)
        for v in range(4):
            i = f" offset:{1024*v}" if v else ""
            if o['KWIN']:
                a(f"s_waitcnt vmcnt({o['KWIN']-1})")
            a(f"buffer_load_dwordx4 v{32+v}, {R1}, s59 offen{i} {self.nt()}lds")
        a(f"""s_add_u32 s59, s59, 4096
              s_add_u32 m0, m0, 4096
              s_sub_u32 s38, s38, 1
              s_cmp_lg_u32 s38, 0
              s_cbranch_scc1 {l}
              s_branch L_ROLE_K""")

    def role_k(self):
        a = self.a
        o = self.o
        QL, SC2 = 131072, 132224
        F = 64
        a.label("L_ROLE_K")
        self.role = 'K'
        self.srd(40, sWS, WS_SIZE)
        self.only_exit('K')
        a(f"""s_lshl_b32 s66, {sG}, 3
              s_add_u32 s66, s66, s56
              s_and_b32 s67, s66, 1
              v_lshrrev_b32 v1, 4, v0
              v_and_b32 v2, 15, v0""")
        a("""v_and_b32 v4, 3, v2
             v_xor_b32 v4, v4, v1
             v_and_b32 v5, 12, v2
             v_lshlrev_b32 v6, 8, v2
             v_add_u32 v6, s62, v6""")
        for t in range(4):
            a(f"""v_xor_b32 v3, {4*t}, v5
                  v_add_u32 v3, v3, v4
                  v_lshl_add_u32 v{36+t}, v3, 4, v6""")
        a(f"""s_lshl_b32 s61, {sWAVE}, 6
              v_add_u32 v5, s61, v0
              v_lshrrev_b32 v6, 2, v5
              v_lshlrev_b32 v6, 8, v6
              v_and_b32 v7, 3, v5
              v_lshl_add_u32 v40, v7, 4, v6
              v_lshrrev_b32 v6, 5, v5
              v_mul_u32_u24 v6, 288, v6
              v_and_b32 v7, 31, v5
              v_lshl_add_u32 v6, v7, 3, v6
              v_add_u32 v41, {QL}, v6
              s_lshl_b32 s69, {sG}, 13
              s_lshl_b32 s61, s57, 6
              s_add_u32 s69, s69, s61
              s_add_u32 s69, s69, {WS_B}""")
        self.act_addr('v42', QL, 288, 'v5')
        a(f"""v_bfe_u32 v5, v0, 2, 2
              v_lshl_add_u32 v5, v5, 2, v1
              v_lshlrev_b32 v5, 6, v5
              v_and_b32 v6, 3, v0
              v_lshl_add_u32 v43, v6, 4, v5
              s_lshl_b32 s63, s60, 14
              s_add_u32 s63, s63, {WS_S}
              s_lshl_b32 s61, s58, 13
              s_add_u32 s63, s63, s61
              s_lshl_b32 s61, {sWAVE}, 10
              s_add_u32 s63, s63, s61""")
        a(f"""s_lshr_b32 s68, s66, 4
              s_add_u32 s68, s68, 1
              s_lshr_b32 s56, s66, 1
              s_and_b32 s56, s56, 7""")
        self.srd(48, sWM, 512 * 6144)
        self.dma_off_p128('v32', 6144, 'v1', 'v2')
        a(f"""s_lshl_b32 s59, s67, 8
              s_lshl_b32 s61, {sWAVE}, 5
              s_add_u32 s59, s59, s61
              s_mul_i32 s59, s59, 6144
              s_lshl_b32 s61, s68, 10
              s_add_u32 s59, s59, s61
              s_lshl_b32 s61, s56, 7
              s_add_u32 s59, s59, s61
              s_add_u32 s59, s59, 2048""")
        self.tag_ready()
        self.x_load()
        self.stamp(1)

        def kfrags():
            self.x_flag()
            for T in range(4):
                for t in range(4):
                    q = F + 16 * T + 4 * t
                    a(f"ds_read_b128 v[{q}:{q+3}], v{36+t} offset:{4096*T}")
                if T == 2:
                    a("s_waitcnt lgkmcnt(6)")
        nopoll = self.lab('knp')
        join = self.lab('kj')
        a(f"""s_cmp_lt_u32 {sWAVE}, 2
              s_cbranch_scc0 {nopoll}""")

        def first():
            self.stamp(2)
            kfrags()
        self.poll('B', [self.gload(4, 'v40', 's69')], lambda ok: self.check_tags(['v6'], ok), first_extra=first, local=['s69'])
        a(f"""ds_write_b64 v41, v[4:5]
              s_branch {join}""")
        a.label(nopoll)
        a("s_waitcnt vmcnt(0)")
        self.stamp(2)
        kfrags()
        a.label(join)
        a("""s_waitcnt lgkmcnt(0)
             s_barrier""")
        self.stamp(3)
        for t in range(4):
            a(f"ds_read_b128 v[{44+4*t}:{47+4*t}], v42 offset:{64*t}")
        D = [4, 8, 12, 16]
        for t in range(4):
            a(f"s_waitcnt lgkmcnt({3-t})")
            for T in range(4):
                q = F + 16 * T + 4 * t
                c = "0" if t == 0 else f"v[{D[T]}:{D[T]+3}]"
                a(f"v_mfma_f32_16x16x32_bf16 v[{D[T]}:{D[T]+3}], v[{q}:{q+3}], v[{44+4*t}:{47+4*t}], {c}")
        self.select_tiles(D)
        a("""v_cvt_pk_bf16_f32 v8, v4, v5
             v_cvt_pk_bf16_f32 v9, v6, v7""")
        self.unpack('v4', 'v5', 'v8')
        self.unpack('v6', 'v7', 'v9')
        for r in range(4):
            a(f"v_mul_f32 v{4+r}, 0x3db504f3, v{4+r}")
        a(f"""v_cvt_pk_bf16_f32 v8, v4, v5
              v_cvt_pk_bf16_f32 v9, v6, v7
              v_mov_b32 v10, {sTAG}
              v_mov_b32 v11, 0""")
        self.st_local(8, 'v43', 's63')
        self.stamp(4)
        end = self.lab('kend')
        a("s_barrier")
        self.st_global(8, 'v43', 's63', flag=True)
        a(f"""s_cmp_lt_u32 s66, 48
              s_cbranch_scc0 {end}
              s_mov_b32 m0, s62""")
        self.srd(52, sC, 4096)
        skipc = self.lab('kc')
        a(f"""s_cmp_lt_u32 {sWAVE}, 4
              s_cbranch_scc0 {skipc}
              s_lshl_b32 s61, {sWAVE}, 10
              s_lshl_b32 s69, s67, 9
              s_add_u32 s69, s69, s61
              v_lshlrev_b32 v7, 3, v0
              buffer_load_dwordx2 v[24:25], v7, {R3}, s69 offen""")
        a.label(skipc)
        self.dma_loop('v32', R2, 's59', 8 * 6144, 4, nt=o['MNT'])
        skips = self.lab('ks')
        a(f"""s_cmp_lt_u32 {sWAVE}, 4
              s_cbranch_scc0 {skips}
              s_waitcnt vmcnt(4)""")
        self.unpack('v8', 'v9', 'v24')
        self.unpack('v10', 'v11', 'v25')
        self.silu4(8, 12)
        a("""v_cvt_pk_bf16_f32 v8, v8, v9
             v_cvt_pk_bf16_f32 v9, v10, v11""")
        self.perm_pos_bytes('v5', 'v0', 'v6')
        a(f"""s_mul_i32 s61, {sWAVE}, 544
              s_add_u32 s61, s61, {SC2}
              v_add_u32 v5, s61, v5
              ds_write_b64 v5, v[8:9]""")
        a.label(skips)
        a(f"s_lshl_b32 s61, {sWAVE}, 5")
        self.tr_addr_p128('v33', 's61', '0', 'v1', 'v2')
        a("v_add_u32 v34, 65536, v33")
        self.act_addr('v35', SC2, 544, 'v1')
        a(f"""v_lshrrev_b32 v1, 5, v0
              v_lshlrev_b32 v36, 10, v1
              v_and_b32 v1, 3, v0
              v_lshl_add_u32 v36, v1, 5, v36
              v_bfe_u32 v1, v0, 4, 1
              v_lshl_add_u32 v36, v1, 4, v36
              s_lshl_b32 s59, s56, 13
              s_lshl_b32 s61, {sWAVE}, 11
              s_add_u32 s59, s59, s61
              s_lshl_b32 s61, s68, 8
              s_add_u32 s59, s59, s61
              s_lshl_b32 s61, s67, 7
              s_add_u32 s59, s59, s61
              s_add_u32 s59, s59, {WS_ML}""")
        self.sel_consts()
        self.tagbytes(28)
        a("""s_waitcnt vmcnt(0) lgkmcnt(0)
             s_barrier""")
        a(f"""s_cmp_lt_u32 {sWAVE}, 4
              s_cbranch_scc0 {end}""")
        for s in range(8):
            a(f"ds_read_b128 v[{96+4*s}:{99+4*s}], v35 offset:{64*s}")
        a("s_waitcnt lgkmcnt(2)")
        for s in range(8):
            va = 'v33' if s < 4 else 'v34'
            for h in range(2):
                q = F + 4 * s + 2 * h
                a(f"ds_read_b64_tr_b16 v[{q}:{q+1}], {va} offset:{16384*(s&3)+2048*h}")
            if s == 5:
                a("s_waitcnt lgkmcnt(6)")
        for s in range(8):
            a(f"s_waitcnt lgkmcnt({max(0, 14-2*s) if s >= 4 else 6})" if s >= 4 else "s_waitcnt lgkmcnt(8)" if s == 0 else "s_nop 0")
            c = "0" if s == 0 else "v[4:7]"
            a(f"v_mfma_f32_16x16x32_bf16 v[4:7], v[{F+4*s}:{F+4*s+3}], v[{96+4*s}:{99+4*s}], {c}")
        self.steal(4, 28)
        a("s_mov_b32 exec_lo, 0x000f000f")
        a("s_mov_b32 exec_hi, 0x000f000f")
        self.gstore(4, 'v36', 's59')
        a("s_mov_b64 exec, -1")
        self.stamp(5)
        a.label(end)
        self.stamps_out(16)
        a("s_endpgm")

    def role_m(self):
        a = self.a
        o = self.o
        M1W, SC, STAT = 0, 16384, 17024
        GATE, UP, DOWN, H2, GU = 32768, 65536, 98304, 131072, 135296
        F = 64
        a.label("L_ENT_M")
        self.role = 'M'
        a(f"""v_lshrrev_b32 v1, 4, v0
              v_and_b32 v3, 15, v0
              v_lshlrev_b32 v2, 1, v1
              v_xor_b32 v2, v2, v3
              v_and_b32 v4, 7, v2
              v_lshlrev_b32 v4, 4, v4
              v_lshrrev_b32 v2, 3, v2
              v_lshl_add_u32 v4, v2, 10, v4
              v_xor_b32 v5, 1024, v4
              v_mul_u32_u24 v1, 6144, v1
              v_add_u32 v32, v1, v4
              v_add_u32 v33, v1, v5
              s_lshl_b32 s59, {sJ}, 6
              s_lshl_b32 s61, {sWAVE}, 3
              s_add_u32 s59, s59, s61
              s_mul_i32 s59, s59, 6144
              s_lshl_b32 s61, {sG}, 7
              s_add_u32 s59, s59, s61
              s_lshl_b32 s61, {sWAVE}, 11
              s_mov_b32 m0, s61
              s_and_b32 s62, {sWAVE}, 3
              s_lshl_b32 s62, s62, 10
              v_lshlrev_b32 v6, 4, v0
              v_lshlrev_b32 v7, 1, v0
              s_lshl_b32 s63, {sJ}, 7
              s_add_u32 s63, s63, s62""")
        self.kwait(ws=False)
        self.srd(44, sWM, 512 * 6144)
        self.srd(48, sC, 4096)
        self.srd(52, sX, 4096)
        l4 = self.lab('m4')
        lx = self.lab('mx')
        a(f"""s_cmp_lt_u32 {sWAVE}, 4
              s_cbranch_scc0 {l4}
              buffer_load_dwordx4 v[24:27], v6, {R3}, s62 offen
              s_branch {lx}""")
        a.label(l4)
        a(f"buffer_load_ushort v24, v7, {R2}, s63 offen")
        a.label(lx)
        self.stamp(15)
        self.only_exit('M', pre=True)
        mnt = 'nt ' if o['MNT'] else ''
        a(f"""buffer_load_dwordx4 v32, {R1}, s59 offen {mnt}lds
              s_add_u32 s59, s59, {4*6144}
              s_add_u32 m0, m0, 1024
              s_nop 0
              buffer_load_dwordx4 v33, {R1}, s59 offen {mnt}lds
              s_branch L_ROLE_M""")
        self.ent_w()
        self.ent_k()
        self.ent_v()
        a.label("L_ROLE_M")
        self.role = 'M'
        self.srd(40, sWS, WS_SIZE)
        self.only_exit('M')
        if o['XFLAG']:
            a("s_waitcnt lgkmcnt(0)")
            self.x_publish(False)
        a(f"""v_bfe_u32 v1, v0, 1, 2
              v_lshlrev_b32 v1, 10, v1
              v_and_b32 v2, 1, v0
              v_lshl_add_u32 v1, v2, 3, v1
              v_lshrrev_b32 v2, 4, v0
              v_lshl_add_u32 v1, v2, 1, v1
              s_lshl_b32 s61, {sG}, 7
              s_lshl_b32 s56, {sJ}, 4
              s_add_u32 s61, s61, s56
              buffer_load_ushort v28, v1, {R3}, s61 offen""")
        if o['TOUCH']:
            lt0 = self.lab('mt0')
            a(f"""s_cmp_eq_u32 {sWAVE}, 4
                  s_cbranch_scc0 {lt0}
                  s_lshl_b32 s61, {sG}, 3
                  s_add_u32 s61, s61, {sJ}
                  s_lshl_b32 s61, s61, 12
                  s_add_u32 s61, s61, {WS_A1 + WS_LOC}
                  v_lshlrev_b32 v2, 4, v0""")
            for m in range(4):
                a(self.gload(64 + 4 * m, 'v2', 's61', 1024 * m))
            a.label(lt0)
        a(f"""v_lshrrev_b32 v1, 4, v0
              v_bfe_u32 v2, v0, 2, 2
              v_lshl_add_u32 v3, v1, 2, v2
              v_lshlrev_b32 v34, 8, v3
              v_and_b32 v3, 1, v1
              v_lshlrev_b32 v3, 3, v3
              v_lshl_add_u32 v3, v2, 1, v3
              s_lshl_b32 s61, {sWAVE}, 1
              v_xor_b32 v3, s61, v3
              v_lshl_add_u32 v34, v3, 4, v34
              v_and_b32 v3, 3, v0
              v_lshl_add_u32 v34, v3, 3, v34""")
        self.act_addr('v35', SC, 160, 'v1')
        a(f"""v_lshrrev_b32 v1, 5, v0
              v_lshlrev_b32 v36, 12, v1
              v_bfe_u32 v1, v0, 2, 1
              v_lshl_add_u32 v36, v1, 10, v36
              v_and_b32 v1, 3, v0
              v_lshl_add_u32 v36, v1, 5, v36
              v_bfe_u32 v1, v0, 4, 1
              v_lshl_add_u32 v36, v1, 4, v36
              s_lshl_b32 s60, {sG}, 15
              s_and_b32 s61, {sWAVE}, 3
              s_lshl_b32 s61, s61, 13
              s_add_u32 s60, s60, s61
              s_lshr_b32 s61, {sWAVE}, 2
              s_lshl_b32 s61, s61, 11
              s_add_u32 s60, s60, s61
              s_lshl_b32 s61, {sJ}, 7
              s_add_u32 s60, s60, s61
              s_add_u32 s60, s60, {WS_A1}""")
        lb = self.lab('mb')
        npf = 1 if o['PF'] else 0
        a(f"""s_cmp_ge_u32 {sWAVE}, 4
              s_cbranch_scc0 {lb}""")
        a("v_lshrrev_b32 v4, 2, v0")
        self.perm_pos_bytes('v5', 'v4', 'v6')
        a(f"""v_and_b32 v6, 3, v0
              v_lshl_add_u32 v5, v6, 1, v5
              s_and_b32 s61, {sWAVE}, 3
              s_mul_i32 s61, s61, 160
              s_add_u32 s61, s61, {SC}
              v_add_u32 v5, s61, v5""")
        if o['TOUCH']:
            lc3 = self.lab('mc3')
            lc7 = self.lab('mc7')
            a(f"""s_cmp_eq_u32 {sWAVE}, 4
                  s_cbranch_scc1 {lc7}
                  s_waitcnt vmcnt(3)""")
            a.label(lc7)
            a("s_waitcnt vmcnt(7)")
        else:
            a("s_waitcnt vmcnt(3)")
        a("v_lshlrev_b32 v8, 16, v24")
        self.silu1('v8', 12)
        a("""v_cvt_pk_bf16_f32 v8, v8, v8
             ds_write_b16 v5, v8""")
        a.label(lb)
        a("""s_waitcnt vmcnt(0) lgkmcnt(0)
             s_barrier""")
        self.stamp(1)
        self.frags(F, 'v34', 2, 8192, 4096)
        a(f"""ds_read_b128 v[72:75], v35
              ds_read_b128 v[76:79], v35 offset:64
              s_add_u32 {sTAG}, {sE}, {TAGC}
              s_waitcnt lgkmcnt(0)
              v_mfma_f32_16x16x32_bf16 v[4:7], v[64:67], v[72:75], 0
              v_mfma_f32_16x16x32_bf16 v[4:7], v[68:71], v[76:79], v[4:7]""")
        a(f"""s_mov_b32 exec_lo, 0x00f000f0
              s_mov_b32 exec_hi, 0x00f000f0
              v_mov_b32 v4, v6
              v_mov_b32 v5, v7
              s_mov_b32 exec_lo, 0x00ff00ff
              s_mov_b32 exec_hi, 0x00ff00ff
              v_mov_b32 v6, {sTAG}
              v_mov_b32 v7, 0""")
        self.st_local(4, 'v36', 's60')
        a("s_mov_b64 exec, -1")
        self.stamp(2)
        ls = self.lab('ms')
        lh4 = self.lab('mh4')
        lh = self.lab('mh')
        a(f"""s_cmp_eq_u32 {sWAVE}, 4
              s_cbranch_scc1 {lh4}
              s_cmp_lt_u32 {sWAVE}, 4
              s_cbranch_scc0 {ls}""")
        for k in range(4):
            self.unpack(f'v{8+2*k}', f'v{9+2*k}', f'v{24+k}')
        self.ln_stats(8, 'v20', 'v21', 'v22', 16)
        a(f"""s_lshl_b32 s61, {sWAVE}, 3
              s_add_u32 s61, s61, {STAT}
              v_mov_b32 v1, s61
              s_mov_b64 exec, 1
              ds_write_b64 v1, v[20:21]
              s_mov_b64 exec, -1
              s_waitcnt lgkmcnt(0)""")
        a.label(ls)
        a("""s_mov_b32 exec_lo, 0x00ff00ff
             s_mov_b32 exec_hi, 0x00ff00ff""")
        self.st_global(4, 'v36', 's60')
        a(f"""s_mov_b64 exec, -1
              s_barrier
              s_branch {lh}""")
        a.label(lh4)
        a("""s_mov_b32 exec_lo, 0x00ff00ff
             s_mov_b32 exec_hi, 0x00ff00ff""")
        self.st_global(4, 'v36', 's60')
        a(f"""s_mov_b64 exec, -1
              v_bfe_u32 v1, v0, 1, 2
              v_lshlrev_b32 v1, 3, v1
              v_add_u32 v1, {STAT}, v1
              v_lshlrev_b32 v28, 16, v28
              s_lshl_b32 s59, {sG}, 3
              s_add_u32 s59, s59, {sJ}
              s_lshl_b32 s57, s59, 7
              s_add_u32 s57, s57, {WS_A2}
              s_lshl_b32 s59, s59, 12
              s_add_u32 s59, s59, {WS_A1}
              v_lshlrev_b32 v2, 4, v0""")
        self.poll('A1', [self.gload(4 + 4 * m, 'v2', 's59', 1024 * m) for m in range(4)],
                  lambda ok: self.check_tags(['v6', 'v10', 'v14', 'v18'], ok), local=['s59'])
        self.stamp(3)
        a("""s_barrier
             ds_read_b64 v[20:21], v1
             v_mov_b32 v6, v8
             v_mov_b32 v7, v9
             v_mov_b32 v14, v16
             v_mov_b32 v15, v17""")
        for r in range(4):
            a(f"v_add_f32_dpp v{4+r}, v{4+r}, v{4+r} row_ror:8 row_mask:0xf bank_mask:0xf")
        for r in range(4):
            a(f"v_add_f32_dpp v{12+r}, v{12+r}, v{12+r} row_ror:8 row_mask:0xf bank_mask:0xf")
        a("""v_permlane16_swap_b32 v4, v5
             v_permlane16_swap_b32 v6, v7
             v_permlane16_swap_b32 v12, v13
             v_permlane16_swap_b32 v14, v15
             v_add_f32 v4, v4, v5
             v_add_f32 v6, v6, v7
             v_add_f32 v12, v12, v13
             v_add_f32 v14, v14, v15
             v_permlane32_swap_b32 v4, v6
             v_permlane32_swap_b32 v12, v14
             v_add_f32 v4, v4, v6
             v_add_f32 v12, v12, v14
             s_waitcnt lgkmcnt(0)
             v_rcp_f32 v22, v21
             v_cvt_pk_bf16_f32 v4, v4, v12
             v_and_b32 v12, 0xffff0000, v4
             v_lshlrev_b32 v4, 16, v4
             v_add_f32 v12, 1.0, v12""")
        self.ln_elem('v29', 'v28', 'v20', 'v21', 'v22', 'v23', 'v30')
        a(f"""v_mov_b32 v22, {sTAG}
              v_mov_b32 v23, 0""")
        self.rnd('v12', 'v12')
        a("v_mul_f32 v12, v29, v12")
        self.rnd('v12', 'v12')
        a("v_add_f32 v12, v12, v4")
        self.rows_to_quad('v20', 'v21', 'v12', 'v8')
        a("s_mov_b64 exec, 0xff")
        self.gstore(20, 'v2', 's57')
        a("s_mov_b64 exec, -1")
        self.stamp(4)
        a.label(lh)
        a(f"""s_cmp_eq_u32 {sJ}, 7
              s_cbranch_scc1 L_ROLE_GA""")
        a(f"""s_mul_i32 s66, {sG}, 7
              s_add_u32 s66, s66, {sJ}""")
        self.srd(44, sWG, 512 * 3584)
        self.srd(48, sWU, 512 * 3584)
        self.srd(52, sWD, 1792 * 1024)
        a(f"""v_lshrrev_b32 v1, 2, v0
              v_mul_u32_u24 v1, 3584, v1
              v_bfe_u32 v2, v0, 4, 1
              v_lshlrev_b32 v2, 1, v2
              v_and_b32 v3, 3, v0
              v_xor_b32 v2, v2, v3
              v_lshl_add_u32 v32, v2, 4, v1
              v_xor_b32 v2, {1 if o['GUMIX'] else 0}, v2
              v_lshl_add_u32 v31, v2, 4, v1
              s_lshl_b32 s59, {sWAVE}, 6
              s_mul_i32 s59, s59, 3584
              s_lshl_b32 s61, s66, 6
              s_add_u32 s59, s59, s61
              s_mov_b32 s60, s59
              s_lshl_b32 s67, s66, 5
              s_lshl_b32 s61, {sWAVE}, 2
              s_add_u32 s67, s67, s61
              s_lshl_b32 s67, s67, 10
              s_and_b32 s62, {sWAVE}, 1
              s_lshl_b32 s62, s62, 3""")
        for n in range(4):
            a(f"""s_add_u32 s63, s62, {2*n}
                  v_xor_b32 v1, s63, v0
                  v_lshlrev_b32 v{40+n}, 4, v1""")
        if o['GUMIX']:
            a(f"""v_lshrrev_b32 v1, 4, v0
                  v_bfe_u32 v2, v0, 2, 2
                  v_lshl_add_u32 v3, v1, 2, v2
                  v_lshlrev_b32 v33, 6, v3
                  v_and_b32 v3, 1, v1
                  v_lshlrev_b32 v3, 1, v3
                  s_and_b32 s61, {sWAVE}, 3
                  v_xor_b32 v3, s61, v3
                  v_bfe_u32 v4, v0, 1, 1
                  v_xor_b32 v3, v3, v4
                  v_lshl_add_u32 v33, v3, 4, v33
                  v_lshl_add_u32 v33, v4, 15, v33
                  v_and_b32 v3, 1, v0
                  v_lshl_add_u32 v33, v3, 3, v33
                  v_add_u32 v33, {GATE}, v33""")
        else:
            a(f"""v_lshrrev_b32 v1, 4, v0
                  v_bfe_u32 v2, v0, 2, 2
                  v_lshl_add_u32 v3, v1, 2, v2
                  v_lshlrev_b32 v33, 6, v3
                  v_and_b32 v3, 1, v1
                  s_and_b32 s61, {sWAVE}, 1
                  v_xor_b32 v3, s61, v3
                  v_lshl_add_u32 v33, v3, 5, v33
                  v_and_b32 v3, 3, v0
                  v_lshl_add_u32 v33, v3, 3, v33
                  s_bfe_u32 s61, {sWAVE}, 0x10001
                  s_lshl_b32 s61, s61, 15
                  s_add_u32 s61, s61, {GATE}
                  v_add_u32 v33, s61, v33""")
        a(f"""v_lshl_add_u32 v3, v1, 2, v2
              v_lshlrev_b32 v4, 10, v3
              v_and_b32 v5, 3, v0
              v_lshl_add_u32 v4, v5, 3, v4
              v_add_u32 v4, {DOWN}, v4
              v_and_b32 v3, 7, v3
              v_lshlrev_b32 v3, 1, v3
              s_lshl_b32 s61, {sWAVE}, 3
              v_xor_b32 v3, s61, v3""")
        for t in range(4):
            a(f"""v_xor_b32 v5, {2*t}, v3
                  v_lshl_add_u32 v{34+t}, v5, 4, v4""")
        self.act_addr('v38', H2, 1056, 'v1')
        self.act_addr('v39', GU, 96, 'v1')
        a(f"""v_lshlrev_b32 v44, 4, v0
              s_lshl_b32 s68, {sG}, 2
              s_add_u32 s68, s68, {sWAVE}
              s_lshl_b32 s68, s68, 12
              s_add_u32 s68, s68, {WS_D}""")
        self.perm_pos_bytes('v45', 'v0', 'v1')
        a(f"""s_mul_i32 s61, {sWAVE}, 1056
              s_add_u32 s61, s61, {H2}
              v_add_u32 v45, s61, v45""")
        if o['GUMIX']:
            a(f"""v_and_b32 v1, 3, v0
                  v_mul_u32_u24 v46, 96, v1
                  v_lshrrev_b32 v1, 4, v0
                  s_lshl_b32 s61, {sWAVE}, 1
                  v_add_u32 v1, s61, v1
                  v_and_b32 v2, 3, v1
                  v_lshl_add_u32 v46, v2, 4, v46
                  v_bfe_u32 v2, v1, 2, 1
                  v_lshl_add_u32 v46, v2, 3, v46
                  v_add_u32 v46, {GU}, v46""")
        else:
            a(f"""v_and_b32 v1, 3, v0
                  v_mul_u32_u24 v46, 96, v1
                  v_lshrrev_b32 v1, 4, v0
                  v_lshl_add_u32 v46, v1, 4, v46
                  s_and_b32 s61, {sWAVE}, 1
                  s_lshl_b32 s61, s61, 3
                  s_bfe_u32 s62, {sWAVE}, 0x10001
                  s_mul_i32 s62, s62, 384
                  s_add_u32 s61, s61, s62
                  s_add_u32 s61, s61, {GU}
                  v_add_u32 v46, s61, v46""")
        a(f"""v_bfe_u32 v1, v0, 2, 2
              v_lshlrev_b32 v1, 1, v1
              v_lshrrev_b32 v2, 5, v0
              v_add_u32 v1, v1, v2
              v_mul_u32_u24 v47, {56*128}, v1
              v_and_b32 v1, 3, v0
              v_lshl_add_u32 v47, v1, 5, v47
              v_bfe_u32 v1, v0, 4, 1
              v_lshl_add_u32 v47, v1, 4, v47
              s_mul_i32 s63, {sWAVE}, {8*56*128}
              s_lshl_b32 s61, s66, 7
              s_add_u32 s63, s63, s61
              s_add_u32 s63, s63, {WS_E}""")
        self.sel_consts()
        self.tagbytes(48)
        if o['MG1']:
            a(f"""s_barrier
                  s_lshl_b32 s61, {sWAVE}, 12
                  s_add_u32 s61, s61, {GATE}
                  s_mov_b32 m0, s61""")
            self.dma_loop('v32', R1, 's59', 16 * 3584, o['MG1'])
        if o['HELPV']:
            lhv = self.lab('hv')
            a(f"""s_barrier
                  s_cmp_lt_u32 {sJ}, 4
                  s_cbranch_scc0 {lhv}
                  s_mov_b32 s92, s8
                  s_mov_b32 s93, s9
                  s_mov_b32 s94, 0x2000000
                  s_mov_b32 s95, 0x20000
                  s_lshl_b32 s61, {sJ}, 3
                  s_add_u32 s61, s61, {sG}
                  s_lshl_b32 s61, s61, 20
                  s_lshl_b32 s62, {sWAVE}, 15
                  s_add_u32 s61, s61, s62
                  s_add_u32 s61, s61, {(3072 + 128 - 32) * 256}
                  v_lshlrev_b32 v212, 7, v0""")
            for n in range(o['HELPV']):
                a(f"""buffer_load_dword v213, v212, s[92:95], s61 offen
                      s_sub_u32 s61, s61, {32*256}""")
            a.label(lhv)
            self.sel_consts()
        if o['MTRIG']:
            lt = self.lab('mt')
            if o['MEARLY']:
                a(f"""s_lshr_b32 s61, s66, 1
                      s_and_b32 s61, s61, 3
                      s_cmp_eq_u32 s61, 3
                      s_cbranch_scc1 {lt}""")
            a(f"""s_cmp_eq_u32 {sWAVE}, 0
                  s_cbranch_scc0 {lt}
                  v_lshlrev_b32 v2, 10, v0
                  s_lshl_b32 s61, {sG}, 13
                  s_add_u32 s61, s61, {WS_B}""")
            if o['MTRIG'] == 2:
                a(f"""v_lshrrev_b32 v2, 1, v0
                      v_lshlrev_b32 v2, 17, v2
                      v_and_b32 v3, 1, v0
                      v_lshl_add_u32 v2, v3, 13, v2
                      s_lshl_b32 s61, {sG}, 14
                      s_add_u32 s61, s61, {WS_S}""")
            a("s_mov_b64 exec, 0xff")
            self.poll('T', [self.gload(4, 'v2', 's61')], lambda ok: self.check_tags(['v6'], ok), local=['s61'])
            a("s_mov_b64 exec, -1")
            a.label(lt)
        a("s_barrier")
        if o['MSLEEP']:
            lms = self.lab('msl')
            a(f"""s_lshr_b32 s61, s66, 1
                  s_and_b32 s61, s61, 3
                  s_cmp_eq_u32 s61, 3
                  s_cbranch_scc1 {lms}
                  s_sleep {o['MSLEEP']}""")
            a.label(lms)
        a(f"""s_lshl_b32 s61, {sWAVE}, 12
              s_add_u32 s61, s61, {GATE + 1024 * o['MG1']}
              s_mov_b32 m0, s61""")
        if o['MG1'] < 4:
            self.dma_loop('v32', R1, 's59', 16 * 3584, 4 - o['MG1'], win=o['MWIN'], nt=o['GUNT'])
        a(f"""s_sub_u32 s61, s61, {1024 * o['MG1']}
              s_add_u32 s61, s61, {UP-GATE}
              s_mov_b32 m0, s61""")
        self.dma_loop('v31', R2, 's60', 16 * 3584, 4, nt=o['GUNT'])
        a(f"""s_add_u32 s61, s61, {DOWN-UP}
              s_mov_b32 m0, s61
              s_nop 0""")
        for n in range(4):
            a(f"""buffer_load_dwordx4 v{40+n}, {R3}, s67 offen {'nt ' if o['DNT'] else ''}lds
                  s_add_u32 s67, s67, 1024
                  s_add_u32 m0, m0, 1024
                  s_nop 0""")
        a("""s_waitcnt vmcnt(0)
             s_barrier""")
        self.stamp(5)
        for t in range(4):
            for h in range(2):
                q = 128 + 4 * t + 2 * h
                a(f"ds_read_b64_tr_b16 v[{q}:{q+1}], v{34+t} offset:{16384*h}")
        lw = self.lab('mw')
        a(f"""s_cmp_lt_u32 {sWAVE}, 4
              s_cbranch_scc0 {lw}
              s_waitcnt lgkmcnt(0)""")
        for s in range(16):
            for h in range(2):
                q = F + 4 * s + 2 * h
                a(f"ds_read_b64_tr_b16 v[{q}:{q+1}], v33 offset:{2048*s+1024*h}")
            if s in (6, 10):
                a("s_waitcnt lgkmcnt(6)")
        self.poll('D', [self.gload(4, 'v44', 's68'), self.gload(8, 'v44', 's68', 2048),
                        self.gload(12, 'v44', 's68', 1024), self.gload(16, 'v44', 's68', 3072)],
                  lambda ok: self.check_tags(['v7', 'v11', 'v15', 'v19'], ok), local=['s68'])
        self.stamp(6)
        X = 20
        self.unpack(f'v{X}', f'v{X+1}', 'v4')
        self.unpack(f'v{X+2}', f'v{X+3}', 'v5')
        self.unpack(f'v{X+4}', f'v{X+5}', 'v12')
        self.unpack(f'v{X+6}', f'v{X+7}', 'v13')
        if o['FASTLN']:
            self.ln2_fast(X)
        else:
            M2, SD2, RC2 = 52, 54, 56
            self.ln_stats_pivot(X, M2, SD2, RC2, 144)
            csrc = ['v6', 'v8', 'v14', 'v16']
            ssrc = ['v9', 'v10', 'v17', 'v18']
            for p in range(4):
                x = X + 2 * p
                a(f"v_pk_add_f32 v[{x}:{x+1}], v[{x}:{x+1}], v[{M2}:{M2+1}] neg_lo:[0,1] neg_hi:[0,1]")
            for p in range(4):
                self.pk_rnd(X + 2 * p, f'v{144+p}')
            for p in range(4):
                x, q = X + 2 * p, 148 + 2 * p
                a(f"v_pk_mul_f32 v[{q}:{q+1}], v[{x}:{x+1}], v[{RC2}:{RC2+1}]")
            for p in range(4):
                x, q = X + 2 * p, 148 + 2 * p
                a(f"v_pk_fma_f32 v[{x}:{x+1}], v[{q}:{q+1}], v[{SD2}:{SD2+1}], v[{x}:{x+1}] neg_lo:[1,0,0] neg_hi:[1,0,0]")
            for p in range(4):
                x, q = X + 2 * p, 148 + 2 * p
                a(f"v_pk_fma_f32 v[{x}:{x+1}], v[{x}:{x+1}], v[{RC2}:{RC2+1}], v[{q}:{q+1}]")
            for p in range(4):
                self.pk_rnd(X + 2 * p, f'v{144+p}')
            for p in range(4):
                q = 148 + 2 * p
                self.unpack(f'v{q}', f'v{q+1}', csrc[p])
            for p in range(4):
                x, q = X + 2 * p, 148 + 2 * p
                a(f"v_pk_mul_f32 v[{x}:{x+1}], v[{x}:{x+1}], v[{q}:{q+1}]")
            for p in range(4):
                q = 148 + 2 * p
                self.unpack(f'v{q}', f'v{q+1}', ssrc[p])
            for p in range(4):
                self.pk_rnd(X + 2 * p, f'v{144+p}')
            for p in range(4):
                x, q = X + 2 * p, 148 + 2 * p
                a(f"v_pk_add_f32 v[{x}:{x+1}], v[{x}:{x+1}], v[{q}:{q+1}]")
            for p in range(4):
                a(f"v_cvt_pk_bf16_f32 v{4+p}, v{X+2*p}, v{X+2*p+1}")
        a("""ds_write_b64 v45, v[4:5]
             ds_write_b64 v45, v[6:7] offset:512""")
        a.label(lw)
        a("""s_waitcnt lgkmcnt(0)
             s_barrier""")
        self.stamp(7)
        lg = self.lab('mg')
        a(f"""s_cmp_lt_u32 {sWAVE}, 4
              s_cbranch_scc0 {lg}""")
        self.gemv16(4, F, 'v38', 144)
        if o['GUMIX']:
            self.pk_rnd(4, 'v12')
            self.pk_rnd(6, 'v13')
            for r in range(4):
                a(f"v_mov_b32 v{8+r}, v{4+r}")
            for r in range(4):
                a(f"v_permlane32_swap_b32 v{4+r}, v{8+r}")
            for r in range(4):
                a(f"v_max_f32 v{4+r}, 0, v{4+r}")
            a("""v_pk_mul_f32 v[4:5], v[4:5], v[8:9]
                 v_pk_mul_f32 v[6:7], v[6:7], v[10:11]
                 v_cvt_pk_bf16_f32 v8, v4, v5
                 v_cvt_pk_bf16_f32 v9, v6, v7
                 s_mov_b32 exec_lo, 0x000f000f
                 s_mov_b32 exec_hi, 0
                 ds_write_b64 v46, v[8:9]
                 s_mov_b64 exec, -1""")
            a.label(lg)
            a("""s_waitcnt lgkmcnt(0)
                 s_barrier
                 ds_read_b128 v[16:19], v39
                 s_waitcnt lgkmcnt(0)""")
        else:
            a("""v_cvt_pk_bf16_f32 v8, v4, v5
                 v_cvt_pk_bf16_f32 v9, v6, v7
                 s_mov_b32 exec_lo, 0x000f000f
                 s_mov_b32 exec_hi, 0x000f000f
                 ds_write_b64 v46, v[8:9]
                 s_mov_b64 exec, -1""")
            a.label(lg)
            a("""s_waitcnt lgkmcnt(0)
                 s_barrier
                 ds_read_b128 v[4:7], v39
                 ds_read_b128 v[8:11], v39 offset:384
                 s_waitcnt lgkmcnt(0)""")
            for k in range(4):
                self.unpack(f'v{20+2*k}', f'v{21+2*k}', f'v{4+k}')
            for k in range(4):
                self.unpack(f'v{144+2*k}', f'v{145+2*k}', f'v{8+k}')
            for k in range(8):
                a(f"v_max_f32 v{20+k}, 0, v{20+k}")
            for k in range(4):
                a(f"v_pk_mul_f32 v[{20+2*k}:{21+2*k}], v[{20+2*k}:{21+2*k}], v[{144+2*k}:{145+2*k}]")
            for k in range(4):
                a(f"v_cvt_pk_bf16_f32 v{16+k}, v{20+2*k}, v{21+2*k}")
        D = [4, 8, 12, 20]
        for t in range(4):
            a(f"v_mfma_f32_16x16x32_bf16 v[{D[t]}:{D[t]+3}], v[{128+4*t}:{131+4*t}], v[16:19], 0")
        self.select_tiles(D)
        self.steal(4, 48)
        self.gstore(4, 'v47', 's63')
        self.stamp(8)
        self.stamps_out(16)
        a("s_endpgm")

        a.label("L_ROLE_GA")
        S = 131072
        self.srd(48, sC, 4096)
        self.dma_off_p128('v32', 6144, 'v1', 'v2')
        a(f"""s_lshl_b32 s59, {sWAVE}, 6
              s_mul_i32 s59, s59, 6144
              s_lshl_b32 s61, {sG}, 7
              s_add_u32 s59, s59, s61
              s_add_u32 s59, s59, 2048
              s_lshl_b32 s61, {sWAVE}, 13
              s_add_u32 s61, s61, {GATE}
              s_mov_b32 m0, s61
              s_barrier""")
        lc = self.lab('gc')
        a(f"""s_cmp_lt_u32 {sWAVE}, 4
              s_cbranch_scc0 {lc}
              s_lshl_b32 s61, {sWAVE}, 10
              v_lshlrev_b32 v1, 3, v0
              buffer_load_dwordx2 v[24:25], v1, {R2}, s61 offen
              buffer_load_dwordx2 v[26:27], v1, {R2}, s61 offen offset:512""")
        a.label(lc)
        self.dma_loop('v32', R1, 's59', 8 * 6144, 8, nt=o['MNT'])
        lc2 = self.lab('gc2')
        a(f"""s_cmp_lt_u32 {sWAVE}, 4
              s_cbranch_scc0 {lc2}
              s_waitcnt vmcnt(8)""")
        self.perm_pos_bytes('v5', 'v0', 'v6')
        a(f"""s_mul_i32 s61, {sWAVE}, 1056
              s_add_u32 s61, s61, {S}
              v_add_u32 v5, s61, v5""")
        for hf in range(2):
            self.unpack('v8', 'v9', f'v{24+2*hf}')
            self.unpack('v10', 'v11', f'v{25+2*hf}')
            self.silu4(8, 12)
            a(f"""v_cvt_pk_bf16_f32 v8, v8, v9
                  v_cvt_pk_bf16_f32 v9, v10, v11
                  ds_write_b64 v5, v[8:9] offset:{512*hf}""")
        a.label(lc2)
        a(f"s_lshl_b32 s61, {sWAVE}, 5")
        self.tr_addr_p128('v33', 's61', GATE, 'v1', 'v2')
        self.act_addr('v35', S, 1056, 'v1')
        a(f"""v_lshrrev_b32 v1, 5, v0
              v_lshlrev_b32 v36, 10, v1
              v_bfe_u32 v1, v0, 2, 1
              v_lshl_add_u32 v36, v1, 7, v36
              v_and_b32 v1, 3, v0
              v_lshl_add_u32 v36, v1, 5, v36
              v_bfe_u32 v1, v0, 4, 1
              v_lshl_add_u32 v36, v1, 4, v36
              s_lshl_b32 s59, {sG}, 13
              s_lshl_b32 s61, {sWAVE}, 11
              s_add_u32 s59, s59, s61
              s_add_u32 s59, s59, {WS_ML}""")
        self.sel_consts()
        self.tagbytes(28)
        a("""s_waitcnt vmcnt(0) lgkmcnt(0)
             s_barrier""")
        le = self.lab('ge')
        a(f"""s_cmp_lt_u32 {sWAVE}, 4
              s_cbranch_scc0 {le}""")
        for s in range(16):
            for h in range(2):
                q = F + 4 * s + 2 * h
                a(f"ds_read_b64_tr_b16 v[{q}:{q+1}], v33 offset:{4096*s+2048*h}")
            if s in (6, 13):
                a("s_waitcnt lgkmcnt(0)")
        a("s_waitcnt lgkmcnt(0)")
        self.gemv16(4, F, 'v35', 144)
        a("""s_mov_b32 exec_lo, 0x00f000f0
             s_mov_b32 exec_hi, 0x00f000f0""")
        for r in range(4):
            a(f"v_mov_b32 v{4+r}, 0")
        a("""s_mov_b32 exec_lo, 0x00ff00ff
             s_mov_b32 exec_hi, 0x00ff00ff""")
        self.steal(4, 28)
        self.gstore(4, 'v36', 's59')
        a("s_mov_b64 exec, -1")
        a.label(le)
        self.stamp(5)
        self.stamps_out(16)
        a("s_endpgm")

    def ent_w(self):
        a = self.a
        o = self.o
        a.label("L_ENT_W")
        self.role = 'W'
        a(f"s_sub_u32 s56, {sJ}, 8")
        if o.get('ISWZ'):
            a(f"s_xor_b32 s56, s56, {o['ISWZ']}")
        self.dma_off_p128('v32', 8192, 'v1', 'v2')
        a(f"""s_lshl_b32 s59, {sWAVE}, 19
              s_lshl_b32 s61, {sG}, 10
              s_add_u32 s59, s59, s61
              s_lshl_b32 s61, s56, 7
              s_add_u32 s59, s59, s61
              s_lshl_b32 s61, {sWAVE}, 13
              s_mov_b32 m0, s61""")
        self.kwait(ws=False)
        self.srd(44, sWQ, 512 * 8192)
        if o['WWAIT'] == 1:
            a("s_waitcnt lgkmcnt(0)")
        if o['WWAIT'] == 2:
            lw = self.lab('ww')
            a(f"""s_cmp_eq_u32 s56, 3
                  s_cbranch_scc1 {lw}
                  s_waitcnt lgkmcnt(0)""")
            a.label(lw)
        if o['WSLEEP']:
            a(f"s_sleep {o['WSLEEP']}")
        self.stamp(15)
        self.only_exit('W', pre=True)
        self.dma_loop('v32', R1, 's59', 8 * 8192, 8, win=o['WWIN'], nt=o['WNT'])
        a("s_branch L_ROLE_W")

    def role_w(self):
        a = self.a
        o = self.o
        WQ, WO, H, O = 0, 65536, 131072, 135296
        F = 64
        a.label("L_ROLE_W")
        self.role = 'W'
        self.srd(40, sWS, WS_SIZE)
        self.only_exit('W')
        self.w_setup1(H, O, WQ, WO)
        if o['IOX']:
            a(f"s_xor_b32 s56, s56, {o['IOX']}")
        self.srd(52, sX, 4096)
        a(f"""v_bfe_u32 v1, v0, 1, 2
              v_lshlrev_b32 v1, 10, v1
              v_and_b32 v2, 1, v0
              v_lshl_add_u32 v1, v2, 3, v1
              v_lshrrev_b32 v2, 4, v0
              v_lshl_add_u32 v1, v2, 1, v1
              s_lshl_b32 s61, s56, 7
              s_lshl_b32 s62, {sWAVE}, 4
              s_add_u32 s61, s61, s62
              buffer_load_ushort v60, v1, {R3}, s61 offen""")
        self.srd(44, sWO, 4096 * 1024)
        self.dma_off_p128('v32', 1024, 'v1', 'v2')
        a(f"""s_lshl_b32 s59, {sG}, 9
              s_lshl_b32 s61, {sWAVE}, 6
              s_add_u32 s59, s59, s61
              s_lshl_b32 s59, s59, 10
              s_lshl_b32 s61, s56, 7
              s_add_u32 s59, s59, s61
              s_lshl_b32 s67, {sWAVE}, 13
              s_add_u32 s67, s67, {WO}""")
        if o['WO1']:
            a("s_mov_b32 m0, s67")
            self.dma_loop('v32', R1, 's59', 8 * 1024, o['WO1'])
            a(f"s_add_u32 s67, s67, {1024 * o['WO1']}")
        a("s_mov_b32 s89, 8")
        if o['WO3']:
            l3 = self.lab('wo3')
            a(f"""s_cmp_eq_u32 s56, 3
                  s_cbranch_scc0 {l3}
                  s_mov_b32 m0, s67""")
            self.dma_loop('v32', R1, 's59', 8 * 1024, o['WO3'], nt=o['WNT'])
            a(f"""s_add_u32 s67, s67, {1024 * o['WO3']}
                  s_mov_b32 s89, {8 - o['WO3']}""")
            a.label(l3)
        self.tag_ready()
        self.x_publish(False)
        self.stamp(1)
        lw1 = self.lab('w1')

        def first():
            self.stamp(2)
            self.x_load()
            a("s_barrier")
            a(f"""s_cmp_lt_u32 {sWAVE}, 4
                  s_cbranch_scc0 {lw1}""")
            for s in range(16):
                for h in range(2):
                    q = F + 4 * s + 2 * h
                    a(f"ds_read_b64_tr_b16 v[{q}:{q+1}], v36 offset:{4096*s+2048*h}")
                if s in (6, 10):
                    a("s_waitcnt lgkmcnt(6)")
            a.label(lw1)
        if o['PIPE_A2']:
            okA = self.lab('a2first')
            a(self.gload(4, 'v33', 's58'))
            a("s_waitcnt vmcnt(0)")
            first()
            self.check_tags(['v6'], okA)
            NS = o['PIPE_A2']

            def takeA(k):
                a(f"""v_mov_b32 v4, v{192+4*k}
                      v_mov_b32 v5, v{193+4*k}""")
            self.poll_pipe('A2', NS, lambda k: [self.gload(192 + 4 * k, 'v33', 's58')],
                           lambda k, ok: self.check_tags([f'v{194+4*k}'], ok), takeA, o['SLP_A2'])
            a.label(okA)
        else:
            self.poll('A2', [self.gload(4, 'v33', 's58')],
                      lambda ok: self.check_tags(['v6'], ok), first_extra=first)
        a("""ds_write_b64 v34, v[4:5]
             s_waitcnt lgkmcnt(0)
             s_barrier""")
        self.stamp(3)
        lq = self.lab('wqskip')
        a(f"""s_mov_b32 m0, s67
              s_cmp_lt_u32 {sWAVE}, 4
              s_cbranch_scc0 {lq}""")
        self.gemv16(4, F, 'v38', 128)
        a(f"""v_cvt_pk_bf16_f32 v8, v4, v5
              v_cvt_pk_bf16_f32 v9, v6, v7
              v_mov_b32 v10, {sTAG}
              v_mov_b32 v11, 0
              s_mov_b32 exec_lo, 0x000f000f
              s_mov_b32 exec_hi, 0x000f000f""")
        self.st_local(8, 'v40', 's57')
        a("s_mov_b64 exec, -1")
        a.label(lq)
        a("s_barrier")
        if o['XFLAG']:
            a("s_waitcnt vmcnt(1)")
            self.x_flag()
        self.stamp(4)
        lq3 = self.lab('wq3')
        a(f"""s_cmp_lt_u32 {sWAVE}, 4
              s_cbranch_scc0 {lq3}
              s_mov_b32 exec_lo, 0x000f000f
              s_mov_b32 exec_hi, 0x000f000f""")
        self.st_global(8, 'v40', 's57', flag=True)
        a("s_mov_b64 exec, -1")
        a.label(lq3)
        if o['WO3']:
            self.dma_loop('v32', R1, 's59', 8 * 1024, 's89', nt=o['WNT'])
        elif o['WO1'] < 8:
            self.dma_loop('v32', R1, 's59', 8 * 1024, 8 - o['WO1'])
        a(f"""s_lshl_b32 s58, {sG}, 13
              s_add_u32 s58, s58, {WS_C}
              v_lshrrev_b32 v1, 5, v0
              v_lshlrev_b32 v41, {11 if o['WOSPLIT'] else 10}, v1
              v_and_b32 v1, 3, v0
              v_lshl_add_u32 v41, v1, 5, v41
              v_bfe_u32 v1, v0, 4, 1
              v_lshl_add_u32 v41, v1, 4, v41
              s_lshl_b32 s57, s56, {14 if o['WOSPLIT'] else 13}
              s_and_b32 s61, {sWAVE}, 3
              s_lshl_b32 s61, s61, {12 if o['WOSPLIT'] else 11}
              s_add_u32 s57, s57, s61
              s_lshr_b32 s61, {sWAVE}, 2
              s_lshl_b32 s61, s61, 10
              s_add_u32 s57, s57, s61
              s_lshl_b32 s61, {sG}, 7
              s_add_u32 s57, s57, s61
              s_add_u32 s57, s57, {WS_C2B if o['WOSPLIT'] else WS_C2}
              v_lshlrev_b32 v42, 4, v0
              s_lshl_b32 s62, s56, 3
              s_add_u32 s62, s62, {sWAVE}
              s_lshl_b32 s63, s62, 10
              s_add_u32 s63, s63, {WS_ML}
              s_lshl_b32 s62, s62, {11 if o['WOSPLIT'] else 10}
              s_add_u32 s62, s62, {WS_C2B if o['WOSPLIT'] else WS_C2}
              ; D publish: ((g*4 + b)*2 + u)*2048 + Q*16, Q = 16i + 2w + q
              v_bfe_u32 v1, v0, 1, 2
              v_lshlrev_b32 v43, 12, v1
              v_and_b32 v1, 1, v0
              v_lshl_add_u32 v43, v1, 4, v43
              s_lshl_b32 s66, {sG}, 14
              s_lshl_b32 s61, s56, 8
              s_add_u32 s66, s66, s61
              s_lshl_b32 s61, {sWAVE}, 5
              s_add_u32 s66, s66, s61
              s_add_u32 s66, s66, {WS_D}
              v_bfe_u32 v1, v0, 1, 2
              v_lshlrev_b32 v61, 10, v1
              v_and_b32 v2, 1, v0
              v_lshl_add_u32 v61, v2, 3, v61
              v_lshrrev_b32 v2, 4, v0
              v_lshl_add_u32 v61, v2, 1, v61
              s_lshl_b32 s68, s56, 7
              s_lshl_b32 s61, {sG}, 4
              s_add_u32 s68, s68, s61
              s_lshl_b32 s69, s56, 3
              s_add_u32 s69, s69, {sG}
              s_mul_i32 s69, s69, {56*128}
              s_add_u32 s69, s69, {WS_E}""")
        if o['TOUCH']:
            a(self.gload(4, 'v42', 's62'))
            a(self.gload(8, 'v42', 's63'))
            lt1 = self.lab('wt1')
            a(f"""s_cmp_eq_u32 {sWAVE}, {sG}
                  s_cbranch_scc0 {lt1}
                  s_add_u32 s61, s69, 4096""")
            for m in range(0 if o.get('NOETOUCH') else 7):
                a(self.gload(64 + 4 * m, 'v42', 's69' if m < 4 else 's61', 1024 * (m & 3)))
            a.label(lt1)
        self.srd(48, sOUT, 4096)
        self.sel_consts()
        self.tagbytes(48)
        a("v_lshlrev_b32 v60, 16, v60")
        lw2 = self.lab('w2')

        def first2():
            self.stamp(5)
            a("s_barrier")
            if o['WOSPLIT']:
                for s in range(8):
                    for h in range(2):
                        q = F + 4 * s + 2 * h
                        a(f"ds_read_b64_tr_b16 v[{q}:{q+1}], v37 offset:{4096*s+2048*h}")
                    if s == 6:
                        a("s_waitcnt lgkmcnt(6)")
                return
            a(f"""s_cmp_lt_u32 {sWAVE}, 4
                  s_cbranch_scc0 {lw2}""")
            for s in range(16):
                for h in range(2):
                    q = F + 4 * s + 2 * h
                    a(f"ds_read_b64_tr_b16 v[{q}:{q+1}], v37 offset:{4096*s+2048*h}")
                if s in (6, 10):
                    a("s_waitcnt lgkmcnt(6)")
            a.label(lw2)
        if o['WOSPLIT']:
            a(f"""s_lshr_b32 s61, {sWAVE}, 2
                  s_lshl_b32 s39, s61, 15
                  v_add_u32 v37, s39, v37
                  s_lshl_b32 s39, s61, 9
                  v_add_u32 v39, s39, v39""")
        self.poll('C', [self.gload(4, 'v33', 's58')], lambda ok: self.check_tags(['v6'], ok), first_extra=first2, local=['s58'])
        a("""ds_write_b64 v35, v[4:5]
             s_waitcnt lgkmcnt(0)
             s_barrier""")
        self.stamp(6)
        lo = self.lab('wo')
        if o['WOSPLIT']:
            for s_ in range(8):
                a(f"ds_read_b128 v[{128+4*s_}:{131+4*s_}], v39 offset:{64*s_}")
            for s_ in range(8):
                a(f"s_waitcnt lgkmcnt({7-s_})")
                c = "0" if s_ == 0 else "v[4:7]"
                a(f"v_mfma_f32_16x16x32_bf16 v[4:7], v[{F+4*s_}:{F+4*s_+3}], v[{128+4*s_}:{131+4*s_}], {c}")
        else:
            a(f"""s_cmp_lt_u32 {sWAVE}, 4
                  s_cbranch_scc0 {lo}""")
            self.gemv16(4, F, 'v39', 128)
        self.steal(4, 48)
        a("""s_mov_b32 exec_lo, 0x000f000f
             s_mov_b32 exec_hi, 0x000f000f""")
        self.gstore(4, 'v41', 's57')
        a("s_mov_b64 exec, -1")
        a.label(lo)
        self.stamp(7)

        def stolen_check(q):
            def chk(ok):
                self.stolen_tag(q, 'v12', 'v13')
                self.check_tags(['v12'], ok)
            return chk
        self.poll('ML', [self.gload(4, 'v42', 's63')] + ([self.gload(28, 'v42', 's62')] if o['MLTOUCH'] else []), stolen_check(4))
        if o['C2EARLY']:
            a(self.gload(24, 'v42', 's62'))
            if o['WOSPLIT']:
                a(self.gload(28, 'v42', 's62', 1024))
        for r in range(4):
            a(f"v_and_b32 v{4+r}, 0xffffff00, v{4+r}")
        for r in range(4):
            a(f"v_add_f32_dpp v{4+r}, v{4+r}, v{4+r} row_ror:8 row_mask:0xf bank_mask:0xf")
        self.pk_rnd(4, 'v12')
        self.pk_rnd(6, 'v13')
        a("""s_mov_b32 exec_lo, 0
             s_mov_b32 exec_hi, 0x0000ffff""")
        for r in range(4):
            a(f"v_add_f32 v{4+r}, 1.0, v{4+r}")
        self.pk_rnd(4, 'v12')
        self.pk_rnd(6, 'v13')
        a("s_mov_b64 exec, -1")
        a("""v_cvt_pk_bf16_f32 v8, v4, v5
             v_cvt_pk_bf16_f32 v9, v6, v7
             v_mov_b32 v16, 0
             v_mov_b32 v17, 0
             v_mov_b32 v18, 0
             v_mov_b32 v19, 0
             v_mov_b32 v10, v8
             v_mov_b32 v11, v9
             v_mov_b32 v14, v8
             v_mov_b32 v15, v9
             v_permlane32_swap_b32 v10, v16
             v_permlane32_swap_b32 v11, v17
             v_permlane16_swap_b32 v14, v18
             v_permlane16_swap_b32 v15, v19""")
        a(f"""v_mov_b32 v58, v16
              v_mov_b32 v20, v17
              v_mov_b32 v21, v18
              v_mov_b32 v22, v19
              v_mov_b32 v23, {sTAG}
              s_mov_b64 exec, 0xff""")
        self.st_local(20, 'v43', 's66', 2048)
        self.st_global(20, 'v43', 's66', 2048, flag=True)
        a("s_mov_b64 exec, -1")
        a("""v_permlane16_swap_b32 v4, v5
             v_permlane16_swap_b32 v6, v7
             v_permlane32_swap_b32 v4, v6
             v_permlane32_swap_b32 v5, v7
             v_mov_b32 v56, v4
             v_mov_b32 v57, v7""")
        self.stamp(8)
        okc = self.lab('c2first')
        lc2 = self.lab('c2got')
        nst = 2 if (o['LOCAL'] and not o.get('NOGLOBAL') and not o['XFLAG']) else 1
        if o['WOSPLIT']:
            def chk2(q0, q1):
                def chk(ok):
                    self.stolen_tag(q0, 'v12', 'v13')
                    self.stolen_tag(q1, 'v14', 'v13')
                    self.check_tags(['v12', 'v14'], ok)
                return chk
            if o['C2EARLY']:
                a(f"s_waitcnt vmcnt({nst})")
                chk2(24, 28)(okc)
            self.poll('C2', [self.gload(4, 'v42', 's62'), self.gload(8, 'v42', 's62', 1024)], chk2(4, 8))
            a(f"s_branch {lc2}")
            a.label(okc)
            for r in range(8):
                a(f"v_mov_b32 v{4+r}, v{24+r}")
            a.label(lc2)
            for r in range(8):
                a(f"v_and_b32 v{4+r}, 0xffffff00, v{4+r}")
            a("""v_pk_add_f32 v[4:5], v[4:5], v[8:9]
                 v_pk_add_f32 v[6:7], v[6:7], v[10:11]""")
        else:
            if o['C2EARLY']:
                a(f"s_waitcnt vmcnt({nst})")
                self.stolen_tag(24, 'v12', 'v13')
                self.check_tags(['v12'], okc)
            self.poll('C2', [self.gload(4, 'v42', 's62')], stolen_check(4))
            a(f"s_branch {lc2}")
            a.label(okc)
            for r in range(4):
                a(f"v_mov_b32 v{4+r}, v{24+r}")
            a.label(lc2)
            for r in range(4):
                a(f"v_and_b32 v{4+r}, 0xffffff00, v{4+r}")
        self.stamp(9)
        self.red_rows(4)
        if o['FASTX']:
            a("v_fma_f32 v4, v56, v4, v60")
        else:
            self.rnd('v4', 'v4')
            a("v_mul_f32 v4, v56, v4")
            self.rnd('v4', 'v4')
            a("v_add_f32 v4, v60, v4")
        self.rnd('v59', 'v4')
        a(f"""v_mov_b32 v10, v58
              v_mov_b32 v11, {sTAG}""")
        self.rows_to_quad('v8', 'v9', 'v59', 'v12')
        a("s_mov_b64 exec, 0xff")
        self.st_local(8, 'v43', 's66')
        self.stamp(10)
        a("s_barrier")
        self.st_global(8, 'v43', 's66', flag=True)
        a("s_mov_b64 exec, -1")
        end = self.lab('wend')
        a(f"""s_cmp_eq_u32 {sWAVE}, {sG}
              s_cbranch_scc0 {end}
              s_add_u32 s61, s69, 4096""")
        if o.get('ESLEEP'):
            a(f"s_sleep {o['ESLEEP']}")
        loads = []
        for m in range(7):
            if m < 4:
                loads.append(self.gload(64 + 4 * m, 'v42', 's69', 1024 * m))
            else:
                loads.append(self.gload(64 + 4 * m, 'v42', 's61', 1024 * (m - 4)))

        def echk(ok):
            for m in range(7):
                self.stolen_tag(64 + 4 * m, f'v{12+m}', 'v20')
            self.check_tags([f'v{12+m}' for m in range(7)], ok)
        if o['PIPE_E']:
            def loadE(k):
                b = 64 + 28 * k
                return [self.gload(b + 4 * m, 'v42', 's69' if m < 4 else 's61', 1024 * (m & 3)) for m in range(7)]

            def chkE(k, ok):
                b = 64 + 28 * k
                for m in range(7):
                    self.stolen_tag(b + 4 * m, f'v{12+m}', 'v20')
                self.check_tags([f'v{12+m}' for m in range(7)], ok)

            def takeE(k):
                for r in range(28):
                    a(f"v_and_b32 v{160+r}, 0xffffff00, v{64+28*k+r}")
            self.poll_pipe('E', o['PIPE_E'], loadE, chkE, takeE, o['SLP_E'])
            EB = 160
        else:
            self.poll('E', loads, echk)
            EB = 64
            for m in range(7):
                for r in range(4):
                    a(f"v_and_b32 v{64+4*m+r}, 0xffffff00, v{64+4*m+r}")
        self.stamp(11)
        def pk(d, s_):
            a(f"v_pk_add_f32 v[{d}:{d+1}], v[{d}:{d+1}], v[{s_}:{s_+1}]")
        for d, s_ in ((0, 4), (8, 12), (16, 20), (0, 8), (16, 24), (0, 16)):
            pk(EB + d, EB + s_)
            pk(EB + d + 2, EB + s_ + 2)
        self.red_rows(EB)
        e = f"v{EB}"
        if o['FASTX']:
            a(f"v_fma_f32 {e}, v57, {e}, v59")
        else:
            self.rnd(e, e)
            a(f"v_mul_f32 {e}, v57, {e}")
            self.rnd(e, e)
            a(f"v_add_f32 {e}, v59, {e}")
        a(f"""v_cvt_pk_bf16_f32 {e}, {e}, {e}
              s_mov_b32 exec_lo, 0x00ff00ff
              s_mov_b32 exec_hi, 0x00ff00ff
              buffer_store_short {e}, v61, {R2}, s68 offen{' sc0 sc1' if o.get('OUTSC') else ''}
              s_mov_b64 exec, -1""")
        noep = self.lab('noep')
        a(f"""s_cmp_eq_u32 s2, 64
              s_cbranch_scc0 {noep}
              v_mov_b32 v1, 0
              v_mov_b32 v2, {sTAG}
              s_mov_b64 exec, 1
              buffer_store_dword v2, v1, {WSR}, 0 offen offset:{WS_EPOCH}
              s_mov_b64 exec, -1""")
        a.label(noep)
        self.stamp(12)
        a.label(end)
        self.stamps_out(16)
        a("s_endpgm")

    def w_setup1(self, H, O, WQ, WO):
        a = self.a
        a(f"""s_lshl_b32 s61, {sWAVE}, 6
              v_add_u32 v1, s61, v0
              v_lshlrev_b32 v33, 4, v1
              v_lshrrev_b32 v2, 3, v1
              v_lshlrev_b32 v2, 1, v2
              v_and_b32 v3, 1, v1
              v_add_u32 v2, v2, v3""")
        self.perm_pos_bytes('v34', 'v2', 'v3')
        a(f"""v_bfe_u32 v3, v1, 1, 2
              v_mul_u32_u24 v3, 1056, v3
              v_add_u32 v34, v34, v3
              v_add_u32 v34, {H}, v34""")
        a(f"""v_bfe_u32 v2, v1, 4, 2
              v_lshlrev_b32 v2, 5, v2
              v_bfe_u32 v3, v1, 6, 1
              v_lshl_add_u32 v2, v3, 4, v2
              v_and_b32 v3, 15, v1
              v_add_u32 v2, v2, v3""")
        self.perm_pos_bytes('v35', 'v2', 'v3')
        a(f"""v_lshrrev_b32 v3, 7, v1
              v_mul_u32_u24 v3, 1056, v3
              v_add_u32 v35, v35, v3
              v_add_u32 v35, {O}, v35""")
        a(f"""s_and_b32 s61, {sWAVE}, 3
              s_lshl_b32 s61, s61, 5""")
        self.tr_addr_p128('v36', 's61', WQ, 'v1', 'v2')
        a(f"v_add_u32 v37, {WO-WQ}, v36")
        self.act_addr('v38', H, 1056, 'v1')
        a(f"v_add_u32 v39, {O-H}, v38")
        a(f"""v_and_b32 v1, 3, v0
              v_lshlrev_b32 v40, 6, v1
              v_lshrrev_b32 v1, 4, v0
              v_lshl_add_u32 v40, v1, 4, v40
              s_lshl_b32 s57, {sG}, 3
              s_add_u32 s57, s57, s56
              s_lshl_b32 s57, s57, 2
              s_add_u32 s57, s57, {sWAVE}
              s_lshl_b32 s57, s57, 8
              s_add_u32 s57, s57, {WS_B}
              s_mov_b32 s58, {WS_A2}""")

    def build(self):
        self.prologue()
        self.role_m()
        self.role_w()
        self.role_k()
        self.role_v()
        self.a.label("L_END")
        self.a("s_endpgm")
        body = self.a.finalize()
        vg = 256 if self.o['PROF'] else 216
        hdr = HEADER.format(lds=LDS_BYTES)
        return hdr + f""".amdgcn_target "amdgcn-amd-amdhsa--gfx950"
.text
.globl {NAME}
.p2align 8
.type {NAME},@function
{NAME}:
{body}.section .rodata,"a"
.p2align 6
.amdhsa_kernel {NAME}
  .amdhsa_next_free_vgpr {vg}
  .amdhsa_next_free_sgpr 102
  .amdhsa_accum_offset {vg}
  .amdhsa_group_segment_fixed_size 0
  .amdhsa_kernarg_size 112
  .amdhsa_user_sgpr_count 2
  .amdhsa_user_sgpr_kernarg_segment_ptr 1
  .amdhsa_system_sgpr_workgroup_id_x 1
.end_amdhsa_kernel
"""


if __name__ == '__main__':
    opt = {}
    out = None
    for arg in sys.argv[1:]:
        if '=' in arg:
            k, v = arg.split('=', 1)
            opt[k] = int(v) if v.lstrip('-').isdigit() else v
        else:
            out = arg
    g = Gen6(opt)
    txt = g.build()
    if out:
        open(out, 'w').write(txt)
    else:
        sys.stdout.write(txt)
    sys.stderr.write(f"instructions: {g.a.count()}\n")
```

```python
import sys, os
sys.path.insert(0, os.path.dirname(os.path.abspath(__file__)))
import gen as G1
from gen import *
WS_X = 0x800
WS_C2B = 0x1C0000

OPT2 = dict(WWAIT=0, KWAIT=1, VWAIT=1, MTRIG=1, GTRIG=0, PF=1, KSLEEP=0, VSLEEP=0, WSLEEP=0, TOUCH=1, KWIN=4, VWIN=1, WWIN=0, BARDMA=1, VN1=3, WO1=0, MG1=0, IOX=4, WO3=2, VN1ODD=2, PIPE_A2=0, SLP_A2=4, PIPE_C2=0, SLP_C2=2, PIPE_E=3, SLP_E=1, MLTOUCH=0, C2EARLY=1, FASTV=1, FASTLN=1, MEARLY=1, MWIN=0, MSLEEP=0, XFLAG=1, GUMIX=1, HELPQ=0, DPPSEL=1, HELPV=0, KWIN0=0, VWIN2=0, FASTX=0, WOSPLIT=0, LIMIT=100000, GUNT=0, WNT=0, DNT=0, MNT=0, KNT=1, VNT=1)


class Gen6(Gen):
    def __init__(self, opt):
        o = dict(OPT2)
        o.update(opt)
        super().__init__(o)

    def kwait(self, ws=True):
        a = self.a
        a("s_waitcnt lgkmcnt(0)")
        if self.o['PROF']:
            a("s_mov_b32 s70, s96")
            for k in range(1, 16):
                a(f"s_mov_b32 s{70+k}, 0")
            a(f"""s_cmp_eq_u32 {sWAVE}, 0
                  s_cselect_b32 s99, 1, 0
                  s_cmp_eq_u32 {sWAVE}, 7
                  s_cselect_b32 s99, 1, s99""")
            if self.role == 'M':
                a(f"""s_cmp_eq_u32 {sWAVE}, 4
                      s_cselect_b32 s99, 1, s99""")
            if self.role == 'W':
                a(f"""s_cmp_eq_u32 {sWAVE}, {sG}
                      s_cselect_b32 s99, 1, s99""")
            self.stamp(14)
        a(f"s_load_dword {sE}, s[{sWS}:{sWS+1}], {WS_EPOCH}")
        if ws:
            self.srd(40, sWS, WS_SIZE)

    def code_prefetch(self):
        if not self.o['PF']:
            return
        a = self.a
        l = self.lab('pf')
        lp = self.lab('pc')
        a(f"""s_cmp_eq_u32 {sWAVE}, 7
              s_cbranch_scc0 {l}
              s_getpc_b64 s[86:87]""")
        a.label(lp)
        a(f"""s_lshl_b32 s88, {sJ}, 10
              s_sub_u32 s86, s86, {lp}-L_START
              s_subb_u32 s87, s87, 0
              v_lshl_add_u32 v204, v0, 4, s88
              v_min_u32 v204, (L_END-L_START-16)&0xfffffff0, v204
              v_mov_b32 v207, s87
              v_add_co_u32 v206, vcc, s86, v204
              v_addc_co_u32 v207, vcc, 0, v207, vcc
              global_load_dwordx4 v[200:203], v[206:207], off""")
        a.label(l)

    def st_local(self, q, voff, soff, imm=0):
        i = f" offset:{imm}" if imm else ""
        if self.o['LOCAL']:
            self.a(f"""s_or_b32 s39, {soff}, {WS_LOC}
                       buffer_store_dwordx4 v[{q}:{q+3}], {voff}, {WSR}, s39 offen{i}""")
        else:
            self.a(f"buffer_store_dwordx4 v[{q}:{q+3}], {voff}, {WSR}, {soff} offen{i} {self.o['ST']}")

    def st_global(self, q, voff, soff, imm=0, flag=False):
        i = f" offset:{imm}" if imm else ""
        if self.o['LOCAL'] and not self.o.get('NOGLOBAL'):
            l = None
            if flag and self.o['XFLAG']:
                l = self.lab('sg')
                self.a(f"""s_cmp_eq_u32 s90, 1
                           s_cbranch_scc1 {l}""")
            self.a(f"buffer_store_dwordx4 v[{q}:{q+3}], {voff}, {WSR}, {soff} offen{i} {self.o['ST']}")
            if l:
                self.a.label(l)

    def x_publish(self, build_ws):
        if not (self.o['XFLAG'] and self.o['LOCAL']):
            return
        a = self.a
        l = self.lab('xp')
        a(f"""s_cmp_eq_u32 {sWAVE}, 0
              s_cbranch_scc0 {l}""")
        if build_ws:
            self.srd(40, sWS, WS_SIZE)
        a(f"""s_getreg_b32 s39, hwreg(HW_REG_XCC_ID, 0, 4)
              s_add_u32 s39, s39, {sE}
              s_add_u32 s39, s39, {TAGC}
              v_mov_b32 v209, s39
              s_lshl_b32 s39, {sG}, 5
              s_add_u32 s39, s39, {sJ}
              s_lshl_b32 s39, s39, 2
              v_mov_b32 v208, s39
              s_mov_b64 exec, 1
              buffer_store_dword v209, v208, {WSR}, 0 offen offset:{WS_X} {self.o['ST']}
              s_mov_b64 exec, -1""")
        a.label(l)

    def select_tiles(self, D):
        if not self.o['DPPSEL']:
            return Gen.select_tiles(self, D)
        for t in range(1, 4):
            for r in range(4):
                self.a(f"v_mov_b32_dpp v{D[0]+r}, v{D[t]+r} quad_perm:[0,1,2,3] row_mask:0xf bank_mask:{1 << t:#x}")

    def x_load(self):
        if not (self.o['XFLAG'] and self.o['LOCAL']):
            return
        self.a(f"""v_and_b32 v211, 31, v0
                   v_lshlrev_b32 v211, 2, v211
                   s_lshl_b32 s90, {sG}, 7
                   buffer_load_dword v210, v211, {WSR}, s90 offen offset:{WS_X} sc1""")

    def x_flag(self):
        if not (self.o['XFLAG'] and self.o['LOCAL']):
            return
        self.a(f"""s_getreg_b32 s39, hwreg(HW_REG_XCC_ID, 0, 4)
                   s_add_u32 s39, s39, {sTAG}
                   v_cmp_ne_u32 vcc, s39, v210
                   s_cmp_eq_u64 vcc, 0
                   s_cselect_b32 s90, 1, 0""")

    def poll_pipe(self, name, nsets, load, check, take, sleep):
        a = self.a
        per = len(load(0))
        oks = [self.lab(name + f'ok{k}_') for k in range(nsets)]
        done = self.lab(name + 'done')
        lp = self.lab(name)
        for k in range(nsets - 1):
            for l in load(k):
                a(l)
            if sleep:
                a(f"s_sleep {sleep}")
        a(f"s_mov_b32 {sCNT}, {self.o['LIMIT'] // nsets}")
        a.label(lp)
        for k in range(nsets):
            kn = (k + nsets - 1) % nsets
            for l in load(kn):
                a(l)
            a(f"s_waitcnt vmcnt({per * (nsets - 1)})")
            check(k, oks[k])
            if sleep:
                a(f"s_sleep {sleep}")
        a(f"""s_sub_u32 {sCNT}, {sCNT}, 1
              s_cbranch_scc0 {lp}
              s_branch {oks[0]}""")
        for k in range(nsets - 1, -1, -1):
            a.label(oks[k])
            take(k)
            if k:
                a(f"s_branch {done}")
        a.label(done)

    def silu1(self, x, t):
        a = self.a
        e, r, q, u = [f"v{t+i}" for i in range(4)]
        a(f"""s_mov_b32 s94, 0xbfb8aa3b
              s_mov_b32 s95, 0xb2a57060
              v_mul_f32 {e}, 0xbfb8aa3b, {x}
              v_fma_f32 {r}, {x}, s94, -{e}
              v_fma_f32 {r}, {x}, s95, {r}
              v_exp_f32 {e}, {e}
              v_mul_f32 {r}, 0x3f317218, {r}
              v_add_f32 {r}, 1.0, {r}
              v_mul_f32 {e}, {e}, {r}
              v_add_f32 {e}, 1.0, {e}
              v_rcp_f32 {r}, {e}
              v_cmp_eq_f32 vcc, 0x7f800000, {e}
              v_mul_f32 {q}, {x}, {r}
              v_fma_f32 {u}, -{q}, {e}, {x}
              v_fma_f32 {u}, {u}, {r}, {q}
              v_cndmask_b32 {x}, {u}, {q}, vcc""")

    def wave_sum2(self, v, w, t, u):
        a = self.a
        for pat in ("quad_perm:[1,0,3,2]", "quad_perm:[2,3,0,1]", "row_half_mirror", "row_mirror"):
            a(f"v_add_f32_dpp {v}, {v}, {v} {pat} row_mask:0xf bank_mask:0xf")
            a(f"v_add_f32_dpp {w}, {w}, {w} {pat} row_mask:0xf bank_mask:0xf")
        a(f"""v_mov_b32 {t}, {v}
              v_mov_b32 {u}, {w}
              v_permlane16_swap_b32 {v}, {t}
              v_permlane16_swap_b32 {w}, {u}
              v_add_f32 {v}, {v}, {t}
              v_add_f32 {w}, {w}, {u}
              v_mov_b32 {t}, {v}
              v_mov_b32 {u}, {w}
              v_permlane32_swap_b32 {v}, {t}
              v_permlane32_swap_b32 {w}, {u}
              v_add_f32 {v}, {v}, {t}
              v_add_f32 {w}, {w}, {u}""")

    def ln_stats_pivot(self, x, M2, SD2, RC2, t):
        a = self.a
        t0, t1, t2, t3 = [f"v{t+i}" for i in range(4)]
        a(f"v_readfirstlane_b32 s39, v{x}")
        D = t + 4
        for k in range(8):
            a(f"v_subrev_f32 v{D+k}, s39, v{x+k}")
        a(f"""v_add_f32 {t0}, v{D}, v{D+1}
              v_mul_f32 {t1}, v{D}, v{D}
              v_add_f32 {t2}, v{D+2}, v{D+3}
              v_mul_f32 {t3}, v{D+1}, v{D+1}
              v_add_f32 {t0}, {t0}, {t2}
              v_fmac_f32 {t1}, v{D+2}, v{D+2}
              v_add_f32 {t2}, v{D+4}, v{D+5}
              v_fmac_f32 {t3}, v{D+3}, v{D+3}
              v_add_f32 {t0}, {t0}, {t2}
              v_fmac_f32 {t1}, v{D+4}, v{D+4}
              v_add_f32 {t2}, v{D+6}, v{D+7}
              v_fmac_f32 {t3}, v{D+5}, v{D+5}
              v_add_f32 {t0}, {t0}, {t2}
              v_fmac_f32 {t1}, v{D+6}, v{D+6}
              v_fmac_f32 {t3}, v{D+7}, v{D+7}
              v_add_f32 {t1}, {t1}, {t3}""")
        self.wave_sum2(t0, t1, t2, t3)
        a(f"""v_mul_f32 {t0}, 0x3b000000, {t0}
              v_mul_f32 {t1}, 0x3b000000, {t1}
              v_fma_f32 {t1}, -{t0}, {t0}, {t1}
              v_add_f32 {t0}, s39, {t0}
              v_max_f32 {t1}, 0, {t1}
              v_cvt_pk_bf16_f32 {t1}, {t0}, {t1}
              v_lshlrev_b32 v{M2}, 16, {t1}
              v_and_b32 {t1}, 0xffff0000, {t1}
              v_add_f32 {t1}, 0x3727c5ac, {t1}
              v_mov_b32 v{M2+1}, v{M2}""")
        self.rnd(t1, t1)
        a(f"v_sqrt_f32 {t1}, {t1}")
        self.rnd(f"v{SD2}", t1)
        a(f"""v_rcp_f32 v{RC2}, v{SD2}
              v_mov_b32 v{SD2+1}, v{SD2}
              v_mov_b32 v{RC2+1}, v{RC2}""")

    def ln2_fast(self, X):
        a = self.a
        t = 144
        t0, t1, t2, t3 = [f"v{t+i}" for i in range(4)]
        D = t + 4
        a(f"v_readfirstlane_b32 s39, v{X}")
        csrc = ['v6', 'v8', 'v14', 'v16']
        ssrc = ['v9', 'v10', 'v17', 'v18']
        C, S = 156, 164
        for p in range(4):
            self.unpack(f'v{C+2*p}', f'v{C+2*p+1}', csrc[p])
        for k in range(8):
            a(f"v_subrev_f32 v{D+k}, s39, v{X+k}")
        a(f"""v_add_f32 {t0}, v{D}, v{D+1}
              v_mul_f32 {t1}, v{D}, v{D}
              v_add_f32 {t2}, v{D+2}, v{D+3}
              v_mul_f32 {t3}, v{D+1}, v{D+1}
              v_add_f32 {t0}, {t0}, {t2}
              v_fmac_f32 {t1}, v{D+2}, v{D+2}
              v_add_f32 {t2}, v{D+4}, v{D+5}
              v_fmac_f32 {t3}, v{D+3}, v{D+3}
              v_add_f32 {t0}, {t0}, {t2}
              v_fmac_f32 {t1}, v{D+4}, v{D+4}
              v_add_f32 {t2}, v{D+6}, v{D+7}
              v_fmac_f32 {t3}, v{D+5}, v{D+5}
              v_add_f32 {t0}, {t0}, {t2}
              v_fmac_f32 {t1}, v{D+6}, v{D+6}
              v_fmac_f32 {t3}, v{D+7}, v{D+7}
              v_add_f32 {t1}, {t1}, {t3}""")
        fill = []
        for p in range(4):
            fill += [f"v_lshlrev_b32 v{S+2*p}, 16, {ssrc[p]}", f"v_and_b32 v{S+2*p+1}, 0xffff0000, {ssrc[p]}"]
        for pat in ("quad_perm:[1,0,3,2]", "quad_perm:[2,3,0,1]", "row_half_mirror", "row_mirror"):
            a(f"v_add_f32_dpp {t0}, {t0}, {t0} {pat} row_mask:0xf bank_mask:0xf")
            a(f"v_add_f32_dpp {t1}, {t1}, {t1} {pat} row_mask:0xf bank_mask:0xf")
            a(fill.pop(0))
        a(f"""v_mov_b32 {t2}, {t0}
              v_mov_b32 {t3}, {t1}""")
        a(fill.pop(0))
        a(f"""v_permlane16_swap_b32 {t0}, {t2}
              v_permlane16_swap_b32 {t1}, {t3}
              v_add_f32 {t0}, {t0}, {t2}
              v_add_f32 {t1}, {t1}, {t3}
              v_mov_b32 {t2}, {t0}
              v_mov_b32 {t3}, {t1}""")
        a(fill.pop(0))
        a(f"""v_permlane32_swap_b32 {t0}, {t2}
              v_permlane32_swap_b32 {t1}, {t3}
              v_add_f32 {t0}, {t0}, {t2}
              v_add_f32 {t1}, {t1}, {t3}""")
        while fill:
            a(fill.pop(0))
        a(f"""v_mul_f32 v52, 0x3b000000, {t0}
              v_mul_f32 {t1}, 0x3b000000, {t1}
              v_fma_f32 {t1}, -v52, v52, {t1}
              v_mov_b32 v53, v52
              v_max_f32 {t1}, 0, {t1}
              v_add_f32 {t1}, 0x3727c5ac, {t1}
              v_rsq_f32 v54, {t1}""")
        for p in range(4):
            d = D + 2 * p
            a(f"v_pk_add_f32 v[{d}:{d+1}], v[{d}:{d+1}], v[52:53] neg_lo:[0,1] neg_hi:[0,1]")
        a("v_mov_b32 v55, v54")
        for p in range(4):
            c = C + 2 * p
            a(f"v_pk_mul_f32 v[{c}:{c+1}], v[{c}:{c+1}], v[54:55]")
        for p in range(4):
            d, c, q = D + 2 * p, C + 2 * p, S + 2 * p
            a(f"v_pk_fma_f32 v[{d}:{d+1}], v[{d}:{d+1}], v[{c}:{c+1}], v[{q}:{q+1}]")
        for p in range(4):
            a(f"v_cvt_pk_bf16_f32 v{4+p}, v{D+2*p}, v{D+2*p+1}")

    def pk_rnd(self, p, t):
        self.a(f"""v_cvt_pk_bf16_f32 {t}, v{p}, v{p+1}
                   v_lshlrev_b32 v{p}, 16, {t}
                   v_and_b32 v{p+1}, 0xffff0000, {t}""")

    def prologue(self):
        a = self.a
        a.label("L_START")
        a(f"""s_cmp_ge_u32 s2, 256
              s_cbranch_scc1 L_END""")
        if self.o.get('RENUM'):
            a("""s_lshr_b32 s3, s2, 3
                 s_and_b32 s3, s3, 7
                 s_xor_b32 s2, s2, s3""")
        a(f"""              s_load_dwordx16 s[4:19], s[0:1], 0
              s_load_dwordx8 s[20:27], s[0:1], 64
              s_load_dwordx4 s[28:31], s[0:1], 96""")
        if self.o['PROF']:
            a("s_memrealtime s[96:97]")
        a(f"""v_lshrrev_b32 v1, 6, v0
              v_and_b32 v0, 63, v0
              s_and_b32 {sG}, s2, 7
              s_lshr_b32 {sJ}, s2, 3
              v_readfirstlane_b32 {sWAVE}, v1""")
        self.code_prefetch()
        a(f"""s_cmp_ge_u32 {sJ}, 24
              s_cbranch_scc1 L_ENT_V
              s_cmp_ge_u32 {sJ}, 16
              s_cbranch_scc1 L_ENT_K
              s_cmp_ge_u32 {sJ}, 8
              s_cbranch_scc1 L_ENT_W""")

    def ent_v(self):
        a = self.a
        o = self.o
        a.label("L_ENT_V")
        self.role = 'V'
        a(f"""s_sub_u32 s56, {sJ}, 24
              s_lshr_b32 s57, s56, 1
              s_and_b32 s58, s56, 1
              s_lshl_b32 s60, s57, 3
              s_add_u32 s60, s60, {sG}
              s_lshl_b32 s59, s60, 20
              s_add_u32 s59, s59, {3072*256}
              s_lshl_b32 s61, s58, 7
              s_add_u32 s59, s59, s61
              s_lshl_b32 s61, {sWAVE}, 15
              s_add_u32 s59, s59, s61
              s_lshl_b32 s62, {sWAVE}, 14
              s_mov_b32 m0, s62""")
        self.dma_off_p128('v32', 256, 'v1', 'v2')
        self.kwait(ws=False)
        if o['HELPQ']:
            lh = self.lab('hq')
            a(f"""s_cmp_eq_u32 {sWAVE}, {o['HELPQ'] - 1}
                  s_cbranch_scc0 {lh}""")
            self.srd(48, sWQ, 512 * 8192)
            a(f"""v_lshlrev_b32 v212, 13, v0
                  s_lshl_b32 s61, s56, 19
                  s_lshl_b32 s63, {sG}, 10
                  s_add_u32 s61, s61, s63
                  buffer_load_dword v213, v212, {R2}, s61 offen offset:384""")
            a.label(lh)
        self.srd(44, sV, 0x2000000)
        vlate = o['XFLAG'] and not o['VWAIT']
        if not vlate:
            if o['VWAIT'] or o['XFLAG']:
                a("s_waitcnt lgkmcnt(0)")
            self.x_publish(True)
        if o['VSLEEP']:
            a(f"s_sleep {o['VSLEEP']}")
        self.stamp(15)
        self.only_exit('V', pre=True)
        if vlate:
            a(f"""buffer_load_dwordx4 v32, {R1}, s59 offen {'nt ' if o['VNT'] else ''}lds
                  s_add_u32 s59, s59, 2048
                  s_add_u32 m0, m0, 1024
                  s_waitcnt lgkmcnt(0)""")
            self.x_publish(True)
            assert o['VN1'] >= 2 and o['VN1ODD'] >= 2 or o['VN1'] == o['VN1ODD']
            o = dict(o)
            o['VN1'] -= 1
            o['VN1ODD'] -= 1
            rest = 15
        else:
            rest = 16
        if o['VN1'] and o['VN1ODD'] != o['VN1']:
            a(f"""s_cmp_eq_u32 s58, 1
                  s_cselect_b32 s63, {o['VN1ODD']}, {o['VN1']}
                  s_sub_u32 s66, {rest}, s63""")
            self.dma_loop('v32', R1, 's59', 2048, 's63', win=o['VWIN'], nt=o['VNT'])
            self.dma_loop('v32', R1, 's59', 2048, 's66', win=o['VWIN2'], nt=o['VNT'])
        elif o['VN1']:
            self.dma_loop('v32', R1, 's59', 2048, o['VN1'], win=o['VWIN'], nt=o['VNT'])
            self.dma_loop('v32', R1, 's59', 2048, rest - o['VN1'], win=o['VWIN2'], nt=o['VNT'])
        else:
            self.dma_loop('v32', R1, 's59', 2048, rest, win=o['VWIN'], nt=o['VNT'])
        a("s_branch L_ROLE_V")

    def role_v(self):
        a = self.a
        o = self.o
        RED, ST = 131072, 139776
        F = 64
        a.label("L_ROLE_V")
        self.role = 'V'
        self.srd(40, sWS, WS_SIZE)
        self.only_exit('V')
        a(f"""v_bfe_u32 v1, v0, 2, 2
              v_lshlrev_b32 v33, 9, v1
              v_lshrrev_b32 v2, 4, v0
              v_lshl_add_u32 v33, v2, 6, v33
              v_and_b32 v3, 3, v0
              v_lshl_add_u32 v33, v3, 4, v33
              s_lshl_b32 s63, s60, 14
              s_add_u32 s63, s63, {WS_S}
              s_lshl_b32 s61, {sWAVE}, 11
              s_add_u32 s63, s63, s61""")
        a(f"""v_mul_u32_u24 v38, 272, v3
              v_lshl_add_u32 v38, v1, 6, v38
              v_lshl_add_u32 v38, v2, 4, v38
              s_mul_i32 s61, {sWAVE}, 1088
              s_add_u32 s61, s61, {RED}
              v_add_u32 v38, s61, v38""")
        a(f"""v_lshlrev_b32 v39, 6, v3
              v_add_u32 v40, {ST}, v39
              s_lshl_b32 s61, {sWAVE}, 3
              v_add_u32 v39, s61, v40
              v_lshl_add_u32 v40, v1, 3, v40
              v_and_b32 v2, 1, v2
              v_lshl_add_u32 v40, v2, 5, v40""")
        for t in range(4):
            self.tr_addr_p128(f'v{34+t}', 32 * t, 's62', 'v1', 'v2')
        a(f"""v_lshrrev_b32 v1, 4, v0
              v_mul_u32_u24 v1, 272, v1
              v_and_b32 v2, 15, v0
              v_lshl_add_u32 v1, v2, 4, v1
              v_add_u32 v41, {RED}, v1
              v_lshrrev_b32 v1, 4, v0
              v_lshlrev_b32 v1, 6, v1
              v_add_u32 v43, {ST}, v1
              v_lshlrev_b32 v42, 4, v0
              s_lshl_b32 s66, {sG}, 2
              s_add_u32 s66, s66, s57
              s_lshl_b32 s66, s66, 1
              s_add_u32 s66, s66, s58
              s_lshl_b32 s66, s66, 10
              s_add_u32 s66, s66, {WS_C}""")
        self.tag_ready()
        self.x_load()
        self.stamp(1)

        def first():
            self.stamp(2)
            self.x_flag()
            for s in range(4):
                for t in range(4):
                    for h in range(2):
                        q = F + 16 * s + 4 * t + 2 * h
                        a(f"ds_read_b64_tr_b16 v[{q}:{q+1}], v{34+t} offset:{4096*s+2048*h}")
                if s < 3:
                    a("s_waitcnt lgkmcnt(6)")
        self.poll('S', [self.gload(4, 'v33', 's63'), self.gload(8, 'v33', 's63', 256)],
                  lambda ok: self.check_tags(['v6', 'v10'], ok), first_extra=first, local=['s63'])
        self.stamp(3)
        self.unpack('v12', 'v13', 'v4')
        self.unpack('v14', 'v15', 'v5')
        self.unpack('v16', 'v17', 'v8')
        self.unpack('v18', 'v19', 'v9')
        a("""s_mov_b32 s94, 0x3fb8aa3b
             v_max3_f32 v20, v12, v13, v14
             v_max3_f32 v21, v15, v16, v17
             v_max3_f32 v20, v20, v18, v19
             v_max_f32 v20, v20, v21
             v_max_f32_dpp v20, v20, v20 row_ror:4 row_mask:0xf bank_mask:0xf
             v_max_f32_dpp v20, v20, v20 row_ror:8 row_mask:0xf bank_mask:0xf
             v_mov_b32 v21, v20
             v_permlane16_swap_b32 v20, v21
             v_max_f32 v20, v20, v21
             v_mov_b32 v21, v20
             v_permlane32_swap_b32 v20, v21
             v_max_f32 v20, v20, v21""")
        if o['FASTV']:
            self.v_fast(F)
        else:
            self.v_exact(F)
        self.stamp(5)
        self.stamps_out(16)
        a("s_endpgm")

    def v_fast(self, F):
        a = self.a
        ST = 139776
        a("v_mul_f32 v21, s94, v20")
        for k in range(8):
            a(f"v_fma_f32 v{12+k}, v{12+k}, s94, -v21")
        for k in range(8):
            a(f"v_exp_f32 v{12+k}, v{12+k}")
        for k in range(4):
            a(f"v_cvt_pk_bf16_f32 v{44+k}, v{12+2*k}, v{13+2*k}")
        D = [4, 8, 24, 28]
        done = set()

        def mf(s, t):
            rho = (s - t) & 3
            q = F + 16 * s + 4 * t
            c = f"v[{D[t]}:{D[t]+3}]" if t in done else "0"
            done.add(t)
            a(f"v_mfma_f32_16x16x32_bf16 v[{D[t]}:{D[t]+3}], v[{q}:{q+3}], v[{44+4*rho}:{47+4*rho}], {c}")

        def rot(rho, n):
            for k in range(4):
                a(f"v_mov_b32_dpp v{44+4*rho+k}, v{44+k} row_ror:{n} row_mask:0xf bank_mask:0xf")
        a("s_waitcnt lgkmcnt(0)")
        rot(2, 8)
        for t in range(4):
            mf(t, t)
        rot(1, 12)
        for t in range(4):
            mf((t + 2) & 3, t)
        rot(3, 4)
        for t in range(4):
            mf((t + 1) & 3, t)
        a("""v_add_f32 v22, v12, v13
             v_add_f32 v23, v14, v15
             v_add_f32 v12, v16, v17
             v_add_f32 v13, v18, v19""")
        mf(3, 0)
        a("""v_add_f32 v22, v22, v23
             v_add_f32 v12, v12, v13""")
        mf(0, 1)
        a("v_add_f32 v21, v22, v12")
        mf(1, 2)
        a("v_add_f32_dpp v21, v21, v21 row_ror:4 row_mask:0xf bank_mask:0xf")
        mf(2, 3)
        a("""v_add_f32_dpp v21, v21, v21 row_ror:8 row_mask:0xf bank_mask:0xf
             v_mov_b32 v22, v21
             v_permlane16_swap_b32 v21, v22
             v_add_f32 v21, v21, v22
             v_mov_b32 v22, v21
             v_permlane32_swap_b32 v21, v22
             v_add_f32 v21, v21, v22
             s_mov_b64 exec, 0xf
             ds_write_b64 v39, v[20:21]
             s_mov_b64 exec, -1""")
        self.select_tiles(D)
        a("""ds_write_b128 v38, v[4:7]
             s_waitcnt lgkmcnt(0)
             s_barrier""")
        self.stamp(4)
        done_l = self.lab('vdone')
        a(f"""s_cmp_eq_u32 {sWAVE}, 0
              s_cbranch_scc0 {done_l}""")
        for k in range(4):
            a(f"ds_read_b128 v[{44+4*k}:{47+4*k}], v43 offset:{16*k}")
        for w in range(8):
            a(f"ds_read_b128 v[{64+4*w}:{67+4*w}], v41 offset:{1088*w}")
        a(f"""v_mov_b32 v6, {sTAG}
              v_mov_b32 v7, 0
              s_waitcnt lgkmcnt(8)
              v_max3_f32 v22, v44, v46, v48
              v_max3_f32 v23, v50, v52, v54
              v_max3_f32 v22, v22, v56, v58
              v_max_f32 v22, v22, v23""")
        for k in range(8):
            a(f"v_sub_f32 v{44+2*k}, v{44+2*k}, v22")
        for k in range(8):
            a(f"v_mul_f32 v{44+2*k}, s94, v{44+2*k}")
        for k in range(8):
            a(f"v_exp_f32 v{44+2*k}, v{44+2*k}")
        a("v_mul_f32 v23, v44, v45")
        for k in range(1, 8):
            a(f"v_fmac_f32 v23, v{44+2*k}, v{45+2*k}")
        for k in range(8):
            a(f"v_mov_b32 v{45+2*k}, v{44+2*k}")
        a("v_rcp_f32 v22, v23")
        a("s_waitcnt lgkmcnt(0)")
        a("""v_pk_mul_f32 v[96:97], v[64:65], v[44:45]
             v_pk_mul_f32 v[98:99], v[66:67], v[44:45]
             v_pk_mul_f32 v[100:101], v[68:69], v[46:47]
             v_pk_mul_f32 v[102:103], v[70:71], v[46:47]""")
        for w in range(2, 8):
            d = 96 + 4 * (w & 1)
            a(f"""v_pk_fma_f32 v[{d}:{d+1}], v[{64+4*w}:{65+4*w}], v[{44+2*w}:{45+2*w}], v[{d}:{d+1}]
                  v_pk_fma_f32 v[{d+2}:{d+3}], v[{66+4*w}:{67+4*w}], v[{44+2*w}:{45+2*w}], v[{d+2}:{d+3}]""")
        a("""v_mov_b32 v23, v22
             v_pk_add_f32 v[96:97], v[96:97], v[100:101]
             v_pk_add_f32 v[98:99], v[98:99], v[102:103]
             v_pk_mul_f32 v[96:97], v[96:97], v[22:23]
             v_pk_mul_f32 v[98:99], v[98:99], v[22:23]
             v_cvt_pk_bf16_f32 v4, v96, v97
             v_cvt_pk_bf16_f32 v5, v98, v99""")
        self.st_local(4, 'v42', 's66')
        self.st_global(4, 'v42', 's66', flag=True)
        a.label(done_l)

    def v_exact(self, F):
        a = self.a
        for k in range(8):
            a(f"v_sub_f32 v{12+k}, v{12+k}, v20")
        for k in range(8):
            a(f"v_mul_f32 v{12+k}, s94, v{12+k}")
        for k in range(8):
            a(f"v_exp_f32 v{12+k}, v{12+k}")
        a("""v_add_f32 v22, v12, v13
             v_add_f32 v23, v14, v15
             v_add_f32 v24, v16, v17
             v_add_f32 v25, v18, v19
             v_add_f32 v22, v22, v23
             v_add_f32 v24, v24, v25
             v_add_f32 v21, v22, v24
             v_add_f32_dpp v21, v21, v21 row_ror:4 row_mask:0xf bank_mask:0xf
             v_add_f32_dpp v21, v21, v21 row_ror:8 row_mask:0xf bank_mask:0xf
             v_mov_b32 v22, v21
             v_permlane16_swap_b32 v21, v22
             v_add_f32 v21, v21, v22
             v_mov_b32 v22, v21
             v_permlane32_swap_b32 v21, v22
             v_add_f32 v21, v21, v22
             s_mov_b64 exec, 0xf
             ds_write_b64 v39, v[20:21]
             s_mov_b64 exec, -1
             s_waitcnt lgkmcnt(0)
             s_barrier
             ds_read_b64 v[22:23], v40
             s_waitcnt lgkmcnt(0)
             v_mov_b32 v24, v22
             v_max_f32_dpp v24, v24, v24 row_ror:4 row_mask:0xf bank_mask:0xf
             v_max_f32_dpp v24, v24, v24 row_ror:8 row_mask:0xf bank_mask:0xf
             v_mov_b32 v25, v24
             v_permlane16_swap_b32 v24, v25
             v_max_f32 v24, v24, v25
             v_sub_f32 v22, v22, v24
             v_sub_f32 v20, v20, v24
             v_mul_f32 v22, s94, v22
             v_mul_f32 v20, s94, v20
             v_exp_f32 v22, v22
             v_exp_f32 v20, v20
             v_mul_f32 v22, v22, v23
             v_add_f32_dpp v22, v22, v22 row_ror:4 row_mask:0xf bank_mask:0xf
             v_add_f32_dpp v22, v22, v22 row_ror:8 row_mask:0xf bank_mask:0xf
             v_mov_b32 v23, v22
             v_permlane16_swap_b32 v22, v23
             v_add_f32 v22, v22, v23
             v_rcp_f32 v22, v22
             v_mul_f32 v20, v20, v22""")
        for k in range(8):
            a(f"v_mul_f32 v{12+k}, v{12+k}, v20")
        for k in range(4):
            a(f"v_cvt_pk_bf16_f32 v{44+k}, v{12+2*k}, v{13+2*k}")
        D = [4, 8, 12, 16]
        rot = ((2, 8), (1, 12), (3, 4))
        done = set()

        def mf(s, t):
            rho = (s - t) & 3
            q = F + 16 * s + 4 * t
            c = f"v[{D[t]}:{D[t]+3}]" if t in done else "0"
            done.add(t)
            a(f"v_mfma_f32_16x16x32_bf16 v[{D[t]}:{D[t]+3}], v[{q}:{q+3}], v[{44+4*rho}:{47+4*rho}], {c}")
        for rho, n in rot:
            for k in range(4):
                a(f"v_mov_b32_dpp v{44+4*rho+k}, v{44+k} row_ror:{n} row_mask:0xf bank_mask:0xf")
        for rho in (0, 2, 1, 3):
            for t in range(4):
                mf((t + rho) & 3, t)
        self.select_tiles(D)
        a("""ds_write_b128 v38, v[4:7]
             s_waitcnt lgkmcnt(0)
             s_barrier""")
        self.stamp(4)
        done = self.lab('vdone')
        a(f"""s_cmp_eq_u32 {sWAVE}, 0
              s_cbranch_scc0 {done}""")
        for w in range(8):
            a(f"ds_read_b128 v[{64+4*w}:{67+4*w}], v41 offset:{1088*w}")
        a(f"""v_mov_b32 v6, {sTAG}
              v_mov_b32 v7, 0""")

        def pk(d, s_):
            a(f"v_pk_add_f32 v[{d}:{d+1}], v[{d}:{d+1}], v[{s_}:{s_+1}]")
        for n, (d, s_) in enumerate(((64, 68), (72, 76), (80, 84), (88, 92))):
            a(f"s_waitcnt lgkmcnt({6-2*n})")
            pk(d, s_)
            pk(d + 2, s_ + 2)
        for d, s_ in ((64, 72), (80, 88), (64, 80)):
            pk(d, s_)
            pk(d + 2, s_ + 2)
        a("""v_cvt_pk_bf16_f32 v4, v64, v65
             v_cvt_pk_bf16_f32 v5, v66, v67""")
        self.st_local(4, 'v42', 's66')
        self.st_global(4, 'v42', 's66', flag=True)
        a.label(done)

    def ent_k(self):
        a = self.a
        o = self.o
        a.label("L_ENT_K")
        self.role = 'K'
        a(f"""s_sub_u32 s56, {sJ}, 16
              s_lshr_b32 s57, s56, 1
              s_and_b32 s58, s56, 1
              s_lshl_b32 s60, s57, 3
              s_add_u32 s60, s60, {sG}
              s_lshl_b32 s59, s60, 20
              s_add_u32 s59, s59, {3072*256}
              s_lshl_b32 s61, s58, 17
              s_add_u32 s59, s59, s61
              s_lshl_b32 s62, {sWAVE}, 14
              s_add_u32 s59, s59, s62
              s_mov_b32 m0, s62
              v_lshrrev_b32 v1, 4, v0
              v_and_b32 v2, 15, v0
              v_xor_b32 v3, v1, v2
              v_lshlrev_b32 v3, 4, v3""")
        for v in range(4):
            if v:
                a(f"v_xor_b32 v4, {64*v}, v3")
            a(f"v_lshl_add_u32 v{32+v}, v1, 8, {'v4' if v else 'v3'}")
        self.kwait(ws=False)
        self.srd(44, sK, 0x2000000)
        late = o['XFLAG'] and not o['KWAIT']
        if not late:
            if o['KWAIT'] or o['XFLAG']:
                a("s_waitcnt lgkmcnt(0)")
            self.x_publish(True)
        if o['KSLEEP']:
            a(f"s_sleep {o['KSLEEP']}")
        self.stamp(15)
        self.only_exit('K', pre=True)
        l = self.lab('kdma')
        nit = 4
        if o['KWIN0'] or late:
            for v in range(4):
                i = f" offset:{1024*v}" if v else ""
                if o['KWIN0']:
                    a(f"s_waitcnt vmcnt({o['KWIN0']-1})")
                a(f"buffer_load_dwordx4 v{32+v}, {R1}, s59 offen{i} {'nt ' if o['KNT'] else ''}lds")
            a("""s_add_u32 s59, s59, 4096
                 s_add_u32 m0, m0, 4096""")
            nit = 3
        if late:
            a("s_waitcnt lgkmcnt(0)")
            self.x_publish(True)
        a(f"s_mov_b32 s38, {nit}")
        a.label(l)
        for v in range(4):
            i = f" offset:{1024*v}" if v else ""
            if o['KWIN']:
                a(f"s_waitcnt vmcnt({o['KWIN']-1})")
            a(f"buffer_load_dwordx4 v{32+v}, {R1}, s59 offen{i} {'nt ' if o['KNT'] else ''}lds")
        a(f"""s_add_u32 s59, s59, 4096
              s_add_u32 m0, m0, 4096
              s_sub_u32 s38, s38, 1
              s_cmp_lg_u32 s38, 0
              s_cbranch_scc1 {l}
              s_branch L_ROLE_K""")

    def role_k(self):
        a = self.a
        o = self.o
        QL, SC2 = 131072, 132224
        F = 64
        a.label("L_ROLE_K")
        self.role = 'K'
        self.srd(40, sWS, WS_SIZE)
        self.only_exit('K')
        a(f"""s_lshl_b32 s66, {sG}, 3
              s_add_u32 s66, s66, s56
              s_and_b32 s67, s66, 1
              v_lshrrev_b32 v1, 4, v0
              v_and_b32 v2, 15, v0""")
        a("""v_and_b32 v4, 3, v2
             v_xor_b32 v4, v4, v1
             v_and_b32 v5, 12, v2
             v_lshlrev_b32 v6, 8, v2
             v_add_u32 v6, s62, v6""")
        for t in range(4):
            a(f"""v_xor_b32 v3, {4*t}, v5
                  v_add_u32 v3, v3, v4
                  v_lshl_add_u32 v{36+t}, v3, 4, v6""")
        a(f"""s_lshl_b32 s61, {sWAVE}, 6
              v_add_u32 v5, s61, v0
              v_lshrrev_b32 v6, 2, v5
              v_lshlrev_b32 v6, 8, v6
              v_and_b32 v7, 3, v5
              v_lshl_add_u32 v40, v7, 4, v6
              v_lshrrev_b32 v6, 5, v5
              v_mul_u32_u24 v6, 288, v6
              v_and_b32 v7, 31, v5
              v_lshl_add_u32 v6, v7, 3, v6
              v_add_u32 v41, {QL}, v6
              s_lshl_b32 s69, {sG}, 13
              s_lshl_b32 s61, s57, 6
              s_add_u32 s69, s69, s61
              s_add_u32 s69, s69, {WS_B}""")
        self.act_addr('v42', QL, 288, 'v5')
        a(f"""v_bfe_u32 v5, v0, 2, 2
              v_lshl_add_u32 v5, v5, 2, v1
              v_lshlrev_b32 v5, 6, v5
              v_and_b32 v6, 3, v0
              v_lshl_add_u32 v43, v6, 4, v5
              s_lshl_b32 s63, s60, 14
              s_add_u32 s63, s63, {WS_S}
              s_lshl_b32 s61, s58, 13
              s_add_u32 s63, s63, s61
              s_lshl_b32 s61, {sWAVE}, 10
              s_add_u32 s63, s63, s61""")
        a(f"""s_lshr_b32 s68, s66, 4
              s_add_u32 s68, s68, 1
              s_lshr_b32 s56, s66, 1
              s_and_b32 s56, s56, 7""")
        self.srd(48, sWM, 512 * 6144)
        self.dma_off_p128('v32', 6144, 'v1', 'v2')
        a(f"""s_lshl_b32 s59, s67, 8
              s_lshl_b32 s61, {sWAVE}, 5
              s_add_u32 s59, s59, s61
              s_mul_i32 s59, s59, 6144
              s_lshl_b32 s61, s68, 10
              s_add_u32 s59, s59, s61
              s_lshl_b32 s61, s56, 7
              s_add_u32 s59, s59, s61
              s_add_u32 s59, s59, 2048""")
        self.tag_ready()
        self.x_load()
        self.stamp(1)

        def kfrags():
            self.x_flag()
            for T in range(4):
                for t in range(4):
                    q = F + 16 * T + 4 * t
                    a(f"ds_read_b128 v[{q}:{q+3}], v{36+t} offset:{4096*T}")
                if T == 2:
                    a("s_waitcnt lgkmcnt(6)")
        nopoll = self.lab('knp')
        join = self.lab('kj')
        a(f"""s_cmp_lt_u32 {sWAVE}, 2
              s_cbranch_scc0 {nopoll}""")

        def first():
            self.stamp(2)
            kfrags()
        self.poll('B', [self.gload(4, 'v40', 's69')], lambda ok: self.check_tags(['v6'], ok), first_extra=first, local=['s69'])
        a(f"""ds_write_b64 v41, v[4:5]
              s_branch {join}""")
        a.label(nopoll)
        a("s_waitcnt vmcnt(0)")
        self.stamp(2)
        kfrags()
        a.label(join)
        a("""s_waitcnt lgkmcnt(0)
             s_barrier""")
        self.stamp(3)
        for t in range(4):
            a(f"ds_read_b128 v[{44+4*t}:{47+4*t}], v42 offset:{64*t}")
        D = [4, 8, 12, 16]
        for t in range(4):
            a(f"s_waitcnt lgkmcnt({3-t})")
            for T in range(4):
                q = F + 16 * T + 4 * t
                c = "0" if t == 0 else f"v[{D[T]}:{D[T]+3}]"
                a(f"v_mfma_f32_16x16x32_bf16 v[{D[T]}:{D[T]+3}], v[{q}:{q+3}], v[{44+4*t}:{47+4*t}], {c}")
        self.select_tiles(D)
        a("""v_cvt_pk_bf16_f32 v8, v4, v5
             v_cvt_pk_bf16_f32 v9, v6, v7""")
        self.unpack('v4', 'v5', 'v8')
        self.unpack('v6', 'v7', 'v9')
        for r in range(4):
            a(f"v_mul_f32 v{4+r}, 0x3db504f3, v{4+r}")
        a(f"""v_cvt_pk_bf16_f32 v8, v4, v5
              v_cvt_pk_bf16_f32 v9, v6, v7
              v_mov_b32 v10, {sTAG}
              v_mov_b32 v11, 0""")
        self.st_local(8, 'v43', 's63')
        self.stamp(4)
        end = self.lab('kend')
        a("s_barrier")
        self.st_global(8, 'v43', 's63', flag=True)
        a(f"""s_cmp_lt_u32 s66, 48
              s_cbranch_scc0 {end}
              s_mov_b32 m0, s62""")
        self.srd(52, sC, 4096)
        skipc = self.lab('kc')
        a(f"""s_cmp_lt_u32 {sWAVE}, 4
              s_cbranch_scc0 {skipc}
              s_lshl_b32 s61, {sWAVE}, 10
              s_lshl_b32 s69, s67, 9
              s_add_u32 s69, s69, s61
              v_lshlrev_b32 v7, 3, v0
              buffer_load_dwordx2 v[24:25], v7, {R3}, s69 offen""")
        a.label(skipc)
        self.dma_loop('v32', R2, 's59', 8 * 6144, 4, nt=o['MNT'])
        skips = self.lab('ks')
        a(f"""s_cmp_lt_u32 {sWAVE}, 4
              s_cbranch_scc0 {skips}
              s_waitcnt vmcnt(4)""")
        self.unpack('v8', 'v9', 'v24')
        self.unpack('v10', 'v11', 'v25')
        self.silu4(8, 12)
        a("""v_cvt_pk_bf16_f32 v8, v8, v9
             v_cvt_pk_bf16_f32 v9, v10, v11""")
        self.perm_pos_bytes('v5', 'v0', 'v6')
        a(f"""s_mul_i32 s61, {sWAVE}, 544
              s_add_u32 s61, s61, {SC2}
              v_add_u32 v5, s61, v5
              ds_write_b64 v5, v[8:9]""")
        a.label(skips)
        a(f"s_lshl_b32 s61, {sWAVE}, 5")
        self.tr_addr_p128('v33', 's61', '0', 'v1', 'v2')
        a("v_add_u32 v34, 65536, v33")
        self.act_addr('v35', SC2, 544, 'v1')
        a(f"""v_lshrrev_b32 v1, 5, v0
              v_lshlrev_b32 v36, 10, v1
              v_and_b32 v1, 3, v0
              v_lshl_add_u32 v36, v1, 5, v36
              v_bfe_u32 v1, v0, 4, 1
              v_lshl_add_u32 v36, v1, 4, v36
              s_lshl_b32 s59, s56, 13
              s_lshl_b32 s61, {sWAVE}, 11
              s_add_u32 s59, s59, s61
              s_lshl_b32 s61, s68, 8
              s_add_u32 s59, s59, s61
              s_lshl_b32 s61, s67, 7
              s_add_u32 s59, s59, s61
              s_add_u32 s59, s59, {WS_ML}""")
        self.sel_consts()
        self.tagbytes(28)
        a("""s_waitcnt vmcnt(0) lgkmcnt(0)
             s_barrier""")
        a(f"""s_cmp_lt_u32 {sWAVE}, 4
              s_cbranch_scc0 {end}""")
        for s in range(8):
            a(f"ds_read_b128 v[{96+4*s}:{99+4*s}], v35 offset:{64*s}")
        a("s_waitcnt lgkmcnt(2)")
        for s in range(8):
            va = 'v33' if s < 4 else 'v34'
            for h in range(2):
                q = F + 4 * s + 2 * h
                a(f"ds_read_b64_tr_b16 v[{q}:{q+1}], {va} offset:{16384*(s&3)+2048*h}")
            if s == 5:
                a("s_waitcnt lgkmcnt(6)")
        for s in range(8):
            a(f"s_waitcnt lgkmcnt({max(0, 14-2*s) if s >= 4 else 6})" if s >= 4 else "s_waitcnt lgkmcnt(8)" if s == 0 else "s_nop 0")
            c = "0" if s == 0 else "v[4:7]"
            a(f"v_mfma_f32_16x16x32_bf16 v[4:7], v[{F+4*s}:{F+4*s+3}], v[{96+4*s}:{99+4*s}], {c}")
        self.steal(4, 28)
        a("s_mov_b32 exec_lo, 0x000f000f")
        a("s_mov_b32 exec_hi, 0x000f000f")
        self.gstore(4, 'v36', 's59')
        a("s_mov_b64 exec, -1")
        self.stamp(5)
        a.label(end)
        self.stamps_out(16)
        a("s_endpgm")

    def role_m(self):
        a = self.a
        o = self.o
        M1W, SC, STAT = 0, 16384, 17024
        GATE, UP, DOWN, H2, GU = 32768, 65536, 98304, 131072, 135296
        F = 64
        a.label("L_ENT_M")
        self.role = 'M'
        a(f"""v_lshrrev_b32 v1, 4, v0
              v_and_b32 v3, 15, v0
              v_lshlrev_b32 v2, 1, v1
              v_xor_b32 v2, v2, v3
              v_and_b32 v4, 7, v2
              v_lshlrev_b32 v4, 4, v4
              v_lshrrev_b32 v2, 3, v2
              v_lshl_add_u32 v4, v2, 10, v4
              v_xor_b32 v5, 1024, v4
              v_mul_u32_u24 v1, 6144, v1
              v_add_u32 v32, v1, v4
              v_add_u32 v33, v1, v5
              s_lshl_b32 s59, {sJ}, 6
              s_lshl_b32 s61, {sWAVE}, 3
              s_add_u32 s59, s59, s61
              s_mul_i32 s59, s59, 6144
              s_lshl_b32 s61, {sG}, 7
              s_add_u32 s59, s59, s61
              s_lshl_b32 s61, {sWAVE}, 11
              s_mov_b32 m0, s61
              s_and_b32 s62, {sWAVE}, 3
              s_lshl_b32 s62, s62, 10
              v_lshlrev_b32 v6, 4, v0
              v_lshlrev_b32 v7, 1, v0
              s_lshl_b32 s63, {sJ}, 7
              s_add_u32 s63, s63, s62""")
        self.kwait(ws=False)
        self.srd(44, sWM, 512 * 6144)
        self.srd(48, sC, 4096)
        self.srd(52, sX, 4096)
        l4 = self.lab('m4')
        lx = self.lab('mx')
        a(f"""s_cmp_lt_u32 {sWAVE}, 4
              s_cbranch_scc0 {l4}
              buffer_load_dwordx4 v[24:27], v6, {R3}, s62 offen
              s_branch {lx}""")
        a.label(l4)
        a(f"buffer_load_ushort v24, v7, {R2}, s63 offen")
        a.label(lx)
        self.stamp(15)
        self.only_exit('M', pre=True)
        mnt = 'nt ' if o['MNT'] else ''
        a(f"""buffer_load_dwordx4 v32, {R1}, s59 offen {mnt}lds
              s_add_u32 s59, s59, {4*6144}
              s_add_u32 m0, m0, 1024
              s_nop 0
              buffer_load_dwordx4 v33, {R1}, s59 offen {mnt}lds
              s_branch L_ROLE_M""")
        self.ent_w()
        self.ent_k()
        self.ent_v()
        a.label("L_ROLE_M")
        self.role = 'M'
        self.srd(40, sWS, WS_SIZE)
        self.only_exit('M')
        if o['XFLAG']:
            a("s_waitcnt lgkmcnt(0)")
            self.x_publish(False)
        a(f"""v_bfe_u32 v1, v0, 1, 2
              v_lshlrev_b32 v1, 10, v1
              v_and_b32 v2, 1, v0
              v_lshl_add_u32 v1, v2, 3, v1
              v_lshrrev_b32 v2, 4, v0
              v_lshl_add_u32 v1, v2, 1, v1
              s_lshl_b32 s61, {sG}, 7
              s_lshl_b32 s56, {sJ}, 4
              s_add_u32 s61, s61, s56
              buffer_load_ushort v28, v1, {R3}, s61 offen""")
        if o['TOUCH']:
            lt0 = self.lab('mt0')
            a(f"""s_cmp_eq_u32 {sWAVE}, 4
                  s_cbranch_scc0 {lt0}
                  s_lshl_b32 s61, {sG}, 3
                  s_add_u32 s61, s61, {sJ}
                  s_lshl_b32 s61, s61, 12
                  s_add_u32 s61, s61, {WS_A1 + WS_LOC}
                  v_lshlrev_b32 v2, 4, v0""")
            for m in range(4):
                a(self.gload(64 + 4 * m, 'v2', 's61', 1024 * m))
            a.label(lt0)
        a(f"""v_lshrrev_b32 v1, 4, v0
              v_bfe_u32 v2, v0, 2, 2
              v_lshl_add_u32 v3, v1, 2, v2
              v_lshlrev_b32 v34, 8, v3
              v_and_b32 v3, 1, v1
              v_lshlrev_b32 v3, 3, v3
              v_lshl_add_u32 v3, v2, 1, v3
              s_lshl_b32 s61, {sWAVE}, 1
              v_xor_b32 v3, s61, v3
              v_lshl_add_u32 v34, v3, 4, v34
              v_and_b32 v3, 3, v0
              v_lshl_add_u32 v34, v3, 3, v34""")
        self.act_addr('v35', SC, 160, 'v1')
        a(f"""v_lshrrev_b32 v1, 5, v0
              v_lshlrev_b32 v36, 12, v1
              v_bfe_u32 v1, v0, 2, 1
              v_lshl_add_u32 v36, v1, 10, v36
              v_and_b32 v1, 3, v0
              v_lshl_add_u32 v36, v1, 5, v36
              v_bfe_u32 v1, v0, 4, 1
              v_lshl_add_u32 v36, v1, 4, v36
              s_lshl_b32 s60, {sG}, 15
              s_and_b32 s61, {sWAVE}, 3
              s_lshl_b32 s61, s61, 13
              s_add_u32 s60, s60, s61
              s_lshr_b32 s61, {sWAVE}, 2
              s_lshl_b32 s61, s61, 11
              s_add_u32 s60, s60, s61
              s_lshl_b32 s61, {sJ}, 7
              s_add_u32 s60, s60, s61
              s_add_u32 s60, s60, {WS_A1}""")
        lb = self.lab('mb')
        npf = 1 if o['PF'] else 0
        a(f"""s_cmp_ge_u32 {sWAVE}, 4
              s_cbranch_scc0 {lb}""")
        a("v_lshrrev_b32 v4, 2, v0")
        self.perm_pos_bytes('v5', 'v4', 'v6')
        a(f"""v_and_b32 v6, 3, v0
              v_lshl_add_u32 v5, v6, 1, v5
              s_and_b32 s61, {sWAVE}, 3
              s_mul_i32 s61, s61, 160
              s_add_u32 s61, s61, {SC}
              v_add_u32 v5, s61, v5""")
        if o['TOUCH']:
            lc3 = self.lab('mc3')
            lc7 = self.lab('mc7')
            a(f"""s_cmp_eq_u32 {sWAVE}, 4
                  s_cbranch_scc1 {lc7}
                  s_waitcnt vmcnt(3)""")
            a.label(lc7)
            a("s_waitcnt vmcnt(7)")
        else:
            a("s_waitcnt vmcnt(3)")
        a("v_lshlrev_b32 v8, 16, v24")
        self.silu1('v8', 12)
        a("""v_cvt_pk_bf16_f32 v8, v8, v8
             ds_write_b16 v5, v8""")
        a.label(lb)
        a("""s_waitcnt vmcnt(0) lgkmcnt(0)
             s_barrier""")
        self.stamp(1)
        self.frags(F, 'v34', 2, 8192, 4096)
        a(f"""ds_read_b128 v[72:75], v35
              ds_read_b128 v[76:79], v35 offset:64
              s_add_u32 {sTAG}, {sE}, {TAGC}
              s_waitcnt lgkmcnt(0)
              v_mfma_f32_16x16x32_bf16 v[4:7], v[64:67], v[72:75], 0
              v_mfma_f32_16x16x32_bf16 v[4:7], v[68:71], v[76:79], v[4:7]""")
        a(f"""s_mov_b32 exec_lo, 0x00f000f0
              s_mov_b32 exec_hi, 0x00f000f0
              v_mov_b32 v4, v6
              v_mov_b32 v5, v7
              s_mov_b32 exec_lo, 0x00ff00ff
              s_mov_b32 exec_hi, 0x00ff00ff
              v_mov_b32 v6, {sTAG}
              v_mov_b32 v7, 0""")
        self.st_local(4, 'v36', 's60')
        a("s_mov_b64 exec, -1")
        self.stamp(2)
        ls = self.lab('ms')
        lh4 = self.lab('mh4')
        lh = self.lab('mh')
        a(f"""s_cmp_eq_u32 {sWAVE}, 4
              s_cbranch_scc1 {lh4}
              s_cmp_lt_u32 {sWAVE}, 4
              s_cbranch_scc0 {ls}""")
        for k in range(4):
            self.unpack(f'v{8+2*k}', f'v{9+2*k}', f'v{24+k}')
        self.ln_stats(8, 'v20', 'v21', 'v22', 16)
        a(f"""s_lshl_b32 s61, {sWAVE}, 3
              s_add_u32 s61, s61, {STAT}
              v_mov_b32 v1, s61
              s_mov_b64 exec, 1
              ds_write_b64 v1, v[20:21]
              s_mov_b64 exec, -1
              s_waitcnt lgkmcnt(0)""")
        a.label(ls)
        a("""s_mov_b32 exec_lo, 0x00ff00ff
             s_mov_b32 exec_hi, 0x00ff00ff""")
        self.st_global(4, 'v36', 's60')
        a(f"""s_mov_b64 exec, -1
              s_barrier
              s_branch {lh}""")
        a.label(lh4)
        a("""s_mov_b32 exec_lo, 0x00ff00ff
             s_mov_b32 exec_hi, 0x00ff00ff""")
        self.st_global(4, 'v36', 's60')
        a(f"""s_mov_b64 exec, -1
              v_bfe_u32 v1, v0, 1, 2
              v_lshlrev_b32 v1, 3, v1
              v_add_u32 v1, {STAT}, v1
              v_lshlrev_b32 v28, 16, v28
              s_lshl_b32 s59, {sG}, 3
              s_add_u32 s59, s59, {sJ}
              s_lshl_b32 s57, s59, 7
              s_add_u32 s57, s57, {WS_A2}
              s_lshl_b32 s59, s59, 12
              s_add_u32 s59, s59, {WS_A1}
              v_lshlrev_b32 v2, 4, v0""")
        self.poll('A1', [self.gload(4 + 4 * m, 'v2', 's59', 1024 * m) for m in range(4)],
                  lambda ok: self.check_tags(['v6', 'v10', 'v14', 'v18'], ok), local=['s59'])
        self.stamp(3)
        a("""s_barrier
             ds_read_b64 v[20:21], v1
             v_mov_b32 v6, v8
             v_mov_b32 v7, v9
             v_mov_b32 v14, v16
             v_mov_b32 v15, v17""")
        for r in range(4):
            a(f"v_add_f32_dpp v{4+r}, v{4+r}, v{4+r} row_ror:8 row_mask:0xf bank_mask:0xf")
        for r in range(4):
            a(f"v_add_f32_dpp v{12+r}, v{12+r}, v{12+r} row_ror:8 row_mask:0xf bank_mask:0xf")
        a("""v_permlane16_swap_b32 v4, v5
             v_permlane16_swap_b32 v6, v7
             v_permlane16_swap_b32 v12, v13
             v_permlane16_swap_b32 v14, v15
             v_add_f32 v4, v4, v5
             v_add_f32 v6, v6, v7
             v_add_f32 v12, v12, v13
             v_add_f32 v14, v14, v15
             v_permlane32_swap_b32 v4, v6
             v_permlane32_swap_b32 v12, v14
             v_add_f32 v4, v4, v6
             v_add_f32 v12, v12, v14
             s_waitcnt lgkmcnt(0)
             v_rcp_f32 v22, v21
             v_cvt_pk_bf16_f32 v4, v4, v12
             v_and_b32 v12, 0xffff0000, v4
             v_lshlrev_b32 v4, 16, v4
             v_add_f32 v12, 1.0, v12""")
        self.ln_elem('v29', 'v28', 'v20', 'v21', 'v22', 'v23', 'v30')
        a(f"""v_mov_b32 v22, {sTAG}
              v_mov_b32 v23, 0""")
        self.rnd('v12', 'v12')
        a("v_mul_f32 v12, v29, v12")
        self.rnd('v12', 'v12')
        a("v_add_f32 v12, v12, v4")
        self.rows_to_quad('v20', 'v21', 'v12', 'v8')
        a("s_mov_b64 exec, 0xff")
        self.gstore(20, 'v2', 's57')
        a("s_mov_b64 exec, -1")
        self.stamp(4)
        a.label(lh)
        a(f"""s_cmp_eq_u32 {sJ}, 7
              s_cbranch_scc1 L_ROLE_GA""")
        a(f"""s_mul_i32 s66, {sG}, 7
              s_add_u32 s66, s66, {sJ}""")
        self.srd(44, sWG, 512 * 3584)
        self.srd(48, sWU, 512 * 3584)
        self.srd(52, sWD, 1792 * 1024)
        a(f"""v_lshrrev_b32 v1, 2, v0
              v_mul_u32_u24 v1, 3584, v1
              v_bfe_u32 v2, v0, 4, 1
              v_lshlrev_b32 v2, 1, v2
              v_and_b32 v3, 3, v0
              v_xor_b32 v2, v2, v3
              v_lshl_add_u32 v32, v2, 4, v1
              v_xor_b32 v2, {1 if o['GUMIX'] else 0}, v2
              v_lshl_add_u32 v31, v2, 4, v1
              s_lshl_b32 s59, {sWAVE}, 6
              s_mul_i32 s59, s59, 3584
              s_lshl_b32 s61, s66, 6
              s_add_u32 s59, s59, s61
              s_mov_b32 s60, s59
              s_lshl_b32 s67, s66, 5
              s_lshl_b32 s61, {sWAVE}, 2
              s_add_u32 s67, s67, s61
              s_lshl_b32 s67, s67, 10
              s_and_b32 s62, {sWAVE}, 1
              s_lshl_b32 s62, s62, 3""")
        for n in range(4):
            a(f"""s_add_u32 s63, s62, {2*n}
                  v_xor_b32 v1, s63, v0
                  v_lshlrev_b32 v{40+n}, 4, v1""")
        if o['GUMIX']:
            a(f"""v_lshrrev_b32 v1, 4, v0
                  v_bfe_u32 v2, v0, 2, 2
                  v_lshl_add_u32 v3, v1, 2, v2
                  v_lshlrev_b32 v33, 6, v3
                  v_and_b32 v3, 1, v1
                  v_lshlrev_b32 v3, 1, v3
                  s_and_b32 s61, {sWAVE}, 3
                  v_xor_b32 v3, s61, v3
                  v_bfe_u32 v4, v0, 1, 1
                  v_xor_b32 v3, v3, v4
                  v_lshl_add_u32 v33, v3, 4, v33
                  v_lshl_add_u32 v33, v4, 15, v33
                  v_and_b32 v3, 1, v0
                  v_lshl_add_u32 v33, v3, 3, v33
                  v_add_u32 v33, {GATE}, v33""")
        else:
            a(f"""v_lshrrev_b32 v1, 4, v0
                  v_bfe_u32 v2, v0, 2, 2
                  v_lshl_add_u32 v3, v1, 2, v2
                  v_lshlrev_b32 v33, 6, v3
                  v_and_b32 v3, 1, v1
                  s_and_b32 s61, {sWAVE}, 1
                  v_xor_b32 v3, s61, v3
                  v_lshl_add_u32 v33, v3, 5, v33
                  v_and_b32 v3, 3, v0
                  v_lshl_add_u32 v33, v3, 3, v33
                  s_bfe_u32 s61, {sWAVE}, 0x10001
                  s_lshl_b32 s61, s61, 15
                  s_add_u32 s61, s61, {GATE}
                  v_add_u32 v33, s61, v33""")
        a(f"""v_lshl_add_u32 v3, v1, 2, v2
              v_lshlrev_b32 v4, 10, v3
              v_and_b32 v5, 3, v0
              v_lshl_add_u32 v4, v5, 3, v4
              v_add_u32 v4, {DOWN}, v4
              v_and_b32 v3, 7, v3
              v_lshlrev_b32 v3, 1, v3
              s_lshl_b32 s61, {sWAVE}, 3
              v_xor_b32 v3, s61, v3""")
        for t in range(4):
            a(f"""v_xor_b32 v5, {2*t}, v3
                  v_lshl_add_u32 v{34+t}, v5, 4, v4""")
        self.act_addr('v38', H2, 1056, 'v1')
        self.act_addr('v39', GU, 96, 'v1')
        a(f"""v_lshlrev_b32 v44, 4, v0
              s_lshl_b32 s68, {sG}, 2
              s_add_u32 s68, s68, {sWAVE}
              s_lshl_b32 s68, s68, 12
              s_add_u32 s68, s68, {WS_D}""")
        self.perm_pos_bytes('v45', 'v0', 'v1')
        a(f"""s_mul_i32 s61, {sWAVE}, 1056
              s_add_u32 s61, s61, {H2}
              v_add_u32 v45, s61, v45""")
        if o['GUMIX']:
            a(f"""v_and_b32 v1, 3, v0
                  v_mul_u32_u24 v46, 96, v1
                  v_lshrrev_b32 v1, 4, v0
                  s_lshl_b32 s61, {sWAVE}, 1
                  v_add_u32 v1, s61, v1
                  v_and_b32 v2, 3, v1
                  v_lshl_add_u32 v46, v2, 4, v46
                  v_bfe_u32 v2, v1, 2, 1
                  v_lshl_add_u32 v46, v2, 3, v46
                  v_add_u32 v46, {GU}, v46""")
        else:
            a(f"""v_and_b32 v1, 3, v0
                  v_mul_u32_u24 v46, 96, v1
                  v_lshrrev_b32 v1, 4, v0
                  v_lshl_add_u32 v46, v1, 4, v46
                  s_and_b32 s61, {sWAVE}, 1
                  s_lshl_b32 s61, s61, 3
                  s_bfe_u32 s62, {sWAVE}, 0x10001
                  s_mul_i32 s62, s62, 384
                  s_add_u32 s61, s61, s62
                  s_add_u32 s61, s61, {GU}
                  v_add_u32 v46, s61, v46""")
        a(f"""v_bfe_u32 v1, v0, 2, 2
              v_lshlrev_b32 v1, 1, v1
              v_lshrrev_b32 v2, 5, v0
              v_add_u32 v1, v1, v2
              v_mul_u32_u24 v47, {56*128}, v1
              v_and_b32 v1, 3, v0
              v_lshl_add_u32 v47, v1, 5, v47
              v_bfe_u32 v1, v0, 4, 1
              v_lshl_add_u32 v47, v1, 4, v47
              s_mul_i32 s63, {sWAVE}, {8*56*128}
              s_lshl_b32 s61, s66, 7
              s_add_u32 s63, s63, s61
              s_add_u32 s63, s63, {WS_E}""")
        self.sel_consts()
        self.tagbytes(48)
        if o['MG1']:
            a(f"""s_barrier
                  s_lshl_b32 s61, {sWAVE}, 12
                  s_add_u32 s61, s61, {GATE}
                  s_mov_b32 m0, s61""")
            self.dma_loop('v32', R1, 's59', 16 * 3584, o['MG1'])
        if o['HELPV']:
            lhv = self.lab('hv')
            a(f"""s_barrier
                  s_cmp_lt_u32 {sJ}, 4
                  s_cbranch_scc0 {lhv}
                  s_mov_b32 s92, s8
                  s_mov_b32 s93, s9
                  s_mov_b32 s94, 0x2000000
                  s_mov_b32 s95, 0x20000
                  s_lshl_b32 s61, {sJ}, 3
                  s_add_u32 s61, s61, {sG}
                  s_lshl_b32 s61, s61, 20
                  s_lshl_b32 s62, {sWAVE}, 15
                  s_add_u32 s61, s61, s62
                  s_add_u32 s61, s61, {(3072 + 128 - 32) * 256}
                  v_lshlrev_b32 v212, 7, v0""")
            for n in range(o['HELPV']):
                a(f"""buffer_load_dword v213, v212, s[92:95], s61 offen
                      s_sub_u32 s61, s61, {32*256}""")
            a.label(lhv)
            self.sel_consts()
        if o['MTRIG']:
            lt = self.lab('mt')
            if o['MEARLY']:
                a(f"""s_lshr_b32 s61, s66, 1
                      s_and_b32 s61, s61, 3
                      s_cmp_eq_u32 s61, 3
                      s_cbranch_scc1 {lt}""")
            a(f"""s_cmp_eq_u32 {sWAVE}, 0
                  s_cbranch_scc0 {lt}
                  v_lshlrev_b32 v2, 10, v0
                  s_lshl_b32 s61, {sG}, 13
                  s_add_u32 s61, s61, {WS_B}""")
            if o['MTRIG'] == 2:
                a(f"""v_lshrrev_b32 v2, 1, v0
                      v_lshlrev_b32 v2, 17, v2
                      v_and_b32 v3, 1, v0
                      v_lshl_add_u32 v2, v3, 13, v2
                      s_lshl_b32 s61, {sG}, 14
                      s_add_u32 s61, s61, {WS_S}""")
            a("s_mov_b64 exec, 0xff")
            self.poll('T', [self.gload(4, 'v2', 's61')], lambda ok: self.check_tags(['v6'], ok), local=['s61'])
            a("s_mov_b64 exec, -1")
            a.label(lt)
        a("s_barrier")
        if o['MSLEEP']:
            lms = self.lab('msl')
            a(f"""s_lshr_b32 s61, s66, 1
                  s_and_b32 s61, s61, 3
                  s_cmp_eq_u32 s61, 3
                  s_cbranch_scc1 {lms}
                  s_sleep {o['MSLEEP']}""")
            a.label(lms)
        a(f"""s_lshl_b32 s61, {sWAVE}, 12
              s_add_u32 s61, s61, {GATE + 1024 * o['MG1']}
              s_mov_b32 m0, s61""")
        if o['MG1'] < 4:
            self.dma_loop('v32', R1, 's59', 16 * 3584, 4 - o['MG1'], win=o['MWIN'], nt=o['GUNT'])
        a(f"""s_sub_u32 s61, s61, {1024 * o['MG1']}
              s_add_u32 s61, s61, {UP-GATE}
              s_mov_b32 m0, s61""")
        self.dma_loop('v31', R2, 's60', 16 * 3584, 4, nt=o['GUNT'])
        a(f"""s_add_u32 s61, s61, {DOWN-UP}
              s_mov_b32 m0, s61
              s_nop 0""")
        for n in range(4):
            a(f"""buffer_load_dwordx4 v{40+n}, {R3}, s67 offen {'nt ' if o['DNT'] else ''}lds
                  s_add_u32 s67, s67, 1024
                  s_add_u32 m0, m0, 1024
                  s_nop 0""")
        a("""s_waitcnt vmcnt(0)
             s_barrier""")
        self.stamp(5)
        for t in range(4):
            for h in range(2):
                q = 128 + 4 * t + 2 * h
                a(f"ds_read_b64_tr_b16 v[{q}:{q+1}], v{34+t} offset:{16384*h}")
        lw = self.lab('mw')
        a(f"""s_cmp_lt_u32 {sWAVE}, 4
              s_cbranch_scc0 {lw}
              s_waitcnt lgkmcnt(0)""")
        for s in range(16):
            for h in range(2):
                q = F + 4 * s + 2 * h
                a(f"ds_read_b64_tr_b16 v[{q}:{q+1}], v33 offset:{2048*s+1024*h}")
            if s in (6, 10):
                a("s_waitcnt lgkmcnt(6)")
        self.poll('D', [self.gload(4, 'v44', 's68'), self.gload(8, 'v44', 's68', 2048),
                        self.gload(12, 'v44', 's68', 1024), self.gload(16, 'v44', 's68', 3072)],
                  lambda ok: self.check_tags(['v7', 'v11', 'v15', 'v19'], ok), local=['s68'])
        self.stamp(6)
        X = 20
        self.unpack(f'v{X}', f'v{X+1}', 'v4')
        self.unpack(f'v{X+2}', f'v{X+3}', 'v5')
        self.unpack(f'v{X+4}', f'v{X+5}', 'v12')
        self.unpack(f'v{X+6}', f'v{X+7}', 'v13')
        if o['FASTLN']:
            self.ln2_fast(X)
        else:
            M2, SD2, RC2 = 52, 54, 56
            self.ln_stats_pivot(X, M2, SD2, RC2, 144)
            csrc = ['v6', 'v8', 'v14', 'v16']
            ssrc = ['v9', 'v10', 'v17', 'v18']
            for p in range(4):
                x = X + 2 * p
                a(f"v_pk_add_f32 v[{x}:{x+1}], v[{x}:{x+1}], v[{M2}:{M2+1}] neg_lo:[0,1] neg_hi:[0,1]")
            for p in range(4):
                self.pk_rnd(X + 2 * p, f'v{144+p}')
            for p in range(4):
                x, q = X + 2 * p, 148 + 2 * p
                a(f"v_pk_mul_f32 v[{q}:{q+1}], v[{x}:{x+1}], v[{RC2}:{RC2+1}]")
            for p in range(4):
                x, q = X + 2 * p, 148 + 2 * p
                a(f"v_pk_fma_f32 v[{x}:{x+1}], v[{q}:{q+1}], v[{SD2}:{SD2+1}], v[{x}:{x+1}] neg_lo:[1,0,0] neg_hi:[1,0,0]")
            for p in range(4):
                x, q = X + 2 * p, 148 + 2 * p
                a(f"v_pk_fma_f32 v[{x}:{x+1}], v[{x}:{x+1}], v[{RC2}:{RC2+1}], v[{q}:{q+1}]")
            for p in range(4):
                self.pk_rnd(X + 2 * p, f'v{144+p}')
            for p in range(4):
                q = 148 + 2 * p
                self.unpack(f'v{q}', f'v{q+1}', csrc[p])
            for p in range(4):
                x, q = X + 2 * p, 148 + 2 * p
                a(f"v_pk_mul_f32 v[{x}:{x+1}], v[{x}:{x+1}], v[{q}:{q+1}]")
            for p in range(4):
                q = 148 + 2 * p
                self.unpack(f'v{q}', f'v{q+1}', ssrc[p])
            for p in range(4):
                self.pk_rnd(X + 2 * p, f'v{144+p}')
            for p in range(4):
                x, q = X + 2 * p, 148 + 2 * p
                a(f"v_pk_add_f32 v[{x}:{x+1}], v[{x}:{x+1}], v[{q}:{q+1}]")
            for p in range(4):
                a(f"v_cvt_pk_bf16_f32 v{4+p}, v{X+2*p}, v{X+2*p+1}")
        a("""ds_write_b64 v45, v[4:5]
             ds_write_b64 v45, v[6:7] offset:512""")
        a.label(lw)
        a("""s_waitcnt lgkmcnt(0)
             s_barrier""")
        self.stamp(7)
        lg = self.lab('mg')
        a(f"""s_cmp_lt_u32 {sWAVE}, 4
              s_cbranch_scc0 {lg}""")
        self.gemv16(4, F, 'v38', 144)
        if o['GUMIX']:
            self.pk_rnd(4, 'v12')
            self.pk_rnd(6, 'v13')
            for r in range(4):
                a(f"v_mov_b32 v{8+r}, v{4+r}")
            for r in range(4):
                a(f"v_permlane32_swap_b32 v{4+r}, v{8+r}")
            for r in range(4):
                a(f"v_max_f32 v{4+r}, 0, v{4+r}")
            a("""v_pk_mul_f32 v[4:5], v[4:5], v[8:9]
                 v_pk_mul_f32 v[6:7], v[6:7], v[10:11]
                 v_cvt_pk_bf16_f32 v8, v4, v5
                 v_cvt_pk_bf16_f32 v9, v6, v7
                 s_mov_b32 exec_lo, 0x000f000f
                 s_mov_b32 exec_hi, 0
                 ds_write_b64 v46, v[8:9]
                 s_mov_b64 exec, -1""")
            a.label(lg)
            a("""s_waitcnt lgkmcnt(0)
                 s_barrier
                 ds_read_b128 v[16:19], v39
                 s_waitcnt lgkmcnt(0)""")
        else:
            a("""v_cvt_pk_bf16_f32 v8, v4, v5
                 v_cvt_pk_bf16_f32 v9, v6, v7
                 s_mov_b32 exec_lo, 0x000f000f
                 s_mov_b32 exec_hi, 0x000f000f
                 ds_write_b64 v46, v[8:9]
                 s_mov_b64 exec, -1""")
            a.label(lg)
            a("""s_waitcnt lgkmcnt(0)
                 s_barrier
                 ds_read_b128 v[4:7], v39
                 ds_read_b128 v[8:11], v39 offset:384
                 s_waitcnt lgkmcnt(0)""")
            for k in range(4):
                self.unpack(f'v{20+2*k}', f'v{21+2*k}', f'v{4+k}')
            for k in range(4):
                self.unpack(f'v{144+2*k}', f'v{145+2*k}', f'v{8+k}')
            for k in range(8):
                a(f"v_max_f32 v{20+k}, 0, v{20+k}")
            for k in range(4):
                a(f"v_pk_mul_f32 v[{20+2*k}:{21+2*k}], v[{20+2*k}:{21+2*k}], v[{144+2*k}:{145+2*k}]")
            for k in range(4):
                a(f"v_cvt_pk_bf16_f32 v{16+k}, v{20+2*k}, v{21+2*k}")
        D = [4, 8, 12, 20]
        for t in range(4):
            a(f"v_mfma_f32_16x16x32_bf16 v[{D[t]}:{D[t]+3}], v[{128+4*t}:{131+4*t}], v[16:19], 0")
        self.select_tiles(D)
        self.steal(4, 48)
        self.gstore(4, 'v47', 's63')
        self.stamp(8)
        self.stamps_out(16)
        a("s_endpgm")

        a.label("L_ROLE_GA")
        S = 131072
        self.srd(48, sC, 4096)
        self.dma_off_p128('v32', 6144, 'v1', 'v2')
        a(f"""s_lshl_b32 s59, {sWAVE}, 6
              s_mul_i32 s59, s59, 6144
              s_lshl_b32 s61, {sG}, 7
              s_add_u32 s59, s59, s61
              s_add_u32 s59, s59, 2048
              s_lshl_b32 s61, {sWAVE}, 13
              s_add_u32 s61, s61, {GATE}
              s_mov_b32 m0, s61
              s_barrier""")
        lc = self.lab('gc')
        a(f"""s_cmp_lt_u32 {sWAVE}, 4
              s_cbranch_scc0 {lc}
              s_lshl_b32 s61, {sWAVE}, 10
              v_lshlrev_b32 v1, 3, v0
              buffer_load_dwordx2 v[24:25], v1, {R2}, s61 offen
              buffer_load_dwordx2 v[26:27], v1, {R2}, s61 offen offset:512""")
        a.label(lc)
        self.dma_loop('v32', R1, 's59', 8 * 6144, 8, nt=o['MNT'])
        lc2 = self.lab('gc2')
        a(f"""s_cmp_lt_u32 {sWAVE}, 4
              s_cbranch_scc0 {lc2}
              s_waitcnt vmcnt(8)""")
        self.perm_pos_bytes('v5', 'v0', 'v6')
        a(f"""s_mul_i32 s61, {sWAVE}, 1056
              s_add_u32 s61, s61, {S}
              v_add_u32 v5, s61, v5""")
        for hf in range(2):
            self.unpack('v8', 'v9', f'v{24+2*hf}')
            self.unpack('v10', 'v11', f'v{25+2*hf}')
            self.silu4(8, 12)
            a(f"""v_cvt_pk_bf16_f32 v8, v8, v9
                  v_cvt_pk_bf16_f32 v9, v10, v11
                  ds_write_b64 v5, v[8:9] offset:{512*hf}""")
        a.label(lc2)
        a(f"s_lshl_b32 s61, {sWAVE}, 5")
        self.tr_addr_p128('v33', 's61', GATE, 'v1', 'v2')
        self.act_addr('v35', S, 1056, 'v1')
        a(f"""v_lshrrev_b32 v1, 5, v0
              v_lshlrev_b32 v36, 10, v1
              v_bfe_u32 v1, v0, 2, 1
              v_lshl_add_u32 v36, v1, 7, v36
              v_and_b32 v1, 3, v0
              v_lshl_add_u32 v36, v1, 5, v36
              v_bfe_u32 v1, v0, 4, 1
              v_lshl_add_u32 v36, v1, 4, v36
              s_lshl_b32 s59, {sG}, 13
              s_lshl_b32 s61, {sWAVE}, 11
              s_add_u32 s59, s59, s61
              s_add_u32 s59, s59, {WS_ML}""")
        self.sel_consts()
        self.tagbytes(28)
        a("""s_waitcnt vmcnt(0) lgkmcnt(0)
             s_barrier""")
        le = self.lab('ge')
        a(f"""s_cmp_lt_u32 {sWAVE}, 4
              s_cbranch_scc0 {le}""")
        for s in range(16):
            for h in range(2):
                q = F + 4 * s + 2 * h
                a(f"ds_read_b64_tr_b16 v[{q}:{q+1}], v33 offset:{4096*s+2048*h}")
            if s in (6, 13):
                a("s_waitcnt lgkmcnt(0)")
        a("s_waitcnt lgkmcnt(0)")
        self.gemv16(4, F, 'v35', 144)
        a("""s_mov_b32 exec_lo, 0x00f000f0
             s_mov_b32 exec_hi, 0x00f000f0""")
        for r in range(4):
            a(f"v_mov_b32 v{4+r}, 0")
        a("""s_mov_b32 exec_lo, 0x00ff00ff
             s_mov_b32 exec_hi, 0x00ff00ff""")
        self.steal(4, 28)
        self.gstore(4, 'v36', 's59')
        a("s_mov_b64 exec, -1")
        a.label(le)
        self.stamp(5)
        self.stamps_out(16)
        a("s_endpgm")

    def ent_w(self):
        a = self.a
        o = self.o
        a.label("L_ENT_W")
        self.role = 'W'
        a(f"s_sub_u32 s56, {sJ}, 8")
        if o.get('ISWZ'):
            a(f"s_xor_b32 s56, s56, {o['ISWZ']}")
        self.dma_off_p128('v32', 8192, 'v1', 'v2')
        a(f"""s_lshl_b32 s59, {sWAVE}, 19
              s_lshl_b32 s61, {sG}, 10
              s_add_u32 s59, s59, s61
              s_lshl_b32 s61, s56, 7
              s_add_u32 s59, s59, s61
              s_lshl_b32 s61, {sWAVE}, 13
              s_mov_b32 m0, s61""")
        self.kwait(ws=False)
        self.srd(44, sWQ, 512 * 8192)
        if o['WWAIT'] == 1:
            a("s_waitcnt lgkmcnt(0)")
        if o['WWAIT'] == 2:
            lw = self.lab('ww')
            a(f"""s_cmp_eq_u32 s56, 3
                  s_cbranch_scc1 {lw}
                  s_waitcnt lgkmcnt(0)""")
            a.label(lw)
        if o['WSLEEP']:
            a(f"s_sleep {o['WSLEEP']}")
        self.stamp(15)
        self.only_exit('W', pre=True)
        self.dma_loop('v32', R1, 's59', 8 * 8192, 8, win=o['WWIN'], nt=o['WNT'])
        a("s_branch L_ROLE_W")

    def role_w(self):
        a = self.a
        o = self.o
        WQ, WO, H, O = 0, 65536, 131072, 135296
        F = 64
        a.label("L_ROLE_W")
        self.role = 'W'
        self.srd(40, sWS, WS_SIZE)
        self.only_exit('W')
        self.w_setup1(H, O, WQ, WO)
        if o['IOX']:
            a(f"s_xor_b32 s56, s56, {o['IOX']}")
        self.srd(52, sX, 4096)
        a(f"""v_bfe_u32 v1, v0, 1, 2
              v_lshlrev_b32 v1, 10, v1
              v_and_b32 v2, 1, v0
              v_lshl_add_u32 v1, v2, 3, v1
              v_lshrrev_b32 v2, 4, v0
              v_lshl_add_u32 v1, v2, 1, v1
              s_lshl_b32 s61, s56, 7
              s_lshl_b32 s62, {sWAVE}, 4
              s_add_u32 s61, s61, s62
              buffer_load_ushort v60, v1, {R3}, s61 offen""")
        self.srd(44, sWO, 4096 * 1024)
        self.dma_off_p128('v32', 1024, 'v1', 'v2')
        a(f"""s_lshl_b32 s59, {sG}, 9
              s_lshl_b32 s61, {sWAVE}, 6
              s_add_u32 s59, s59, s61
              s_lshl_b32 s59, s59, 10
              s_lshl_b32 s61, s56, 7
              s_add_u32 s59, s59, s61
              s_lshl_b32 s67, {sWAVE}, 13
              s_add_u32 s67, s67, {WO}""")
        if o['WO1']:
            a("s_mov_b32 m0, s67")
            self.dma_loop('v32', R1, 's59', 8 * 1024, o['WO1'], nt=o['WNT'])
            a(f"s_add_u32 s67, s67, {1024 * o['WO1']}")
        a("s_mov_b32 s89, 8")
        if o['WO3']:
            l3 = self.lab('wo3')
            a(f"""s_cmp_eq_u32 s56, 3
                  s_cbranch_scc0 {l3}
                  s_mov_b32 m0, s67""")
            self.dma_loop('v32', R1, 's59', 8 * 1024, o['WO3'], nt=o['WNT'])
            a(f"""s_add_u32 s67, s67, {1024 * o['WO3']}
                  s_mov_b32 s89, {8 - o['WO3']}""")
            a.label(l3)
        self.tag_ready()
        self.x_publish(False)
        self.stamp(1)
        lw1 = self.lab('w1')

        def first():
            self.stamp(2)
            self.x_load()
            a("s_barrier")
            a(f"""s_cmp_lt_u32 {sWAVE}, 4
                  s_cbranch_scc0 {lw1}""")
            for s in range(16):
                for h in range(2):
                    q = F + 4 * s + 2 * h
                    a(f"ds_read_b64_tr_b16 v[{q}:{q+1}], v36 offset:{4096*s+2048*h}")
                if s in (6, 10):
                    a("s_waitcnt lgkmcnt(6)")
            a.label(lw1)
        if o['PIPE_A2']:
            okA = self.lab('a2first')
            a(self.gload(4, 'v33', 's58'))
            a("s_waitcnt vmcnt(0)")
            first()
            self.check_tags(['v6'], okA)
            NS = o['PIPE_A2']

            def takeA(k):
                a(f"""v_mov_b32 v4, v{192+4*k}
                      v_mov_b32 v5, v{193+4*k}""")
            self.poll_pipe('A2', NS, lambda k: [self.gload(192 + 4 * k, 'v33', 's58')],
                           lambda k, ok: self.check_tags([f'v{194+4*k}'], ok), takeA, o['SLP_A2'])
            a.label(okA)
        else:
            self.poll('A2', [self.gload(4, 'v33', 's58')],
                      lambda ok: self.check_tags(['v6'], ok), first_extra=first)
        a("""ds_write_b64 v34, v[4:5]
             s_waitcnt lgkmcnt(0)
             s_barrier""")
        self.stamp(3)
        lq = self.lab('wqskip')
        a(f"""s_mov_b32 m0, s67
              s_cmp_lt_u32 {sWAVE}, 4
              s_cbranch_scc0 {lq}""")
        self.gemv16(4, F, 'v38', 128)
        a(f"""v_cvt_pk_bf16_f32 v8, v4, v5
              v_cvt_pk_bf16_f32 v9, v6, v7
              v_mov_b32 v10, {sTAG}
              v_mov_b32 v11, 0
              s_mov_b32 exec_lo, 0x000f000f
              s_mov_b32 exec_hi, 0x000f000f""")
        self.st_local(8, 'v40', 's57')
        a("s_mov_b64 exec, -1")
        a.label(lq)
        a("s_barrier")
        if o['XFLAG']:
            a("s_waitcnt vmcnt(1)")
            self.x_flag()
        self.stamp(4)
        lq3 = self.lab('wq3')
        a(f"""s_cmp_lt_u32 {sWAVE}, 4
              s_cbranch_scc0 {lq3}
              s_mov_b32 exec_lo, 0x000f000f
              s_mov_b32 exec_hi, 0x000f000f""")
        self.st_global(8, 'v40', 's57', flag=True)
        a("s_mov_b64 exec, -1")
        a.label(lq3)
        if o['WO3']:
            self.dma_loop('v32', R1, 's59', 8 * 1024, 's89', nt=o['WNT'])
        elif o['WO1'] < 8:
            self.dma_loop('v32', R1, 's59', 8 * 1024, 8 - o['WO1'], nt=o['WNT'])
        a(f"""s_lshl_b32 s58, {sG}, 13
              s_add_u32 s58, s58, {WS_C}
              v_lshrrev_b32 v1, 5, v0
              v_lshlrev_b32 v41, {11 if o['WOSPLIT'] else 10}, v1
              v_and_b32 v1, 3, v0
              v_lshl_add_u32 v41, v1, 5, v41
              v_bfe_u32 v1, v0, 4, 1
              v_lshl_add_u32 v41, v1, 4, v41
              s_lshl_b32 s57, s56, {14 if o['WOSPLIT'] else 13}
              s_and_b32 s61, {sWAVE}, 3
              s_lshl_b32 s61, s61, {12 if o['WOSPLIT'] else 11}
              s_add_u32 s57, s57, s61
              s_lshr_b32 s61, {sWAVE}, 2
              s_lshl_b32 s61, s61, 10
              s_add_u32 s57, s57, s61
              s_lshl_b32 s61, {sG}, 7
              s_add_u32 s57, s57, s61
              s_add_u32 s57, s57, {WS_C2B if o['WOSPLIT'] else WS_C2}
              v_lshlrev_b32 v42, 4, v0
              s_lshl_b32 s62, s56, 3
              s_add_u32 s62, s62, {sWAVE}
              s_lshl_b32 s63, s62, 10
              s_add_u32 s63, s63, {WS_ML}
              s_lshl_b32 s62, s62, {11 if o['WOSPLIT'] else 10}
              s_add_u32 s62, s62, {WS_C2B if o['WOSPLIT'] else WS_C2}
              ; D publish: ((g*4 + b)*2 + u)*2048 + Q*16, Q = 16i + 2w + q
              v_bfe_u32 v1, v0, 1, 2
              v_lshlrev_b32 v43, 12, v1
              v_and_b32 v1, 1, v0
              v_lshl_add_u32 v43, v1, 4, v43
              s_lshl_b32 s66, {sG}, 14
              s_lshl_b32 s61, s56, 8
              s_add_u32 s66, s66, s61
              s_lshl_b32 s61, {sWAVE}, 5
              s_add_u32 s66, s66, s61
              s_add_u32 s66, s66, {WS_D}
              v_bfe_u32 v1, v0, 1, 2
              v_lshlrev_b32 v61, 10, v1
              v_and_b32 v2, 1, v0
              v_lshl_add_u32 v61, v2, 3, v61
              v_lshrrev_b32 v2, 4, v0
              v_lshl_add_u32 v61, v2, 1, v61
              s_lshl_b32 s68, s56, 7
              s_lshl_b32 s61, {sG}, 4
              s_add_u32 s68, s68, s61
              s_lshl_b32 s69, s56, 3
              s_add_u32 s69, s69, {sG}
              s_mul_i32 s69, s69, {56*128}
              s_add_u32 s69, s69, {WS_E}""")
        if o['TOUCH']:
            a(self.gload(4, 'v42', 's62'))
            a(self.gload(8, 'v42', 's63'))
            lt1 = self.lab('wt1')
            a(f"""s_cmp_eq_u32 {sWAVE}, {sG}
                  s_cbranch_scc0 {lt1}
                  s_add_u32 s61, s69, 4096""")
            for m in range(0 if o.get('NOETOUCH') else 7):
                a(self.gload(64 + 4 * m, 'v42', 's69' if m < 4 else 's61', 1024 * (m & 3)))
            a.label(lt1)
        self.srd(48, sOUT, 4096)
        self.sel_consts()
        self.tagbytes(48)
        a("v_lshlrev_b32 v60, 16, v60")
        lw2 = self.lab('w2')

        def first2():
            self.stamp(5)
            a("s_barrier")
            if o['WOSPLIT']:
                for s in range(8):
                    for h in range(2):
                        q = F + 4 * s + 2 * h
                        a(f"ds_read_b64_tr_b16 v[{q}:{q+1}], v37 offset:{4096*s+2048*h}")
                    if s == 6:
                        a("s_waitcnt lgkmcnt(6)")
                return
            a(f"""s_cmp_lt_u32 {sWAVE}, 4
                  s_cbranch_scc0 {lw2}""")
            for s in range(16):
                for h in range(2):
                    q = F + 4 * s + 2 * h
                    a(f"ds_read_b64_tr_b16 v[{q}:{q+1}], v37 offset:{4096*s+2048*h}")
                if s in (6, 10):
                    a("s_waitcnt lgkmcnt(6)")
            a.label(lw2)
        if o['WOSPLIT']:
            a(f"""s_lshr_b32 s61, {sWAVE}, 2
                  s_lshl_b32 s39, s61, 15
                  v_add_u32 v37, s39, v37
                  s_lshl_b32 s39, s61, 9
                  v_add_u32 v39, s39, v39""")
        self.poll('C', [self.gload(4, 'v33', 's58')], lambda ok: self.check_tags(['v6'], ok), first_extra=first2, local=['s58'])
        a("""ds_write_b64 v35, v[4:5]
             s_waitcnt lgkmcnt(0)
             s_barrier""")
        self.stamp(6)
        lo = self.lab('wo')
        if o['WOSPLIT']:
            for s_ in range(8):
                a(f"ds_read_b128 v[{128+4*s_}:{131+4*s_}], v39 offset:{64*s_}")
            for s_ in range(8):
                a(f"s_waitcnt lgkmcnt({7-s_})")
                c = "0" if s_ == 0 else "v[4:7]"
                a(f"v_mfma_f32_16x16x32_bf16 v[4:7], v[{F+4*s_}:{F+4*s_+3}], v[{128+4*s_}:{131+4*s_}], {c}")
        else:
            a(f"""s_cmp_lt_u32 {sWAVE}, 4
                  s_cbranch_scc0 {lo}""")
            self.gemv16(4, F, 'v39', 128)
        self.steal(4, 48)
        a("""s_mov_b32 exec_lo, 0x000f000f
             s_mov_b32 exec_hi, 0x000f000f""")
        self.gstore(4, 'v41', 's57')
        a("s_mov_b64 exec, -1")
        a.label(lo)
        self.stamp(7)

        def stolen_check(q):
            def chk(ok):
                self.stolen_tag(q, 'v12', 'v13')
                self.check_tags(['v12'], ok)
            return chk
        self.poll('ML', [self.gload(4, 'v42', 's63')] + ([self.gload(28, 'v42', 's62')] if o['MLTOUCH'] else []), stolen_check(4))
        if o['C2EARLY']:
            a(self.gload(24, 'v42', 's62'))
            if o['WOSPLIT']:
                a(self.gload(28, 'v42', 's62', 1024))
        for r in range(4):
            a(f"v_and_b32 v{4+r}, 0xffffff00, v{4+r}")
        for r in range(4):
            a(f"v_add_f32_dpp v{4+r}, v{4+r}, v{4+r} row_ror:8 row_mask:0xf bank_mask:0xf")
        self.pk_rnd(4, 'v12')
        self.pk_rnd(6, 'v13')
        a("""s_mov_b32 exec_lo, 0
             s_mov_b32 exec_hi, 0x0000ffff""")
        for r in range(4):
            a(f"v_add_f32 v{4+r}, 1.0, v{4+r}")
        self.pk_rnd(4, 'v12')
        self.pk_rnd(6, 'v13')
        a("s_mov_b64 exec, -1")
        a("""v_cvt_pk_bf16_f32 v8, v4, v5
             v_cvt_pk_bf16_f32 v9, v6, v7
             v_mov_b32 v16, 0
             v_mov_b32 v17, 0
             v_mov_b32 v18, 0
             v_mov_b32 v19, 0
             v_mov_b32 v10, v8
             v_mov_b32 v11, v9
             v_mov_b32 v14, v8
             v_mov_b32 v15, v9
             v_permlane32_swap_b32 v10, v16
             v_permlane32_swap_b32 v11, v17
             v_permlane16_swap_b32 v14, v18
             v_permlane16_swap_b32 v15, v19""")
        a(f"""v_mov_b32 v58, v16
              v_mov_b32 v20, v17
              v_mov_b32 v21, v18
              v_mov_b32 v22, v19
              v_mov_b32 v23, {sTAG}
              s_mov_b64 exec, 0xff""")
        self.st_local(20, 'v43', 's66', 2048)
        self.st_global(20, 'v43', 's66', 2048, flag=True)
        a("s_mov_b64 exec, -1")
        a("""v_permlane16_swap_b32 v4, v5
             v_permlane16_swap_b32 v6, v7
             v_permlane32_swap_b32 v4, v6
             v_permlane32_swap_b32 v5, v7
             v_mov_b32 v56, v4
             v_mov_b32 v57, v7""")
        self.stamp(8)
        okc = self.lab('c2first')
        lc2 = self.lab('c2got')
        nst = 2 if (o['LOCAL'] and not o.get('NOGLOBAL') and not o['XFLAG']) else 1
        if o['WOSPLIT']:
            def chk2(q0, q1):
                def chk(ok):
                    self.stolen_tag(q0, 'v12', 'v13')
                    self.stolen_tag(q1, 'v14', 'v13')
                    self.check_tags(['v12', 'v14'], ok)
                return chk
            if o['C2EARLY']:
                a(f"s_waitcnt vmcnt({nst})")
                chk2(24, 28)(okc)
            self.poll('C2', [self.gload(4, 'v42', 's62'), self.gload(8, 'v42', 's62', 1024)], chk2(4, 8))
            a(f"s_branch {lc2}")
            a.label(okc)
            for r in range(8):
                a(f"v_mov_b32 v{4+r}, v{24+r}")
            a.label(lc2)
            for r in range(8):
                a(f"v_and_b32 v{4+r}, 0xffffff00, v{4+r}")
            a("""v_pk_add_f32 v[4:5], v[4:5], v[8:9]
                 v_pk_add_f32 v[6:7], v[6:7], v[10:11]""")
        else:
            if o['C2EARLY']:
                a(f"s_waitcnt vmcnt({nst})")
                self.stolen_tag(24, 'v12', 'v13')
                self.check_tags(['v12'], okc)
            self.poll('C2', [self.gload(4, 'v42', 's62')], stolen_check(4))
            a(f"s_branch {lc2}")
            a.label(okc)
            for r in range(4):
                a(f"v_mov_b32 v{4+r}, v{24+r}")
            a.label(lc2)
            for r in range(4):
                a(f"v_and_b32 v{4+r}, 0xffffff00, v{4+r}")
        self.stamp(9)
        self.red_rows(4)
        if o['FASTX']:
            a("v_fma_f32 v4, v56, v4, v60")
        else:
            self.rnd('v4', 'v4')
            a("v_mul_f32 v4, v56, v4")
            self.rnd('v4', 'v4')
            a("v_add_f32 v4, v60, v4")
        self.rnd('v59', 'v4')
        a(f"""v_mov_b32 v10, v58
              v_mov_b32 v11, {sTAG}""")
        self.rows_to_quad('v8', 'v9', 'v59', 'v12')
        a("s_mov_b64 exec, 0xff")
        self.st_local(8, 'v43', 's66')
        self.stamp(10)
        a("s_barrier")
        self.st_global(8, 'v43', 's66', flag=True)
        a("s_mov_b64 exec, -1")
        end = self.lab('wend')
        a(f"""s_cmp_eq_u32 {sWAVE}, {sG}
              s_cbranch_scc0 {end}
              s_add_u32 s61, s69, 4096""")
        if o.get('ESLEEP'):
            a(f"s_sleep {o['ESLEEP']}")
        loads = []
        for m in range(7):
            if m < 4:
                loads.append(self.gload(64 + 4 * m, 'v42', 's69', 1024 * m))
            else:
                loads.append(self.gload(64 + 4 * m, 'v42', 's61', 1024 * (m - 4)))

        def echk(ok):
            for m in range(7):
                self.stolen_tag(64 + 4 * m, f'v{12+m}', 'v20')
            self.check_tags([f'v{12+m}' for m in range(7)], ok)
        if o['PIPE_E']:
            def loadE(k):
                b = 64 + 28 * k
                return [self.gload(b + 4 * m, 'v42', 's69' if m < 4 else 's61', 1024 * (m & 3)) for m in range(7)]

            def chkE(k, ok):
                b = 64 + 28 * k
                for m in range(7):
                    self.stolen_tag(b + 4 * m, f'v{12+m}', 'v20')
                self.check_tags([f'v{12+m}' for m in range(7)], ok)

            def takeE(k):
                for r in range(28):
                    a(f"v_and_b32 v{160+r}, 0xffffff00, v{64+28*k+r}")
            self.poll_pipe('E', o['PIPE_E'], loadE, chkE, takeE, o['SLP_E'])
            EB = 160
        else:
            self.poll('E', loads, echk)
            EB = 64
            for m in range(7):
                for r in range(4):
                    a(f"v_and_b32 v{64+4*m+r}, 0xffffff00, v{64+4*m+r}")
        self.stamp(11)
        def pk(d, s_):
            a(f"v_pk_add_f32 v[{d}:{d+1}], v[{d}:{d+1}], v[{s_}:{s_+1}]")
        for d, s_ in ((0, 4), (8, 12), (16, 20), (0, 8), (16, 24), (0, 16)):
            pk(EB + d, EB + s_)
            pk(EB + d + 2, EB + s_ + 2)
        self.red_rows(EB)
        e = f"v{EB}"
        if o['FASTX']:
            a(f"v_fma_f32 {e}, v57, {e}, v59")
        else:
            self.rnd(e, e)
            a(f"v_mul_f32 {e}, v57, {e}")
            self.rnd(e, e)
            a(f"v_add_f32 {e}, v59, {e}")
        a(f"""v_cvt_pk_bf16_f32 {e}, {e}, {e}
              s_mov_b32 exec_lo, 0x00ff00ff
              s_mov_b32 exec_hi, 0x00ff00ff
              buffer_store_short {e}, v61, {R2}, s68 offen{' sc0 sc1' if o.get('OUTSC') else ''}
              s_mov_b64 exec, -1""")
        noep = self.lab('noep')
        a(f"""s_cmp_eq_u32 s2, 64
              s_cbranch_scc0 {noep}
              v_mov_b32 v1, 0
              v_mov_b32 v2, {sTAG}
              s_mov_b64 exec, 1
              buffer_store_dword v2, v1, {WSR}, 0 offen offset:{WS_EPOCH}
              s_mov_b64 exec, -1""")
        a.label(noep)
        self.stamp(12)
        a.label(end)
        self.stamps_out(16)
        a("s_endpgm")

    def w_setup1(self, H, O, WQ, WO):
        a = self.a
        a(f"""s_lshl_b32 s61, {sWAVE}, 6
              v_add_u32 v1, s61, v0
              v_lshlrev_b32 v33, 4, v1
              v_lshrrev_b32 v2, 3, v1
              v_lshlrev_b32 v2, 1, v2
              v_and_b32 v3, 1, v1
              v_add_u32 v2, v2, v3""")
        self.perm_pos_bytes('v34', 'v2', 'v3')
        a(f"""v_bfe_u32 v3, v1, 1, 2
              v_mul_u32_u24 v3, 1056, v3
              v_add_u32 v34, v34, v3
              v_add_u32 v34, {H}, v34""")
        a(f"""v_bfe_u32 v2, v1, 4, 2
              v_lshlrev_b32 v2, 5, v2
              v_bfe_u32 v3, v1, 6, 1
              v_lshl_add_u32 v2, v3, 4, v2
              v_and_b32 v3, 15, v1
              v_add_u32 v2, v2, v3""")
        self.perm_pos_bytes('v35', 'v2', 'v3')
        a(f"""v_lshrrev_b32 v3, 7, v1
              v_mul_u32_u24 v3, 1056, v3
              v_add_u32 v35, v35, v3
              v_add_u32 v35, {O}, v35""")
        a(f"""s_and_b32 s61, {sWAVE}, 3
              s_lshl_b32 s61, s61, 5""")
        self.tr_addr_p128('v36', 's61', WQ, 'v1', 'v2')
        a(f"v_add_u32 v37, {WO-WQ}, v36")
        self.act_addr('v38', H, 1056, 'v1')
        a(f"v_add_u32 v39, {O-H}, v38")
        a(f"""v_and_b32 v1, 3, v0
              v_lshlrev_b32 v40, 6, v1
              v_lshrrev_b32 v1, 4, v0
              v_lshl_add_u32 v40, v1, 4, v40
              s_lshl_b32 s57, {sG}, 3
              s_add_u32 s57, s57, s56
              s_lshl_b32 s57, s57, 2
              s_add_u32 s57, s57, {sWAVE}
              s_lshl_b32 s57, s57, 8
              s_add_u32 s57, s57, {WS_B}
              s_mov_b32 s58, {WS_A2}""")

    def build(self):
        self.prologue()
        self.role_m()
        self.role_w()
        self.role_k()
        self.role_v()
        self.a.label("L_END")
        self.a("s_endpgm")
        body = self.a.finalize()
        vg = 256 if self.o['PROF'] else 216
        hdr = HEADER.format(lds=LDS_BYTES)
        return hdr + f""".amdgcn_target "amdgcn-amd-amdhsa--gfx950"
.text
.globl {NAME}
.p2align 8
.type {NAME},@function
{NAME}:
{body}.section .rodata,"a"
.p2align 6
.amdhsa_kernel {NAME}
  .amdhsa_next_free_vgpr {vg}
  .amdhsa_next_free_sgpr 102
  .amdhsa_accum_offset {vg}
  .amdhsa_group_segment_fixed_size 0
  .amdhsa_kernarg_size 112
  .amdhsa_user_sgpr_count 2
  .amdhsa_user_sgpr_kernarg_segment_ptr 1
  .amdhsa_system_sgpr_workgroup_id_x 1
.end_amdhsa_kernel
"""


if __name__ == '__main__':
    opt = {}
    out = None
    for arg in sys.argv[1:]:
        if '=' in arg:
            k, v = arg.split('=', 1)
            opt[k] = int(v) if v.lstrip('-').isdigit() else v
        else:
            out = arg
    g = Gen6(opt)
    txt = g.build()
    if out:
        open(out, 'w').write(txt)
    else:
        sys.stdout.write(txt)
    sys.stderr.write(f"instructions: {g.a.count()}\n")
```

```python
import sys, os
sys.path.insert(0, os.path.dirname(os.path.abspath(__file__)))
import gen as G1
from gen import *
WS_X = 0x800
WS_C2B = 0x1C0000

OPT2 = dict(WWAIT=0, KWAIT=1, VWAIT=1, MTRIG=1, GTRIG=0, PF=1, KSLEEP=0, VSLEEP=0, WSLEEP=0, TOUCH=1, KWIN=4, VWIN=1, WWIN=0, BARDMA=1, VN1=3, WO1=0, MG1=0, IOX=4, WO3=2, VN1ODD=2, PIPE_A2=0, SLP_A2=4, PIPE_C2=0, SLP_C2=2, PIPE_E=3, SLP_E=1, MLTOUCH=0, C2EARLY=1, FASTV=1, FASTLN=1, MEARLY=1, MWIN=0, MSLEEP=0, XFLAG=1, GUMIX=1, HELPQ=0, DPPSEL=1, HELPV=0, KWIN0=0, VWIN2=0, FASTX=0, WOSPLIT=0, LIMIT=100000, GUNT=0, WNT=0, DNT=0, MNT=0, KNT=1, VNT=1, DSPLIT=0, XA1=0)


class Gen6(Gen):
    def __init__(self, opt):
        o = dict(OPT2)
        o.update(opt)
        super().__init__(o)

    def kwait(self, ws=True):
        a = self.a
        a("s_waitcnt lgkmcnt(0)")
        if self.o['PROF']:
            a("s_mov_b32 s70, s96")
            for k in range(1, 16):
                a(f"s_mov_b32 s{70+k}, 0")
            a(f"""s_cmp_eq_u32 {sWAVE}, 0
                  s_cselect_b32 s99, 1, 0
                  s_cmp_eq_u32 {sWAVE}, 7
                  s_cselect_b32 s99, 1, s99""")
            if self.role == 'M':
                a(f"""s_cmp_eq_u32 {sWAVE}, 4
                      s_cselect_b32 s99, 1, s99""")
            if self.role == 'W':
                a(f"""s_cmp_eq_u32 {sWAVE}, {sG}
                      s_cselect_b32 s99, 1, s99""")
            self.stamp(14)
        a(f"s_load_dword {sE}, s[{sWS}:{sWS+1}], {WS_EPOCH}")
        if ws:
            self.srd(40, sWS, WS_SIZE)

    def code_prefetch(self):
        if not self.o['PF']:
            return
        a = self.a
        l = self.lab('pf')
        lp = self.lab('pc')
        a(f"""s_cmp_eq_u32 {sWAVE}, 7
              s_cbranch_scc0 {l}
              s_getpc_b64 s[86:87]""")
        a.label(lp)
        a(f"""s_lshl_b32 s88, {sJ}, 10
              s_sub_u32 s86, s86, {lp}-L_START
              s_subb_u32 s87, s87, 0
              v_lshl_add_u32 v204, v0, 4, s88
              v_min_u32 v204, (L_END-L_START-16)&0xfffffff0, v204
              v_mov_b32 v207, s87
              v_add_co_u32 v206, vcc, s86, v204
              v_addc_co_u32 v207, vcc, 0, v207, vcc
              global_load_dwordx4 v[200:203], v[206:207], off""")
        a.label(l)

    def st_local(self, q, voff, soff, imm=0):
        i = f" offset:{imm}" if imm else ""
        if self.o['LOCAL']:
            self.a(f"""s_or_b32 s39, {soff}, {WS_LOC}
                       buffer_store_dwordx4 v[{q}:{q+3}], {voff}, {WSR}, s39 offen{i}""")
        else:
            self.a(f"buffer_store_dwordx4 v[{q}:{q+3}], {voff}, {WSR}, {soff} offen{i} {self.o['ST']}")

    def st_global(self, q, voff, soff, imm=0, flag=False):
        i = f" offset:{imm}" if imm else ""
        if self.o['LOCAL'] and not self.o.get('NOGLOBAL'):
            l = None
            if flag and self.o['XFLAG']:
                l = self.lab('sg')
                self.a(f"""s_cmp_eq_u32 s90, 1
                           s_cbranch_scc1 {l}""")
            self.a(f"buffer_store_dwordx4 v[{q}:{q+3}], {voff}, {WSR}, {soff} offen{i} {self.o['ST']}")
            if l:
                self.a.label(l)

    def x_publish(self, build_ws):
        if not (self.o['XFLAG'] and self.o['LOCAL']):
            return
        a = self.a
        l = self.lab('xp')
        a(f"""s_cmp_eq_u32 {sWAVE}, 0
              s_cbranch_scc0 {l}""")
        if build_ws:
            self.srd(40, sWS, WS_SIZE)
        a(f"""s_getreg_b32 s39, hwreg(HW_REG_XCC_ID, 0, 4)
              s_add_u32 s39, s39, {sE}
              s_add_u32 s39, s39, {TAGC}
              v_mov_b32 v209, s39
              s_lshl_b32 s39, {sG}, 5
              s_add_u32 s39, s39, {sJ}
              s_lshl_b32 s39, s39, 2
              v_mov_b32 v208, s39
              s_mov_b64 exec, 1
              buffer_store_dword v209, v208, {WSR}, 0 offen offset:{WS_X} {self.o['ST']}
              s_mov_b64 exec, -1""")
        a.label(l)

    def select_tiles(self, D):
        if not self.o['DPPSEL']:
            return Gen.select_tiles(self, D)
        for t in range(1, 4):
            for r in range(4):
                self.a(f"v_mov_b32_dpp v{D[0]+r}, v{D[t]+r} quad_perm:[0,1,2,3] row_mask:0xf bank_mask:{1 << t:#x}")

    def x_load(self, mask=31):
        if not (self.o['XFLAG'] and self.o['LOCAL']):
            return
        self.a(f"""v_and_b32 v211, {mask}, v0
                   v_lshlrev_b32 v211, 2, v211
                   s_lshl_b32 s90, {sG}, 7
                   buffer_load_dword v210, v211, {WSR}, s90 offen offset:{WS_X} sc1""")

    def x_flag(self):
        if not (self.o['XFLAG'] and self.o['LOCAL']):
            return
        self.a(f"""s_getreg_b32 s39, hwreg(HW_REG_XCC_ID, 0, 4)
                   s_add_u32 s39, s39, {sTAG}
                   v_cmp_ne_u32 vcc, s39, v210
                   s_cmp_eq_u64 vcc, 0
                   s_cselect_b32 s90, 1, 0""")

    def poll_pipe(self, name, nsets, load, check, take, sleep):
        a = self.a
        per = len(load(0))
        oks = [self.lab(name + f'ok{k}_') for k in range(nsets)]
        done = self.lab(name + 'done')
        lp = self.lab(name)
        for k in range(nsets - 1):
            for l in load(k):
                a(l)
            if sleep:
                a(f"s_sleep {sleep}")
        a(f"s_mov_b32 {sCNT}, {self.o['LIMIT'] // nsets}")
        a.label(lp)
        for k in range(nsets):
            kn = (k + nsets - 1) % nsets
            for l in load(kn):
                a(l)
            a(f"s_waitcnt vmcnt({per * (nsets - 1)})")
            check(k, oks[k])
            if sleep:
                a(f"s_sleep {sleep}")
        a(f"""s_sub_u32 {sCNT}, {sCNT}, 1
              s_cbranch_scc0 {lp}
              s_branch {oks[0]}""")
        for k in range(nsets - 1, -1, -1):
            a.label(oks[k])
            take(k)
            if k:
                a(f"s_branch {done}")
        a.label(done)

    def silu1(self, x, t):
        a = self.a
        e, r, q, u = [f"v{t+i}" for i in range(4)]
        a(f"""s_mov_b32 s94, 0xbfb8aa3b
              s_mov_b32 s95, 0xb2a57060
              v_mul_f32 {e}, 0xbfb8aa3b, {x}
              v_fma_f32 {r}, {x}, s94, -{e}
              v_fma_f32 {r}, {x}, s95, {r}
              v_exp_f32 {e}, {e}
              v_mul_f32 {r}, 0x3f317218, {r}
              v_add_f32 {r}, 1.0, {r}
              v_mul_f32 {e}, {e}, {r}
              v_add_f32 {e}, 1.0, {e}
              v_rcp_f32 {r}, {e}
              v_cmp_eq_f32 vcc, 0x7f800000, {e}
              v_mul_f32 {q}, {x}, {r}
              v_fma_f32 {u}, -{q}, {e}, {x}
              v_fma_f32 {u}, {u}, {r}, {q}
              v_cndmask_b32 {x}, {u}, {q}, vcc""")

    def wave_sum2(self, v, w, t, u):
        a = self.a
        for pat in ("quad_perm:[1,0,3,2]", "quad_perm:[2,3,0,1]", "row_half_mirror", "row_mirror"):
            a(f"v_add_f32_dpp {v}, {v}, {v} {pat} row_mask:0xf bank_mask:0xf")
            a(f"v_add_f32_dpp {w}, {w}, {w} {pat} row_mask:0xf bank_mask:0xf")
        a(f"""v_mov_b32 {t}, {v}
              v_mov_b32 {u}, {w}
              v_permlane16_swap_b32 {v}, {t}
              v_permlane16_swap_b32 {w}, {u}
              v_add_f32 {v}, {v}, {t}
              v_add_f32 {w}, {w}, {u}
              v_mov_b32 {t}, {v}
              v_mov_b32 {u}, {w}
              v_permlane32_swap_b32 {v}, {t}
              v_permlane32_swap_b32 {w}, {u}
              v_add_f32 {v}, {v}, {t}
              v_add_f32 {w}, {w}, {u}""")

    def ln_stats_pivot(self, x, M2, SD2, RC2, t):
        a = self.a
        t0, t1, t2, t3 = [f"v{t+i}" for i in range(4)]
        a(f"v_readfirstlane_b32 s39, v{x}")
        D = t + 4
        for k in range(8):
            a(f"v_subrev_f32 v{D+k}, s39, v{x+k}")
        a(f"""v_add_f32 {t0}, v{D}, v{D+1}
              v_mul_f32 {t1}, v{D}, v{D}
              v_add_f32 {t2}, v{D+2}, v{D+3}
              v_mul_f32 {t3}, v{D+1}, v{D+1}
              v_add_f32 {t0}, {t0}, {t2}
              v_fmac_f32 {t1}, v{D+2}, v{D+2}
              v_add_f32 {t2}, v{D+4}, v{D+5}
              v_fmac_f32 {t3}, v{D+3}, v{D+3}
              v_add_f32 {t0}, {t0}, {t2}
              v_fmac_f32 {t1}, v{D+4}, v{D+4}
              v_add_f32 {t2}, v{D+6}, v{D+7}
              v_fmac_f32 {t3}, v{D+5}, v{D+5}
              v_add_f32 {t0}, {t0}, {t2}
              v_fmac_f32 {t1}, v{D+6}, v{D+6}
              v_fmac_f32 {t3}, v{D+7}, v{D+7}
              v_add_f32 {t1}, {t1}, {t3}""")
        self.wave_sum2(t0, t1, t2, t3)
        a(f"""v_mul_f32 {t0}, 0x3b000000, {t0}
              v_mul_f32 {t1}, 0x3b000000, {t1}
              v_fma_f32 {t1}, -{t0}, {t0}, {t1}
              v_add_f32 {t0}, s39, {t0}
              v_max_f32 {t1}, 0, {t1}
              v_cvt_pk_bf16_f32 {t1}, {t0}, {t1}
              v_lshlrev_b32 v{M2}, 16, {t1}
              v_and_b32 {t1}, 0xffff0000, {t1}
              v_add_f32 {t1}, 0x3727c5ac, {t1}
              v_mov_b32 v{M2+1}, v{M2}""")
        self.rnd(t1, t1)
        a(f"v_sqrt_f32 {t1}, {t1}")
        self.rnd(f"v{SD2}", t1)
        a(f"""v_rcp_f32 v{RC2}, v{SD2}
              v_mov_b32 v{SD2+1}, v{SD2}
              v_mov_b32 v{RC2+1}, v{RC2}""")

    def ln2_fast(self, X):
        a = self.a
        t = 144
        t0, t1, t2, t3 = [f"v{t+i}" for i in range(4)]
        D = t + 4
        a(f"v_readfirstlane_b32 s39, v{X}")
        csrc = ['v6', 'v8', 'v14', 'v16']
        ssrc = ['v9', 'v10', 'v17', 'v18']
        C, S = 156, 164
        for p in ((0, 2) if self.o['DSPLIT'] else range(4)):
            self.unpack(f'v{C+2*p}', f'v{C+2*p+1}', csrc[p])
        for k in range(8):
            a(f"v_subrev_f32 v{D+k}, s39, v{X+k}")
        a(f"""v_add_f32 {t0}, v{D}, v{D+1}
              v_mul_f32 {t1}, v{D}, v{D}
              v_add_f32 {t2}, v{D+2}, v{D+3}
              v_mul_f32 {t3}, v{D+1}, v{D+1}
              v_add_f32 {t0}, {t0}, {t2}
              v_fmac_f32 {t1}, v{D+2}, v{D+2}
              v_add_f32 {t2}, v{D+4}, v{D+5}
              v_fmac_f32 {t3}, v{D+3}, v{D+3}
              v_add_f32 {t0}, {t0}, {t2}
              v_fmac_f32 {t1}, v{D+4}, v{D+4}
              v_add_f32 {t2}, v{D+6}, v{D+7}
              v_fmac_f32 {t3}, v{D+5}, v{D+5}
              v_add_f32 {t0}, {t0}, {t2}
              v_fmac_f32 {t1}, v{D+6}, v{D+6}
              v_fmac_f32 {t3}, v{D+7}, v{D+7}
              v_add_f32 {t1}, {t1}, {t3}""")
        fill = []
        for p in range(4):
            if not self.o['DSPLIT']:
                fill += [f"v_lshlrev_b32 v{S+2*p}, 16, {ssrc[p]}", f"v_and_b32 v{S+2*p+1}, 0xffff0000, {ssrc[p]}"]
        for pat in ("quad_perm:[1,0,3,2]", "quad_perm:[2,3,0,1]", "row_half_mirror", "row_mirror"):
            a(f"v_add_f32_dpp {t0}, {t0}, {t0} {pat} row_mask:0xf bank_mask:0xf")
            a(f"v_add_f32_dpp {t1}, {t1}, {t1} {pat} row_mask:0xf bank_mask:0xf")
            if fill:
                a(fill.pop(0))
        a(f"""v_mov_b32 {t2}, {t0}
              v_mov_b32 {t3}, {t1}""")
        if fill:
            a(fill.pop(0))
        a(f"""v_permlane16_swap_b32 {t0}, {t2}
              v_permlane16_swap_b32 {t1}, {t3}
              v_add_f32 {t0}, {t0}, {t2}
              v_add_f32 {t1}, {t1}, {t3}
              v_mov_b32 {t2}, {t0}
              v_mov_b32 {t3}, {t1}""")
        if fill:
            a(fill.pop(0))
        a(f"""v_permlane32_swap_b32 {t0}, {t2}
              v_permlane32_swap_b32 {t1}, {t3}
              v_add_f32 {t0}, {t0}, {t2}
              v_add_f32 {t1}, {t1}, {t3}""")
        while fill:
            if fill:
                a(fill.pop(0))
        a(f"""v_mul_f32 v52, 0x3b000000, {t0}
              v_mul_f32 {t1}, 0x3b000000, {t1}
              v_fma_f32 {t1}, -v52, v52, {t1}
              v_mov_b32 v53, v52
              v_max_f32 {t1}, 0, {t1}
              v_add_f32 {t1}, 0x3727c5ac, {t1}
              v_rsq_f32 v54, {t1}""")
        for p in range(4):
            d = D + 2 * p
            a(f"v_pk_add_f32 v[{d}:{d+1}], v[{d}:{d+1}], v[52:53] neg_lo:[0,1] neg_hi:[0,1]")
        a("v_mov_b32 v55, v54")
        for p in range(4):
            c = C + 2 * p
            a(f"v_pk_mul_f32 v[{c}:{c+1}], v[{c}:{c+1}], v[54:55]")
        for p in range(4):
            d, c, q = D + 2 * p, C + 2 * p, S + 2 * p
            a(f"v_pk_fma_f32 v[{d}:{d+1}], v[{d}:{d+1}], v[{c}:{c+1}], v[{q}:{q+1}]")
        for p in range(4):
            a(f"v_cvt_pk_bf16_f32 v{4+p}, v{D+2*p}, v{D+2*p+1}")

    def pk_rnd(self, p, t):
        self.a(f"""v_cvt_pk_bf16_f32 {t}, v{p}, v{p+1}
                   v_lshlrev_b32 v{p}, 16, {t}
                   v_and_b32 v{p+1}, 0xffff0000, {t}""")

    def prologue(self):
        a = self.a
        a.label("L_START")
        a(f"""s_cmp_ge_u32 s2, 256
              s_cbranch_scc1 L_END""")
        if self.o.get('RENUM'):
            a("""s_lshr_b32 s3, s2, 3
                 s_and_b32 s3, s3, 7
                 s_xor_b32 s2, s2, s3""")
        a(f"""              s_load_dwordx16 s[4:19], s[0:1], 0
              s_load_dwordx8 s[20:27], s[0:1], 64
              s_load_dwordx4 s[28:31], s[0:1], 96""")
        if self.o['PROF']:
            a("s_memrealtime s[96:97]")
        a(f"""v_lshrrev_b32 v1, 6, v0
              v_and_b32 v0, 63, v0
              s_and_b32 {sG}, s2, 7
              s_lshr_b32 {sJ}, s2, 3
              v_readfirstlane_b32 {sWAVE}, v1""")
        self.code_prefetch()
        a(f"""s_cmp_ge_u32 {sJ}, 24
              s_cbranch_scc1 L_ENT_V
              s_cmp_ge_u32 {sJ}, 16
              s_cbranch_scc1 L_ENT_K
              s_cmp_ge_u32 {sJ}, 8
              s_cbranch_scc1 L_ENT_W""")

    def ent_v(self):
        a = self.a
        o = self.o
        a.label("L_ENT_V")
        self.role = 'V'
        a(f"""s_sub_u32 s56, {sJ}, 24
              s_lshr_b32 s57, s56, 1
              s_and_b32 s58, s56, 1
              s_lshl_b32 s60, s57, 3
              s_add_u32 s60, s60, {sG}
              s_lshl_b32 s59, s60, 20
              s_add_u32 s59, s59, {3072*256}
              s_lshl_b32 s61, s58, 7
              s_add_u32 s59, s59, s61
              s_lshl_b32 s61, {sWAVE}, 15
              s_add_u32 s59, s59, s61
              s_lshl_b32 s62, {sWAVE}, 14
              s_mov_b32 m0, s62""")
        self.dma_off_p128('v32', 256, 'v1', 'v2')
        self.kwait(ws=False)
        if o['HELPQ']:
            lh = self.lab('hq')
            a(f"""s_cmp_eq_u32 {sWAVE}, {o['HELPQ'] - 1}
                  s_cbranch_scc0 {lh}""")
            self.srd(48, sWQ, 512 * 8192)
            a(f"""v_lshlrev_b32 v212, 13, v0
                  s_lshl_b32 s61, s56, 19
                  s_lshl_b32 s63, {sG}, 10
                  s_add_u32 s61, s61, s63
                  buffer_load_dword v213, v212, {R2}, s61 offen offset:384""")
            a.label(lh)
        self.srd(44, sV, 0x2000000)
        if o.get('VASK'):
            a(f"""s_waitcnt lgkmcnt(0)
                  s_lshl_b32 s59, s60, 20
                  s_add_u32 s59, s59, {3072*256}
                  s_lshl_b32 s61, s58, 17
                  s_add_u32 s59, s59, s61
                  s_lshl_b32 s61, {sWAVE}, 14
                  s_add_u32 s59, s59, s61
                  v_lshlrev_b32 v32, 4, v0""")
            self.x_publish(True)
            self.stamp(15)
            self.dma_loop('v32', R1, 's59', 1024, 16, win=o['VASK'], nt=1)
            a("s_branch L_ROLE_V")
            return
        vlate = o['XFLAG'] and not o['VWAIT']
        if not vlate:
            if o['VWAIT'] or o['XFLAG']:
                a("s_waitcnt lgkmcnt(0)")
            self.x_publish(True)
        if o['VSLEEP']:
            a(f"s_sleep {o['VSLEEP']}")
        self.stamp(15)
        self.only_exit('V', pre=True)
        if vlate:
            a(f"""buffer_load_dwordx4 v32, {R1}, s59 offen {'nt ' if o['VNT'] else ''}lds
                  s_add_u32 s59, s59, 2048
                  s_add_u32 m0, m0, 1024
                  s_waitcnt lgkmcnt(0)""")
            self.x_publish(True)
            assert o['VN1'] >= 2 and o['VN1ODD'] >= 2 or o['VN1'] == o['VN1ODD']
            o = dict(o)
            o['VN1'] -= 1
            o['VN1ODD'] -= 1
            rest = 15
        else:
            rest = 16
        if o['VN1'] and o['VN1ODD'] != o['VN1']:
            a(f"""s_cmp_eq_u32 s58, 1
                  s_cselect_b32 s63, {o['VN1ODD']}, {o['VN1']}
                  s_sub_u32 s66, {rest}, s63""")
            self.dma_loop('v32', R1, 's59', 2048, 's63', win=o['VWIN'], nt=o['VNT'])
            self.dma_loop('v32', R1, 's59', 2048, 's66', win=o['VWIN2'], nt=o['VNT'])
        elif o['VN1']:
            self.dma_loop('v32', R1, 's59', 2048, o['VN1'], win=o['VWIN'], nt=o['VNT'])
            self.dma_loop('v32', R1, 's59', 2048, rest - o['VN1'], win=o['VWIN2'], nt=o['VNT'])
        else:
            self.dma_loop('v32', R1, 's59', 2048, rest, win=o['VWIN'], nt=o['VNT'])
        a("s_branch L_ROLE_V")

    def role_v(self):
        a = self.a
        o = self.o
        RED, ST = 131072, 139776
        F = 64
        a.label("L_ROLE_V")
        self.role = 'V'
        self.srd(40, sWS, WS_SIZE)
        self.only_exit('V')
        a(f"""v_bfe_u32 v1, v0, 2, 2
              v_lshlrev_b32 v33, 9, v1
              v_lshrrev_b32 v2, 4, v0
              v_lshl_add_u32 v33, v2, 6, v33
              v_and_b32 v3, 3, v0
              v_lshl_add_u32 v33, v3, 4, v33
              s_lshl_b32 s63, s60, 14
              s_add_u32 s63, s63, {WS_S}
              s_lshl_b32 s61, {sWAVE}, 11
              s_add_u32 s63, s63, s61""")
        a(f"""v_mul_u32_u24 v38, 272, v3
              v_lshl_add_u32 v38, v1, 6, v38
              v_lshl_add_u32 v38, v2, 4, v38
              s_mul_i32 s61, {sWAVE}, 1088
              s_add_u32 s61, s61, {RED}
              v_add_u32 v38, s61, v38""")
        a(f"""v_lshlrev_b32 v39, 6, v3
              v_add_u32 v40, {ST}, v39
              s_lshl_b32 s61, {sWAVE}, 3
              v_add_u32 v39, s61, v40
              v_lshl_add_u32 v40, v1, 3, v40
              v_and_b32 v2, 1, v2
              v_lshl_add_u32 v40, v2, 5, v40""")
        for t in range(4):
            self.tr_addr_p128(f'v{34+t}', 32 * t, 's62', 'v1', 'v2')
        a(f"""v_lshrrev_b32 v1, 4, v0
              v_mul_u32_u24 v1, 272, v1
              v_and_b32 v2, 15, v0
              v_lshl_add_u32 v1, v2, 4, v1
              v_add_u32 v41, {RED}, v1
              v_lshrrev_b32 v1, 4, v0
              v_lshlrev_b32 v1, 6, v1
              v_add_u32 v43, {ST}, v1
              v_lshlrev_b32 v42, 4, v0
              s_lshl_b32 s66, {sG}, 2
              s_add_u32 s66, s66, s57
              s_lshl_b32 s66, s66, 1
              s_add_u32 s66, s66, s58
              s_lshl_b32 s66, s66, 10
              s_add_u32 s66, s66, {WS_C}""")
        self.tag_ready()
        self.x_load()
        self.stamp(1)

        def first():
            self.stamp(2)
            self.x_flag()
            for s in range(4):
                for t in range(4):
                    for h in range(2):
                        q = F + 16 * s + 4 * t + 2 * h
                        a(f"ds_read_b64_tr_b16 v[{q}:{q+1}], v{34+t} offset:{4096*s+2048*h}")
                if s < 3:
                    a("s_waitcnt lgkmcnt(6)")
        self.poll('S', [self.gload(4, 'v33', 's63'), self.gload(8, 'v33', 's63', 256)],
                  lambda ok: self.check_tags(['v6', 'v10'], ok), first_extra=first, local=['s63'])
        self.stamp(3)
        self.unpack('v12', 'v13', 'v4')
        self.unpack('v14', 'v15', 'v5')
        self.unpack('v16', 'v17', 'v8')
        self.unpack('v18', 'v19', 'v9')
        a("""s_mov_b32 s94, 0x3fb8aa3b
             v_max3_f32 v20, v12, v13, v14
             v_max3_f32 v21, v15, v16, v17
             v_max3_f32 v20, v20, v18, v19
             v_max_f32 v20, v20, v21
             v_max_f32_dpp v20, v20, v20 row_ror:4 row_mask:0xf bank_mask:0xf
             v_max_f32_dpp v20, v20, v20 row_ror:8 row_mask:0xf bank_mask:0xf
             v_mov_b32 v21, v20
             v_permlane16_swap_b32 v20, v21
             v_max_f32 v20, v20, v21
             v_mov_b32 v21, v20
             v_permlane32_swap_b32 v20, v21
             v_max_f32 v20, v20, v21""")
        if o['FASTV']:
            self.v_fast(F)
        else:
            self.v_exact(F)
        self.stamp(5)
        self.stamps_out(16)
        a("s_endpgm")

    def v_fast(self, F):
        a = self.a
        ST = 139776
        a("v_mul_f32 v21, s94, v20")
        for k in range(8):
            a(f"v_fma_f32 v{12+k}, v{12+k}, s94, -v21")
        for k in range(8):
            a(f"v_exp_f32 v{12+k}, v{12+k}")
        for k in range(4):
            a(f"v_cvt_pk_bf16_f32 v{44+k}, v{12+2*k}, v{13+2*k}")
        D = [4, 8, 24, 28]
        done = set()

        def mf(s, t):
            rho = (s - t) & 3
            q = F + 16 * s + 4 * t
            c = f"v[{D[t]}:{D[t]+3}]" if t in done else "0"
            done.add(t)
            a(f"v_mfma_f32_16x16x32_bf16 v[{D[t]}:{D[t]+3}], v[{q}:{q+3}], v[{44+4*rho}:{47+4*rho}], {c}")

        def rot(rho, n):
            for k in range(4):
                a(f"v_mov_b32_dpp v{44+4*rho+k}, v{44+k} row_ror:{n} row_mask:0xf bank_mask:0xf")
        a("s_waitcnt lgkmcnt(0)")
        rot(2, 8)
        for t in range(4):
            mf(t, t)
        rot(1, 12)
        for t in range(4):
            mf((t + 2) & 3, t)
        rot(3, 4)
        for t in range(4):
            mf((t + 1) & 3, t)
        a("""v_add_f32 v22, v12, v13
             v_add_f32 v23, v14, v15
             v_add_f32 v12, v16, v17
             v_add_f32 v13, v18, v19""")
        mf(3, 0)
        a("""v_add_f32 v22, v22, v23
             v_add_f32 v12, v12, v13""")
        mf(0, 1)
        a("v_add_f32 v21, v22, v12")
        mf(1, 2)
        a("v_add_f32_dpp v21, v21, v21 row_ror:4 row_mask:0xf bank_mask:0xf")
        mf(2, 3)
        a("""v_add_f32_dpp v21, v21, v21 row_ror:8 row_mask:0xf bank_mask:0xf
             v_mov_b32 v22, v21
             v_permlane16_swap_b32 v21, v22
             v_add_f32 v21, v21, v22
             v_mov_b32 v22, v21
             v_permlane32_swap_b32 v21, v22
             v_add_f32 v21, v21, v22
             s_mov_b64 exec, 0xf
             ds_write_b64 v39, v[20:21]
             s_mov_b64 exec, -1""")
        self.select_tiles(D)
        a("""ds_write_b128 v38, v[4:7]
             s_waitcnt lgkmcnt(0)
             s_barrier""")
        self.stamp(4)
        done_l = self.lab('vdone')
        a(f"""s_cmp_eq_u32 {sWAVE}, 0
              s_cbranch_scc0 {done_l}""")
        for k in range(4):
            a(f"ds_read_b128 v[{44+4*k}:{47+4*k}], v43 offset:{16*k}")
        for w in range(8):
            a(f"ds_read_b128 v[{64+4*w}:{67+4*w}], v41 offset:{1088*w}")
        a(f"""v_mov_b32 v6, {sTAG}
              v_mov_b32 v7, 0
              s_waitcnt lgkmcnt(8)
              v_max3_f32 v22, v44, v46, v48
              v_max3_f32 v23, v50, v52, v54
              v_max3_f32 v22, v22, v56, v58
              v_max_f32 v22, v22, v23""")
        for k in range(8):
            a(f"v_sub_f32 v{44+2*k}, v{44+2*k}, v22")
        for k in range(8):
            a(f"v_mul_f32 v{44+2*k}, s94, v{44+2*k}")
        for k in range(8):
            a(f"v_exp_f32 v{44+2*k}, v{44+2*k}")
        a("v_mul_f32 v23, v44, v45")
        for k in range(1, 8):
            a(f"v_fmac_f32 v23, v{44+2*k}, v{45+2*k}")
        for k in range(8):
            a(f"v_mov_b32 v{45+2*k}, v{44+2*k}")
        a("v_rcp_f32 v22, v23")
        a("s_waitcnt lgkmcnt(0)")
        a("""v_pk_mul_f32 v[96:97], v[64:65], v[44:45]
             v_pk_mul_f32 v[98:99], v[66:67], v[44:45]
             v_pk_mul_f32 v[100:101], v[68:69], v[46:47]
             v_pk_mul_f32 v[102:103], v[70:71], v[46:47]""")
        for w in range(2, 8):
            d = 96 + 4 * (w & 1)
            a(f"""v_pk_fma_f32 v[{d}:{d+1}], v[{64+4*w}:{65+4*w}], v[{44+2*w}:{45+2*w}], v[{d}:{d+1}]
                  v_pk_fma_f32 v[{d+2}:{d+3}], v[{66+4*w}:{67+4*w}], v[{44+2*w}:{45+2*w}], v[{d+2}:{d+3}]""")
        a("""v_mov_b32 v23, v22
             v_pk_add_f32 v[96:97], v[96:97], v[100:101]
             v_pk_add_f32 v[98:99], v[98:99], v[102:103]
             v_pk_mul_f32 v[96:97], v[96:97], v[22:23]
             v_pk_mul_f32 v[98:99], v[98:99], v[22:23]
             v_cvt_pk_bf16_f32 v4, v96, v97
             v_cvt_pk_bf16_f32 v5, v98, v99""")
        self.st_local(4, 'v42', 's66')
        self.st_global(4, 'v42', 's66', flag=True)
        a.label(done_l)

    def v_exact(self, F):
        a = self.a
        for k in range(8):
            a(f"v_sub_f32 v{12+k}, v{12+k}, v20")
        for k in range(8):
            a(f"v_mul_f32 v{12+k}, s94, v{12+k}")
        for k in range(8):
            a(f"v_exp_f32 v{12+k}, v{12+k}")
        a("""v_add_f32 v22, v12, v13
             v_add_f32 v23, v14, v15
             v_add_f32 v24, v16, v17
             v_add_f32 v25, v18, v19
             v_add_f32 v22, v22, v23
             v_add_f32 v24, v24, v25
             v_add_f32 v21, v22, v24
             v_add_f32_dpp v21, v21, v21 row_ror:4 row_mask:0xf bank_mask:0xf
             v_add_f32_dpp v21, v21, v21 row_ror:8 row_mask:0xf bank_mask:0xf
             v_mov_b32 v22, v21
             v_permlane16_swap_b32 v21, v22
             v_add_f32 v21, v21, v22
             v_mov_b32 v22, v21
             v_permlane32_swap_b32 v21, v22
             v_add_f32 v21, v21, v22
             s_mov_b64 exec, 0xf
             ds_write_b64 v39, v[20:21]
             s_mov_b64 exec, -1
             s_waitcnt lgkmcnt(0)
             s_barrier
             ds_read_b64 v[22:23], v40
             s_waitcnt lgkmcnt(0)
             v_mov_b32 v24, v22
             v_max_f32_dpp v24, v24, v24 row_ror:4 row_mask:0xf bank_mask:0xf
             v_max_f32_dpp v24, v24, v24 row_ror:8 row_mask:0xf bank_mask:0xf
             v_mov_b32 v25, v24
             v_permlane16_swap_b32 v24, v25
             v_max_f32 v24, v24, v25
             v_sub_f32 v22, v22, v24
             v_sub_f32 v20, v20, v24
             v_mul_f32 v22, s94, v22
             v_mul_f32 v20, s94, v20
             v_exp_f32 v22, v22
             v_exp_f32 v20, v20
             v_mul_f32 v22, v22, v23
             v_add_f32_dpp v22, v22, v22 row_ror:4 row_mask:0xf bank_mask:0xf
             v_add_f32_dpp v22, v22, v22 row_ror:8 row_mask:0xf bank_mask:0xf
             v_mov_b32 v23, v22
             v_permlane16_swap_b32 v22, v23
             v_add_f32 v22, v22, v23
             v_rcp_f32 v22, v22
             v_mul_f32 v20, v20, v22""")
        for k in range(8):
            a(f"v_mul_f32 v{12+k}, v{12+k}, v20")
        for k in range(4):
            a(f"v_cvt_pk_bf16_f32 v{44+k}, v{12+2*k}, v{13+2*k}")
        D = [4, 8, 12, 16]
        rot = ((2, 8), (1, 12), (3, 4))
        done = set()

        def mf(s, t):
            rho = (s - t) & 3
            q = F + 16 * s + 4 * t
            c = f"v[{D[t]}:{D[t]+3}]" if t in done else "0"
            done.add(t)
            a(f"v_mfma_f32_16x16x32_bf16 v[{D[t]}:{D[t]+3}], v[{q}:{q+3}], v[{44+4*rho}:{47+4*rho}], {c}")
        for rho, n in rot:
            for k in range(4):
                a(f"v_mov_b32_dpp v{44+4*rho+k}, v{44+k} row_ror:{n} row_mask:0xf bank_mask:0xf")
        for rho in (0, 2, 1, 3):
            for t in range(4):
                mf((t + rho) & 3, t)
        self.select_tiles(D)
        a("""ds_write_b128 v38, v[4:7]
             s_waitcnt lgkmcnt(0)
             s_barrier""")
        self.stamp(4)
        done = self.lab('vdone')
        a(f"""s_cmp_eq_u32 {sWAVE}, 0
              s_cbranch_scc0 {done}""")
        for w in range(8):
            a(f"ds_read_b128 v[{64+4*w}:{67+4*w}], v41 offset:{1088*w}")
        a(f"""v_mov_b32 v6, {sTAG}
              v_mov_b32 v7, 0""")

        def pk(d, s_):
            a(f"v_pk_add_f32 v[{d}:{d+1}], v[{d}:{d+1}], v[{s_}:{s_+1}]")
        for n, (d, s_) in enumerate(((64, 68), (72, 76), (80, 84), (88, 92))):
            a(f"s_waitcnt lgkmcnt({6-2*n})")
            pk(d, s_)
            pk(d + 2, s_ + 2)
        for d, s_ in ((64, 72), (80, 88), (64, 80)):
            pk(d, s_)
            pk(d + 2, s_ + 2)
        a("""v_cvt_pk_bf16_f32 v4, v64, v65
             v_cvt_pk_bf16_f32 v5, v66, v67""")
        self.st_local(4, 'v42', 's66')
        self.st_global(4, 'v42', 's66', flag=True)
        a.label(done)

    def ent_k(self):
        a = self.a
        o = self.o
        a.label("L_ENT_K")
        self.role = 'K'
        a(f"""s_sub_u32 s56, {sJ}, 16
              s_lshr_b32 s57, s56, 1
              s_and_b32 s58, s56, 1
              s_lshl_b32 s60, s57, 3
              s_add_u32 s60, s60, {sG}
              s_lshl_b32 s59, s60, 20
              s_add_u32 s59, s59, {3072*256}
              s_lshl_b32 s61, s58, 17
              s_add_u32 s59, s59, s61
              s_lshl_b32 s62, {sWAVE}, 14
              s_add_u32 s59, s59, s62
              s_mov_b32 m0, s62
              v_lshrrev_b32 v1, 4, v0
              v_and_b32 v2, 15, v0
              v_xor_b32 v3, v1, v2
              v_lshlrev_b32 v3, 4, v3""")
        for v in range(4):
            if v:
                a(f"v_xor_b32 v4, {64*v}, v3")
            a(f"v_lshl_add_u32 v{32+v}, v1, 8, {'v4' if v else 'v3'}")
        self.kwait(ws=False)
        self.srd(44, sK, 0x2000000)
        late = o['XFLAG'] and not o['KWAIT']
        if not late:
            if o['KWAIT'] or o['XFLAG']:
                a("s_waitcnt lgkmcnt(0)")
            self.x_publish(True)
        if o['KSLEEP']:
            a(f"s_sleep {o['KSLEEP']}")
        self.stamp(15)
        self.only_exit('K', pre=True)
        l = self.lab('kdma')
        nit = 4
        if o['KWIN0'] or late:
            for v in range(4):
                i = f" offset:{1024*v}" if v else ""
                if o['KWIN0']:
                    a(f"s_waitcnt vmcnt({o['KWIN0']-1})")
                a(f"buffer_load_dwordx4 v{32+v}, {R1}, s59 offen{i} {'nt ' if o['KNT'] else ''}lds")
            a("""s_add_u32 s59, s59, 4096
                 s_add_u32 m0, m0, 4096""")
            nit = 3
        if late:
            a("s_waitcnt lgkmcnt(0)")
            self.x_publish(True)
        a(f"s_mov_b32 s38, {nit}")
        a.label(l)
        for v in range(4):
            i = f" offset:{1024*v}" if v else ""
            if o['KWIN']:
                a(f"s_waitcnt vmcnt({o['KWIN']-1})")
            a(f"buffer_load_dwordx4 v{32+v}, {R1}, s59 offen{i} {'nt ' if o['KNT'] else ''}lds")
        a(f"""s_add_u32 s59, s59, 4096
              s_add_u32 m0, m0, 4096
              s_sub_u32 s38, s38, 1
              s_cmp_lg_u32 s38, 0
              s_cbranch_scc1 {l}
              s_branch L_ROLE_K""")

    def role_k(self):
        a = self.a
        o = self.o
        QL, SC2 = 131072, 132224
        F = 64
        a.label("L_ROLE_K")
        self.role = 'K'
        self.srd(40, sWS, WS_SIZE)
        self.only_exit('K')
        a(f"""s_lshl_b32 s66, {sG}, 3
              s_add_u32 s66, s66, s56
              s_and_b32 s67, s66, 1
              v_lshrrev_b32 v1, 4, v0
              v_and_b32 v2, 15, v0""")
        a("""v_and_b32 v4, 3, v2
             v_xor_b32 v4, v4, v1
             v_and_b32 v5, 12, v2
             v_lshlrev_b32 v6, 8, v2
             v_add_u32 v6, s62, v6""")
        for t in range(4):
            a(f"""v_xor_b32 v3, {4*t}, v5
                  v_add_u32 v3, v3, v4
                  v_lshl_add_u32 v{36+t}, v3, 4, v6""")
        a(f"""s_lshl_b32 s61, {sWAVE}, 6
              v_add_u32 v5, s61, v0
              v_lshrrev_b32 v6, 2, v5
              v_lshlrev_b32 v6, 8, v6
              v_and_b32 v7, 3, v5
              v_lshl_add_u32 v40, v7, 4, v6
              v_lshrrev_b32 v6, 5, v5
              v_mul_u32_u24 v6, 288, v6
              v_and_b32 v7, 31, v5
              v_lshl_add_u32 v6, v7, 3, v6
              v_add_u32 v41, {QL}, v6
              s_lshl_b32 s69, {sG}, 13
              s_lshl_b32 s61, s57, 6
              s_add_u32 s69, s69, s61
              s_add_u32 s69, s69, {WS_B}""")
        self.act_addr('v42', QL, 288, 'v5')
        a(f"""v_bfe_u32 v5, v0, 2, 2
              v_lshl_add_u32 v5, v5, 2, v1
              v_lshlrev_b32 v5, 6, v5
              v_and_b32 v6, 3, v0
              v_lshl_add_u32 v43, v6, 4, v5
              s_lshl_b32 s63, s60, 14
              s_add_u32 s63, s63, {WS_S}
              s_lshl_b32 s61, s58, 13
              s_add_u32 s63, s63, s61
              s_lshl_b32 s61, {sWAVE}, 10
              s_add_u32 s63, s63, s61""")
        a(f"""s_lshr_b32 s68, s66, 4
              s_add_u32 s68, s68, 1
              s_lshr_b32 s56, s66, 1
              s_and_b32 s56, s56, 7""")
        self.srd(48, sWM, 512 * 6144)
        self.dma_off_p128('v32', 6144, 'v1', 'v2')
        a(f"""s_lshl_b32 s59, s67, 8
              s_lshl_b32 s61, {sWAVE}, 5
              s_add_u32 s59, s59, s61
              s_mul_i32 s59, s59, 6144
              s_lshl_b32 s61, s68, 10
              s_add_u32 s59, s59, s61
              s_lshl_b32 s61, s56, 7
              s_add_u32 s59, s59, s61
              s_add_u32 s59, s59, 2048""")
        self.tag_ready()
        self.x_load()
        self.stamp(1)

        def kfrags():
            self.x_flag()
            for T in range(4):
                for t in range(4):
                    q = F + 16 * T + 4 * t
                    a(f"ds_read_b128 v[{q}:{q+3}], v{36+t} offset:{4096*T}")
                if T == 2:
                    a("s_waitcnt lgkmcnt(6)")
        nopoll = self.lab('knp')
        join = self.lab('kj')
        a(f"""s_cmp_lt_u32 {sWAVE}, 2
              s_cbranch_scc0 {nopoll}""")

        def first():
            self.stamp(2)
            kfrags()
        self.poll('B', [self.gload(4, 'v40', 's69')], lambda ok: self.check_tags(['v6'], ok), first_extra=first, local=['s69'])
        a(f"""ds_write_b64 v41, v[4:5]
              s_branch {join}""")
        a.label(nopoll)
        a("s_waitcnt vmcnt(0)")
        self.stamp(2)
        kfrags()
        a.label(join)
        a("""s_waitcnt lgkmcnt(0)
             s_barrier""")
        self.stamp(3)
        for t in range(4):
            a(f"ds_read_b128 v[{44+4*t}:{47+4*t}], v42 offset:{64*t}")
        D = [4, 8, 12, 16]
        for t in range(4):
            a(f"s_waitcnt lgkmcnt({3-t})")
            for T in range(4):
                q = F + 16 * T + 4 * t
                c = "0" if t == 0 else f"v[{D[T]}:{D[T]+3}]"
                a(f"v_mfma_f32_16x16x32_bf16 v[{D[T]}:{D[T]+3}], v[{q}:{q+3}], v[{44+4*t}:{47+4*t}], {c}")
        self.select_tiles(D)
        a("""v_cvt_pk_bf16_f32 v8, v4, v5
             v_cvt_pk_bf16_f32 v9, v6, v7""")
        self.unpack('v4', 'v5', 'v8')
        self.unpack('v6', 'v7', 'v9')
        for r in range(4):
            a(f"v_mul_f32 v{4+r}, 0x3db504f3, v{4+r}")
        a(f"""v_cvt_pk_bf16_f32 v8, v4, v5
              v_cvt_pk_bf16_f32 v9, v6, v7
              v_mov_b32 v10, {sTAG}
              v_mov_b32 v11, 0""")
        self.st_local(8, 'v43', 's63')
        self.stamp(4)
        end = self.lab('kend')
        a("s_barrier")
        self.st_global(8, 'v43', 's63', flag=True)
        a(f"""s_cmp_lt_u32 s66, 48
              s_cbranch_scc0 {end}
              s_mov_b32 m0, s62""")
        self.srd(52, sC, 4096)
        skipc = self.lab('kc')
        a(f"""s_cmp_lt_u32 {sWAVE}, 4
              s_cbranch_scc0 {skipc}
              s_lshl_b32 s61, {sWAVE}, 10
              s_lshl_b32 s69, s67, 9
              s_add_u32 s69, s69, s61
              v_lshlrev_b32 v7, 3, v0
              buffer_load_dwordx2 v[24:25], v7, {R3}, s69 offen""")
        a.label(skipc)
        self.dma_loop('v32', R2, 's59', 8 * 6144, 4, nt=o['MNT'])
        skips = self.lab('ks')
        a(f"""s_cmp_lt_u32 {sWAVE}, 4
              s_cbranch_scc0 {skips}
              s_waitcnt vmcnt(4)""")
        self.unpack('v8', 'v9', 'v24')
        self.unpack('v10', 'v11', 'v25')
        self.silu4(8, 12)
        a("""v_cvt_pk_bf16_f32 v8, v8, v9
             v_cvt_pk_bf16_f32 v9, v10, v11""")
        self.perm_pos_bytes('v5', 'v0', 'v6')
        a(f"""s_mul_i32 s61, {sWAVE}, 544
              s_add_u32 s61, s61, {SC2}
              v_add_u32 v5, s61, v5
              ds_write_b64 v5, v[8:9]""")
        a.label(skips)
        a(f"s_lshl_b32 s61, {sWAVE}, 5")
        self.tr_addr_p128('v33', 's61', '0', 'v1', 'v2')
        a("v_add_u32 v34, 65536, v33")
        self.act_addr('v35', SC2, 544, 'v1')
        a(f"""v_lshrrev_b32 v1, 5, v0
              v_lshlrev_b32 v36, 10, v1
              v_and_b32 v1, 3, v0
              v_lshl_add_u32 v36, v1, 5, v36
              v_bfe_u32 v1, v0, 4, 1
              v_lshl_add_u32 v36, v1, 4, v36
              s_lshl_b32 s59, s56, 13
              s_lshl_b32 s61, {sWAVE}, 11
              s_add_u32 s59, s59, s61
              s_lshl_b32 s61, s68, 8
              s_add_u32 s59, s59, s61
              s_lshl_b32 s61, s67, 7
              s_add_u32 s59, s59, s61
              s_add_u32 s59, s59, {WS_ML}""")
        self.sel_consts()
        self.tagbytes(28)
        a("""s_waitcnt vmcnt(0) lgkmcnt(0)
             s_barrier""")
        a(f"""s_cmp_lt_u32 {sWAVE}, 4
              s_cbranch_scc0 {end}""")
        for s in range(8):
            a(f"ds_read_b128 v[{96+4*s}:{99+4*s}], v35 offset:{64*s}")
        a("s_waitcnt lgkmcnt(2)")
        for s in range(8):
            va = 'v33' if s < 4 else 'v34'
            for h in range(2):
                q = F + 4 * s + 2 * h
                a(f"ds_read_b64_tr_b16 v[{q}:{q+1}], {va} offset:{16384*(s&3)+2048*h}")
            if s == 5:
                a("s_waitcnt lgkmcnt(6)")
        for s in range(8):
            a(f"s_waitcnt lgkmcnt({max(0, 14-2*s) if s >= 4 else 6})" if s >= 4 else "s_waitcnt lgkmcnt(8)" if s == 0 else "s_nop 0")
            c = "0" if s == 0 else "v[4:7]"
            a(f"v_mfma_f32_16x16x32_bf16 v[4:7], v[{F+4*s}:{F+4*s+3}], v[{96+4*s}:{99+4*s}], {c}")
        self.steal(4, 28)
        a("s_mov_b32 exec_lo, 0x000f000f")
        a("s_mov_b32 exec_hi, 0x000f000f")
        self.gstore(4, 'v36', 's59')
        a("s_mov_b64 exec, -1")
        self.stamp(5)
        a.label(end)
        self.stamps_out(16)
        a("s_endpgm")

    def role_m(self):
        a = self.a
        o = self.o
        M1W, SC, STAT = 0, 16384, 17024
        GATE, UP, DOWN, H2, GU = 32768, 65536, 98304, 131072, 135296
        F = 64
        a.label("L_ENT_M")
        self.role = 'M'
        a(f"""v_lshrrev_b32 v1, 4, v0
              v_and_b32 v3, 15, v0
              v_lshlrev_b32 v2, 1, v1
              v_xor_b32 v2, v2, v3
              v_and_b32 v4, 7, v2
              v_lshlrev_b32 v4, 4, v4
              v_lshrrev_b32 v2, 3, v2
              v_lshl_add_u32 v4, v2, 10, v4
              v_xor_b32 v5, 1024, v4
              v_mul_u32_u24 v1, 6144, v1
              v_add_u32 v32, v1, v4
              v_add_u32 v33, v1, v5
              s_lshl_b32 s59, {sJ}, 6
              s_lshl_b32 s61, {sWAVE}, 3
              s_add_u32 s59, s59, s61
              s_mul_i32 s59, s59, 6144
              s_lshl_b32 s61, {sG}, 7
              s_add_u32 s59, s59, s61
              s_lshl_b32 s61, {sWAVE}, 11
              s_mov_b32 m0, s61
              s_and_b32 s62, {sWAVE}, 3
              s_lshl_b32 s62, s62, 10
              v_lshlrev_b32 v6, 4, v0
              v_lshlrev_b32 v7, 1, v0
              s_lshl_b32 s63, {sJ}, 7
              s_add_u32 s63, s63, s62""")
        self.kwait(ws=False)
        self.srd(44, sWM, 512 * 6144)
        self.srd(48, sC, 4096)
        self.srd(52, sX, 4096)
        l4 = self.lab('m4')
        lx = self.lab('mx')
        a(f"""s_cmp_lt_u32 {sWAVE}, 4
              s_cbranch_scc0 {l4}
              buffer_load_dwordx4 v[24:27], v6, {R3}, s62 offen
              s_branch {lx}""")
        a.label(l4)
        a(f"buffer_load_ushort v24, v7, {R2}, s63 offen")
        a.label(lx)
        self.stamp(15)
        self.only_exit('M', pre=True)
        mnt = 'nt ' if o['MNT'] else ''
        a(f"""buffer_load_dwordx4 v32, {R1}, s59 offen {mnt}lds
              s_add_u32 s59, s59, {4*6144}
              s_add_u32 m0, m0, 1024
              s_nop 0
              buffer_load_dwordx4 v33, {R1}, s59 offen {mnt}lds
              s_branch L_ROLE_M""")
        self.ent_w()
        self.ent_k()
        self.ent_v()
        a.label("L_ROLE_M")
        self.role = 'M'
        self.srd(40, sWS, WS_SIZE)
        self.only_exit('M')
        if o['XFLAG']:
            a("s_waitcnt lgkmcnt(0)")
            self.x_publish(False)
        a(f"""v_bfe_u32 v1, v0, 1, 2
              v_lshlrev_b32 v1, 10, v1
              v_and_b32 v2, 1, v0
              v_lshl_add_u32 v1, v2, 3, v1
              v_lshrrev_b32 v2, 4, v0
              v_lshl_add_u32 v1, v2, 1, v1
              s_lshl_b32 s61, {sG}, 7
              s_lshl_b32 s56, {sJ}, 4
              s_add_u32 s61, s61, s56
              buffer_load_ushort v28, v1, {R3}, s61 offen""")
        if o['TOUCH']:
            lt0 = self.lab('mt0')
            a(f"""s_cmp_eq_u32 {sWAVE}, 4
                  s_cbranch_scc0 {lt0}
                  s_lshl_b32 s61, {sG}, 3
                  s_add_u32 s61, s61, {sJ}
                  s_lshl_b32 s61, s61, 12
                  s_add_u32 s61, s61, {WS_A1 + WS_LOC}
                  v_lshlrev_b32 v2, 4, v0""")
            for m in range(4):
                a(self.gload(64 + 4 * m, 'v2', 's61', 1024 * m))
            a.label(lt0)
        a(f"""v_lshrrev_b32 v1, 4, v0
              v_bfe_u32 v2, v0, 2, 2
              v_lshl_add_u32 v3, v1, 2, v2
              v_lshlrev_b32 v34, 8, v3
              v_and_b32 v3, 1, v1
              v_lshlrev_b32 v3, 3, v3
              v_lshl_add_u32 v3, v2, 1, v3
              s_lshl_b32 s61, {sWAVE}, 1
              v_xor_b32 v3, s61, v3
              v_lshl_add_u32 v34, v3, 4, v34
              v_and_b32 v3, 3, v0
              v_lshl_add_u32 v34, v3, 3, v34""")
        self.act_addr('v35', SC, 160, 'v1')
        a(f"""v_lshrrev_b32 v1, 5, v0
              v_lshlrev_b32 v36, 12, v1
              v_bfe_u32 v1, v0, 2, 1
              v_lshl_add_u32 v36, v1, 10, v36
              v_and_b32 v1, 3, v0
              v_lshl_add_u32 v36, v1, 5, v36
              v_bfe_u32 v1, v0, 4, 1
              v_lshl_add_u32 v36, v1, 4, v36
              s_lshl_b32 s60, {sG}, 15
              s_and_b32 s61, {sWAVE}, 3
              s_lshl_b32 s61, s61, 13
              s_add_u32 s60, s60, s61
              s_lshr_b32 s61, {sWAVE}, 2
              s_lshl_b32 s61, s61, 11
              s_add_u32 s60, s60, s61
              s_lshl_b32 s61, {sJ}, 7
              s_add_u32 s60, s60, s61
              s_add_u32 s60, s60, {WS_A1}""")
        lb = self.lab('mb')
        npf = 1 if o['PF'] else 0
        a(f"""s_cmp_ge_u32 {sWAVE}, 4
              s_cbranch_scc0 {lb}""")
        a("v_lshrrev_b32 v4, 2, v0")
        self.perm_pos_bytes('v5', 'v4', 'v6')
        a(f"""v_and_b32 v6, 3, v0
              v_lshl_add_u32 v5, v6, 1, v5
              s_and_b32 s61, {sWAVE}, 3
              s_mul_i32 s61, s61, 160
              s_add_u32 s61, s61, {SC}
              v_add_u32 v5, s61, v5""")
        if o['TOUCH']:
            lc3 = self.lab('mc3')
            lc7 = self.lab('mc7')
            a(f"""s_cmp_eq_u32 {sWAVE}, 4
                  s_cbranch_scc1 {lc7}
                  s_waitcnt vmcnt(3)""")
            a.label(lc7)
            a("s_waitcnt vmcnt(7)")
        else:
            a("s_waitcnt vmcnt(3)")
        a("v_lshlrev_b32 v8, 16, v24")
        self.silu1('v8', 12)
        a("""v_cvt_pk_bf16_f32 v8, v8, v8
             ds_write_b16 v5, v8""")
        a.label(lb)
        if o['XA1']:
            self.x_load(mask=7)
        a("""s_waitcnt vmcnt(0) lgkmcnt(0)
             s_barrier""")
        self.stamp(1)
        self.frags(F, 'v34', 2, 8192, 4096)
        if o['XA1']:
            a(f"s_add_u32 {sTAG}, {sE}, {TAGC}")
            self.x_flag()
        a(f"""ds_read_b128 v[72:75], v35
              ds_read_b128 v[76:79], v35 offset:64
              s_add_u32 {sTAG}, {sE}, {TAGC}
              s_waitcnt lgkmcnt(0)
              v_mfma_f32_16x16x32_bf16 v[4:7], v[64:67], v[72:75], 0
              v_mfma_f32_16x16x32_bf16 v[4:7], v[68:71], v[76:79], v[4:7]""")
        a(f"""s_mov_b32 exec_lo, 0x00f000f0
              s_mov_b32 exec_hi, 0x00f000f0
              v_mov_b32 v4, v6
              v_mov_b32 v5, v7
              s_mov_b32 exec_lo, 0x00ff00ff
              s_mov_b32 exec_hi, 0x00ff00ff
              v_mov_b32 v6, {sTAG}
              v_mov_b32 v7, 0""")
        self.st_local(4, 'v36', 's60')
        a("s_mov_b64 exec, -1")
        self.stamp(2)
        ls = self.lab('ms')
        lh4 = self.lab('mh4')
        lh = self.lab('mh')
        a(f"""s_cmp_eq_u32 {sWAVE}, 4
              s_cbranch_scc1 {lh4}
              s_cmp_lt_u32 {sWAVE}, 4
              s_cbranch_scc0 {ls}""")
        for k in range(4):
            self.unpack(f'v{8+2*k}', f'v{9+2*k}', f'v{24+k}')
        self.ln_stats(8, 'v20', 'v21', 'v22', 16)
        a(f"""s_lshl_b32 s61, {sWAVE}, 3
              s_add_u32 s61, s61, {STAT}
              v_mov_b32 v1, s61
              s_mov_b64 exec, 1
              ds_write_b64 v1, v[20:21]
              s_mov_b64 exec, -1
              s_waitcnt lgkmcnt(0)""")
        a.label(ls)
        a("""s_mov_b32 exec_lo, 0x00ff00ff
             s_mov_b32 exec_hi, 0x00ff00ff""")
        self.st_global(4, 'v36', 's60', flag=bool(o['XA1']))
        a(f"""s_mov_b64 exec, -1
              s_barrier
              s_branch {lh}""")
        a.label(lh4)
        a("""s_mov_b32 exec_lo, 0x00ff00ff
             s_mov_b32 exec_hi, 0x00ff00ff""")
        self.st_global(4, 'v36', 's60', flag=bool(o['XA1']))
        a(f"""s_mov_b64 exec, -1
              v_bfe_u32 v1, v0, 1, 2
              v_lshlrev_b32 v1, 3, v1
              v_add_u32 v1, {STAT}, v1
              v_lshlrev_b32 v28, 16, v28
              s_lshl_b32 s59, {sG}, 3
              s_add_u32 s59, s59, {sJ}
              s_lshl_b32 s57, s59, 7
              s_add_u32 s57, s57, {WS_A2}
              s_lshl_b32 s59, s59, 12
              s_add_u32 s59, s59, {WS_A1}
              v_lshlrev_b32 v2, 4, v0""")
        self.poll('A1', [self.gload(4 + 4 * m, 'v2', 's59', 1024 * m) for m in range(4)],
                  lambda ok: self.check_tags(['v6', 'v10', 'v14', 'v18'], ok), local=['s59'])
        self.stamp(3)
        a("""s_barrier
             ds_read_b64 v[20:21], v1
             v_mov_b32 v6, v8
             v_mov_b32 v7, v9
             v_mov_b32 v14, v16
             v_mov_b32 v15, v17""")
        for r in range(4):
            a(f"v_add_f32_dpp v{4+r}, v{4+r}, v{4+r} row_ror:8 row_mask:0xf bank_mask:0xf")
        for r in range(4):
            a(f"v_add_f32_dpp v{12+r}, v{12+r}, v{12+r} row_ror:8 row_mask:0xf bank_mask:0xf")
        a("""v_permlane16_swap_b32 v4, v5
             v_permlane16_swap_b32 v6, v7
             v_permlane16_swap_b32 v12, v13
             v_permlane16_swap_b32 v14, v15
             v_add_f32 v4, v4, v5
             v_add_f32 v6, v6, v7
             v_add_f32 v12, v12, v13
             v_add_f32 v14, v14, v15
             v_permlane32_swap_b32 v4, v6
             v_permlane32_swap_b32 v12, v14
             v_add_f32 v4, v4, v6
             v_add_f32 v12, v12, v14
             s_waitcnt lgkmcnt(0)
             v_rcp_f32 v22, v21
             v_cvt_pk_bf16_f32 v4, v4, v12
             v_and_b32 v12, 0xffff0000, v4
             v_lshlrev_b32 v4, 16, v4
             v_add_f32 v12, 1.0, v12""")
        self.ln_elem('v29', 'v28', 'v20', 'v21', 'v22', 'v23', 'v30')
        a(f"""v_mov_b32 v22, {sTAG}
              v_mov_b32 v23, 0""")
        self.rnd('v12', 'v12')
        a("v_mul_f32 v12, v29, v12")
        self.rnd('v12', 'v12')
        a("v_add_f32 v12, v12, v4")
        self.rows_to_quad('v20', 'v21', 'v12', 'v8')
        a("s_mov_b64 exec, 0xff")
        self.gstore(20, 'v2', 's57')
        a("s_mov_b64 exec, -1")
        self.stamp(4)
        a.label(lh)
        a(f"""s_cmp_eq_u32 {sJ}, 7
              s_cbranch_scc1 L_ROLE_GA""")
        a(f"""s_mul_i32 s66, {sG}, 7
              s_add_u32 s66, s66, {sJ}""")
        self.srd(44, sWG, 512 * 3584)
        self.srd(48, sWU, 512 * 3584)
        self.srd(52, sWD, 1792 * 1024)
        a(f"""v_lshrrev_b32 v1, 2, v0
              v_mul_u32_u24 v1, 3584, v1
              v_bfe_u32 v2, v0, 4, 1
              v_lshlrev_b32 v2, 1, v2
              v_and_b32 v3, 3, v0
              v_xor_b32 v2, v2, v3
              v_lshl_add_u32 v32, v2, 4, v1
              v_xor_b32 v2, {1 if o['GUMIX'] else 0}, v2
              v_lshl_add_u32 v31, v2, 4, v1
              s_lshl_b32 s59, {sWAVE}, 6
              s_mul_i32 s59, s59, 3584
              s_lshl_b32 s61, s66, 6
              s_add_u32 s59, s59, s61
              s_mov_b32 s60, s59
              s_lshl_b32 s67, s66, 5
              s_lshl_b32 s61, {sWAVE}, 2
              s_add_u32 s67, s67, s61
              s_lshl_b32 s67, s67, 10
              s_and_b32 s62, {sWAVE}, 1
              s_lshl_b32 s62, s62, 3""")
        for n in range(4):
            a(f"""s_add_u32 s63, s62, {2*n}
                  v_xor_b32 v1, s63, v0
                  v_lshlrev_b32 v{40+n}, 4, v1""")
        if o['GUMIX']:
            a(f"""v_lshrrev_b32 v1, 4, v0
                  v_bfe_u32 v2, v0, 2, 2
                  v_lshl_add_u32 v3, v1, 2, v2
                  v_lshlrev_b32 v33, 6, v3
                  v_and_b32 v3, 1, v1
                  v_lshlrev_b32 v3, 1, v3
                  s_and_b32 s61, {sWAVE}, 3
                  v_xor_b32 v3, s61, v3
                  v_bfe_u32 v4, v0, 1, 1
                  v_xor_b32 v3, v3, v4
                  v_lshl_add_u32 v33, v3, 4, v33
                  v_lshl_add_u32 v33, v4, 15, v33
                  v_and_b32 v3, 1, v0
                  v_lshl_add_u32 v33, v3, 3, v33
                  v_add_u32 v33, {GATE}, v33""")
        else:
            a(f"""v_lshrrev_b32 v1, 4, v0
                  v_bfe_u32 v2, v0, 2, 2
                  v_lshl_add_u32 v3, v1, 2, v2
                  v_lshlrev_b32 v33, 6, v3
                  v_and_b32 v3, 1, v1
                  s_and_b32 s61, {sWAVE}, 1
                  v_xor_b32 v3, s61, v3
                  v_lshl_add_u32 v33, v3, 5, v33
                  v_and_b32 v3, 3, v0
                  v_lshl_add_u32 v33, v3, 3, v33
                  s_bfe_u32 s61, {sWAVE}, 0x10001
                  s_lshl_b32 s61, s61, 15
                  s_add_u32 s61, s61, {GATE}
                  v_add_u32 v33, s61, v33""")
        a(f"""v_lshl_add_u32 v3, v1, 2, v2
              v_lshlrev_b32 v4, 10, v3
              v_and_b32 v5, 3, v0
              v_lshl_add_u32 v4, v5, 3, v4
              v_add_u32 v4, {DOWN}, v4
              v_and_b32 v3, 7, v3
              v_lshlrev_b32 v3, 1, v3
              s_lshl_b32 s61, {sWAVE}, 3
              v_xor_b32 v3, s61, v3""")
        for t in range(4):
            a(f"""v_xor_b32 v5, {2*t}, v3
                  v_lshl_add_u32 v{34+t}, v5, 4, v4""")
        self.act_addr('v38', H2, 1056, 'v1')
        self.act_addr('v39', GU, 96, 'v1')
        a(f"""v_lshlrev_b32 v44, 4, v0
              s_lshl_b32 s68, {sG}, 2
              s_add_u32 s68, s68, {sWAVE}
              s_lshl_b32 s68, s68, 12
              s_add_u32 s68, s68, {WS_D}""")
        self.perm_pos_bytes('v45', 'v0', 'v1')
        a(f"""s_mul_i32 s61, {sWAVE}, 1056
              s_add_u32 s61, s61, {H2}
              v_add_u32 v45, s61, v45""")
        if o['GUMIX']:
            a(f"""v_and_b32 v1, 3, v0
                  v_mul_u32_u24 v46, 96, v1
                  v_lshrrev_b32 v1, 4, v0
                  s_lshl_b32 s61, {sWAVE}, 1
                  v_add_u32 v1, s61, v1
                  v_and_b32 v2, 3, v1
                  v_lshl_add_u32 v46, v2, 4, v46
                  v_bfe_u32 v2, v1, 2, 1
                  v_lshl_add_u32 v46, v2, 3, v46
                  v_add_u32 v46, {GU}, v46""")
        else:
            a(f"""v_and_b32 v1, 3, v0
                  v_mul_u32_u24 v46, 96, v1
                  v_lshrrev_b32 v1, 4, v0
                  v_lshl_add_u32 v46, v1, 4, v46
                  s_and_b32 s61, {sWAVE}, 1
                  s_lshl_b32 s61, s61, 3
                  s_bfe_u32 s62, {sWAVE}, 0x10001
                  s_mul_i32 s62, s62, 384
                  s_add_u32 s61, s61, s62
                  s_add_u32 s61, s61, {GU}
                  v_add_u32 v46, s61, v46""")
        a(f"""v_bfe_u32 v1, v0, 2, 2
              v_lshlrev_b32 v1, 1, v1
              v_lshrrev_b32 v2, 5, v0
              v_add_u32 v1, v1, v2
              v_mul_u32_u24 v47, {56*128}, v1
              v_and_b32 v1, 3, v0
              v_lshl_add_u32 v47, v1, 5, v47
              v_bfe_u32 v1, v0, 4, 1
              v_lshl_add_u32 v47, v1, 4, v47
              s_mul_i32 s63, {sWAVE}, {8*56*128}
              s_lshl_b32 s61, s66, 7
              s_add_u32 s63, s63, s61
              s_add_u32 s63, s63, {WS_E}""")
        self.sel_consts()
        self.tagbytes(48)
        if o['MG1']:
            a(f"""s_barrier
                  s_lshl_b32 s61, {sWAVE}, 12
                  s_add_u32 s61, s61, {GATE}
                  s_mov_b32 m0, s61""")
            self.dma_loop('v32', R1, 's59', 16 * 3584, o['MG1'])
        if o['HELPV']:
            lhv = self.lab('hv')
            a(f"""s_barrier
                  s_cmp_lt_u32 {sJ}, 4
                  s_cbranch_scc0 {lhv}
                  s_mov_b32 s92, s8
                  s_mov_b32 s93, s9
                  s_mov_b32 s94, 0x2000000
                  s_mov_b32 s95, 0x20000
                  s_lshl_b32 s61, {sJ}, 3
                  s_add_u32 s61, s61, {sG}
                  s_lshl_b32 s61, s61, 20
                  s_lshl_b32 s62, {sWAVE}, 15
                  s_add_u32 s61, s61, s62
                  s_add_u32 s61, s61, {(3072 + 128 - 32) * 256}
                  v_lshlrev_b32 v212, 7, v0""")
            for n in range(o['HELPV']):
                a(f"""buffer_load_dword v213, v212, s[92:95], s61 offen
                      s_sub_u32 s61, s61, {32*256}""")
            a.label(lhv)
            self.sel_consts()
        if o['MTRIG']:
            lt = self.lab('mt')
            if o['MEARLY']:
                a(f"""s_lshr_b32 s61, s66, 1
                      s_and_b32 s61, s61, 3
                      s_cmp_eq_u32 s61, 3
                      s_cbranch_scc1 {lt}""")
            a(f"""s_cmp_eq_u32 {sWAVE}, 0
                  s_cbranch_scc0 {lt}
                  v_lshlrev_b32 v2, 10, v0
                  s_lshl_b32 s61, {sG}, 13
                  s_add_u32 s61, s61, {WS_B}""")
            if o['MTRIG'] == 2:
                a(f"""v_lshrrev_b32 v2, 1, v0
                      v_lshlrev_b32 v2, 17, v2
                      v_and_b32 v3, 1, v0
                      v_lshl_add_u32 v2, v3, 13, v2
                      s_lshl_b32 s61, {sG}, 14
                      s_add_u32 s61, s61, {WS_S}""")
            a("s_mov_b64 exec, 0xff")
            self.poll('T', [self.gload(4, 'v2', 's61')], lambda ok: self.check_tags(['v6'], ok), local=['s61'])
            a("s_mov_b64 exec, -1")
            a.label(lt)
        a("s_barrier")
        if o['MSLEEP']:
            lms = self.lab('msl')
            a(f"""s_lshr_b32 s61, s66, 1
                  s_and_b32 s61, s61, 3
                  s_cmp_eq_u32 s61, 3
                  s_cbranch_scc1 {lms}
                  s_sleep {o['MSLEEP']}""")
            a.label(lms)
        a(f"""s_lshl_b32 s61, {sWAVE}, 12
              s_add_u32 s61, s61, {GATE + 1024 * o['MG1']}
              s_mov_b32 m0, s61""")
        if o['MG1'] < 4:
            self.dma_loop('v32', R1, 's59', 16 * 3584, 4 - o['MG1'], win=o['MWIN'], nt=o['GUNT'])
        a(f"""s_sub_u32 s61, s61, {1024 * o['MG1']}
              s_add_u32 s61, s61, {UP-GATE}
              s_mov_b32 m0, s61""")
        self.dma_loop('v31', R2, 's60', 16 * 3584, 4, nt=o['GUNT'])
        a(f"""s_add_u32 s61, s61, {DOWN-UP}
              s_mov_b32 m0, s61
              s_nop 0""")
        for n in range(4):
            a(f"""buffer_load_dwordx4 v{40+n}, {R3}, s67 offen {'nt ' if o['DNT'] else ''}lds
                  s_add_u32 s67, s67, 1024
                  s_add_u32 m0, m0, 1024
                  s_nop 0""")
        a("""s_waitcnt vmcnt(0)
             s_barrier""")
        self.stamp(5)
        for t in range(4):
            for h in range(2):
                q = 128 + 4 * t + 2 * h
                a(f"ds_read_b64_tr_b16 v[{q}:{q+1}], v{34+t} offset:{16384*h}")
        lw = self.lab('mw')
        a(f"""s_cmp_lt_u32 {sWAVE}, 4
              s_cbranch_scc0 {lw}
              s_waitcnt lgkmcnt(0)""")
        for s in range(16):
            for h in range(2):
                q = F + 4 * s + 2 * h
                a(f"ds_read_b64_tr_b16 v[{q}:{q+1}], v33 offset:{2048*s+1024*h}")
            if s in (6, 10):
                a("s_waitcnt lgkmcnt(6)")
        if o['DSPLIT']:
            self.poll('D1', [self.gload(8, 'v44', 's68', 2048), self.gload(16, 'v44', 's68', 3072)],
                      lambda ok: self.check_tags(['v11', 'v19'], ok), local=['s68'])
            for p, src in ((1, 'v8'), (3, 'v16')):
                self.unpack(f'v{156+2*p}', f'v{157+2*p}', src)
            for p, src in enumerate(('v9', 'v10', 'v17', 'v18')):
                self.unpack(f'v{164+2*p}', f'v{165+2*p}', src)
            a(f"s_and_b32 s68, s68, {~WS_LOC & 0xffffffff:#x}")
            self.poll('D', [self.gload(4, 'v44', 's68'), self.gload(12, 'v44', 's68', 1024)],
                      lambda ok: self.check_tags(['v7', 'v15'], ok), local=['s68'])
        else:
            self.poll('D', [self.gload(4, 'v44', 's68'), self.gload(8, 'v44', 's68', 2048),
                            self.gload(12, 'v44', 's68', 1024), self.gload(16, 'v44', 's68', 3072)],
                      lambda ok: self.check_tags(['v7', 'v11', 'v15', 'v19'], ok), local=['s68'])
        self.stamp(6)
        X = 20
        self.unpack(f'v{X}', f'v{X+1}', 'v4')
        self.unpack(f'v{X+2}', f'v{X+3}', 'v5')
        self.unpack(f'v{X+4}', f'v{X+5}', 'v12')
        self.unpack(f'v{X+6}', f'v{X+7}', 'v13')
        if o['FASTLN']:
            self.ln2_fast(X)
        else:
            M2, SD2, RC2 = 52, 54, 56
            self.ln_stats_pivot(X, M2, SD2, RC2, 144)
            csrc = ['v6', 'v8', 'v14', 'v16']
            ssrc = ['v9', 'v10', 'v17', 'v18']
            for p in range(4):
                x = X + 2 * p
                a(f"v_pk_add_f32 v[{x}:{x+1}], v[{x}:{x+1}], v[{M2}:{M2+1}] neg_lo:[0,1] neg_hi:[0,1]")
            for p in range(4):
                self.pk_rnd(X + 2 * p, f'v{144+p}')
            for p in range(4):
                x, q = X + 2 * p, 148 + 2 * p
                a(f"v_pk_mul_f32 v[{q}:{q+1}], v[{x}:{x+1}], v[{RC2}:{RC2+1}]")
            for p in range(4):
                x, q = X + 2 * p, 148 + 2 * p
                a(f"v_pk_fma_f32 v[{x}:{x+1}], v[{q}:{q+1}], v[{SD2}:{SD2+1}], v[{x}:{x+1}] neg_lo:[1,0,0] neg_hi:[1,0,0]")
            for p in range(4):
                x, q = X + 2 * p, 148 + 2 * p
                a(f"v_pk_fma_f32 v[{x}:{x+1}], v[{x}:{x+1}], v[{RC2}:{RC2+1}], v[{q}:{q+1}]")
            for p in range(4):
                self.pk_rnd(X + 2 * p, f'v{144+p}')
            for p in range(4):
                q = 148 + 2 * p
                self.unpack(f'v{q}', f'v{q+1}', csrc[p])
            for p in range(4):
                x, q = X + 2 * p, 148 + 2 * p
                a(f"v_pk_mul_f32 v[{x}:{x+1}], v[{x}:{x+1}], v[{q}:{q+1}]")
            for p in range(4):
                q = 148 + 2 * p
                self.unpack(f'v{q}', f'v{q+1}', ssrc[p])
            for p in range(4):
                self.pk_rnd(X + 2 * p, f'v{144+p}')
            for p in range(4):
                x, q = X + 2 * p, 148 + 2 * p
                a(f"v_pk_add_f32 v[{x}:{x+1}], v[{x}:{x+1}], v[{q}:{q+1}]")
            for p in range(4):
                a(f"v_cvt_pk_bf16_f32 v{4+p}, v{X+2*p}, v{X+2*p+1}")
        a("""ds_write_b64 v45, v[4:5]
             ds_write_b64 v45, v[6:7] offset:512""")
        a.label(lw)
        a("""s_waitcnt lgkmcnt(0)
             s_barrier""")
        self.stamp(7)
        lg = self.lab('mg')
        a(f"""s_cmp_lt_u32 {sWAVE}, 4
              s_cbranch_scc0 {lg}""")
        self.gemv16(4, F, 'v38', 144)
        if o['GUMIX']:
            self.pk_rnd(4, 'v12')
            self.pk_rnd(6, 'v13')
            for r in range(4):
                a(f"v_mov_b32 v{8+r}, v{4+r}")
            for r in range(4):
                a(f"v_permlane32_swap_b32 v{4+r}, v{8+r}")
            for r in range(4):
                a(f"v_max_f32 v{4+r}, 0, v{4+r}")
            a("""v_pk_mul_f32 v[4:5], v[4:5], v[8:9]
                 v_pk_mul_f32 v[6:7], v[6:7], v[10:11]
                 v_cvt_pk_bf16_f32 v8, v4, v5
                 v_cvt_pk_bf16_f32 v9, v6, v7
                 s_mov_b32 exec_lo, 0x000f000f
                 s_mov_b32 exec_hi, 0
                 ds_write_b64 v46, v[8:9]
                 s_mov_b64 exec, -1""")
            a.label(lg)
            a("""s_waitcnt lgkmcnt(0)
                 s_barrier
                 ds_read_b128 v[16:19], v39
                 s_waitcnt lgkmcnt(0)""")
        else:
            a("""v_cvt_pk_bf16_f32 v8, v4, v5
                 v_cvt_pk_bf16_f32 v9, v6, v7
                 s_mov_b32 exec_lo, 0x000f000f
                 s_mov_b32 exec_hi, 0x000f000f
                 ds_write_b64 v46, v[8:9]
                 s_mov_b64 exec, -1""")
            a.label(lg)
            a("""s_waitcnt lgkmcnt(0)
                 s_barrier
                 ds_read_b128 v[4:7], v39
                 ds_read_b128 v[8:11], v39 offset:384
                 s_waitcnt lgkmcnt(0)""")
            for k in range(4):
                self.unpack(f'v{20+2*k}', f'v{21+2*k}', f'v{4+k}')
            for k in range(4):
                self.unpack(f'v{144+2*k}', f'v{145+2*k}', f'v{8+k}')
            for k in range(8):
                a(f"v_max_f32 v{20+k}, 0, v{20+k}")
            for k in range(4):
                a(f"v_pk_mul_f32 v[{20+2*k}:{21+2*k}], v[{20+2*k}:{21+2*k}], v[{144+2*k}:{145+2*k}]")
            for k in range(4):
                a(f"v_cvt_pk_bf16_f32 v{16+k}, v{20+2*k}, v{21+2*k}")
        D = [4, 8, 12, 20]
        for t in range(4):
            a(f"v_mfma_f32_16x16x32_bf16 v[{D[t]}:{D[t]+3}], v[{128+4*t}:{131+4*t}], v[16:19], 0")
        self.select_tiles(D)
        self.steal(4, 48)
        self.gstore(4, 'v47', 's63')
        self.stamp(8)
        self.stamps_out(16)
        a("s_endpgm")

        a.label("L_ROLE_GA")
        S = 131072
        self.srd(48, sC, 4096)
        self.dma_off_p128('v32', 6144, 'v1', 'v2')
        a(f"""s_lshl_b32 s59, {sWAVE}, 6
              s_mul_i32 s59, s59, 6144
              s_lshl_b32 s61, {sG}, 7
              s_add_u32 s59, s59, s61
              s_add_u32 s59, s59, 2048
              s_lshl_b32 s61, {sWAVE}, 13
              s_add_u32 s61, s61, {GATE}
              s_mov_b32 m0, s61
              s_barrier""")
        lc = self.lab('gc')
        a(f"""s_cmp_lt_u32 {sWAVE}, 4
              s_cbranch_scc0 {lc}
              s_lshl_b32 s61, {sWAVE}, 10
              v_lshlrev_b32 v1, 3, v0
              buffer_load_dwordx2 v[24:25], v1, {R2}, s61 offen
              buffer_load_dwordx2 v[26:27], v1, {R2}, s61 offen offset:512""")
        a.label(lc)
        self.dma_loop('v32', R1, 's59', 8 * 6144, 8, nt=o['MNT'])
        lc2 = self.lab('gc2')
        a(f"""s_cmp_lt_u32 {sWAVE}, 4
              s_cbranch_scc0 {lc2}
              s_waitcnt vmcnt(8)""")
        self.perm_pos_bytes('v5', 'v0', 'v6')
        a(f"""s_mul_i32 s61, {sWAVE}, 1056
              s_add_u32 s61, s61, {S}
              v_add_u32 v5, s61, v5""")
        for hf in range(2):
            self.unpack('v8', 'v9', f'v{24+2*hf}')
            self.unpack('v10', 'v11', f'v{25+2*hf}')
            self.silu4(8, 12)
            a(f"""v_cvt_pk_bf16_f32 v8, v8, v9
                  v_cvt_pk_bf16_f32 v9, v10, v11
                  ds_write_b64 v5, v[8:9] offset:{512*hf}""")
        a.label(lc2)
        a(f"s_lshl_b32 s61, {sWAVE}, 5")
        self.tr_addr_p128('v33', 's61', GATE, 'v1', 'v2')
        self.act_addr('v35', S, 1056, 'v1')
        a(f"""v_lshrrev_b32 v1, 5, v0
              v_lshlrev_b32 v36, 10, v1
              v_bfe_u32 v1, v0, 2, 1
              v_lshl_add_u32 v36, v1, 7, v36
              v_and_b32 v1, 3, v0
              v_lshl_add_u32 v36, v1, 5, v36
              v_bfe_u32 v1, v0, 4, 1
              v_lshl_add_u32 v36, v1, 4, v36
              s_lshl_b32 s59, {sG}, 13
              s_lshl_b32 s61, {sWAVE}, 11
              s_add_u32 s59, s59, s61
              s_add_u32 s59, s59, {WS_ML}""")
        self.sel_consts()
        self.tagbytes(28)
        a("""s_waitcnt vmcnt(0) lgkmcnt(0)
             s_barrier""")
        le = self.lab('ge')
        a(f"""s_cmp_lt_u32 {sWAVE}, 4
              s_cbranch_scc0 {le}""")
        for s in range(16):
            for h in range(2):
                q = F + 4 * s + 2 * h
                a(f"ds_read_b64_tr_b16 v[{q}:{q+1}], v33 offset:{4096*s+2048*h}")
            if s in (6, 13):
                a("s_waitcnt lgkmcnt(0)")
        a("s_waitcnt lgkmcnt(0)")
        self.gemv16(4, F, 'v35', 144)
        a("""s_mov_b32 exec_lo, 0x00f000f0
             s_mov_b32 exec_hi, 0x00f000f0""")
        for r in range(4):
            a(f"v_mov_b32 v{4+r}, 0")
        a("""s_mov_b32 exec_lo, 0x00ff00ff
             s_mov_b32 exec_hi, 0x00ff00ff""")
        self.steal(4, 28)
        self.gstore(4, 'v36', 's59')
        a("s_mov_b64 exec, -1")
        a.label(le)
        self.stamp(5)
        self.stamps_out(16)
        a("s_endpgm")

    def ent_w(self):
        a = self.a
        o = self.o
        a.label("L_ENT_W")
        self.role = 'W'
        a(f"s_sub_u32 s56, {sJ}, 8")
        if o.get('ISWZ'):
            a(f"s_xor_b32 s56, s56, {o['ISWZ']}")
        self.dma_off_p128('v32', 8192, 'v1', 'v2')
        a(f"""s_lshl_b32 s59, {sWAVE}, 19
              s_lshl_b32 s61, {sG}, 10
              s_add_u32 s59, s59, s61
              s_lshl_b32 s61, s56, 7
              s_add_u32 s59, s59, s61
              s_lshl_b32 s61, {sWAVE}, 13
              s_mov_b32 m0, s61""")
        self.kwait(ws=False)
        self.srd(44, sWQ, 512 * 8192)
        if o['WWAIT'] == 1:
            a("s_waitcnt lgkmcnt(0)")
        if o['WWAIT'] == 2:
            lw = self.lab('ww')
            a(f"""s_cmp_eq_u32 s56, 3
                  s_cbranch_scc1 {lw}
                  s_waitcnt lgkmcnt(0)""")
            a.label(lw)
        if o['WSLEEP']:
            a(f"s_sleep {o['WSLEEP']}")
        self.stamp(15)
        self.only_exit('W', pre=True)
        self.dma_loop('v32', R1, 's59', 8 * 8192, 8, win=o['WWIN'], nt=o['WNT'])
        a("s_branch L_ROLE_W")

    def role_w(self):
        a = self.a
        o = self.o
        WQ, WO, H, O = 0, 65536, 131072, 135296
        F = 64
        a.label("L_ROLE_W")
        self.role = 'W'
        self.srd(40, sWS, WS_SIZE)
        self.only_exit('W')
        self.w_setup1(H, O, WQ, WO)
        if o['IOX']:
            a(f"s_xor_b32 s56, s56, {o['IOX']}")
        self.srd(52, sX, 4096)
        a(f"""v_bfe_u32 v1, v0, 1, 2
              v_lshlrev_b32 v1, 10, v1
              v_and_b32 v2, 1, v0
              v_lshl_add_u32 v1, v2, 3, v1
              v_lshrrev_b32 v2, 4, v0
              v_lshl_add_u32 v1, v2, 1, v1
              s_lshl_b32 s61, s56, 7
              s_lshl_b32 s62, {sWAVE}, 4
              s_add_u32 s61, s61, s62
              buffer_load_ushort v60, v1, {R3}, s61 offen""")
        self.srd(44, sWO, 4096 * 1024)
        self.dma_off_p128('v32', 1024, 'v1', 'v2')
        a(f"""s_lshl_b32 s59, {sG}, 9
              s_lshl_b32 s61, {sWAVE}, 6
              s_add_u32 s59, s59, s61
              s_lshl_b32 s59, s59, 10
              s_lshl_b32 s61, s56, 7
              s_add_u32 s59, s59, s61
              s_lshl_b32 s67, {sWAVE}, 13
              s_add_u32 s67, s67, {WO}""")
        if o['WO1']:
            a("s_mov_b32 m0, s67")
            self.dma_loop('v32', R1, 's59', 8 * 1024, o['WO1'], nt=o['WNT'])
            a(f"s_add_u32 s67, s67, {1024 * o['WO1']}")
        a("s_mov_b32 s89, 8")
        if o['WO3']:
            l3 = self.lab('wo3')
            a(f"""s_cmp_eq_u32 s56, 3
                  s_cbranch_scc0 {l3}
                  s_mov_b32 m0, s67""")
            self.dma_loop('v32', R1, 's59', 8 * 1024, o['WO3'], nt=o['WNT'])
            a(f"""s_add_u32 s67, s67, {1024 * o['WO3']}
                  s_mov_b32 s89, {8 - o['WO3']}""")
            a.label(l3)
        self.tag_ready()
        self.x_publish(False)
        self.stamp(1)
        lw1 = self.lab('w1')

        def first():
            self.stamp(2)
            self.x_load()
            a("s_barrier")
            a(f"""s_cmp_lt_u32 {sWAVE}, 4
                  s_cbranch_scc0 {lw1}""")
            for s in range(16):
                for h in range(2):
                    q = F + 4 * s + 2 * h
                    a(f"ds_read_b64_tr_b16 v[{q}:{q+1}], v36 offset:{4096*s+2048*h}")
                if s in (6, 10):
                    a("s_waitcnt lgkmcnt(6)")
            a.label(lw1)
        if o['PIPE_A2']:
            okA = self.lab('a2first')
            a(self.gload(4, 'v33', 's58'))
            a("s_waitcnt vmcnt(0)")
            first()
            self.check_tags(['v6'], okA)
            NS = o['PIPE_A2']

            def takeA(k):
                a(f"""v_mov_b32 v4, v{192+4*k}
                      v_mov_b32 v5, v{193+4*k}""")
            self.poll_pipe('A2', NS, lambda k: [self.gload(192 + 4 * k, 'v33', 's58')],
                           lambda k, ok: self.check_tags([f'v{194+4*k}'], ok), takeA, o['SLP_A2'])
            a.label(okA)
        else:
            self.poll('A2', [self.gload(4, 'v33', 's58')],
                      lambda ok: self.check_tags(['v6'], ok), first_extra=first)
        a("""ds_write_b64 v34, v[4:5]
             s_waitcnt lgkmcnt(0)
             s_barrier""")
        self.stamp(3)
        lq = self.lab('wqskip')
        a(f"""s_mov_b32 m0, s67
              s_cmp_lt_u32 {sWAVE}, 4
              s_cbranch_scc0 {lq}""")
        self.gemv16(4, F, 'v38', 128)
        a(f"""v_cvt_pk_bf16_f32 v8, v4, v5
              v_cvt_pk_bf16_f32 v9, v6, v7
              v_mov_b32 v10, {sTAG}
              v_mov_b32 v11, 0
              s_mov_b32 exec_lo, 0x000f000f
              s_mov_b32 exec_hi, 0x000f000f""")
        self.st_local(8, 'v40', 's57')
        a("s_mov_b64 exec, -1")
        a.label(lq)
        a("s_barrier")
        if o['XFLAG']:
            a("s_waitcnt vmcnt(1)")
            self.x_flag()
        self.stamp(4)
        lq3 = self.lab('wq3')
        a(f"""s_cmp_lt_u32 {sWAVE}, 4
              s_cbranch_scc0 {lq3}
              s_mov_b32 exec_lo, 0x000f000f
              s_mov_b32 exec_hi, 0x000f000f""")
        self.st_global(8, 'v40', 's57', flag=True)
        a("s_mov_b64 exec, -1")
        a.label(lq3)
        if o['WO3']:
            self.dma_loop('v32', R1, 's59', 8 * 1024, 's89', nt=o['WNT'])
        elif o['WO1'] < 8:
            self.dma_loop('v32', R1, 's59', 8 * 1024, 8 - o['WO1'], nt=o['WNT'])
        a(f"""s_lshl_b32 s58, {sG}, 13
              s_add_u32 s58, s58, {WS_C}
              v_lshrrev_b32 v1, 5, v0
              v_lshlrev_b32 v41, {11 if o['WOSPLIT'] else 10}, v1
              v_and_b32 v1, 3, v0
              v_lshl_add_u32 v41, v1, 5, v41
              v_bfe_u32 v1, v0, 4, 1
              v_lshl_add_u32 v41, v1, 4, v41
              s_lshl_b32 s57, s56, {14 if o['WOSPLIT'] else 13}
              s_and_b32 s61, {sWAVE}, 3
              s_lshl_b32 s61, s61, {12 if o['WOSPLIT'] else 11}
              s_add_u32 s57, s57, s61
              s_lshr_b32 s61, {sWAVE}, 2
              s_lshl_b32 s61, s61, 10
              s_add_u32 s57, s57, s61
              s_lshl_b32 s61, {sG}, 7
              s_add_u32 s57, s57, s61
              s_add_u32 s57, s57, {WS_C2B if o['WOSPLIT'] else WS_C2}
              v_lshlrev_b32 v42, 4, v0
              s_lshl_b32 s62, s56, 3
              s_add_u32 s62, s62, {sWAVE}
              s_lshl_b32 s63, s62, 10
              s_add_u32 s63, s63, {WS_ML}
              s_lshl_b32 s62, s62, {11 if o['WOSPLIT'] else 10}
              s_add_u32 s62, s62, {WS_C2B if o['WOSPLIT'] else WS_C2}
              ; D publish: ((g*4 + b)*2 + u)*2048 + Q*16, Q = 16i + 2w + q
              v_bfe_u32 v1, v0, 1, 2
              v_lshlrev_b32 v43, 12, v1
              v_and_b32 v1, 1, v0
              v_lshl_add_u32 v43, v1, 4, v43
              s_lshl_b32 s66, {sG}, 14
              s_lshl_b32 s61, s56, 8
              s_add_u32 s66, s66, s61
              s_lshl_b32 s61, {sWAVE}, 5
              s_add_u32 s66, s66, s61
              s_add_u32 s66, s66, {WS_D}
              v_bfe_u32 v1, v0, 1, 2
              v_lshlrev_b32 v61, 10, v1
              v_and_b32 v2, 1, v0
              v_lshl_add_u32 v61, v2, 3, v61
              v_lshrrev_b32 v2, 4, v0
              v_lshl_add_u32 v61, v2, 1, v61
              s_lshl_b32 s68, s56, 7
              s_lshl_b32 s61, {sG}, 4
              s_add_u32 s68, s68, s61
              s_lshl_b32 s69, s56, 3
              s_add_u32 s69, s69, {sG}
              s_mul_i32 s69, s69, {56*128}
              s_add_u32 s69, s69, {WS_E}""")
        if o['TOUCH']:
            a(self.gload(4, 'v42', 's62'))
            a(self.gload(8, 'v42', 's63'))
            lt1 = self.lab('wt1')
            a(f"""s_cmp_eq_u32 {sWAVE}, {sG}
                  s_cbranch_scc0 {lt1}
                  s_add_u32 s61, s69, 4096""")
            for m in range(0 if o.get('NOETOUCH') else 7):
                a(self.gload(64 + 4 * m, 'v42', 's69' if m < 4 else 's61', 1024 * (m & 3)))
            a.label(lt1)
        self.srd(48, sOUT, 4096)
        self.sel_consts()
        self.tagbytes(48)
        a("v_lshlrev_b32 v60, 16, v60")
        lw2 = self.lab('w2')

        def first2():
            self.stamp(5)
            a("s_barrier")
            if o['WOSPLIT']:
                for s in range(8):
                    for h in range(2):
                        q = F + 4 * s + 2 * h
                        a(f"ds_read_b64_tr_b16 v[{q}:{q+1}], v37 offset:{4096*s+2048*h}")
                    if s == 6:
                        a("s_waitcnt lgkmcnt(6)")
                return
            a(f"""s_cmp_lt_u32 {sWAVE}, 4
                  s_cbranch_scc0 {lw2}""")
            for s in range(16):
                for h in range(2):
                    q = F + 4 * s + 2 * h
                    a(f"ds_read_b64_tr_b16 v[{q}:{q+1}], v37 offset:{4096*s+2048*h}")
                if s in (6, 10):
                    a("s_waitcnt lgkmcnt(6)")
            a.label(lw2)
        if o['WOSPLIT']:
            a(f"""s_lshr_b32 s61, {sWAVE}, 2
                  s_lshl_b32 s39, s61, 15
                  v_add_u32 v37, s39, v37
                  s_lshl_b32 s39, s61, 9
                  v_add_u32 v39, s39, v39""")
        self.poll('C', [self.gload(4, 'v33', 's58')], lambda ok: self.check_tags(['v6'], ok), first_extra=first2, local=['s58'])
        a("""ds_write_b64 v35, v[4:5]
             s_waitcnt lgkmcnt(0)
             s_barrier""")
        self.stamp(6)
        lo = self.lab('wo')
        if o['WOSPLIT']:
            for s_ in range(8):
                a(f"ds_read_b128 v[{128+4*s_}:{131+4*s_}], v39 offset:{64*s_}")
            for s_ in range(8):
                a(f"s_waitcnt lgkmcnt({7-s_})")
                c = "0" if s_ == 0 else "v[4:7]"
                a(f"v_mfma_f32_16x16x32_bf16 v[4:7], v[{F+4*s_}:{F+4*s_+3}], v[{128+4*s_}:{131+4*s_}], {c}")
        else:
            a(f"""s_cmp_lt_u32 {sWAVE}, 4
                  s_cbranch_scc0 {lo}""")
            self.gemv16(4, F, 'v39', 128)
        self.steal(4, 48)
        a("""s_mov_b32 exec_lo, 0x000f000f
             s_mov_b32 exec_hi, 0x000f000f""")
        self.gstore(4, 'v41', 's57')
        a("s_mov_b64 exec, -1")
        a.label(lo)
        self.stamp(7)

        def stolen_check(q):
            def chk(ok):
                self.stolen_tag(q, 'v12', 'v13')
                self.check_tags(['v12'], ok)
            return chk
        self.poll('ML', [self.gload(4, 'v42', 's63')] + ([self.gload(28, 'v42', 's62')] if o['MLTOUCH'] else []), stolen_check(4))
        if o['C2EARLY']:
            a(self.gload(24, 'v42', 's62'))
            if o['WOSPLIT']:
                a(self.gload(28, 'v42', 's62', 1024))
        for r in range(4):
            a(f"v_and_b32 v{4+r}, 0xffffff00, v{4+r}")
        for r in range(4):
            a(f"v_add_f32_dpp v{4+r}, v{4+r}, v{4+r} row_ror:8 row_mask:0xf bank_mask:0xf")
        self.pk_rnd(4, 'v12')
        self.pk_rnd(6, 'v13')
        a("""s_mov_b32 exec_lo, 0
             s_mov_b32 exec_hi, 0x0000ffff""")
        for r in range(4):
            a(f"v_add_f32 v{4+r}, 1.0, v{4+r}")
        self.pk_rnd(4, 'v12')
        self.pk_rnd(6, 'v13')
        a("s_mov_b64 exec, -1")
        a("""v_cvt_pk_bf16_f32 v8, v4, v5
             v_cvt_pk_bf16_f32 v9, v6, v7
             v_mov_b32 v16, 0
             v_mov_b32 v17, 0
             v_mov_b32 v18, 0
             v_mov_b32 v19, 0
             v_mov_b32 v10, v8
             v_mov_b32 v11, v9
             v_mov_b32 v14, v8
             v_mov_b32 v15, v9
             v_permlane32_swap_b32 v10, v16
             v_permlane32_swap_b32 v11, v17
             v_permlane16_swap_b32 v14, v18
             v_permlane16_swap_b32 v15, v19""")
        a(f"""v_mov_b32 v58, v16
              v_mov_b32 v20, v17
              v_mov_b32 v21, v18
              v_mov_b32 v22, v19
              v_mov_b32 v23, {sTAG}
              s_mov_b64 exec, 0xff""")
        self.st_local(20, 'v43', 's66', 2048)
        self.st_global(20, 'v43', 's66', 2048, flag=True)
        a("s_mov_b64 exec, -1")
        a("""v_permlane16_swap_b32 v4, v5
             v_permlane16_swap_b32 v6, v7
             v_permlane32_swap_b32 v4, v6
             v_permlane32_swap_b32 v5, v7
             v_mov_b32 v56, v4
             v_mov_b32 v57, v7""")
        self.stamp(8)
        okc = self.lab('c2first')
        lc2 = self.lab('c2got')
        nst = 2 if (o['LOCAL'] and not o.get('NOGLOBAL') and not o['XFLAG']) else 1
        if o['WOSPLIT']:
            def chk2(q0, q1):
                def chk(ok):
                    self.stolen_tag(q0, 'v12', 'v13')
                    self.stolen_tag(q1, 'v14', 'v13')
                    self.check_tags(['v12', 'v14'], ok)
                return chk
            if o['C2EARLY']:
                a(f"s_waitcnt vmcnt({nst})")
                chk2(24, 28)(okc)
            self.poll('C2', [self.gload(4, 'v42', 's62'), self.gload(8, 'v42', 's62', 1024)], chk2(4, 8))
            a(f"s_branch {lc2}")
            a.label(okc)
            for r in range(8):
                a(f"v_mov_b32 v{4+r}, v{24+r}")
            a.label(lc2)
            for r in range(8):
                a(f"v_and_b32 v{4+r}, 0xffffff00, v{4+r}")
            a("""v_pk_add_f32 v[4:5], v[4:5], v[8:9]
                 v_pk_add_f32 v[6:7], v[6:7], v[10:11]""")
        else:
            if o['C2EARLY']:
                a(f"s_waitcnt vmcnt({nst})")
                self.stolen_tag(24, 'v12', 'v13')
                self.check_tags(['v12'], okc)
            self.poll('C2', [self.gload(4, 'v42', 's62')], stolen_check(4))
            a(f"s_branch {lc2}")
            a.label(okc)
            for r in range(4):
                a(f"v_mov_b32 v{4+r}, v{24+r}")
            a.label(lc2)
            for r in range(4):
                a(f"v_and_b32 v{4+r}, 0xffffff00, v{4+r}")
        self.stamp(9)
        self.red_rows(4)
        if o['FASTX']:
            a("v_fma_f32 v4, v56, v4, v60")
        else:
            self.rnd('v4', 'v4')
            a("v_mul_f32 v4, v56, v4")
            self.rnd('v4', 'v4')
            a("v_add_f32 v4, v60, v4")
        self.rnd('v59', 'v4')
        a(f"""v_mov_b32 v10, v58
              v_mov_b32 v11, {sTAG}""")
        self.rows_to_quad('v8', 'v9', 'v59', 'v12')
        a("s_mov_b64 exec, 0xff")
        self.st_local(8, 'v43', 's66')
        self.stamp(10)
        a("s_barrier")
        self.st_global(8, 'v43', 's66', flag=True)
        a("s_mov_b64 exec, -1")
        end = self.lab('wend')
        a(f"""s_cmp_eq_u32 {sWAVE}, {sG}
              s_cbranch_scc0 {end}
              s_add_u32 s61, s69, 4096""")
        if o.get('ESLEEP'):
            a(f"s_sleep {o['ESLEEP']}")
        loads = []
        for m in range(7):
            if m < 4:
                loads.append(self.gload(64 + 4 * m, 'v42', 's69', 1024 * m))
            else:
                loads.append(self.gload(64 + 4 * m, 'v42', 's61', 1024 * (m - 4)))

        def echk(ok):
            for m in range(7):
                self.stolen_tag(64 + 4 * m, f'v{12+m}', 'v20')
            self.check_tags([f'v{12+m}' for m in range(7)], ok)
        if o['PIPE_E']:
            def loadE(k):
                b = 64 + 28 * k
                return [self.gload(b + 4 * m, 'v42', 's69' if m < 4 else 's61', 1024 * (m & 3)) for m in range(7)]

            def chkE(k, ok):
                b = 64 + 28 * k
                for m in range(7):
                    self.stolen_tag(b + 4 * m, f'v{12+m}', 'v20')
                self.check_tags([f'v{12+m}' for m in range(7)], ok)

            def takeE(k):
                for r in range(28):
                    a(f"v_and_b32 v{160+r}, 0xffffff00, v{64+28*k+r}")
            self.poll_pipe('E', o['PIPE_E'], loadE, chkE, takeE, o['SLP_E'])
            EB = 160
        else:
            self.poll('E', loads, echk)
            EB = 64
            for m in range(7):
                for r in range(4):
                    a(f"v_and_b32 v{64+4*m+r}, 0xffffff00, v{64+4*m+r}")
        self.stamp(11)
        def pk(d, s_):
            a(f"v_pk_add_f32 v[{d}:{d+1}], v[{d}:{d+1}], v[{s_}:{s_+1}]")
        for d, s_ in ((0, 4), (8, 12), (16, 20), (0, 8), (16, 24), (0, 16)):
            pk(EB + d, EB + s_)
            pk(EB + d + 2, EB + s_ + 2)
        self.red_rows(EB)
        e = f"v{EB}"
        if o['FASTX']:
            a(f"v_fma_f32 {e}, v57, {e}, v59")
        else:
            self.rnd(e, e)
            a(f"v_mul_f32 {e}, v57, {e}")
            self.rnd(e, e)
            a(f"v_add_f32 {e}, v59, {e}")
        a(f"""v_cvt_pk_bf16_f32 {e}, {e}, {e}
              s_mov_b32 exec_lo, 0x00ff00ff
              s_mov_b32 exec_hi, 0x00ff00ff
              buffer_store_short {e}, v61, {R2}, s68 offen{' sc0 sc1' if o.get('OUTSC') else ''}
              s_mov_b64 exec, -1""")
        noep = self.lab('noep')
        a(f"""s_cmp_eq_u32 s2, 64
              s_cbranch_scc0 {noep}
              v_mov_b32 v1, 0
              v_mov_b32 v2, {sTAG}
              s_mov_b64 exec, 1
              buffer_store_dword v2, v1, {WSR}, 0 offen offset:{WS_EPOCH}
              s_mov_b64 exec, -1""")
        a.label(noep)
        self.stamp(12)
        a.label(end)
        self.stamps_out(16)
        a("s_endpgm")

    def w_setup1(self, H, O, WQ, WO):
        a = self.a
        a(f"""s_lshl_b32 s61, {sWAVE}, 6
              v_add_u32 v1, s61, v0
              v_lshlrev_b32 v33, 4, v1
              v_lshrrev_b32 v2, 3, v1
              v_lshlrev_b32 v2, 1, v2
              v_and_b32 v3, 1, v1
              v_add_u32 v2, v2, v3""")
        self.perm_pos_bytes('v34', 'v2', 'v3')
        a(f"""v_bfe_u32 v3, v1, 1, 2
              v_mul_u32_u24 v3, 1056, v3
              v_add_u32 v34, v34, v3
              v_add_u32 v34, {H}, v34""")
        a(f"""v_bfe_u32 v2, v1, 4, 2
              v_lshlrev_b32 v2, 5, v2
              v_bfe_u32 v3, v1, 6, 1
              v_lshl_add_u32 v2, v3, 4, v2
              v_and_b32 v3, 15, v1
              v_add_u32 v2, v2, v3""")
        self.perm_pos_bytes('v35', 'v2', 'v3')
        a(f"""v_lshrrev_b32 v3, 7, v1
              v_mul_u32_u24 v3, 1056, v3
              v_add_u32 v35, v35, v3
              v_add_u32 v35, {O}, v35""")
        a(f"""s_and_b32 s61, {sWAVE}, 3
              s_lshl_b32 s61, s61, 5""")
        self.tr_addr_p128('v36', 's61', WQ, 'v1', 'v2')
        a(f"v_add_u32 v37, {WO-WQ}, v36")
        self.act_addr('v38', H, 1056, 'v1')
        a(f"v_add_u32 v39, {O-H}, v38")
        a(f"""v_and_b32 v1, 3, v0
              v_lshlrev_b32 v40, 6, v1
              v_lshrrev_b32 v1, 4, v0
              v_lshl_add_u32 v40, v1, 4, v40
              s_lshl_b32 s57, {sG}, 3
              s_add_u32 s57, s57, s56
              s_lshl_b32 s57, s57, 2
              s_add_u32 s57, s57, {sWAVE}
              s_lshl_b32 s57, s57, 8
              s_add_u32 s57, s57, {WS_B}
              s_mov_b32 s58, {WS_A2}""")

    def build(self):
        self.prologue()
        self.role_m()
        self.role_w()
        self.role_k()
        self.role_v()
        self.a.label("L_END")
        self.a("s_endpgm")
        body = self.a.finalize()
        vg = 256 if self.o['PROF'] else 216
        hdr = HEADER.format(lds=LDS_BYTES)
        return hdr + f""".amdgcn_target "amdgcn-amd-amdhsa--gfx950"
.text
.globl {NAME}
.p2align 8
.type {NAME},@function
{NAME}:
{body}.section .rodata,"a"
.p2align 6
.amdhsa_kernel {NAME}
  .amdhsa_next_free_vgpr {vg}
  .amdhsa_next_free_sgpr 102
  .amdhsa_accum_offset {vg}
  .amdhsa_group_segment_fixed_size 0
  .amdhsa_kernarg_size 112
  .amdhsa_user_sgpr_count 2
  .amdhsa_user_sgpr_kernarg_segment_ptr 1
  .amdhsa_system_sgpr_workgroup_id_x 1
.end_amdhsa_kernel
"""


if __name__ == '__main__':
    opt = {}
    out = None
    for arg in sys.argv[1:]:
        if '=' in arg:
            k, v = arg.split('=', 1)
            opt[k] = int(v) if v.lstrip('-').isdigit() else v
        else:
            out = arg
    g = Gen6(opt)
    txt = g.build()
    if out:
        open(out, 'w').write(txt)
    else:
        sys.stdout.write(txt)
    sys.stderr.write(f"instructions: {g.a.count()}\n")
```

```python
import sys, os
sys.path.insert(0, os.path.dirname(os.path.abspath(__file__)))
import gen as G1
from gen import *
WS_X = 0x800
WS_C2B = 0x1C0000

OPT2 = dict(WWAIT=0, KWAIT=1, VWAIT=1, MTRIG=1, GTRIG=0, PF=1, KSLEEP=0, VSLEEP=0, WSLEEP=0, TOUCH=1, KWIN=4, VWIN=1, WWIN=0, BARDMA=1, VN1=3, WO1=0, MG1=0, IOX=4, WO3=2, VN1ODD=2, PIPE_A2=0, SLP_A2=4, PIPE_C2=0, SLP_C2=2, PIPE_E=3, SLP_E=1, MLTOUCH=0, C2EARLY=1, FASTV=1, FASTLN=1, MEARLY=1, MWIN=0, MSLEEP=0, XFLAG=1, GUMIX=1, HELPQ=0, DPPSEL=1, HELPV=0, KWIN0=0, VWIN2=0, FASTX=0, WOSPLIT=0, LIMIT=100000, GUNT=0, WNT=0, DNT=0, MNT=0, KNT=1, VNT=1, DSPLIT=0, XA1=0, MTW=0, MFAST=0)


class Gen6(Gen):
    def __init__(self, opt):
        o = dict(OPT2)
        o.update(opt)
        super().__init__(o)

    def kwait(self, ws=True):
        a = self.a
        a("s_waitcnt lgkmcnt(0)")
        if self.o['PROF']:
            a("s_mov_b32 s70, s96")
            for k in range(1, 16):
                a(f"s_mov_b32 s{70+k}, 0")
            a(f"""s_cmp_eq_u32 {sWAVE}, 0
                  s_cselect_b32 s99, 1, 0
                  s_cmp_eq_u32 {sWAVE}, 7
                  s_cselect_b32 s99, 1, s99""")
            if self.role == 'M':
                a(f"""s_cmp_eq_u32 {sWAVE}, 4
                      s_cselect_b32 s99, 1, s99""")
            if self.role == 'W':
                a(f"""s_cmp_eq_u32 {sWAVE}, {sG}
                      s_cselect_b32 s99, 1, s99""")
            self.stamp(14)
        a(f"s_load_dword {sE}, s[{sWS}:{sWS+1}], {WS_EPOCH}")
        if ws:
            self.srd(40, sWS, WS_SIZE)

    def code_prefetch(self):
        if not self.o['PF']:
            return
        a = self.a
        l = self.lab('pf')
        lp = self.lab('pc')
        a(f"""s_cmp_eq_u32 {sWAVE}, 7
              s_cbranch_scc0 {l}
              s_getpc_b64 s[86:87]""")
        a.label(lp)
        a(f"""s_lshl_b32 s88, {sJ}, 10
              s_sub_u32 s86, s86, {lp}-L_START
              s_subb_u32 s87, s87, 0
              v_lshl_add_u32 v204, v0, 4, s88
              v_min_u32 v204, (L_END-L_START-16)&0xfffffff0, v204
              v_mov_b32 v207, s87
              v_add_co_u32 v206, vcc, s86, v204
              v_addc_co_u32 v207, vcc, 0, v207, vcc
              global_load_dwordx4 v[200:203], v[206:207], off""")
        a.label(l)

    def st_local(self, q, voff, soff, imm=0):
        i = f" offset:{imm}" if imm else ""
        if self.o['LOCAL']:
            self.a(f"""s_or_b32 s39, {soff}, {WS_LOC}
                       buffer_store_dwordx4 v[{q}:{q+3}], {voff}, {WSR}, s39 offen{i}""")
        else:
            self.a(f"buffer_store_dwordx4 v[{q}:{q+3}], {voff}, {WSR}, {soff} offen{i} {self.o['ST']}")

    def st_global(self, q, voff, soff, imm=0, flag=False):
        i = f" offset:{imm}" if imm else ""
        if self.o['LOCAL'] and not self.o.get('NOGLOBAL'):
            l = None
            if flag and self.o['XFLAG']:
                l = self.lab('sg')
                self.a(f"""s_cmp_eq_u32 s90, 1
                           s_cbranch_scc1 {l}""")
            self.a(f"buffer_store_dwordx4 v[{q}:{q+3}], {voff}, {WSR}, {soff} offen{i} {self.o['ST']}")
            if l:
                self.a.label(l)

    def x_publish(self, build_ws):
        if not (self.o['XFLAG'] and self.o['LOCAL']):
            return
        a = self.a
        l = self.lab('xp')
        a(f"""s_cmp_eq_u32 {sWAVE}, 0
              s_cbranch_scc0 {l}""")
        if build_ws:
            self.srd(40, sWS, WS_SIZE)
        a(f"""s_getreg_b32 s39, hwreg(HW_REG_XCC_ID, 0, 4)
              s_add_u32 s39, s39, {sE}
              s_add_u32 s39, s39, {TAGC}
              v_mov_b32 v209, s39
              s_lshl_b32 s39, {sG}, 5
              s_add_u32 s39, s39, {sJ}
              s_lshl_b32 s39, s39, 2
              v_mov_b32 v208, s39
              s_mov_b64 exec, 1
              buffer_store_dword v209, v208, {WSR}, 0 offen offset:{WS_X} {self.o['ST']}
              s_mov_b64 exec, -1""")
        a.label(l)

    def select_tiles(self, D):
        if not self.o['DPPSEL']:
            return Gen.select_tiles(self, D)
        for t in range(1, 4):
            for r in range(4):
                self.a(f"v_mov_b32_dpp v{D[0]+r}, v{D[t]+r} quad_perm:[0,1,2,3] row_mask:0xf bank_mask:{1 << t:#x}")

    def x_load(self, mask=31):
        if not (self.o['XFLAG'] and self.o['LOCAL']):
            return
        self.a(f"""v_and_b32 v211, {mask}, v0
                   v_lshlrev_b32 v211, 2, v211
                   s_lshl_b32 s90, {sG}, 7
                   buffer_load_dword v210, v211, {WSR}, s90 offen offset:{WS_X} sc1""")

    def x_flag(self):
        if not (self.o['XFLAG'] and self.o['LOCAL']):
            return
        self.a(f"""s_getreg_b32 s39, hwreg(HW_REG_XCC_ID, 0, 4)
                   s_add_u32 s39, s39, {sTAG}
                   v_cmp_ne_u32 vcc, s39, v210
                   s_cmp_eq_u64 vcc, 0
                   s_cselect_b32 s90, 1, 0""")

    def poll_pipe(self, name, nsets, load, check, take, sleep):
        a = self.a
        per = len(load(0))
        oks = [self.lab(name + f'ok{k}_') for k in range(nsets)]
        done = self.lab(name + 'done')
        lp = self.lab(name)
        for k in range(nsets - 1):
            for l in load(k):
                a(l)
            if sleep:
                a(f"s_sleep {sleep}")
        a(f"s_mov_b32 {sCNT}, {self.o['LIMIT'] // nsets}")
        a.label(lp)
        for k in range(nsets):
            kn = (k + nsets - 1) % nsets
            for l in load(kn):
                a(l)
            a(f"s_waitcnt vmcnt({per * (nsets - 1)})")
            check(k, oks[k])
            if sleep:
                a(f"s_sleep {sleep}")
        a(f"""s_sub_u32 {sCNT}, {sCNT}, 1
              s_cbranch_scc0 {lp}
              s_branch {oks[0]}""")
        for k in range(nsets - 1, -1, -1):
            a.label(oks[k])
            take(k)
            if k:
                a(f"s_branch {done}")
        a.label(done)

    def silu1(self, x, t):
        a = self.a
        e, r, q, u = [f"v{t+i}" for i in range(4)]
        a(f"""s_mov_b32 s94, 0xbfb8aa3b
              s_mov_b32 s95, 0xb2a57060
              v_mul_f32 {e}, 0xbfb8aa3b, {x}
              v_fma_f32 {r}, {x}, s94, -{e}
              v_fma_f32 {r}, {x}, s95, {r}
              v_exp_f32 {e}, {e}
              v_mul_f32 {r}, 0x3f317218, {r}
              v_add_f32 {r}, 1.0, {r}
              v_mul_f32 {e}, {e}, {r}
              v_add_f32 {e}, 1.0, {e}
              v_rcp_f32 {r}, {e}
              v_cmp_eq_f32 vcc, 0x7f800000, {e}
              v_mul_f32 {q}, {x}, {r}
              v_fma_f32 {u}, -{q}, {e}, {x}
              v_fma_f32 {u}, {u}, {r}, {q}
              v_cndmask_b32 {x}, {u}, {q}, vcc""")

    def wave_sum2(self, v, w, t, u):
        a = self.a
        for pat in ("quad_perm:[1,0,3,2]", "quad_perm:[2,3,0,1]", "row_half_mirror", "row_mirror"):
            a(f"v_add_f32_dpp {v}, {v}, {v} {pat} row_mask:0xf bank_mask:0xf")
            a(f"v_add_f32_dpp {w}, {w}, {w} {pat} row_mask:0xf bank_mask:0xf")
        a(f"""v_mov_b32 {t}, {v}
              v_mov_b32 {u}, {w}
              v_permlane16_swap_b32 {v}, {t}
              v_permlane16_swap_b32 {w}, {u}
              v_add_f32 {v}, {v}, {t}
              v_add_f32 {w}, {w}, {u}
              v_mov_b32 {t}, {v}
              v_mov_b32 {u}, {w}
              v_permlane32_swap_b32 {v}, {t}
              v_permlane32_swap_b32 {w}, {u}
              v_add_f32 {v}, {v}, {t}
              v_add_f32 {w}, {w}, {u}""")

    def ln_stats_pivot(self, x, M2, SD2, RC2, t):
        a = self.a
        t0, t1, t2, t3 = [f"v{t+i}" for i in range(4)]
        a(f"v_readfirstlane_b32 s39, v{x}")
        D = t + 4
        for k in range(8):
            a(f"v_subrev_f32 v{D+k}, s39, v{x+k}")
        a(f"""v_add_f32 {t0}, v{D}, v{D+1}
              v_mul_f32 {t1}, v{D}, v{D}
              v_add_f32 {t2}, v{D+2}, v{D+3}
              v_mul_f32 {t3}, v{D+1}, v{D+1}
              v_add_f32 {t0}, {t0}, {t2}
              v_fmac_f32 {t1}, v{D+2}, v{D+2}
              v_add_f32 {t2}, v{D+4}, v{D+5}
              v_fmac_f32 {t3}, v{D+3}, v{D+3}
              v_add_f32 {t0}, {t0}, {t2}
              v_fmac_f32 {t1}, v{D+4}, v{D+4}
              v_add_f32 {t2}, v{D+6}, v{D+7}
              v_fmac_f32 {t3}, v{D+5}, v{D+5}
              v_add_f32 {t0}, {t0}, {t2}
              v_fmac_f32 {t1}, v{D+6}, v{D+6}
              v_fmac_f32 {t3}, v{D+7}, v{D+7}
              v_add_f32 {t1}, {t1}, {t3}""")
        self.wave_sum2(t0, t1, t2, t3)
        a(f"""v_mul_f32 {t0}, 0x3b000000, {t0}
              v_mul_f32 {t1}, 0x3b000000, {t1}
              v_fma_f32 {t1}, -{t0}, {t0}, {t1}
              v_add_f32 {t0}, s39, {t0}
              v_max_f32 {t1}, 0, {t1}
              v_cvt_pk_bf16_f32 {t1}, {t0}, {t1}
              v_lshlrev_b32 v{M2}, 16, {t1}
              v_and_b32 {t1}, 0xffff0000, {t1}
              v_add_f32 {t1}, 0x3727c5ac, {t1}
              v_mov_b32 v{M2+1}, v{M2}""")
        self.rnd(t1, t1)
        a(f"v_sqrt_f32 {t1}, {t1}")
        self.rnd(f"v{SD2}", t1)
        a(f"""v_rcp_f32 v{RC2}, v{SD2}
              v_mov_b32 v{SD2+1}, v{SD2}
              v_mov_b32 v{RC2+1}, v{RC2}""")

    def ln2_fast(self, X):
        a = self.a
        t = 144
        t0, t1, t2, t3 = [f"v{t+i}" for i in range(4)]
        D = t + 4
        a(f"v_readfirstlane_b32 s39, v{X}")
        csrc = ['v6', 'v8', 'v14', 'v16']
        ssrc = ['v9', 'v10', 'v17', 'v18']
        C, S = 156, 164
        for p in ((0, 2) if self.o['DSPLIT'] else range(4)):
            self.unpack(f'v{C+2*p}', f'v{C+2*p+1}', csrc[p])
        for k in range(8):
            a(f"v_subrev_f32 v{D+k}, s39, v{X+k}")
        a(f"""v_add_f32 {t0}, v{D}, v{D+1}
              v_mul_f32 {t1}, v{D}, v{D}
              v_add_f32 {t2}, v{D+2}, v{D+3}
              v_mul_f32 {t3}, v{D+1}, v{D+1}
              v_add_f32 {t0}, {t0}, {t2}
              v_fmac_f32 {t1}, v{D+2}, v{D+2}
              v_add_f32 {t2}, v{D+4}, v{D+5}
              v_fmac_f32 {t3}, v{D+3}, v{D+3}
              v_add_f32 {t0}, {t0}, {t2}
              v_fmac_f32 {t1}, v{D+4}, v{D+4}
              v_add_f32 {t2}, v{D+6}, v{D+7}
              v_fmac_f32 {t3}, v{D+5}, v{D+5}
              v_add_f32 {t0}, {t0}, {t2}
              v_fmac_f32 {t1}, v{D+6}, v{D+6}
              v_fmac_f32 {t3}, v{D+7}, v{D+7}
              v_add_f32 {t1}, {t1}, {t3}""")
        fill = []
        for p in range(4):
            if not self.o['DSPLIT']:
                fill += [f"v_lshlrev_b32 v{S+2*p}, 16, {ssrc[p]}", f"v_and_b32 v{S+2*p+1}, 0xffff0000, {ssrc[p]}"]
        for pat in ("quad_perm:[1,0,3,2]", "quad_perm:[2,3,0,1]", "row_half_mirror", "row_mirror"):
            a(f"v_add_f32_dpp {t0}, {t0}, {t0} {pat} row_mask:0xf bank_mask:0xf")
            a(f"v_add_f32_dpp {t1}, {t1}, {t1} {pat} row_mask:0xf bank_mask:0xf")
            if fill:
                a(fill.pop(0))
        a(f"""v_mov_b32 {t2}, {t0}
              v_mov_b32 {t3}, {t1}""")
        if fill:
            a(fill.pop(0))
        a(f"""v_permlane16_swap_b32 {t0}, {t2}
              v_permlane16_swap_b32 {t1}, {t3}
              v_add_f32 {t0}, {t0}, {t2}
              v_add_f32 {t1}, {t1}, {t3}
              v_mov_b32 {t2}, {t0}
              v_mov_b32 {t3}, {t1}""")
        if fill:
            a(fill.pop(0))
        a(f"""v_permlane32_swap_b32 {t0}, {t2}
              v_permlane32_swap_b32 {t1}, {t3}
              v_add_f32 {t0}, {t0}, {t2}
              v_add_f32 {t1}, {t1}, {t3}""")
        while fill:
            if fill:
                a(fill.pop(0))
        a(f"""v_mul_f32 v52, 0x3b000000, {t0}
              v_mul_f32 {t1}, 0x3b000000, {t1}
              v_fma_f32 {t1}, -v52, v52, {t1}
              v_mov_b32 v53, v52
              v_max_f32 {t1}, 0, {t1}
              v_add_f32 {t1}, 0x3727c5ac, {t1}
              v_rsq_f32 v54, {t1}""")
        for p in range(4):
            d = D + 2 * p
            a(f"v_pk_add_f32 v[{d}:{d+1}], v[{d}:{d+1}], v[52:53] neg_lo:[0,1] neg_hi:[0,1]")
        a("v_mov_b32 v55, v54")
        for p in range(4):
            c = C + 2 * p
            a(f"v_pk_mul_f32 v[{c}:{c+1}], v[{c}:{c+1}], v[54:55]")
        for p in range(4):
            d, c, q = D + 2 * p, C + 2 * p, S + 2 * p
            a(f"v_pk_fma_f32 v[{d}:{d+1}], v[{d}:{d+1}], v[{c}:{c+1}], v[{q}:{q+1}]")
        for p in range(4):
            a(f"v_cvt_pk_bf16_f32 v{4+p}, v{D+2*p}, v{D+2*p+1}")

    def pk_rnd(self, p, t):
        self.a(f"""v_cvt_pk_bf16_f32 {t}, v{p}, v{p+1}
                   v_lshlrev_b32 v{p}, 16, {t}
                   v_and_b32 v{p+1}, 0xffff0000, {t}""")

    def prologue(self):
        a = self.a
        a.label("L_START")
        a(f"""s_cmp_ge_u32 s2, 256
              s_cbranch_scc1 L_END""")
        if self.o.get('RENUM'):
            a("""s_lshr_b32 s3, s2, 3
                 s_and_b32 s3, s3, 7
                 s_xor_b32 s2, s2, s3""")
        a(f"""              s_load_dwordx16 s[4:19], s[0:1], 0
              s_load_dwordx8 s[20:27], s[0:1], 64
              s_load_dwordx4 s[28:31], s[0:1], 96""")
        if self.o['PROF']:
            a("s_memrealtime s[96:97]")
        a(f"""v_lshrrev_b32 v1, 6, v0
              v_and_b32 v0, 63, v0
              s_and_b32 {sG}, s2, 7
              s_lshr_b32 {sJ}, s2, 3
              v_readfirstlane_b32 {sWAVE}, v1""")
        self.code_prefetch()
        a(f"""s_cmp_ge_u32 {sJ}, 24
              s_cbranch_scc1 L_ENT_V
              s_cmp_ge_u32 {sJ}, 16
              s_cbranch_scc1 L_ENT_K
              s_cmp_ge_u32 {sJ}, 8
              s_cbranch_scc1 L_ENT_W""")

    def ent_v(self):
        a = self.a
        o = self.o
        a.label("L_ENT_V")
        self.role = 'V'
        a(f"""s_sub_u32 s56, {sJ}, 24
              s_lshr_b32 s57, s56, 1
              s_and_b32 s58, s56, 1
              s_lshl_b32 s60, s57, 3
              s_add_u32 s60, s60, {sG}
              s_lshl_b32 s59, s60, 20
              s_add_u32 s59, s59, {3072*256}
              s_lshl_b32 s61, s58, 7
              s_add_u32 s59, s59, s61
              s_lshl_b32 s61, {sWAVE}, 15
              s_add_u32 s59, s59, s61
              s_lshl_b32 s62, {sWAVE}, 14
              s_mov_b32 m0, s62""")
        self.dma_off_p128('v32', 256, 'v1', 'v2')
        self.kwait(ws=False)
        if o['HELPQ']:
            lh = self.lab('hq')
            a(f"""s_cmp_eq_u32 {sWAVE}, {o['HELPQ'] - 1}
                  s_cbranch_scc0 {lh}""")
            self.srd(48, sWQ, 512 * 8192)
            a(f"""v_lshlrev_b32 v212, 13, v0
                  s_lshl_b32 s61, s56, 19
                  s_lshl_b32 s63, {sG}, 10
                  s_add_u32 s61, s61, s63
                  buffer_load_dword v213, v212, {R2}, s61 offen offset:384""")
            a.label(lh)
        self.srd(44, sV, 0x2000000)
        if o.get('VASK'):
            a(f"""s_waitcnt lgkmcnt(0)
                  s_lshl_b32 s59, s60, 20
                  s_add_u32 s59, s59, {3072*256}
                  s_lshl_b32 s61, s58, 17
                  s_add_u32 s59, s59, s61
                  s_lshl_b32 s61, {sWAVE}, 14
                  s_add_u32 s59, s59, s61
                  v_lshlrev_b32 v32, 4, v0""")
            self.x_publish(True)
            self.stamp(15)
            self.dma_loop('v32', R1, 's59', 1024, 16, win=o['VASK'], nt=1)
            a("s_branch L_ROLE_V")
            return
        vlate = o['XFLAG'] and not o['VWAIT']
        if not vlate:
            if o['VWAIT'] or o['XFLAG']:
                a("s_waitcnt lgkmcnt(0)")
            self.x_publish(True)
        if o['VSLEEP']:
            a(f"s_sleep {o['VSLEEP']}")
        self.stamp(15)
        self.only_exit('V', pre=True)
        if vlate:
            a(f"""buffer_load_dwordx4 v32, {R1}, s59 offen {'nt ' if o['VNT'] else ''}lds
                  s_add_u32 s59, s59, 2048
                  s_add_u32 m0, m0, 1024
                  s_waitcnt lgkmcnt(0)""")
            self.x_publish(True)
            assert o['VN1'] >= 2 and o['VN1ODD'] >= 2 or o['VN1'] == o['VN1ODD']
            o = dict(o)
            o['VN1'] -= 1
            o['VN1ODD'] -= 1
            rest = 15
        else:
            rest = 16
        if o['VN1'] and o['VN1ODD'] != o['VN1']:
            a(f"""s_cmp_eq_u32 s58, 1
                  s_cselect_b32 s63, {o['VN1ODD']}, {o['VN1']}
                  s_sub_u32 s66, {rest}, s63""")
            self.dma_loop('v32', R1, 's59', 2048, 's63', win=o['VWIN'], nt=o['VNT'])
            self.dma_loop('v32', R1, 's59', 2048, 's66', win=o['VWIN2'], nt=o['VNT'])
        elif o['VN1']:
            self.dma_loop('v32', R1, 's59', 2048, o['VN1'], win=o['VWIN'], nt=o['VNT'])
            self.dma_loop('v32', R1, 's59', 2048, rest - o['VN1'], win=o['VWIN2'], nt=o['VNT'])
        else:
            self.dma_loop('v32', R1, 's59', 2048, rest, win=o['VWIN'], nt=o['VNT'])
        a("s_branch L_ROLE_V")

    def role_v(self):
        a = self.a
        o = self.o
        RED, ST = 131072, 139776
        F = 64
        a.label("L_ROLE_V")
        self.role = 'V'
        self.srd(40, sWS, WS_SIZE)
        self.only_exit('V')
        a(f"""v_bfe_u32 v1, v0, 2, 2
              v_lshlrev_b32 v33, 9, v1
              v_lshrrev_b32 v2, 4, v0
              v_lshl_add_u32 v33, v2, 6, v33
              v_and_b32 v3, 3, v0
              v_lshl_add_u32 v33, v3, 4, v33
              s_lshl_b32 s63, s60, 14
              s_add_u32 s63, s63, {WS_S}
              s_lshl_b32 s61, {sWAVE}, 11
              s_add_u32 s63, s63, s61""")
        a(f"""v_mul_u32_u24 v38, 272, v3
              v_lshl_add_u32 v38, v1, 6, v38
              v_lshl_add_u32 v38, v2, 4, v38
              s_mul_i32 s61, {sWAVE}, 1088
              s_add_u32 s61, s61, {RED}
              v_add_u32 v38, s61, v38""")
        a(f"""v_lshlrev_b32 v39, 6, v3
              v_add_u32 v40, {ST}, v39
              s_lshl_b32 s61, {sWAVE}, 3
              v_add_u32 v39, s61, v40
              v_lshl_add_u32 v40, v1, 3, v40
              v_and_b32 v2, 1, v2
              v_lshl_add_u32 v40, v2, 5, v40""")
        for t in range(4):
            self.tr_addr_p128(f'v{34+t}', 32 * t, 's62', 'v1', 'v2')
        a(f"""v_lshrrev_b32 v1, 4, v0
              v_mul_u32_u24 v1, 272, v1
              v_and_b32 v2, 15, v0
              v_lshl_add_u32 v1, v2, 4, v1
              v_add_u32 v41, {RED}, v1
              v_lshrrev_b32 v1, 4, v0
              v_lshlrev_b32 v1, 6, v1
              v_add_u32 v43, {ST}, v1
              v_lshlrev_b32 v42, 4, v0
              s_lshl_b32 s66, {sG}, 2
              s_add_u32 s66, s66, s57
              s_lshl_b32 s66, s66, 1
              s_add_u32 s66, s66, s58
              s_lshl_b32 s66, s66, 10
              s_add_u32 s66, s66, {WS_C}""")
        self.tag_ready()
        self.x_load()
        self.stamp(1)

        def first():
            self.stamp(2)
            self.x_flag()
            for s in range(4):
                for t in range(4):
                    for h in range(2):
                        q = F + 16 * s + 4 * t + 2 * h
                        a(f"ds_read_b64_tr_b16 v[{q}:{q+1}], v{34+t} offset:{4096*s+2048*h}")
                if s < 3:
                    a("s_waitcnt lgkmcnt(6)")
        self.poll('S', [self.gload(4, 'v33', 's63'), self.gload(8, 'v33', 's63', 256)],
                  lambda ok: self.check_tags(['v6', 'v10'], ok), first_extra=first, local=['s63'])
        self.stamp(3)
        self.unpack('v12', 'v13', 'v4')
        self.unpack('v14', 'v15', 'v5')
        self.unpack('v16', 'v17', 'v8')
        self.unpack('v18', 'v19', 'v9')
        a("""s_mov_b32 s94, 0x3fb8aa3b
             v_max3_f32 v20, v12, v13, v14
             v_max3_f32 v21, v15, v16, v17
             v_max3_f32 v20, v20, v18, v19
             v_max_f32 v20, v20, v21
             v_max_f32_dpp v20, v20, v20 row_ror:4 row_mask:0xf bank_mask:0xf
             v_max_f32_dpp v20, v20, v20 row_ror:8 row_mask:0xf bank_mask:0xf
             v_mov_b32 v21, v20
             v_permlane16_swap_b32 v20, v21
             v_max_f32 v20, v20, v21
             v_mov_b32 v21, v20
             v_permlane32_swap_b32 v20, v21
             v_max_f32 v20, v20, v21""")
        if o['FASTV']:
            self.v_fast(F)
        else:
            self.v_exact(F)
        self.stamp(5)
        self.stamps_out(16)
        a("s_endpgm")

    def v_fast(self, F):
        a = self.a
        ST = 139776
        a("v_mul_f32 v21, s94, v20")
        for k in range(8):
            a(f"v_fma_f32 v{12+k}, v{12+k}, s94, -v21")
        for k in range(8):
            a(f"v_exp_f32 v{12+k}, v{12+k}")
        for k in range(4):
            a(f"v_cvt_pk_bf16_f32 v{44+k}, v{12+2*k}, v{13+2*k}")
        D = [4, 8, 24, 28]
        done = set()

        def mf(s, t):
            rho = (s - t) & 3
            q = F + 16 * s + 4 * t
            c = f"v[{D[t]}:{D[t]+3}]" if t in done else "0"
            done.add(t)
            a(f"v_mfma_f32_16x16x32_bf16 v[{D[t]}:{D[t]+3}], v[{q}:{q+3}], v[{44+4*rho}:{47+4*rho}], {c}")

        def rot(rho, n):
            for k in range(4):
                a(f"v_mov_b32_dpp v{44+4*rho+k}, v{44+k} row_ror:{n} row_mask:0xf bank_mask:0xf")
        a("s_waitcnt lgkmcnt(0)")
        rot(2, 8)
        for t in range(4):
            mf(t, t)
        rot(1, 12)
        for t in range(4):
            mf((t + 2) & 3, t)
        rot(3, 4)
        for t in range(4):
            mf((t + 1) & 3, t)
        a("""v_add_f32 v22, v12, v13
             v_add_f32 v23, v14, v15
             v_add_f32 v12, v16, v17
             v_add_f32 v13, v18, v19""")
        mf(3, 0)
        a("""v_add_f32 v22, v22, v23
             v_add_f32 v12, v12, v13""")
        mf(0, 1)
        a("v_add_f32 v21, v22, v12")
        mf(1, 2)
        a("v_add_f32_dpp v21, v21, v21 row_ror:4 row_mask:0xf bank_mask:0xf")
        mf(2, 3)
        a("""v_add_f32_dpp v21, v21, v21 row_ror:8 row_mask:0xf bank_mask:0xf
             v_mov_b32 v22, v21
             v_permlane16_swap_b32 v21, v22
             v_add_f32 v21, v21, v22
             v_mov_b32 v22, v21
             v_permlane32_swap_b32 v21, v22
             v_add_f32 v21, v21, v22
             s_mov_b64 exec, 0xf
             ds_write_b64 v39, v[20:21]
             s_mov_b64 exec, -1""")
        self.select_tiles(D)
        a("""ds_write_b128 v38, v[4:7]
             s_waitcnt lgkmcnt(0)
             s_barrier""")
        self.stamp(4)
        done_l = self.lab('vdone')
        a(f"""s_cmp_eq_u32 {sWAVE}, 0
              s_cbranch_scc0 {done_l}""")
        for k in range(4):
            a(f"ds_read_b128 v[{44+4*k}:{47+4*k}], v43 offset:{16*k}")
        for w in range(8):
            a(f"ds_read_b128 v[{64+4*w}:{67+4*w}], v41 offset:{1088*w}")
        a(f"""v_mov_b32 v6, {sTAG}
              v_mov_b32 v7, 0
              s_waitcnt lgkmcnt(8)
              v_max3_f32 v22, v44, v46, v48
              v_max3_f32 v23, v50, v52, v54
              v_max3_f32 v22, v22, v56, v58
              v_max_f32 v22, v22, v23""")
        for k in range(8):
            a(f"v_sub_f32 v{44+2*k}, v{44+2*k}, v22")
        for k in range(8):
            a(f"v_mul_f32 v{44+2*k}, s94, v{44+2*k}")
        for k in range(8):
            a(f"v_exp_f32 v{44+2*k}, v{44+2*k}")
        a("v_mul_f32 v23, v44, v45")
        for k in range(1, 8):
            a(f"v_fmac_f32 v23, v{44+2*k}, v{45+2*k}")
        for k in range(8):
            a(f"v_mov_b32 v{45+2*k}, v{44+2*k}")
        a("v_rcp_f32 v22, v23")
        a("s_waitcnt lgkmcnt(0)")
        a("""v_pk_mul_f32 v[96:97], v[64:65], v[44:45]
             v_pk_mul_f32 v[98:99], v[66:67], v[44:45]
             v_pk_mul_f32 v[100:101], v[68:69], v[46:47]
             v_pk_mul_f32 v[102:103], v[70:71], v[46:47]""")
        for w in range(2, 8):
            d = 96 + 4 * (w & 1)
            a(f"""v_pk_fma_f32 v[{d}:{d+1}], v[{64+4*w}:{65+4*w}], v[{44+2*w}:{45+2*w}], v[{d}:{d+1}]
                  v_pk_fma_f32 v[{d+2}:{d+3}], v[{66+4*w}:{67+4*w}], v[{44+2*w}:{45+2*w}], v[{d+2}:{d+3}]""")
        a("""v_mov_b32 v23, v22
             v_pk_add_f32 v[96:97], v[96:97], v[100:101]
             v_pk_add_f32 v[98:99], v[98:99], v[102:103]
             v_pk_mul_f32 v[96:97], v[96:97], v[22:23]
             v_pk_mul_f32 v[98:99], v[98:99], v[22:23]
             v_cvt_pk_bf16_f32 v4, v96, v97
             v_cvt_pk_bf16_f32 v5, v98, v99""")
        self.st_local(4, 'v42', 's66')
        self.st_global(4, 'v42', 's66', flag=True)
        a.label(done_l)

    def v_exact(self, F):
        a = self.a
        for k in range(8):
            a(f"v_sub_f32 v{12+k}, v{12+k}, v20")
        for k in range(8):
            a(f"v_mul_f32 v{12+k}, s94, v{12+k}")
        for k in range(8):
            a(f"v_exp_f32 v{12+k}, v{12+k}")
        a("""v_add_f32 v22, v12, v13
             v_add_f32 v23, v14, v15
             v_add_f32 v24, v16, v17
             v_add_f32 v25, v18, v19
             v_add_f32 v22, v22, v23
             v_add_f32 v24, v24, v25
             v_add_f32 v21, v22, v24
             v_add_f32_dpp v21, v21, v21 row_ror:4 row_mask:0xf bank_mask:0xf
             v_add_f32_dpp v21, v21, v21 row_ror:8 row_mask:0xf bank_mask:0xf
             v_mov_b32 v22, v21
             v_permlane16_swap_b32 v21, v22
             v_add_f32 v21, v21, v22
             v_mov_b32 v22, v21
             v_permlane32_swap_b32 v21, v22
             v_add_f32 v21, v21, v22
             s_mov_b64 exec, 0xf
             ds_write_b64 v39, v[20:21]
             s_mov_b64 exec, -1
             s_waitcnt lgkmcnt(0)
             s_barrier
             ds_read_b64 v[22:23], v40
             s_waitcnt lgkmcnt(0)
             v_mov_b32 v24, v22
             v_max_f32_dpp v24, v24, v24 row_ror:4 row_mask:0xf bank_mask:0xf
             v_max_f32_dpp v24, v24, v24 row_ror:8 row_mask:0xf bank_mask:0xf
             v_mov_b32 v25, v24
             v_permlane16_swap_b32 v24, v25
             v_max_f32 v24, v24, v25
             v_sub_f32 v22, v22, v24
             v_sub_f32 v20, v20, v24
             v_mul_f32 v22, s94, v22
             v_mul_f32 v20, s94, v20
             v_exp_f32 v22, v22
             v_exp_f32 v20, v20
             v_mul_f32 v22, v22, v23
             v_add_f32_dpp v22, v22, v22 row_ror:4 row_mask:0xf bank_mask:0xf
             v_add_f32_dpp v22, v22, v22 row_ror:8 row_mask:0xf bank_mask:0xf
             v_mov_b32 v23, v22
             v_permlane16_swap_b32 v22, v23
             v_add_f32 v22, v22, v23
             v_rcp_f32 v22, v22
             v_mul_f32 v20, v20, v22""")
        for k in range(8):
            a(f"v_mul_f32 v{12+k}, v{12+k}, v20")
        for k in range(4):
            a(f"v_cvt_pk_bf16_f32 v{44+k}, v{12+2*k}, v{13+2*k}")
        D = [4, 8, 12, 16]
        rot = ((2, 8), (1, 12), (3, 4))
        done = set()

        def mf(s, t):
            rho = (s - t) & 3
            q = F + 16 * s + 4 * t
            c = f"v[{D[t]}:{D[t]+3}]" if t in done else "0"
            done.add(t)
            a(f"v_mfma_f32_16x16x32_bf16 v[{D[t]}:{D[t]+3}], v[{q}:{q+3}], v[{44+4*rho}:{47+4*rho}], {c}")
        for rho, n in rot:
            for k in range(4):
                a(f"v_mov_b32_dpp v{44+4*rho+k}, v{44+k} row_ror:{n} row_mask:0xf bank_mask:0xf")
        for rho in (0, 2, 1, 3):
            for t in range(4):
                mf((t + rho) & 3, t)
        self.select_tiles(D)
        a("""ds_write_b128 v38, v[4:7]
             s_waitcnt lgkmcnt(0)
             s_barrier""")
        self.stamp(4)
        done = self.lab('vdone')
        a(f"""s_cmp_eq_u32 {sWAVE}, 0
              s_cbranch_scc0 {done}""")
        for w in range(8):
            a(f"ds_read_b128 v[{64+4*w}:{67+4*w}], v41 offset:{1088*w}")
        a(f"""v_mov_b32 v6, {sTAG}
              v_mov_b32 v7, 0""")

        def pk(d, s_):
            a(f"v_pk_add_f32 v[{d}:{d+1}], v[{d}:{d+1}], v[{s_}:{s_+1}]")
        for n, (d, s_) in enumerate(((64, 68), (72, 76), (80, 84), (88, 92))):
            a(f"s_waitcnt lgkmcnt({6-2*n})")
            pk(d, s_)
            pk(d + 2, s_ + 2)
        for d, s_ in ((64, 72), (80, 88), (64, 80)):
            pk(d, s_)
            pk(d + 2, s_ + 2)
        a("""v_cvt_pk_bf16_f32 v4, v64, v65
             v_cvt_pk_bf16_f32 v5, v66, v67""")
        self.st_local(4, 'v42', 's66')
        self.st_global(4, 'v42', 's66', flag=True)
        a.label(done)

    def ent_k(self):
        a = self.a
        o = self.o
        a.label("L_ENT_K")
        self.role = 'K'
        a(f"""s_sub_u32 s56, {sJ}, 16
              s_lshr_b32 s57, s56, 1
              s_and_b32 s58, s56, 1
              s_lshl_b32 s60, s57, 3
              s_add_u32 s60, s60, {sG}
              s_lshl_b32 s59, s60, 20
              s_add_u32 s59, s59, {3072*256}
              s_lshl_b32 s61, s58, 17
              s_add_u32 s59, s59, s61
              s_lshl_b32 s62, {sWAVE}, 14
              s_add_u32 s59, s59, s62
              s_mov_b32 m0, s62
              v_lshrrev_b32 v1, 4, v0
              v_and_b32 v2, 15, v0
              v_xor_b32 v3, v1, v2
              v_lshlrev_b32 v3, 4, v3""")
        for v in range(4):
            if v:
                a(f"v_xor_b32 v4, {64*v}, v3")
            a(f"v_lshl_add_u32 v{32+v}, v1, 8, {'v4' if v else 'v3'}")
        self.kwait(ws=False)
        self.srd(44, sK, 0x2000000)
        late = o['XFLAG'] and not o['KWAIT']
        if not late:
            if o['KWAIT'] or o['XFLAG']:
                a("s_waitcnt lgkmcnt(0)")
            self.x_publish(True)
        if o['KSLEEP']:
            a(f"s_sleep {o['KSLEEP']}")
        self.stamp(15)
        self.only_exit('K', pre=True)
        l = self.lab('kdma')
        nit = 4
        if o['KWIN0'] or late:
            for v in range(4):
                i = f" offset:{1024*v}" if v else ""
                if o['KWIN0']:
                    a(f"s_waitcnt vmcnt({o['KWIN0']-1})")
                a(f"buffer_load_dwordx4 v{32+v}, {R1}, s59 offen{i} {'nt ' if o['KNT'] else ''}lds")
            a("""s_add_u32 s59, s59, 4096
                 s_add_u32 m0, m0, 4096""")
            nit = 3
        if late:
            a("s_waitcnt lgkmcnt(0)")
            self.x_publish(True)
        a(f"s_mov_b32 s38, {nit}")
        a.label(l)
        for v in range(4):
            i = f" offset:{1024*v}" if v else ""
            if o['KWIN']:
                a(f"s_waitcnt vmcnt({o['KWIN']-1})")
            a(f"buffer_load_dwordx4 v{32+v}, {R1}, s59 offen{i} {'nt ' if o['KNT'] else ''}lds")
        a(f"""s_add_u32 s59, s59, 4096
              s_add_u32 m0, m0, 4096
              s_sub_u32 s38, s38, 1
              s_cmp_lg_u32 s38, 0
              s_cbranch_scc1 {l}
              s_branch L_ROLE_K""")

    def role_k(self):
        a = self.a
        o = self.o
        QL, SC2 = 131072, 132224
        F = 64
        a.label("L_ROLE_K")
        self.role = 'K'
        self.srd(40, sWS, WS_SIZE)
        self.only_exit('K')
        a(f"""s_lshl_b32 s66, {sG}, 3
              s_add_u32 s66, s66, s56
              s_and_b32 s67, s66, 1
              v_lshrrev_b32 v1, 4, v0
              v_and_b32 v2, 15, v0""")
        a("""v_and_b32 v4, 3, v2
             v_xor_b32 v4, v4, v1
             v_and_b32 v5, 12, v2
             v_lshlrev_b32 v6, 8, v2
             v_add_u32 v6, s62, v6""")
        for t in range(4):
            a(f"""v_xor_b32 v3, {4*t}, v5
                  v_add_u32 v3, v3, v4
                  v_lshl_add_u32 v{36+t}, v3, 4, v6""")
        a(f"""s_lshl_b32 s61, {sWAVE}, 6
              v_add_u32 v5, s61, v0
              v_lshrrev_b32 v6, 2, v5
              v_lshlrev_b32 v6, 8, v6
              v_and_b32 v7, 3, v5
              v_lshl_add_u32 v40, v7, 4, v6
              v_lshrrev_b32 v6, 5, v5
              v_mul_u32_u24 v6, 288, v6
              v_and_b32 v7, 31, v5
              v_lshl_add_u32 v6, v7, 3, v6
              v_add_u32 v41, {QL}, v6
              s_lshl_b32 s69, {sG}, 13
              s_lshl_b32 s61, s57, 6
              s_add_u32 s69, s69, s61
              s_add_u32 s69, s69, {WS_B}""")
        self.act_addr('v42', QL, 288, 'v5')
        a(f"""v_bfe_u32 v5, v0, 2, 2
              v_lshl_add_u32 v5, v5, 2, v1
              v_lshlrev_b32 v5, 6, v5
              v_and_b32 v6, 3, v0
              v_lshl_add_u32 v43, v6, 4, v5
              s_lshl_b32 s63, s60, 14
              s_add_u32 s63, s63, {WS_S}
              s_lshl_b32 s61, s58, 13
              s_add_u32 s63, s63, s61
              s_lshl_b32 s61, {sWAVE}, 10
              s_add_u32 s63, s63, s61""")
        a(f"""s_lshr_b32 s68, s66, 4
              s_add_u32 s68, s68, 1
              s_lshr_b32 s56, s66, 1
              s_and_b32 s56, s56, 7""")
        self.srd(48, sWM, 512 * 6144)
        self.dma_off_p128('v32', 6144, 'v1', 'v2')
        a(f"""s_lshl_b32 s59, s67, 8
              s_lshl_b32 s61, {sWAVE}, 5
              s_add_u32 s59, s59, s61
              s_mul_i32 s59, s59, 6144
              s_lshl_b32 s61, s68, 10
              s_add_u32 s59, s59, s61
              s_lshl_b32 s61, s56, 7
              s_add_u32 s59, s59, s61
              s_add_u32 s59, s59, 2048""")
        self.tag_ready()
        self.x_load()
        self.stamp(1)

        def kfrags():
            self.x_flag()
            for T in range(4):
                for t in range(4):
                    q = F + 16 * T + 4 * t
                    a(f"ds_read_b128 v[{q}:{q+3}], v{36+t} offset:{4096*T}")
                if T == 2:
                    a("s_waitcnt lgkmcnt(6)")
        nopoll = self.lab('knp')
        join = self.lab('kj')
        a(f"""s_cmp_lt_u32 {sWAVE}, 2
              s_cbranch_scc0 {nopoll}""")

        def first():
            self.stamp(2)
            kfrags()
        self.poll('B', [self.gload(4, 'v40', 's69')], lambda ok: self.check_tags(['v6'], ok), first_extra=first, local=['s69'])
        a(f"""ds_write_b64 v41, v[4:5]
              s_branch {join}""")
        a.label(nopoll)
        a("s_waitcnt vmcnt(0)")
        self.stamp(2)
        kfrags()
        a.label(join)
        a("""s_waitcnt lgkmcnt(0)
             s_barrier""")
        self.stamp(3)
        for t in range(4):
            a(f"ds_read_b128 v[{44+4*t}:{47+4*t}], v42 offset:{64*t}")
        D = [4, 8, 12, 16]
        for t in range(4):
            a(f"s_waitcnt lgkmcnt({3-t})")
            for T in range(4):
                q = F + 16 * T + 4 * t
                c = "0" if t == 0 else f"v[{D[T]}:{D[T]+3}]"
                a(f"v_mfma_f32_16x16x32_bf16 v[{D[T]}:{D[T]+3}], v[{q}:{q+3}], v[{44+4*t}:{47+4*t}], {c}")
        self.select_tiles(D)
        a("""v_cvt_pk_bf16_f32 v8, v4, v5
             v_cvt_pk_bf16_f32 v9, v6, v7""")
        self.unpack('v4', 'v5', 'v8')
        self.unpack('v6', 'v7', 'v9')
        for r in range(4):
            a(f"v_mul_f32 v{4+r}, 0x3db504f3, v{4+r}")
        a(f"""v_cvt_pk_bf16_f32 v8, v4, v5
              v_cvt_pk_bf16_f32 v9, v6, v7
              v_mov_b32 v10, {sTAG}
              v_mov_b32 v11, 0""")
        self.st_local(8, 'v43', 's63')
        self.stamp(4)
        end = self.lab('kend')
        a("s_barrier")
        self.st_global(8, 'v43', 's63', flag=True)
        a(f"""s_cmp_lt_u32 s66, 48
              s_cbranch_scc0 {end}
              s_mov_b32 m0, s62""")
        self.srd(52, sC, 4096)
        skipc = self.lab('kc')
        a(f"""s_cmp_lt_u32 {sWAVE}, 4
              s_cbranch_scc0 {skipc}
              s_lshl_b32 s61, {sWAVE}, 10
              s_lshl_b32 s69, s67, 9
              s_add_u32 s69, s69, s61
              v_lshlrev_b32 v7, 3, v0
              buffer_load_dwordx2 v[24:25], v7, {R3}, s69 offen""")
        a.label(skipc)
        self.dma_loop('v32', R2, 's59', 8 * 6144, 4, nt=o['MNT'])
        skips = self.lab('ks')
        a(f"""s_cmp_lt_u32 {sWAVE}, 4
              s_cbranch_scc0 {skips}
              s_waitcnt vmcnt(4)""")
        self.unpack('v8', 'v9', 'v24')
        self.unpack('v10', 'v11', 'v25')
        self.silu4(8, 12)
        a("""v_cvt_pk_bf16_f32 v8, v8, v9
             v_cvt_pk_bf16_f32 v9, v10, v11""")
        self.perm_pos_bytes('v5', 'v0', 'v6')
        a(f"""s_mul_i32 s61, {sWAVE}, 544
              s_add_u32 s61, s61, {SC2}
              v_add_u32 v5, s61, v5
              ds_write_b64 v5, v[8:9]""")
        a.label(skips)
        a(f"s_lshl_b32 s61, {sWAVE}, 5")
        self.tr_addr_p128('v33', 's61', '0', 'v1', 'v2')
        a("v_add_u32 v34, 65536, v33")
        self.act_addr('v35', SC2, 544, 'v1')
        a(f"""v_lshrrev_b32 v1, 5, v0
              v_lshlrev_b32 v36, 10, v1
              v_and_b32 v1, 3, v0
              v_lshl_add_u32 v36, v1, 5, v36
              v_bfe_u32 v1, v0, 4, 1
              v_lshl_add_u32 v36, v1, 4, v36
              s_lshl_b32 s59, s56, 13
              s_lshl_b32 s61, {sWAVE}, 11
              s_add_u32 s59, s59, s61
              s_lshl_b32 s61, s68, 8
              s_add_u32 s59, s59, s61
              s_lshl_b32 s61, s67, 7
              s_add_u32 s59, s59, s61
              s_add_u32 s59, s59, {WS_ML}""")
        self.sel_consts()
        self.tagbytes(28)
        a("""s_waitcnt vmcnt(0) lgkmcnt(0)
             s_barrier""")
        a(f"""s_cmp_lt_u32 {sWAVE}, 4
              s_cbranch_scc0 {end}""")
        for s in range(8):
            a(f"ds_read_b128 v[{96+4*s}:{99+4*s}], v35 offset:{64*s}")
        a("s_waitcnt lgkmcnt(2)")
        for s in range(8):
            va = 'v33' if s < 4 else 'v34'
            for h in range(2):
                q = F + 4 * s + 2 * h
                a(f"ds_read_b64_tr_b16 v[{q}:{q+1}], {va} offset:{16384*(s&3)+2048*h}")
            if s == 5:
                a("s_waitcnt lgkmcnt(6)")
        for s in range(8):
            a(f"s_waitcnt lgkmcnt({max(0, 14-2*s) if s >= 4 else 6})" if s >= 4 else "s_waitcnt lgkmcnt(8)" if s == 0 else "s_nop 0")
            c = "0" if s == 0 else "v[4:7]"
            a(f"v_mfma_f32_16x16x32_bf16 v[4:7], v[{F+4*s}:{F+4*s+3}], v[{96+4*s}:{99+4*s}], {c}")
        self.steal(4, 28)
        a("s_mov_b32 exec_lo, 0x000f000f")
        a("s_mov_b32 exec_hi, 0x000f000f")
        self.gstore(4, 'v36', 's59')
        a("s_mov_b64 exec, -1")
        self.stamp(5)
        a.label(end)
        self.stamps_out(16)
        a("s_endpgm")

    def role_m(self):
        a = self.a
        o = self.o
        M1W, SC, STAT = 0, 16384, 17024
        GATE, UP, DOWN, H2, GU = 32768, 65536, 98304, 131072, 135296
        F = 64
        a.label("L_ENT_M")
        self.role = 'M'
        a(f"""v_lshrrev_b32 v1, 4, v0
              v_and_b32 v3, 15, v0
              v_lshlrev_b32 v2, 1, v1
              v_xor_b32 v2, v2, v3
              v_and_b32 v4, 7, v2
              v_lshlrev_b32 v4, 4, v4
              v_lshrrev_b32 v2, 3, v2
              v_lshl_add_u32 v4, v2, 10, v4
              v_xor_b32 v5, 1024, v4
              v_mul_u32_u24 v1, 6144, v1
              v_add_u32 v32, v1, v4
              v_add_u32 v33, v1, v5
              s_lshl_b32 s59, {sJ}, 6
              s_lshl_b32 s61, {sWAVE}, 3
              s_add_u32 s59, s59, s61
              s_mul_i32 s59, s59, 6144
              s_lshl_b32 s61, {sG}, 7
              s_add_u32 s59, s59, s61
              s_lshl_b32 s61, {sWAVE}, 11
              s_mov_b32 m0, s61
              s_and_b32 s62, {sWAVE}, 3
              s_lshl_b32 s62, s62, 10
              v_lshlrev_b32 v6, 4, v0
              v_lshlrev_b32 v7, 1, v0
              s_lshl_b32 s63, {sJ}, 7
              s_add_u32 s63, s63, s62""")
        self.kwait(ws=False)
        self.srd(44, sWM, 512 * 6144)
        self.srd(48, sC, 4096)
        self.srd(52, sX, 4096)
        l4 = self.lab('m4')
        lx = self.lab('mx')
        a(f"""s_cmp_lt_u32 {sWAVE}, 4
              s_cbranch_scc0 {l4}
              buffer_load_dwordx4 v[24:27], v6, {R3}, s62 offen
              s_branch {lx}""")
        a.label(l4)
        a(f"buffer_load_ushort v24, v7, {R2}, s63 offen")
        a.label(lx)
        self.stamp(15)
        self.only_exit('M', pre=True)
        mnt = 'nt ' if o['MNT'] else ''
        if o.get('M1T'):
            lfull = self.lab('m1full')
            lnone = self.lab('m1none')
            a(f"""s_cmp_eq_u32 {sJ}, 7
                  s_cbranch_scc1 {lfull}""")
            if o['M1T'] >= 2:
                a(f"""s_cmp_lt_u32 {sJ}, 4
                      s_cbranch_scc0 {lnone}
                      s_cmp_lt_u32 {sWAVE}, 4
                      s_cbranch_scc0 {lnone}
                      v_lshrrev_b32 v8, 1, v0
                      v_mul_u32_u24 v8, 6144, v8
                      v_and_b32 v9, 1, v0
                      v_lshl_add_u32 v8, v9, 10, v8
                      s_lshl_b32 s59, {sJ}, 7
                      s_lshl_b32 s61, {sWAVE}, 5
                      s_add_u32 s59, s59, s61
                      s_mul_i32 s59, s59, 6144
                      s_lshl_b32 s61, {sG}, 7
                      s_add_u32 s59, s59, s61
                      buffer_load_dword v10, v8, {R1}, s59 offen""")
            a.label(lnone)
            a("s_branch L_ROLE_M")
            a.label(lfull)
            l = self.lab('m1l')
            a(f"""s_lshl_b32 s59, {sWAVE}, 6
                  s_mul_i32 s59, s59, 6144
                  s_lshl_b32 s61, {sG}, 7
                  s_add_u32 s59, s59, s61
                  s_lshl_b32 s61, {sWAVE}, 14
                  s_mov_b32 m0, s61
                  s_mov_b32 s38, 8""")
            a.label(l)
            a(f"""buffer_load_dwordx4 v32, {R1}, s59 offen {mnt}lds
                  s_add_u32 s59, s59, {4*6144}
                  s_add_u32 m0, m0, 1024
                  s_nop 0
                  buffer_load_dwordx4 v33, {R1}, s59 offen {mnt}lds
                  s_add_u32 s59, s59, {4*6144}
                  s_add_u32 m0, m0, 1024
                  s_sub_u32 s38, s38, 1
                  s_cmp_lg_u32 s38, 0
                  s_cbranch_scc1 {l}
                  s_branch L_ROLE_M""")
        a(f"""buffer_load_dwordx4 v32, {R1}, s59 offen {mnt}lds
              s_add_u32 s59, s59, {4*6144}
              s_add_u32 m0, m0, 1024
              s_nop 0
              buffer_load_dwordx4 v33, {R1}, s59 offen {mnt}lds
              s_branch L_ROLE_M""")
        self.ent_w()
        self.ent_k()
        self.ent_v()
        a.label("L_ROLE_M")
        self.role = 'M'
        self.srd(40, sWS, WS_SIZE)
        self.only_exit('M')
        if o['XFLAG'] and not o['MFAST']:
            a("s_waitcnt lgkmcnt(0)")
            self.x_publish(False)
        lxe = self.lab('mxe')
        if o['MFAST']:
            a(f"""s_cmp_eq_u32 {sWAVE}, 4
                  s_cbranch_scc0 {lxe}""")
        a(f"""v_bfe_u32 v1, v0, 1, 2
              v_lshlrev_b32 v1, 10, v1
              v_and_b32 v2, 1, v0
              v_lshl_add_u32 v1, v2, 3, v1
              v_lshrrev_b32 v2, 4, v0
              v_lshl_add_u32 v1, v2, 1, v1
              s_lshl_b32 s61, {sG}, 7
              s_lshl_b32 s56, {sJ}, 4
              s_add_u32 s61, s61, s56
              buffer_load_ushort v28, v1, {R3}, s61 offen""")
        if o['MFAST']:
            a.label(lxe)
        if o['TOUCH']:
            lt0 = self.lab('mt0')
            a(f"""s_cmp_eq_u32 {sWAVE}, 4
                  s_cbranch_scc0 {lt0}
                  s_lshl_b32 s61, {sG}, 3
                  s_add_u32 s61, s61, {sJ}
                  s_lshl_b32 s61, s61, 12
                  s_add_u32 s61, s61, {WS_A1 + WS_LOC}
                  v_lshlrev_b32 v2, 4, v0""")
            for m in range(4):
                a(self.gload((160 if o['MTW'] else 64) + 4 * m, 'v2', 's61', 1024 * m))
            a.label(lt0)
        a(f"""v_lshrrev_b32 v1, 4, v0
              v_bfe_u32 v2, v0, 2, 2
              v_lshl_add_u32 v3, v1, 2, v2
              v_lshlrev_b32 v34, 8, v3
              v_and_b32 v3, 1, v1
              v_lshlrev_b32 v3, 3, v3
              v_lshl_add_u32 v3, v2, 1, v3
              s_lshl_b32 s61, {sWAVE}, 1
              v_xor_b32 v3, s61, v3
              v_lshl_add_u32 v34, v3, 4, v34
              v_and_b32 v3, 3, v0
              v_lshl_add_u32 v34, v3, 3, v34""")
        self.act_addr('v35', SC, 160, 'v1')
        a(f"""v_lshrrev_b32 v1, 5, v0
              v_lshlrev_b32 v36, 12, v1
              v_bfe_u32 v1, v0, 2, 1
              v_lshl_add_u32 v36, v1, 10, v36
              v_and_b32 v1, 3, v0
              v_lshl_add_u32 v36, v1, 5, v36
              v_bfe_u32 v1, v0, 4, 1
              v_lshl_add_u32 v36, v1, 4, v36
              s_lshl_b32 s60, {sG}, 15
              s_and_b32 s61, {sWAVE}, 3
              s_lshl_b32 s61, s61, 13
              s_add_u32 s60, s60, s61
              s_lshr_b32 s61, {sWAVE}, 2
              s_lshl_b32 s61, s61, 11
              s_add_u32 s60, s60, s61
              s_lshl_b32 s61, {sJ}, 7
              s_add_u32 s60, s60, s61
              s_add_u32 s60, s60, {WS_A1}""")
        lb = self.lab('mb')
        npf = 1 if o['PF'] else 0
        a(f"""s_cmp_ge_u32 {sWAVE}, 4
              s_cbranch_scc0 {lb}""")
        a("v_lshrrev_b32 v4, 2, v0")
        self.perm_pos_bytes('v5', 'v4', 'v6')
        a(f"""v_and_b32 v6, 3, v0
              v_lshl_add_u32 v5, v6, 1, v5
              s_and_b32 s61, {sWAVE}, 3
              s_mul_i32 s61, s61, 160
              s_add_u32 s61, s61, {SC}
              v_add_u32 v5, s61, v5""")
        n_other = 2 if o['MFAST'] else 3
        if o['TOUCH'] or o['MFAST']:
            lc3 = self.lab('mc3')
            lc7 = self.lab('mc7')
            a(f"""s_cmp_eq_u32 {sWAVE}, 4
                  s_cbranch_scc1 {lc7}
                  s_waitcnt vmcnt({n_other})""")
            a.label(lc7)
            a(f"s_waitcnt vmcnt({7 if o['TOUCH'] else 3})")
        else:
            a("s_waitcnt vmcnt(3)")
        a("v_lshlrev_b32 v8, 16, v24")
        self.silu1('v8', 12)
        a("""v_cvt_pk_bf16_f32 v8, v8, v8
             ds_write_b16 v5, v8""")
        a.label(lb)
        if o['XA1']:
            self.x_load(mask=7)
        if o['MTW'] and o['TOUCH']:
            lw4 = self.lab('mw4')
            a(f"""s_cmp_eq_u32 {sWAVE}, 4
                  s_cbranch_scc1 {lw4}
                  s_waitcnt vmcnt(0)""")
            a.label(lw4)
            if o['MFAST'] and o['XFLAG']:
                a("s_waitcnt lgkmcnt(0)")
                self.x_publish(False)
            a(f"""s_waitcnt vmcnt({5 if o['MFAST'] else 4}) lgkmcnt(0)
                 s_barrier""")
        else:
            a("""s_waitcnt vmcnt(0) lgkmcnt(0)
                 s_barrier""")
        self.stamp(1)
        self.frags(F, 'v34', 2, 8192, 4096)
        if o['XA1']:
            a(f"s_add_u32 {sTAG}, {sE}, {TAGC}")
            self.x_flag()
        a(f"""ds_read_b128 v[72:75], v35
              ds_read_b128 v[76:79], v35 offset:64
              s_add_u32 {sTAG}, {sE}, {TAGC}
              s_waitcnt lgkmcnt(0)
              v_mfma_f32_16x16x32_bf16 v[4:7], v[64:67], v[72:75], 0
              v_mfma_f32_16x16x32_bf16 v[4:7], v[68:71], v[76:79], v[4:7]""")
        a(f"""s_mov_b32 exec_lo, 0x00f000f0
              s_mov_b32 exec_hi, 0x00f000f0
              v_mov_b32 v4, v6
              v_mov_b32 v5, v7
              s_mov_b32 exec_lo, 0x00ff00ff
              s_mov_b32 exec_hi, 0x00ff00ff
              v_mov_b32 v6, {sTAG}
              v_mov_b32 v7, 0""")
        self.st_local(4, 'v36', 's60')
        a("s_mov_b64 exec, -1")
        self.stamp(2)
        ls = self.lab('ms')
        lh4 = self.lab('mh4')
        lh = self.lab('mh')
        a(f"""s_cmp_eq_u32 {sWAVE}, 4
              s_cbranch_scc1 {lh4}
              s_cmp_lt_u32 {sWAVE}, 4
              s_cbranch_scc0 {ls}""")
        for k in range(4):
            self.unpack(f'v{8+2*k}', f'v{9+2*k}', f'v{24+k}')
        self.ln_stats(8, 'v20', 'v21', 'v22', 16)
        a(f"""s_lshl_b32 s61, {sWAVE}, 3
              s_add_u32 s61, s61, {STAT}
              v_mov_b32 v1, s61
              s_mov_b64 exec, 1
              ds_write_b64 v1, v[20:21]
              s_mov_b64 exec, -1
              s_waitcnt lgkmcnt(0)""")
        a.label(ls)
        a("""s_mov_b32 exec_lo, 0x00ff00ff
             s_mov_b32 exec_hi, 0x00ff00ff""")
        self.st_global(4, 'v36', 's60', flag=bool(o['XA1']))
        a(f"""s_mov_b64 exec, -1
              s_barrier
              s_branch {lh}""")
        a.label(lh4)
        a("""s_mov_b32 exec_lo, 0x00ff00ff
             s_mov_b32 exec_hi, 0x00ff00ff""")
        self.st_global(4, 'v36', 's60', flag=bool(o['XA1']))
        a(f"""s_mov_b64 exec, -1
              v_bfe_u32 v1, v0, 1, 2
              v_lshlrev_b32 v1, 3, v1
              v_add_u32 v1, {STAT}, v1
              s_lshl_b32 s59, {sG}, 3
              s_add_u32 s59, s59, {sJ}
              s_lshl_b32 s57, s59, 7
              s_add_u32 s57, s57, {WS_A2}
              s_lshl_b32 s59, s59, 12
              s_add_u32 s59, s59, {WS_A1}
              v_lshlrev_b32 v2, 4, v0""")
        self.poll('A1', [self.gload(4 + 4 * m, 'v2', 's59', 1024 * m) for m in range(4)],
                  lambda ok: self.check_tags(['v6', 'v10', 'v14', 'v18'], ok), local=['s59'])
        self.stamp(3)
        a("""s_barrier
             ds_read_b64 v[20:21], v1
             v_lshlrev_b32 v28, 16, v28
             v_mov_b32 v6, v8
             v_mov_b32 v7, v9
             v_mov_b32 v14, v16
             v_mov_b32 v15, v17""")
        for r in range(4):
            a(f"v_add_f32_dpp v{4+r}, v{4+r}, v{4+r} row_ror:8 row_mask:0xf bank_mask:0xf")
        for r in range(4):
            a(f"v_add_f32_dpp v{12+r}, v{12+r}, v{12+r} row_ror:8 row_mask:0xf bank_mask:0xf")
        a("""v_permlane16_swap_b32 v4, v5
             v_permlane16_swap_b32 v6, v7
             v_permlane16_swap_b32 v12, v13
             v_permlane16_swap_b32 v14, v15
             v_add_f32 v4, v4, v5
             v_add_f32 v6, v6, v7
             v_add_f32 v12, v12, v13
             v_add_f32 v14, v14, v15
             v_permlane32_swap_b32 v4, v6
             v_permlane32_swap_b32 v12, v14
             v_add_f32 v4, v4, v6
             v_add_f32 v12, v12, v14
             s_waitcnt lgkmcnt(0)
             v_rcp_f32 v22, v21
             v_cvt_pk_bf16_f32 v4, v4, v12
             v_and_b32 v12, 0xffff0000, v4
             v_lshlrev_b32 v4, 16, v4
             v_add_f32 v12, 1.0, v12""")
        self.ln_elem('v29', 'v28', 'v20', 'v21', 'v22', 'v23', 'v30')
        a(f"""v_mov_b32 v22, {sTAG}
              v_mov_b32 v23, 0""")
        self.rnd('v12', 'v12')
        a("v_mul_f32 v12, v29, v12")
        self.rnd('v12', 'v12')
        a("v_add_f32 v12, v12, v4")
        self.rows_to_quad('v20', 'v21', 'v12', 'v8')
        a("s_mov_b64 exec, 0xff")
        self.gstore(20, 'v2', 's57')
        a("s_mov_b64 exec, -1")
        self.stamp(4)
        a.label(lh)
        a(f"""s_cmp_eq_u32 {sJ}, 7
              s_cbranch_scc1 L_ROLE_GA""")
        a(f"""s_mul_i32 s66, {sG}, 7
              s_add_u32 s66, s66, {sJ}""")
        self.srd(44, sWG, 512 * 3584)
        self.srd(48, sWU, 512 * 3584)
        self.srd(52, sWD, 1792 * 1024)
        a(f"""v_lshrrev_b32 v1, 2, v0
              v_mul_u32_u24 v1, 3584, v1
              v_bfe_u32 v2, v0, 4, 1
              v_lshlrev_b32 v2, 1, v2
              v_and_b32 v3, 3, v0
              v_xor_b32 v2, v2, v3
              v_lshl_add_u32 v32, v2, 4, v1
              v_xor_b32 v2, {1 if o['GUMIX'] else 0}, v2
              v_lshl_add_u32 v31, v2, 4, v1
              s_lshl_b32 s59, {sWAVE}, 6
              s_mul_i32 s59, s59, 3584
              s_lshl_b32 s61, s66, 6
              s_add_u32 s59, s59, s61
              s_mov_b32 s60, s59
              s_lshl_b32 s67, s66, 5
              s_lshl_b32 s61, {sWAVE}, 2
              s_add_u32 s67, s67, s61
              s_lshl_b32 s67, s67, 10
              s_and_b32 s62, {sWAVE}, 1
              s_lshl_b32 s62, s62, 3""")
        for n in range(4):
            a(f"""s_add_u32 s63, s62, {2*n}
                  v_xor_b32 v1, s63, v0
                  v_lshlrev_b32 v{40+n}, 4, v1""")
        if o['GUMIX']:
            a(f"""v_lshrrev_b32 v1, 4, v0
                  v_bfe_u32 v2, v0, 2, 2
                  v_lshl_add_u32 v3, v1, 2, v2
                  v_lshlrev_b32 v33, 6, v3
                  v_and_b32 v3, 1, v1
                  v_lshlrev_b32 v3, 1, v3
                  s_and_b32 s61, {sWAVE}, 3
                  v_xor_b32 v3, s61, v3
                  v_bfe_u32 v4, v0, 1, 1
                  v_xor_b32 v3, v3, v4
                  v_lshl_add_u32 v33, v3, 4, v33
                  v_lshl_add_u32 v33, v4, 15, v33
                  v_and_b32 v3, 1, v0
                  v_lshl_add_u32 v33, v3, 3, v33
                  v_add_u32 v33, {GATE}, v33""")
        else:
            a(f"""v_lshrrev_b32 v1, 4, v0
                  v_bfe_u32 v2, v0, 2, 2
                  v_lshl_add_u32 v3, v1, 2, v2
                  v_lshlrev_b32 v33, 6, v3
                  v_and_b32 v3, 1, v1
                  s_and_b32 s61, {sWAVE}, 1
                  v_xor_b32 v3, s61, v3
                  v_lshl_add_u32 v33, v3, 5, v33
                  v_and_b32 v3, 3, v0
                  v_lshl_add_u32 v33, v3, 3, v33
                  s_bfe_u32 s61, {sWAVE}, 0x10001
                  s_lshl_b32 s61, s61, 15
                  s_add_u32 s61, s61, {GATE}
                  v_add_u32 v33, s61, v33""")
        a(f"""v_lshl_add_u32 v3, v1, 2, v2
              v_lshlrev_b32 v4, 10, v3
              v_and_b32 v5, 3, v0
              v_lshl_add_u32 v4, v5, 3, v4
              v_add_u32 v4, {DOWN}, v4
              v_and_b32 v3, 7, v3
              v_lshlrev_b32 v3, 1, v3
              s_lshl_b32 s61, {sWAVE}, 3
              v_xor_b32 v3, s61, v3""")
        for t in range(4):
            a(f"""v_xor_b32 v5, {2*t}, v3
                  v_lshl_add_u32 v{34+t}, v5, 4, v4""")
        self.act_addr('v38', H2, 1056, 'v1')
        self.act_addr('v39', GU, 96, 'v1')
        a(f"""v_lshlrev_b32 v44, 4, v0
              s_lshl_b32 s68, {sG}, 2
              s_add_u32 s68, s68, {sWAVE}
              s_lshl_b32 s68, s68, 12
              s_add_u32 s68, s68, {WS_D}""")
        self.perm_pos_bytes('v45', 'v0', 'v1')
        a(f"""s_mul_i32 s61, {sWAVE}, 1056
              s_add_u32 s61, s61, {H2}
              v_add_u32 v45, s61, v45""")
        if o['GUMIX']:
            a(f"""v_and_b32 v1, 3, v0
                  v_mul_u32_u24 v46, 96, v1
                  v_lshrrev_b32 v1, 4, v0
                  s_lshl_b32 s61, {sWAVE}, 1
                  v_add_u32 v1, s61, v1
                  v_and_b32 v2, 3, v1
                  v_lshl_add_u32 v46, v2, 4, v46
                  v_bfe_u32 v2, v1, 2, 1
                  v_lshl_add_u32 v46, v2, 3, v46
                  v_add_u32 v46, {GU}, v46""")
        else:
            a(f"""v_and_b32 v1, 3, v0
                  v_mul_u32_u24 v46, 96, v1
                  v_lshrrev_b32 v1, 4, v0
                  v_lshl_add_u32 v46, v1, 4, v46
                  s_and_b32 s61, {sWAVE}, 1
                  s_lshl_b32 s61, s61, 3
                  s_bfe_u32 s62, {sWAVE}, 0x10001
                  s_mul_i32 s62, s62, 384
                  s_add_u32 s61, s61, s62
                  s_add_u32 s61, s61, {GU}
                  v_add_u32 v46, s61, v46""")
        a(f"""v_bfe_u32 v1, v0, 2, 2
              v_lshlrev_b32 v1, 1, v1
              v_lshrrev_b32 v2, 5, v0
              v_add_u32 v1, v1, v2
              v_mul_u32_u24 v47, {56*128}, v1
              v_and_b32 v1, 3, v0
              v_lshl_add_u32 v47, v1, 5, v47
              v_bfe_u32 v1, v0, 4, 1
              v_lshl_add_u32 v47, v1, 4, v47
              s_mul_i32 s63, {sWAVE}, {8*56*128}
              s_lshl_b32 s61, s66, 7
              s_add_u32 s63, s63, s61
              s_add_u32 s63, s63, {WS_E}""")
        self.sel_consts()
        self.tagbytes(48)
        if o['MG1']:
            a(f"""s_barrier
                  s_lshl_b32 s61, {sWAVE}, 12
                  s_add_u32 s61, s61, {GATE}
                  s_mov_b32 m0, s61""")
            self.dma_loop('v32', R1, 's59', 16 * 3584, o['MG1'])
        if o['HELPV']:
            lhv = self.lab('hv')
            a(f"""s_barrier
                  s_cmp_lt_u32 {sJ}, 4
                  s_cbranch_scc0 {lhv}
                  s_mov_b32 s92, s8
                  s_mov_b32 s93, s9
                  s_mov_b32 s94, 0x2000000
                  s_mov_b32 s95, 0x20000
                  s_lshl_b32 s61, {sJ}, 3
                  s_add_u32 s61, s61, {sG}
                  s_lshl_b32 s61, s61, 20
                  s_lshl_b32 s62, {sWAVE}, 15
                  s_add_u32 s61, s61, s62
                  s_add_u32 s61, s61, {(3072 + 128 - 32) * 256}
                  v_lshlrev_b32 v212, 7, v0""")
            for n in range(o['HELPV']):
                a(f"""buffer_load_dword v213, v212, s[92:95], s61 offen
                      s_sub_u32 s61, s61, {32*256}""")
            a.label(lhv)
            self.sel_consts()
        if o['MTRIG']:
            lt = self.lab('mt')
            if o['MEARLY']:
                a(f"""s_lshr_b32 s61, s66, 1
                      s_and_b32 s61, s61, 3
                      s_cmp_eq_u32 s61, 3
                      s_cbranch_scc1 {lt}""")
            a(f"""s_cmp_eq_u32 {sWAVE}, 0
                  s_cbranch_scc0 {lt}
                  v_lshlrev_b32 v2, 10, v0
                  s_lshl_b32 s61, {sG}, 13
                  s_add_u32 s61, s61, {WS_B}""")
            if o['MTRIG'] == 2:
                a(f"""v_lshrrev_b32 v2, 1, v0
                      v_lshlrev_b32 v2, 17, v2
                      v_and_b32 v3, 1, v0
                      v_lshl_add_u32 v2, v3, 13, v2
                      s_lshl_b32 s61, {sG}, 14
                      s_add_u32 s61, s61, {WS_S}""")
            a("s_mov_b64 exec, 0xff")
            self.poll('T', [self.gload(4, 'v2', 's61')], lambda ok: self.check_tags(['v6'], ok), local=['s61'])
            a("s_mov_b64 exec, -1")
            a.label(lt)
        a("s_barrier")
        if o['MSLEEP']:
            lms = self.lab('msl')
            a(f"""s_lshr_b32 s61, s66, 1
                  s_and_b32 s61, s61, 3
                  s_cmp_eq_u32 s61, 3
                  s_cbranch_scc1 {lms}
                  s_sleep {o['MSLEEP']}""")
            a.label(lms)
        a(f"""s_lshl_b32 s61, {sWAVE}, 12
              s_add_u32 s61, s61, {GATE + 1024 * o['MG1']}
              s_mov_b32 m0, s61""")
        if o['MG1'] < 4:
            self.dma_loop('v32', R1, 's59', 16 * 3584, 4 - o['MG1'], win=o['MWIN'], nt=o['GUNT'])
        a(f"""s_sub_u32 s61, s61, {1024 * o['MG1']}
              s_add_u32 s61, s61, {UP-GATE}
              s_mov_b32 m0, s61""")
        self.dma_loop('v31', R2, 's60', 16 * 3584, 4, nt=o['GUNT'])
        a(f"""s_add_u32 s61, s61, {DOWN-UP}
              s_mov_b32 m0, s61
              s_nop 0""")
        for n in range(4):
            a(f"""buffer_load_dwordx4 v{40+n}, {R3}, s67 offen {'nt ' if o['DNT'] else ''}lds
                  s_add_u32 s67, s67, 1024
                  s_add_u32 m0, m0, 1024
                  s_nop 0""")
        a("""s_waitcnt vmcnt(0)
             s_barrier""")
        self.stamp(5)
        for t in range(4):
            for h in range(2):
                q = 128 + 4 * t + 2 * h
                a(f"ds_read_b64_tr_b16 v[{q}:{q+1}], v{34+t} offset:{16384*h}")
        lw = self.lab('mw')
        a(f"""s_cmp_lt_u32 {sWAVE}, 4
              s_cbranch_scc0 {lw}
              s_waitcnt lgkmcnt(0)""")
        for s in range(16):
            for h in range(2):
                q = F + 4 * s + 2 * h
                a(f"ds_read_b64_tr_b16 v[{q}:{q+1}], v33 offset:{2048*s+1024*h}")
            if s in (6, 10):
                a("s_waitcnt lgkmcnt(6)")
        if o['DSPLIT']:
            self.poll('D1', [self.gload(8, 'v44', 's68', 2048), self.gload(16, 'v44', 's68', 3072)],
                      lambda ok: self.check_tags(['v11', 'v19'], ok), local=['s68'])
            for p, src in ((1, 'v8'), (3, 'v16')):
                self.unpack(f'v{156+2*p}', f'v{157+2*p}', src)
            for p, src in enumerate(('v9', 'v10', 'v17', 'v18')):
                self.unpack(f'v{164+2*p}', f'v{165+2*p}', src)
            a(f"s_and_b32 s68, s68, {~WS_LOC & 0xffffffff:#x}")
            self.poll('D', [self.gload(4, 'v44', 's68'), self.gload(12, 'v44', 's68', 1024)],
                      lambda ok: self.check_tags(['v7', 'v15'], ok), local=['s68'])
        else:
            self.poll('D', [self.gload(4, 'v44', 's68'), self.gload(8, 'v44', 's68', 2048),
                            self.gload(12, 'v44', 's68', 1024), self.gload(16, 'v44', 's68', 3072)],
                      lambda ok: self.check_tags(['v7', 'v11', 'v15', 'v19'], ok), local=['s68'])
        self.stamp(6)
        X = 20
        self.unpack(f'v{X}', f'v{X+1}', 'v4')
        self.unpack(f'v{X+2}', f'v{X+3}', 'v5')
        self.unpack(f'v{X+4}', f'v{X+5}', 'v12')
        self.unpack(f'v{X+6}', f'v{X+7}', 'v13')
        if o['FASTLN']:
            self.ln2_fast(X)
        else:
            M2, SD2, RC2 = 52, 54, 56
            self.ln_stats_pivot(X, M2, SD2, RC2, 144)
            csrc = ['v6', 'v8', 'v14', 'v16']
            ssrc = ['v9', 'v10', 'v17', 'v18']
            for p in range(4):
                x = X + 2 * p
                a(f"v_pk_add_f32 v[{x}:{x+1}], v[{x}:{x+1}], v[{M2}:{M2+1}] neg_lo:[0,1] neg_hi:[0,1]")
            for p in range(4):
                self.pk_rnd(X + 2 * p, f'v{144+p}')
            for p in range(4):
                x, q = X + 2 * p, 148 + 2 * p
                a(f"v_pk_mul_f32 v[{q}:{q+1}], v[{x}:{x+1}], v[{RC2}:{RC2+1}]")
            for p in range(4):
                x, q = X + 2 * p, 148 + 2 * p
                a(f"v_pk_fma_f32 v[{x}:{x+1}], v[{q}:{q+1}], v[{SD2}:{SD2+1}], v[{x}:{x+1}] neg_lo:[1,0,0] neg_hi:[1,0,0]")
            for p in range(4):
                x, q = X + 2 * p, 148 + 2 * p
                a(f"v_pk_fma_f32 v[{x}:{x+1}], v[{x}:{x+1}], v[{RC2}:{RC2+1}], v[{q}:{q+1}]")
            for p in range(4):
                self.pk_rnd(X + 2 * p, f'v{144+p}')
            for p in range(4):
                q = 148 + 2 * p
                self.unpack(f'v{q}', f'v{q+1}', csrc[p])
            for p in range(4):
                x, q = X + 2 * p, 148 + 2 * p
                a(f"v_pk_mul_f32 v[{x}:{x+1}], v[{x}:{x+1}], v[{q}:{q+1}]")
            for p in range(4):
                q = 148 + 2 * p
                self.unpack(f'v{q}', f'v{q+1}', ssrc[p])
            for p in range(4):
                self.pk_rnd(X + 2 * p, f'v{144+p}')
            for p in range(4):
                x, q = X + 2 * p, 148 + 2 * p
                a(f"v_pk_add_f32 v[{x}:{x+1}], v[{x}:{x+1}], v[{q}:{q+1}]")
            for p in range(4):
                a(f"v_cvt_pk_bf16_f32 v{4+p}, v{X+2*p}, v{X+2*p+1}")
        a("""ds_write_b64 v45, v[4:5]
             ds_write_b64 v45, v[6:7] offset:512""")
        a.label(lw)
        a("""s_waitcnt lgkmcnt(0)
             s_barrier""")
        self.stamp(7)
        lg = self.lab('mg')
        a(f"""s_cmp_lt_u32 {sWAVE}, 4
              s_cbranch_scc0 {lg}""")
        self.gemv16(4, F, 'v38', 144)
        if o['GUMIX']:
            self.pk_rnd(4, 'v12')
            self.pk_rnd(6, 'v13')
            for r in range(4):
                a(f"v_mov_b32 v{8+r}, v{4+r}")
            for r in range(4):
                a(f"v_permlane32_swap_b32 v{4+r}, v{8+r}")
            for r in range(4):
                a(f"v_max_f32 v{4+r}, 0, v{4+r}")
            a("""v_pk_mul_f32 v[4:5], v[4:5], v[8:9]
                 v_pk_mul_f32 v[6:7], v[6:7], v[10:11]
                 v_cvt_pk_bf16_f32 v8, v4, v5
                 v_cvt_pk_bf16_f32 v9, v6, v7
                 s_mov_b32 exec_lo, 0x000f000f
                 s_mov_b32 exec_hi, 0
                 ds_write_b64 v46, v[8:9]
                 s_mov_b64 exec, -1""")
            a.label(lg)
            a("""s_waitcnt lgkmcnt(0)
                 s_barrier
                 ds_read_b128 v[16:19], v39
                 s_waitcnt lgkmcnt(0)""")
        else:
            a("""v_cvt_pk_bf16_f32 v8, v4, v5
                 v_cvt_pk_bf16_f32 v9, v6, v7
                 s_mov_b32 exec_lo, 0x000f000f
                 s_mov_b32 exec_hi, 0x000f000f
                 ds_write_b64 v46, v[8:9]
                 s_mov_b64 exec, -1""")
            a.label(lg)
            a("""s_waitcnt lgkmcnt(0)
                 s_barrier
                 ds_read_b128 v[4:7], v39
                 ds_read_b128 v[8:11], v39 offset:384
                 s_waitcnt lgkmcnt(0)""")
            for k in range(4):
                self.unpack(f'v{20+2*k}', f'v{21+2*k}', f'v{4+k}')
            for k in range(4):
                self.unpack(f'v{144+2*k}', f'v{145+2*k}', f'v{8+k}')
            for k in range(8):
                a(f"v_max_f32 v{20+k}, 0, v{20+k}")
            for k in range(4):
                a(f"v_pk_mul_f32 v[{20+2*k}:{21+2*k}], v[{20+2*k}:{21+2*k}], v[{144+2*k}:{145+2*k}]")
            for k in range(4):
                a(f"v_cvt_pk_bf16_f32 v{16+k}, v{20+2*k}, v{21+2*k}")
        D = [4, 8, 12, 20]
        for t in range(4):
            a(f"v_mfma_f32_16x16x32_bf16 v[{D[t]}:{D[t]+3}], v[{128+4*t}:{131+4*t}], v[16:19], 0")
        self.select_tiles(D)
        self.steal(4, 48)
        self.gstore(4, 'v47', 's63')
        self.stamp(8)
        self.stamps_out(16)
        a("s_endpgm")

        a.label("L_ROLE_GA")
        S = 131072
        self.srd(48, sC, 4096)
        self.dma_off_p128('v32', 6144, 'v1', 'v2')
        a(f"""s_lshl_b32 s59, {sWAVE}, 6
              s_mul_i32 s59, s59, 6144
              s_lshl_b32 s61, {sG}, 7
              s_add_u32 s59, s59, s61
              s_add_u32 s59, s59, 2048
              s_lshl_b32 s61, {sWAVE}, 13
              s_add_u32 s61, s61, {GATE}
              s_mov_b32 m0, s61
              s_barrier""")
        lc = self.lab('gc')
        a(f"""s_cmp_lt_u32 {sWAVE}, 4
              s_cbranch_scc0 {lc}
              s_lshl_b32 s61, {sWAVE}, 10
              v_lshlrev_b32 v1, 3, v0
              buffer_load_dwordx2 v[24:25], v1, {R2}, s61 offen
              buffer_load_dwordx2 v[26:27], v1, {R2}, s61 offen offset:512""")
        a.label(lc)
        self.dma_loop('v32', R1, 's59', 8 * 6144, 8, nt=o['MNT'])
        lc2 = self.lab('gc2')
        a(f"""s_cmp_lt_u32 {sWAVE}, 4
              s_cbranch_scc0 {lc2}
              s_waitcnt vmcnt(8)""")
        self.perm_pos_bytes('v5', 'v0', 'v6')
        a(f"""s_mul_i32 s61, {sWAVE}, 1056
              s_add_u32 s61, s61, {S}
              v_add_u32 v5, s61, v5""")
        for hf in range(2):
            self.unpack('v8', 'v9', f'v{24+2*hf}')
            self.unpack('v10', 'v11', f'v{25+2*hf}')
            self.silu4(8, 12)
            a(f"""v_cvt_pk_bf16_f32 v8, v8, v9
                  v_cvt_pk_bf16_f32 v9, v10, v11
                  ds_write_b64 v5, v[8:9] offset:{512*hf}""")
        a.label(lc2)
        a(f"s_lshl_b32 s61, {sWAVE}, 5")
        self.tr_addr_p128('v33', 's61', GATE, 'v1', 'v2')
        self.act_addr('v35', S, 1056, 'v1')
        a(f"""v_lshrrev_b32 v1, 5, v0
              v_lshlrev_b32 v36, 10, v1
              v_bfe_u32 v1, v0, 2, 1
              v_lshl_add_u32 v36, v1, 7, v36
              v_and_b32 v1, 3, v0
              v_lshl_add_u32 v36, v1, 5, v36
              v_bfe_u32 v1, v0, 4, 1
              v_lshl_add_u32 v36, v1, 4, v36
              s_lshl_b32 s59, {sG}, 13
              s_lshl_b32 s61, {sWAVE}, 11
              s_add_u32 s59, s59, s61
              s_add_u32 s59, s59, {WS_ML}""")
        self.sel_consts()
        self.tagbytes(28)
        a("""s_waitcnt vmcnt(0) lgkmcnt(0)
             s_barrier""")
        le = self.lab('ge')
        a(f"""s_cmp_lt_u32 {sWAVE}, 4
              s_cbranch_scc0 {le}""")
        for s in range(16):
            for h in range(2):
                q = F + 4 * s + 2 * h
                a(f"ds_read_b64_tr_b16 v[{q}:{q+1}], v33 offset:{4096*s+2048*h}")
            if s in (6, 13):
                a("s_waitcnt lgkmcnt(0)")
        a("s_waitcnt lgkmcnt(0)")
        self.gemv16(4, F, 'v35', 144)
        a("""s_mov_b32 exec_lo, 0x00f000f0
             s_mov_b32 exec_hi, 0x00f000f0""")
        for r in range(4):
            a(f"v_mov_b32 v{4+r}, 0")
        a("""s_mov_b32 exec_lo, 0x00ff00ff
             s_mov_b32 exec_hi, 0x00ff00ff""")
        self.steal(4, 28)
        self.gstore(4, 'v36', 's59')
        a("s_mov_b64 exec, -1")
        a.label(le)
        self.stamp(5)
        self.stamps_out(16)
        a("s_endpgm")

    def ent_w(self):
        a = self.a
        o = self.o
        a.label("L_ENT_W")
        self.role = 'W'
        a(f"s_sub_u32 s56, {sJ}, 8")
        if o.get('ISWZ'):
            a(f"s_xor_b32 s56, s56, {o['ISWZ']}")
        self.dma_off_p128('v32', 8192, 'v1', 'v2')
        a(f"""s_lshl_b32 s59, {sWAVE}, 19
              s_lshl_b32 s61, {sG}, 10
              s_add_u32 s59, s59, s61
              s_lshl_b32 s61, s56, 7
              s_add_u32 s59, s59, s61
              s_lshl_b32 s61, {sWAVE}, 13
              s_mov_b32 m0, s61""")
        self.kwait(ws=False)
        self.srd(44, sWQ, 512 * 8192)
        if o['WWAIT'] == 1:
            a("s_waitcnt lgkmcnt(0)")
        if o['WWAIT'] == 2:
            lw = self.lab('ww')
            a(f"""s_cmp_eq_u32 s56, 3
                  s_cbranch_scc1 {lw}
                  s_waitcnt lgkmcnt(0)""")
            a.label(lw)
        if o['WSLEEP']:
            a(f"s_sleep {o['WSLEEP']}")
        self.stamp(15)
        self.only_exit('W', pre=True)
        self.dma_loop('v32', R1, 's59', 8 * 8192, 8, win=o['WWIN'], nt=o['WNT'])
        a("s_branch L_ROLE_W")

    def role_w(self):
        a = self.a
        o = self.o
        WQ, WO, H, O = 0, 65536, 131072, 135296
        F = 64
        a.label("L_ROLE_W")
        self.role = 'W'
        self.srd(40, sWS, WS_SIZE)
        self.only_exit('W')
        self.w_setup1(H, O, WQ, WO)
        if o['IOX']:
            a(f"s_xor_b32 s56, s56, {o['IOX']}")
        self.srd(52, sX, 4096)
        a(f"""v_bfe_u32 v1, v0, 1, 2
              v_lshlrev_b32 v1, 10, v1
              v_and_b32 v2, 1, v0
              v_lshl_add_u32 v1, v2, 3, v1
              v_lshrrev_b32 v2, 4, v0
              v_lshl_add_u32 v1, v2, 1, v1
              s_lshl_b32 s61, s56, 7
              s_lshl_b32 s62, {sWAVE}, 4
              s_add_u32 s61, s61, s62
              buffer_load_ushort v60, v1, {R3}, s61 offen""")
        self.srd(44, sWO, 4096 * 1024)
        self.dma_off_p128('v32', 1024, 'v1', 'v2')
        a(f"""s_lshl_b32 s59, {sG}, 9
              s_lshl_b32 s61, {sWAVE}, 6
              s_add_u32 s59, s59, s61
              s_lshl_b32 s59, s59, 10
              s_lshl_b32 s61, s56, 7
              s_add_u32 s59, s59, s61
              s_lshl_b32 s67, {sWAVE}, 13
              s_add_u32 s67, s67, {WO}""")
        if o['WO1']:
            a("s_mov_b32 m0, s67")
            self.dma_loop('v32', R1, 's59', 8 * 1024, o['WO1'], nt=o['WNT'])
            a(f"s_add_u32 s67, s67, {1024 * o['WO1']}")
        a("s_mov_b32 s89, 8")
        if o['WO3']:
            l3 = self.lab('wo3')
            a(f"""s_cmp_eq_u32 s56, 3
                  s_cbranch_scc0 {l3}
                  s_mov_b32 m0, s67""")
            self.dma_loop('v32', R1, 's59', 8 * 1024, o['WO3'], nt=o['WNT'])
            a(f"""s_add_u32 s67, s67, {1024 * o['WO3']}
                  s_mov_b32 s89, {8 - o['WO3']}""")
            a.label(l3)
        self.tag_ready()
        self.x_publish(False)
        self.stamp(1)
        lw1 = self.lab('w1')

        def first():
            self.stamp(2)
            self.x_load()
            a("s_barrier")
            a(f"""s_cmp_lt_u32 {sWAVE}, 4
                  s_cbranch_scc0 {lw1}""")
            for s in range(16):
                for h in range(2):
                    q = F + 4 * s + 2 * h
                    a(f"ds_read_b64_tr_b16 v[{q}:{q+1}], v36 offset:{4096*s+2048*h}")
                if s in (6, 10):
                    a("s_waitcnt lgkmcnt(6)")
            a.label(lw1)
        if o['PIPE_A2']:
            okA = self.lab('a2first')
            a(self.gload(4, 'v33', 's58'))
            a("s_waitcnt vmcnt(0)")
            first()
            self.check_tags(['v6'], okA)
            NS = o['PIPE_A2']

            def takeA(k):
                a(f"""v_mov_b32 v4, v{192+4*k}
                      v_mov_b32 v5, v{193+4*k}""")
            self.poll_pipe('A2', NS, lambda k: [self.gload(192 + 4 * k, 'v33', 's58')],
                           lambda k, ok: self.check_tags([f'v{194+4*k}'], ok), takeA, o['SLP_A2'])
            a.label(okA)
        else:
            self.poll('A2', [self.gload(4, 'v33', 's58')],
                      lambda ok: self.check_tags(['v6'], ok), first_extra=first)
        a("""ds_write_b64 v34, v[4:5]
             s_waitcnt lgkmcnt(0)
             s_barrier""")
        self.stamp(3)
        lq = self.lab('wqskip')
        a(f"""s_mov_b32 m0, s67
              s_cmp_lt_u32 {sWAVE}, 4
              s_cbranch_scc0 {lq}""")
        self.gemv16(4, F, 'v38', 128)
        a(f"""v_cvt_pk_bf16_f32 v8, v4, v5
              v_cvt_pk_bf16_f32 v9, v6, v7
              v_mov_b32 v10, {sTAG}
              v_mov_b32 v11, 0
              s_mov_b32 exec_lo, 0x000f000f
              s_mov_b32 exec_hi, 0x000f000f""")
        self.st_local(8, 'v40', 's57')
        a("s_mov_b64 exec, -1")
        a.label(lq)
        a("s_barrier")
        if o['XFLAG']:
            a("s_waitcnt vmcnt(1)")
            self.x_flag()
        self.stamp(4)
        lq3 = self.lab('wq3')
        a(f"""s_cmp_lt_u32 {sWAVE}, 4
              s_cbranch_scc0 {lq3}
              s_mov_b32 exec_lo, 0x000f000f
              s_mov_b32 exec_hi, 0x000f000f""")
        self.st_global(8, 'v40', 's57', flag=True)
        a("s_mov_b64 exec, -1")
        a.label(lq3)
        if o['WO3']:
            self.dma_loop('v32', R1, 's59', 8 * 1024, 's89', nt=o['WNT'])
        elif o['WO1'] < 8:
            self.dma_loop('v32', R1, 's59', 8 * 1024, 8 - o['WO1'], nt=o['WNT'])
        a(f"""s_lshl_b32 s58, {sG}, 13
              s_add_u32 s58, s58, {WS_C}
              v_lshrrev_b32 v1, 5, v0
              v_lshlrev_b32 v41, {11 if o['WOSPLIT'] else 10}, v1
              v_and_b32 v1, 3, v0
              v_lshl_add_u32 v41, v1, 5, v41
              v_bfe_u32 v1, v0, 4, 1
              v_lshl_add_u32 v41, v1, 4, v41
              s_lshl_b32 s57, s56, {14 if o['WOSPLIT'] else 13}
              s_and_b32 s61, {sWAVE}, 3
              s_lshl_b32 s61, s61, {12 if o['WOSPLIT'] else 11}
              s_add_u32 s57, s57, s61
              s_lshr_b32 s61, {sWAVE}, 2
              s_lshl_b32 s61, s61, 10
              s_add_u32 s57, s57, s61
              s_lshl_b32 s61, {sG}, 7
              s_add_u32 s57, s57, s61
              s_add_u32 s57, s57, {WS_C2B if o['WOSPLIT'] else WS_C2}
              v_lshlrev_b32 v42, 4, v0
              s_lshl_b32 s62, s56, 3
              s_add_u32 s62, s62, {sWAVE}
              s_lshl_b32 s63, s62, 10
              s_add_u32 s63, s63, {WS_ML}
              s_lshl_b32 s62, s62, {11 if o['WOSPLIT'] else 10}
              s_add_u32 s62, s62, {WS_C2B if o['WOSPLIT'] else WS_C2}
              ; D publish: ((g*4 + b)*2 + u)*2048 + Q*16, Q = 16i + 2w + q
              v_bfe_u32 v1, v0, 1, 2
              v_lshlrev_b32 v43, 12, v1
              v_and_b32 v1, 1, v0
              v_lshl_add_u32 v43, v1, 4, v43
              s_lshl_b32 s66, {sG}, 14
              s_lshl_b32 s61, s56, 8
              s_add_u32 s66, s66, s61
              s_lshl_b32 s61, {sWAVE}, 5
              s_add_u32 s66, s66, s61
              s_add_u32 s66, s66, {WS_D}
              v_bfe_u32 v1, v0, 1, 2
              v_lshlrev_b32 v61, 10, v1
              v_and_b32 v2, 1, v0
              v_lshl_add_u32 v61, v2, 3, v61
              v_lshrrev_b32 v2, 4, v0
              v_lshl_add_u32 v61, v2, 1, v61
              s_lshl_b32 s68, s56, 7
              s_lshl_b32 s61, {sG}, 4
              s_add_u32 s68, s68, s61
              s_lshl_b32 s69, s56, 3
              s_add_u32 s69, s69, {sG}
              s_mul_i32 s69, s69, {56*128}
              s_add_u32 s69, s69, {WS_E}""")
        if o['TOUCH']:
            a(self.gload(4, 'v42', 's62'))
            a(self.gload(8, 'v42', 's63'))
            lt1 = self.lab('wt1')
            a(f"""s_cmp_eq_u32 {sWAVE}, {sG}
                  s_cbranch_scc0 {lt1}
                  s_add_u32 s61, s69, 4096""")
            for m in range(0 if o.get('NOETOUCH') else 7):
                a(self.gload(64 + 4 * m, 'v42', 's69' if m < 4 else 's61', 1024 * (m & 3)))
            a.label(lt1)
        self.srd(48, sOUT, 4096)
        self.sel_consts()
        self.tagbytes(48)
        a("v_lshlrev_b32 v60, 16, v60")
        lw2 = self.lab('w2')

        def first2():
            self.stamp(5)
            a("s_barrier")
            if o['WOSPLIT']:
                for s in range(8):
                    for h in range(2):
                        q = F + 4 * s + 2 * h
                        a(f"ds_read_b64_tr_b16 v[{q}:{q+1}], v37 offset:{4096*s+2048*h}")
                    if s == 6:
                        a("s_waitcnt lgkmcnt(6)")
                return
            a(f"""s_cmp_lt_u32 {sWAVE}, 4
                  s_cbranch_scc0 {lw2}""")
            for s in range(16):
                for h in range(2):
                    q = F + 4 * s + 2 * h
                    a(f"ds_read_b64_tr_b16 v[{q}:{q+1}], v37 offset:{4096*s+2048*h}")
                if s in (6, 10):
                    a("s_waitcnt lgkmcnt(6)")
            a.label(lw2)
        if o['WOSPLIT']:
            a(f"""s_lshr_b32 s61, {sWAVE}, 2
                  s_lshl_b32 s39, s61, 15
                  v_add_u32 v37, s39, v37
                  s_lshl_b32 s39, s61, 9
                  v_add_u32 v39, s39, v39""")
        self.poll('C', [self.gload(4, 'v33', 's58')], lambda ok: self.check_tags(['v6'], ok), first_extra=first2, local=['s58'])
        a("""ds_write_b64 v35, v[4:5]
             s_waitcnt lgkmcnt(0)
             s_barrier""")
        self.stamp(6)
        lo = self.lab('wo')
        if o['WOSPLIT']:
            for s_ in range(8):
                a(f"ds_read_b128 v[{128+4*s_}:{131+4*s_}], v39 offset:{64*s_}")
            for s_ in range(8):
                a(f"s_waitcnt lgkmcnt({7-s_})")
                c = "0" if s_ == 0 else "v[4:7]"
                a(f"v_mfma_f32_16x16x32_bf16 v[4:7], v[{F+4*s_}:{F+4*s_+3}], v[{128+4*s_}:{131+4*s_}], {c}")
        else:
            a(f"""s_cmp_lt_u32 {sWAVE}, 4
                  s_cbranch_scc0 {lo}""")
            self.gemv16(4, F, 'v39', 128)
        self.steal(4, 48)
        a("""s_mov_b32 exec_lo, 0x000f000f
             s_mov_b32 exec_hi, 0x000f000f""")
        self.gstore(4, 'v41', 's57')
        a("s_mov_b64 exec, -1")
        a.label(lo)
        self.stamp(7)

        def stolen_check(q):
            def chk(ok):
                self.stolen_tag(q, 'v12', 'v13')
                self.check_tags(['v12'], ok)
            return chk
        self.poll('ML', [self.gload(4, 'v42', 's63')] + ([self.gload(28, 'v42', 's62')] if o['MLTOUCH'] else []), stolen_check(4))
        if o['C2EARLY']:
            a(self.gload(24, 'v42', 's62'))
            if o['WOSPLIT']:
                a(self.gload(28, 'v42', 's62', 1024))
        for r in range(4):
            a(f"v_and_b32 v{4+r}, 0xffffff00, v{4+r}")
        for r in range(4):
            a(f"v_add_f32_dpp v{4+r}, v{4+r}, v{4+r} row_ror:8 row_mask:0xf bank_mask:0xf")
        self.pk_rnd(4, 'v12')
        self.pk_rnd(6, 'v13')
        a("""s_mov_b32 exec_lo, 0
             s_mov_b32 exec_hi, 0x0000ffff""")
        for r in range(4):
            a(f"v_add_f32 v{4+r}, 1.0, v{4+r}")
        self.pk_rnd(4, 'v12')
        self.pk_rnd(6, 'v13')
        a("s_mov_b64 exec, -1")
        a("""v_cvt_pk_bf16_f32 v8, v4, v5
             v_cvt_pk_bf16_f32 v9, v6, v7
             v_mov_b32 v16, 0
             v_mov_b32 v17, 0
             v_mov_b32 v18, 0
             v_mov_b32 v19, 0
             v_mov_b32 v10, v8
             v_mov_b32 v11, v9
             v_mov_b32 v14, v8
             v_mov_b32 v15, v9
             v_permlane32_swap_b32 v10, v16
             v_permlane32_swap_b32 v11, v17
             v_permlane16_swap_b32 v14, v18
             v_permlane16_swap_b32 v15, v19""")
        a(f"""v_mov_b32 v58, v16
              v_mov_b32 v20, v17
              v_mov_b32 v21, v18
              v_mov_b32 v22, v19
              v_mov_b32 v23, {sTAG}
              s_mov_b64 exec, 0xff""")
        self.st_local(20, 'v43', 's66', 2048)
        self.st_global(20, 'v43', 's66', 2048, flag=True)
        a("s_mov_b64 exec, -1")
        a("""v_permlane16_swap_b32 v4, v5
             v_permlane16_swap_b32 v6, v7
             v_permlane32_swap_b32 v4, v6
             v_permlane32_swap_b32 v5, v7
             v_mov_b32 v56, v4
             v_mov_b32 v57, v7""")
        self.stamp(8)
        okc = self.lab('c2first')
        lc2 = self.lab('c2got')
        nst = 2 if (o['LOCAL'] and not o.get('NOGLOBAL') and not o['XFLAG']) else 1
        if o['WOSPLIT']:
            def chk2(q0, q1):
                def chk(ok):
                    self.stolen_tag(q0, 'v12', 'v13')
                    self.stolen_tag(q1, 'v14', 'v13')
                    self.check_tags(['v12', 'v14'], ok)
                return chk
            if o['C2EARLY']:
                a(f"s_waitcnt vmcnt({nst})")
                chk2(24, 28)(okc)
            self.poll('C2', [self.gload(4, 'v42', 's62'), self.gload(8, 'v42', 's62', 1024)], chk2(4, 8))
            a(f"s_branch {lc2}")
            a.label(okc)
            for r in range(8):
                a(f"v_mov_b32 v{4+r}, v{24+r}")
            a.label(lc2)
            for r in range(8):
                a(f"v_and_b32 v{4+r}, 0xffffff00, v{4+r}")
            a("""v_pk_add_f32 v[4:5], v[4:5], v[8:9]
                 v_pk_add_f32 v[6:7], v[6:7], v[10:11]""")
        else:
            if o['C2EARLY']:
                a(f"s_waitcnt vmcnt({nst})")
                self.stolen_tag(24, 'v12', 'v13')
                self.check_tags(['v12'], okc)
            self.poll('C2', [self.gload(4, 'v42', 's62')], stolen_check(4))
            a(f"s_branch {lc2}")
            a.label(okc)
            for r in range(4):
                a(f"v_mov_b32 v{4+r}, v{24+r}")
            a.label(lc2)
            for r in range(4):
                a(f"v_and_b32 v{4+r}, 0xffffff00, v{4+r}")
        self.stamp(9)
        self.red_rows(4)
        if o['FASTX']:
            a("v_fma_f32 v4, v56, v4, v60")
        else:
            self.rnd('v4', 'v4')
            a("v_mul_f32 v4, v56, v4")
            self.rnd('v4', 'v4')
            a("v_add_f32 v4, v60, v4")
        self.rnd('v59', 'v4')
        a(f"""v_mov_b32 v10, v58
              v_mov_b32 v11, {sTAG}""")
        self.rows_to_quad('v8', 'v9', 'v59', 'v12')
        a("s_mov_b64 exec, 0xff")
        self.st_local(8, 'v43', 's66')
        self.stamp(10)
        a("s_barrier")
        self.st_global(8, 'v43', 's66', flag=True)
        a("s_mov_b64 exec, -1")
        end = self.lab('wend')
        a(f"""s_cmp_eq_u32 {sWAVE}, {sG}
              s_cbranch_scc0 {end}
              s_add_u32 s61, s69, 4096""")
        if o.get('ESLEEP'):
            a(f"s_sleep {o['ESLEEP']}")
        loads = []
        for m in range(7):
            if m < 4:
                loads.append(self.gload(64 + 4 * m, 'v42', 's69', 1024 * m))
            else:
                loads.append(self.gload(64 + 4 * m, 'v42', 's61', 1024 * (m - 4)))

        def echk(ok):
            for m in range(7):
                self.stolen_tag(64 + 4 * m, f'v{12+m}', 'v20')
            self.check_tags([f'v{12+m}' for m in range(7)], ok)
        if o['PIPE_E']:
            def loadE(k):
                b = 64 + 28 * k
                return [self.gload(b + 4 * m, 'v42', 's69' if m < 4 else 's61', 1024 * (m & 3)) for m in range(7)]

            def chkE(k, ok):
                b = 64 + 28 * k
                for m in range(7):
                    self.stolen_tag(b + 4 * m, f'v{12+m}', 'v20')
                self.check_tags([f'v{12+m}' for m in range(7)], ok)

            def takeE(k):
                for r in range(28):
                    a(f"v_and_b32 v{160+r}, 0xffffff00, v{64+28*k+r}")
            self.poll_pipe('E', o['PIPE_E'], loadE, chkE, takeE, o['SLP_E'])
            EB = 160
        else:
            self.poll('E', loads, echk)
            EB = 64
            for m in range(7):
                for r in range(4):
                    a(f"v_and_b32 v{64+4*m+r}, 0xffffff00, v{64+4*m+r}")
        self.stamp(11)
        def pk(d, s_):
            a(f"v_pk_add_f32 v[{d}:{d+1}], v[{d}:{d+1}], v[{s_}:{s_+1}]")
        for d, s_ in ((0, 4), (8, 12), (16, 20), (0, 8), (16, 24), (0, 16)):
            pk(EB + d, EB + s_)
            pk(EB + d + 2, EB + s_ + 2)
        self.red_rows(EB)
        e = f"v{EB}"
        if o['FASTX']:
            a(f"v_fma_f32 {e}, v57, {e}, v59")
        else:
            self.rnd(e, e)
            a(f"v_mul_f32 {e}, v57, {e}")
            self.rnd(e, e)
            a(f"v_add_f32 {e}, v59, {e}")
        a(f"""v_cvt_pk_bf16_f32 {e}, {e}, {e}
              s_mov_b32 exec_lo, 0x00ff00ff
              s_mov_b32 exec_hi, 0x00ff00ff
              buffer_store_short {e}, v61, {R2}, s68 offen{' sc0 sc1' if o.get('OUTSC') else ''}
              s_mov_b64 exec, -1""")
        noep = self.lab('noep')
        a(f"""s_cmp_eq_u32 s2, 64
              s_cbranch_scc0 {noep}
              v_mov_b32 v1, 0
              v_mov_b32 v2, {sTAG}
              s_mov_b64 exec, 1
              buffer_store_dword v2, v1, {WSR}, 0 offen offset:{WS_EPOCH}
              s_mov_b64 exec, -1""")
        a.label(noep)
        self.stamp(12)
        a.label(end)
        self.stamps_out(16)
        a("s_endpgm")

    def w_setup1(self, H, O, WQ, WO):
        a = self.a
        a(f"""s_lshl_b32 s61, {sWAVE}, 6
              v_add_u32 v1, s61, v0
              v_lshlrev_b32 v33, 4, v1
              v_lshrrev_b32 v2, 3, v1
              v_lshlrev_b32 v2, 1, v2
              v_and_b32 v3, 1, v1
              v_add_u32 v2, v2, v3""")
        self.perm_pos_bytes('v34', 'v2', 'v3')
        a(f"""v_bfe_u32 v3, v1, 1, 2
              v_mul_u32_u24 v3, 1056, v3
              v_add_u32 v34, v34, v3
              v_add_u32 v34, {H}, v34""")
        a(f"""v_bfe_u32 v2, v1, 4, 2
              v_lshlrev_b32 v2, 5, v2
              v_bfe_u32 v3, v1, 6, 1
              v_lshl_add_u32 v2, v3, 4, v2
              v_and_b32 v3, 15, v1
              v_add_u32 v2, v2, v3""")
        self.perm_pos_bytes('v35', 'v2', 'v3')
        a(f"""v_lshrrev_b32 v3, 7, v1
              v_mul_u32_u24 v3, 1056, v3
              v_add_u32 v35, v35, v3
              v_add_u32 v35, {O}, v35""")
        a(f"""s_and_b32 s61, {sWAVE}, 3
              s_lshl_b32 s61, s61, 5""")
        self.tr_addr_p128('v36', 's61', WQ, 'v1', 'v2')
        a(f"v_add_u32 v37, {WO-WQ}, v36")
        self.act_addr('v38', H, 1056, 'v1')
        a(f"v_add_u32 v39, {O-H}, v38")
        a(f"""v_and_b32 v1, 3, v0
              v_lshlrev_b32 v40, 6, v1
              v_lshrrev_b32 v1, 4, v0
              v_lshl_add_u32 v40, v1, 4, v40
              s_lshl_b32 s57, {sG}, 3
              s_add_u32 s57, s57, s56
              s_lshl_b32 s57, s57, 2
              s_add_u32 s57, s57, {sWAVE}
              s_lshl_b32 s57, s57, 8
              s_add_u32 s57, s57, {WS_B}
              s_mov_b32 s58, {WS_A2}""")

    def build(self):
        self.prologue()
        self.role_m()
        self.role_w()
        self.role_k()
        self.role_v()
        self.a.label("L_END")
        self.a("s_endpgm")
        body = self.a.finalize()
        vg = 256 if self.o['PROF'] else 216
        hdr = HEADER.format(lds=LDS_BYTES)
        return hdr + f""".amdgcn_target "amdgcn-amd-amdhsa--gfx950"
.text
.globl {NAME}
.p2align 8
.type {NAME},@function
{NAME}:
{body}.section .rodata,"a"
.p2align 6
.amdhsa_kernel {NAME}
  .amdhsa_next_free_vgpr {vg}
  .amdhsa_next_free_sgpr 102
  .amdhsa_accum_offset {vg}
  .amdhsa_group_segment_fixed_size 0
  .amdhsa_kernarg_size 112
  .amdhsa_user_sgpr_count 2
  .amdhsa_user_sgpr_kernarg_segment_ptr 1
  .amdhsa_system_sgpr_workgroup_id_x 1
.end_amdhsa_kernel
"""


if __name__ == '__main__':
    opt = {}
    out = None
    for arg in sys.argv[1:]:
        if '=' in arg:
            k, v = arg.split('=', 1)
            opt[k] = int(v) if v.lstrip('-').isdigit() else v
        else:
            out = arg
    g = Gen6(opt)
    txt = g.build()
    if out:
        open(out, 'w').write(txt)
    else:
        sys.stdout.write(txt)
    sys.stderr.write(f"instructions: {g.a.count()}\n")
```
